```python
import torch

def _softmax(x, axis=-1):
    return torch.softmax(x, dim=axis)
def _gelu(x):
    return torch.nn.functional.gelu(x, approximate="tanh")
def _silu(x):
    return torch.nn.functional.silu(x)
def _sigmoid(x):
    return torch.sigmoid(x)
def _layernorm(x, axis=-1, eps=1e-5):
    m = x.mean(dim=axis, keepdim=True)
    v = x.var(dim=axis, keepdim=True, unbiased=False)
    return (x - m) / torch.sqrt(v + eps)
def _scatter_add(tgt, idx, src, axis=0):
    return tgt.clone().index_add_(axis, idx, src)
def _segment_sum(src, seg, n):
    out = torch.zeros((n,) + src.shape[1:], dtype=src.dtype)
    return out.index_add_(0, seg, src)
def _pad(x, pw):
    flat = tuple(v for pair in reversed(pw) for v in pair)
    return torch.nn.functional.pad(x, flat)

kernel_name = 'gated_mix__sliding_block__ssm_conv_h3__prompt'

def setup_inputs():

    _w = (lambda a: (lambda t: t.to(torch.bfloat16) if t.is_floating_point() else t)(torch.as_tensor(a)))
    def _A_setup():
        B, S, D = 1, 2048, 576
        return {
            "x": _w((lambda *s: torch.randn(*s, dtype=torch.bfloat16) * 0.05)(B, S, D)),
            "wqkv": _w((lambda *s: torch.randn(*s, dtype=torch.bfloat16) * 0.8)(D, 3 * D)),
            "wo": _w((lambda *s: torch.randn(*s, dtype=torch.bfloat16) * 0.05)(D, D)),
        }
    _A_in = _A_setup()

    def _B_setup():
        B, S, D = 1, 2048, 576
        ks = 4
        return {
            "q": _w((lambda *s: torch.randn(*s, dtype=torch.bfloat16) * 0.05)(B, S, D)),
            "k": _w((lambda *s: torch.randn(*s, dtype=torch.bfloat16) * 0.8)(B, S, D)),
            "v": _w((lambda *s: torch.randn(*s, dtype=torch.bfloat16) * 0.8)(B, S, D)),
            "shift_k": _w((lambda *s: torch.randn(*s, dtype=torch.bfloat16) * 0.8)(D, ks) * 0.5),
            "ssm_k": _w((lambda *s: torch.randn(*s, dtype=torch.bfloat16) * 1.6)(D, S) * (1.0 / S ** 0.5)),
            "ssm_D": _w((lambda *s: torch.randn(*s, dtype=torch.bfloat16) * 0.8)(D)),
        }
    _B_in = _B_setup()

    return {
        "A_x": _A_in["x"],
        "A_wqkv": _A_in["wqkv"],
        "A_wo": _A_in["wo"],
        "B_q": _B_in["q"],
        "B_k": _B_in["k"],
        "B_v": _B_in["v"],
        "B_shift_k": _B_in["shift_k"],
        "B_ssm_k": _B_in["ssm_k"],
        "B_ssm_D": _B_in["ssm_D"],
        "gate_w": _w((lambda *s: torch.randn(*s, dtype=torch.bfloat16) * 0.05)(576) * 16.0),
    }

def reference(A_x, A_wqkv, A_wo, B_q, B_k, B_v, B_shift_k, B_ssm_k, B_ssm_D, gate_w):
    def _A_ref(x, wqkv, wo):
        B, S, D = x.shape
        H = 32; Dh = D // H; W = 256
        qkv = (lambda x, *d: x.permute(*d))((x @ wqkv).reshape(B, S, 3, H, Dh), 2, 0, 3, 1, 4)
        q, k, v = qkv[0], qkv[1], qkv[2]
        scores = torch.einsum("bhqd,bhkd->bhqk", q, k) * (Dh ** -0.5)
        idx = torch.arange(S)
        mask = (idx[:, None] - idx[None, :] >= 0) & (idx[:, None] - idx[None, :] < W)
        scores = torch.where(mask[None, None], scores, -1e9)
        p = _softmax(scores, axis=-1)
        o = torch.einsum("bhqk,bhkd->bhqd", p, v)
        return (lambda x, *d: x.permute(*d))(o, 0, 2, 1, 3).reshape(B, S, D) @ wo

    def _B_ref(q, k, v, shift_k, ssm_k, ssm_D):
        B, S, D = q.shape
        ks = shift_k.shape[-1]
        k_pad = _pad(k, ((0, 0), (ks - 1, 0), (0, 0)))
        k_shift = torch.zeros_like(k)
        for t in range(ks):
            k_shift = k_shift + k_pad[:, t:t + S, :] * shift_k[:, ks - 1 - t][None, None, :]
        kv = k_shift * v
        L = 2 * S
        kv_pad = _pad(kv, ((0, 0), (0, S), (0, 0)))
        kf_pad = _pad(ssm_k, ((0, 0), (0, S)))
        kv_f = (lambda x, axes=(-2,-1): torch.fft.rfft2(x.float(), dim=axes))(kv_pad[:, None, :, :], axes=(1, 2))
        kf_f = (lambda x, axes=(-2,-1): torch.fft.rfft2(x.float(), dim=axes))(kf_pad[:, None, :], axes=(1, 2))
        kf_f = (lambda x, *d: x.permute(*d))(kf_f, 1, 2, 0)
        y_f = kv_f * kf_f[None, :, :, :]
        y = (lambda x, s, axes=(-2,-1): torch.fft.irfft2(x, s=s, dim=axes).to(torch.bfloat16))(y_f, (1, L), axes=(1, 2))[:, 0, :S, :]
        y = y + kv * ssm_D[None, None, :]
        return q * y

    x = A_x
    g = _sigmoid((x * gate_w).sum(-1, keepdims=True))
    a = _A_ref(x, A_wqkv, A_wo)
    b = _B_ref(x, B_k, B_v, B_shift_k, B_ssm_k, B_ssm_D)
    return g * a + (1 - g) * b
```

```python
class Asm:
    def __init__(self):
        self.lines = []
        self.lgkm = []
        self.vm = []
        self.uid = 0
    def e(self, s):
        self.lines.append("    " + s)
    def c(self, s):
        self.lines.append("    ; " + s)
    def label(self, s):
        self.lines.append(s + ":")
    def raw(self, s):
        self.lines.append(s)
    def newlabel(self, base):
        self.uid += 1
        return f"{base}_{self.uid}"
    def lds(self, s, tag=None):
        self.e(s); self.lgkm.append(tag)
    def vmem(self, s, tag=None):
        self.e(s); self.vm.append(tag)
        assert len(self.vm) <= 63, "too many VMEM outstanding"
    def wait_lds(self, tag=None):
        if tag is None:
            n = 0
        else:
            idx = [i for i, t in enumerate(self.lgkm) if t == tag]
            if not idx: return
            n = len(self.lgkm) - 1 - idx[-1]
        n_emit = min(n, 15)
        self.e(f"s_waitcnt lgkmcnt({n_emit})")
        self.lgkm = self.lgkm[len(self.lgkm) - n_emit:] if n_emit else []
    def wait_vm(self, tag=None):
        if tag is None:
            n = 0
        else:
            idx = [i for i, t in enumerate(self.vm) if t == tag]
            if not idx: return
            n = len(self.vm) - 1 - idx[-1]
        self.e(f"s_waitcnt vmcnt({n})")
        self.vm = self.vm[len(self.vm) - n:] if n else []
    def reset_counters(self):
        self.lgkm = []; self.vm = []
    def text(self):
        return "\n".join(self.lines) + "\n"

def v(b, n=1):
    return f"v{b}" if n == 1 else f"v[{b}:{b+n-1}]"
def s(b, n=1):
    return f"s{b}" if n == 1 else f"s[{b}:{b+n-1}]"

def srd(a, d, base, nbytes, add=0):
    if add:
        a.e(f"s_add_u32 s{d}, s{base}, {add}")
        a.e(f"s_addc_u32 s{d+1}, s{base+1}, 0")
    else:
        a.e(f"s_mov_b32 s{d}, s{base}")
        a.e(f"s_mov_b32 s{d+1}, s{base+1}")
    a.e(f"s_mov_b32 s{d+2}, {nbytes}")
    a.e(f"s_mov_b32 s{d+3}, 0x00020000")

def kernel_head(a, name):
    a.raw(f".globl {name}")
    a.raw(".p2align 8")
    a.raw(f".type {name},@function")
    a.label(name)
    a.reset_counters()

def kernel_desc(name, vgpr, sgpr=102, accum=None):
    if accum is None: accum = (vgpr + 3) // 4 * 4
    return f""".p2align 6
.amdhsa_kernel {name}
  .amdhsa_next_free_vgpr {vgpr}
  .amdhsa_next_free_sgpr {sgpr}
  .amdhsa_accum_offset {accum}
  .amdhsa_group_segment_fixed_size 0
  .amdhsa_kernarg_size 104
  .amdhsa_user_sgpr_count 2
  .amdhsa_user_sgpr_kernarg_segment_ptr 1
  .amdhsa_system_sgpr_workgroup_id_x 1
  .amdhsa_float_denorm_mode_32 3
.end_amdhsa_kernel
"""

def setexec(a, mask):
    a.e(f"s_mov_b32 exec_lo, 0x{mask & 0xffffffff:x}")
    a.e(f"s_mov_b32 exec_hi, 0x{mask >> 32:x}")
```

```python
import sys, struct
from asmlib import *

NAME = "gated_mix__sliding_block__ssm_conv_h3__prompt"
WS_QKV = 0
WS_U = 8 << 20
WS_G = 11 << 20
WS_O = 12 << 20
WS_Z = 15 << 20
WS_TOTAL = 18 << 20
SZ = 2048 * 576 * 2
def f32(x): return "0x%08x" % struct.unpack("<I", struct.pack("<f", x))[0]
QSCALE = 18 ** -0.5 * 1.4426950408889634

def rnd(a, dst, src):
    a.e(f"v_cvt_pk_bf16_f32 v{dst}, 0, v{src}")

K1_CNT = 0
K1_PREP = 64
K1_W = K1_PREP + 32 * 288
K1_LDS = K1_W + 138240 + 64

def gen_k1(a):
    kernel_head(a, "k1_kernel")
    a.e("s_cmp_ge_u32 s2, 256")
    a.e("s_cbranch_scc1 k1_end")
    a.e("s_load_dwordx4 s[4:7], s[0:1], 0")
    a.e("s_load_dwordx4 s[8:11], s[0:1], 32")
    a.e("s_load_dwordx2 s[12:13], s[0:1], 48")
    a.e("s_load_dwordx2 s[14:15], s[0:1], 72")
    a.e("s_load_dwordx2 s[16:17], s[0:1], 96")
    a.e("v_lshrrev_b32 v1, 6, v0")
    a.e("v_and_b32 v0, 63, v0")
    a.e("v_readfirstlane_b32 s18, v1")
    a.e("s_cmp_ge_u32 s18, 4")
    a.e("s_cbranch_scc1 k1_helper")
    a.e("s_and_b32 s19, s2, 3")
    a.e("s_lshl_b32 s19, s19, 2")
    a.e("s_bfe_u32 s20, s2, 0x20003")
    a.e("s_add_u32 s19, s19, s20")
    a.e("s_bfe_u32 s20, s2, 0x10002")
    a.e("s_lshl_b32 s20, s20, 3")
    a.e("s_lshr_b32 s21, s2, 5")
    a.e("s_add_u32 s20, s20, s21")
    RB, HP = 19, 20
    X0, ACC0, WF0, WA0 = 16, 160, 216, 244
    DA0, XO0, FA, ONE, POLL = 1, 5, 7, 8, 9
    for q in range(4):
        a.e(f"s_add_u32 s21, s18, {4*q}")
        a.e("s_cmp_ge_u32 s21, 15")
        a.e("s_cselect_b32 s21, 11, s21")
        a.e(f"s_lshl_b32 s{24+q}, s21, 10")
        a.e("s_lshl_b32 s21, s21, 6")
        a.e("v_add_u32 v10, s21, v0")
        a.e("v_mul_u32_u24 v11, 4370, v10")
        a.e("v_lshrrev_b32 v11, 16, v11")
        a.e("v_mul_u32_u24 v12, 15, v11")
        a.e("v_sub_u32 v12, v10, v12")
        a.e("v_mul_u32_u24 v13, 52, v12")
        a.e("v_lshrrev_b32 v13, 8, v13")
        a.e("v_mul_u32_u24 v14, 5, v13")
        a.e("v_sub_u32 v12, v12, v14")
        a.e("v_and_b32 v14, 0x78, v11")
        a.e("v_and_b32 v15, 1, v11")
        a.e("v_lshl_or_b32 v14, v15, 2, v14")
        a.e("v_bfe_u32 v15, v11, 1, 2")
        a.e("v_or_b32 v14, v14, v15")
        a.e("v_mul_u32_u24 v14, 3456, v14")
        a.e("v_mul_u32_u24 v13, 1152, v13")
        a.e("v_lshlrev_b32 v12, 4, v12")
        a.e(f"v_add3_u32 v{DA0+q}, v14, v13, v12")
    a.e("v_and_b32 v10, 15, v0")
    a.e("v_lshrrev_b32 v11, 4, v0")
    a.e(f"s_lshl_b32 s21, s{RB}, 7")
    a.e("s_lshl_b32 s22, s18, 5")
    a.e("s_add_u32 s21, s21, s22")
    a.e("v_add_u32 v12, s21, v10")
    a.e("v_mul_u32_u24 v12, 1152, v12")
    a.e(f"v_lshl_add_u32 v{XO0}, v11, 4, v12")
    a.e(f"v_add_u32 v{XO0+1}, {16*1152}, v{XO0}")
    a.e("s_waitcnt lgkmcnt(0)")
    srd(a, 28, 4, SZ)
    a.e(f"s_mul_i32 s21, s{HP}, 72")
    a.e("s_add_u32 s32, s6, s21")
    a.e("s_addc_u32 s33, s7, 0")
    a.e(f"s_sub_u32 s34, {576*3456}, s21")
    a.e("s_mov_b32 s35, 0x00020000")
    srd(a, 36, 16, WS_TOTAL)
    def issue_chunk(c):
        a.e(f"s_mov_b32 s22, {c*64*3456}")
        for q in range(4):
            a.e(f"s_add_u32 m0, s{24+q}, {K1_W+c*15360}")
            a.e("s_nop 0")
            a.vmem(f"buffer_load_dwordx4 v{DA0+q}, s[32:35], s22 offen lds", f"W{c}")
        for ks in (2*c, 2*c+1):
            for nt in range(2):
                a.vmem(f"buffer_load_dwordx4 {v(X0+(ks*2+nt)*4,4)}, v{XO0+nt}, s[28:31], 0 offen offset:{64*ks}", f"X{c}")
    for c in range(7): issue_chunk(c)
    a.e("v_bfe_u32 v10, v0, 2, 2")
    a.e("v_and_b32 v12, 3, v0")
    a.e("v_lshlrev_b32 v13, 3, v11")
    a.e("v_lshl_add_u32 v13, v10, 1, v13")
    a.e("v_mul_u32_u24 v13, 240, v13")
    a.e(f"v_add_u32 v13, {K1_W}, v13")
    for mt in range(7):
        a.e(f"v_add_u32 v14, {4*mt}, v12")
        a.e("v_mul_u32_u24 v15, 57, v14")
        a.e("v_lshrrev_b32 v15, 9, v15")
        a.e("v_add_u32 v14, v14, v15")
        a.e(f"v_lshl_add_u32 v{WA0+mt}, v14, 3, v13")
    a.e(f"v_mov_b32 v{FA}, {K1_CNT}")
    a.e(f"v_mov_b32 v{ONE}, 1")
    a.e("s_barrier")
    def arrive(c):
        a.e("s_mov_b64 exec, 1")
        a.lds(f"ds_add_u32 v{FA}, v{ONE} offset:{4*c}", "arr")
        a.e("s_mov_b64 exec, -1")
    def poll_issue(c):
        a.lds(f"ds_read_b32 v{POLL}, v{FA} offset:{4*c}", f"poll{c}")
    def poll_check(c):
        a.wait_lds(f"poll{c}")
        l1 = a.newlabel("k1_spin"); l2 = a.newlabel("k1_go")
        a.label(l1)
        a.e(f"v_readfirstlane_b32 s23, v{POLL}")
        a.e("s_cmp_ge_u32 s23, 4")
        a.e(f"s_cbranch_scc1 {l2}")
        a.e(f"ds_read_b32 v{POLL}, v{FA} offset:{4*c}")
        a.e("s_waitcnt lgkmcnt(0)")
        a.e(f"s_branch {l1}")
        a.label(l2)
    def rd(ks, mt):
        base = ks if ks < 9 else ks - 9
        for hf in range(2):
            a.lds(f"ds_read_b64_tr_b16 {v(WF0+mt*4+2*hf,2)}, v{WA0+mt} offset:{(32*base+hf)*240}", f"F{ks}_{mt}")
    a.wait_vm("W0"); arrive(0); poll_issue(0); poll_check(0)
    for mt in range(7): rd(0, mt)
    for ks in range(18):
        c = ks // 2
        if ks % 2 == 0:
            if c + 1 <= 8:
                a.wait_vm(f"W{c+1}"); arrive(c + 1)
            else:
                a.wait_vm(None)
            if c + 7 <= 8: issue_chunk(c + 7)
        for mt in range(7):
            a.wait_lds(f"F{ks}_{mt}")
            for nt in range(2):
                acc = v(ACC0 + (mt*2+nt)*4, 4)
                a.e(f"v_mfma_f32_16x16x32_bf16 {acc}, {v(WF0+mt*4,4)}, {v(X0+(ks*2+nt)*4,4)}, {acc if ks else 0}")
            if ks + 1 < 18:
                if ks + 1 == 9:
                    a.e(f"v_add_u32 v{WA0+mt}, {9*7680}, v{WA0+mt}")
                rd(ks + 1, mt)
            if ks % 2 == 0 and mt == 3 and c + 1 <= 8:
                poll_issue(c + 1)
        if ks % 2 == 0 and c + 1 <= 8:
            poll_check(c + 1)
    a.e("v_and_b32 v10, 15, v0")
    a.e("v_lshrrev_b32 v11, 4, v0")
    a.e("s_mul_i32 s21, s18, 7680")
    a.e(f"s_add_u32 s21, s21, {K1_W}")
    a.e("v_mul_u32_u24 v10, 40, v10")
    a.e("v_add_u32 v10, s21, v10")
    EA, EB = 16, 24
    for mt in range(7):
        a.e(f"v_add_u32 v12, {4*mt}, v11")
        a.e("v_mul_u32_u24 v13, 57, v12")
        a.e("v_lshrrev_b32 v13, 9, v13")
        a.e("v_mul_u32_u24 v14, 9, v13")
        a.e("v_sub_u32 v12, v12, v14")
        a.e("v_mul_u32_u24 v13, 2560, v13")
        a.e("v_lshl_add_u32 v13, v12, 3, v13")
        a.e("v_cmp_le_u32 vcc, 5, v12")
        a.e("v_mov_b32 v14, 1240")
        a.e("v_cmp_eq_u32 s[40:41], 4, v12")
        a.e("v_cndmask_b32 v14, 0, v14, vcc")
        a.e(f"v_add3_u32 v{EA+mt}, v13, v14, v10")
        if mt in (1, 3, 5):
            a.e("v_mov_b32 v14, 1280")
            a.e("v_cndmask_b32 v14, 4, v14, s[40:41]")
            a.e(f"v_add_u32 v{EB+mt}, v{EA+mt}, v14")
    a.e(f"s_mov_b32 s22, {f32(QSCALE)}")
    a.e("v_mov_b32 v12, s22")
    a.e("v_cmp_eq_u32 vcc, 0, v11")
    a.e("s_nop 1")
    a.e("v_cndmask_b32 v12, 1.0, v12, vcc")
    T = 32
    for mt in range(7):
        for nt in range(2):
            ac = ACC0 + (mt*2+nt)*4
            if mt < 2:
                for i in range(4): a.e(f"v_mul_f32 v{ac+i}, s22, v{ac+i}")
            elif mt == 2:
                for i in range(4): a.e(f"v_mul_f32 v{ac+i}, v12, v{ac+i}")
            t = T + (mt*2+nt)*2
            a.e(f"v_cvt_pk_bf16_f32 v{t}, v{ac}, v{ac+1}")
            a.e(f"v_cvt_pk_bf16_f32 v{t+1}, v{ac+2}, v{ac+3}")
            if mt == 6: setexec(a, 0xffffffffffff)
            if mt in (1, 3, 5):
                a.lds(f"ds_write_b32 v{EA+mt}, v{t} offset:{nt*640}")
                a.lds(f"ds_write_b32 v{EB+mt}, v{t+1} offset:{nt*640}")
            else:
                a.lds(f"ds_write_b64 v{EA+mt}, {v(t,2)} offset:{nt*640}")
            if mt == 6: a.e("s_mov_b64 exec, -1")
    a.e("v_mul_u32_u24 v13, 40, v0")
    a.e("v_add_u32 v13, s21, v13")
    a.e("v_mov_b32 v14, 0x3f80")
    for i in range(3):
        a.lds(f"ds_write_b32 v13, v14 offset:{36+i*2560}")
    a.wait_lds(None)
    a.e("v_lshlrev_b32 v13, 4, v0")
    a.e("v_add_u32 v14, s21, v13")
    for i in range(8):
        a.lds(f"ds_read_b128 {v(64+4*i,4)}, v14 offset:{1024*i}", f"E{i}")
    a.e(f"s_lshl_b32 s22, s{RB}, 2")
    a.e("s_add_u32 s22, s22, s18")
    a.e("s_lshl_b32 s22, s22, 4")
    a.e(f"s_add_u32 s22, s22, s{HP}")
    a.e("s_mul_i32 s22, s22, 7680")
    for i in range(8):
        a.wait_lds(f"E{i}")
        if i == 4: a.e("s_add_u32 s22, s22, 4096")
        if i == 7: setexec(a, 0xffffffff)
        a.vmem(f"buffer_store_dwordx4 {v(64+4*i,4)}, v13, s[36:39], s22 offen offset:{1024*(i%4)}")
    a.e("s_endpgm")
    a.label("k1_helper")
    a.reset_counters()
    a.e("s_sub_u32 s18, s18, 4")
    a.e(f"v_lshlrev_b32 v1, 2, v0")
    a.e("v_mov_b32 v2, 0")
    a.e("v_cmp_gt_u32 vcc, 16, v0")
    a.e("s_and_saveexec_b64 s[40:41], vcc")
    a.e(f"ds_write_b32 v1, v2 offset:{K1_CNT}")
    a.e("s_mov_b64 exec, -1")
    a.e("v_mul_u32_u24 v1, 57, v0")
    a.e("v_lshrrev_b32 v1, 10, v1")
    a.e("v_mul_u32_u24 v2, 18, v1")
    a.e("v_sub_u32 v2, v0, v2")
    a.e("v_mul_u32_u24 v3, 3, v1")
    a.e("s_lshl_b32 s19, s18, 3")
    a.e("v_add_u32 v3, s19, v3")
    a.e("s_lshr_b32 s20, s2, 2")
    a.e("s_and_b32 s21, s2, 3")
    a.e("s_lshl_b32 s22, s20, 5")
    a.e("v_add_u32 v4, s22, v3")
    a.e("v_mul_u32_u24 v4, 1152, v4")
    a.e("s_mul_i32 s23, s21, 288")
    a.e("v_lshl_add_u32 v5, v2, 4, s23")
    a.e("v_add_u32 v4, v4, v5")
    for i in range(3):
        a.e(f"v_subrev_u32 v{6+i}, {(3-i)*1152}, v4")
    a.e("v_lshlrev_b32 v9, 2, v5")
    a.e("s_waitcnt lgkmcnt(0)")
    srd(a, 24, 8, SZ)
    srd(a, 28, 10, SZ)
    srd(a, 32, 12, 576*8)
    srd(a, 36, 16, WS_TOTAL)
    srd(a, 44, 4, SZ)
    srd(a, 48, 14, 576*2)
    KR, VR, SW = 16, 40, 52
    GX, GW = 68, 78
    for i in range(3): a.vmem(f"buffer_load_dwordx4 {v(KR+4*i,4)}, v{6+i}, s[24:27], 0 offen", "P")
    for i in range(3): a.vmem(f"buffer_load_dwordx4 {v(KR+12+4*i,4)}, v4, s[24:27], 0 offen offset:{1152*i}", "P")
    for i in range(3): a.vmem(f"buffer_load_dwordx4 {v(VR+4*i,4)}, v4, s[28:31], 0 offen offset:{1152*i}", "P")
    for i in range(4): a.vmem(f"buffer_load_dwordx4 {v(SW+4*i,4)}, v9, s[32:35], 0 offen offset:{16*i}", "P")
    a.e("v_lshrrev_b32 v10, 5, v0")
    a.e("s_lshl_b32 s23, s2, 3")
    a.e("s_lshl_b32 s19, s18, 1")
    a.e("s_add_u32 s23, s23, s19")
    a.e("v_add_u32 v10, s23, v10")
    a.e("v_and_b32 v11, 31, v0")
    a.e("v_lshlrev_b32 v11, 2, v11")
    a.e("v_mul_u32_u24 v12, 1152, v10")
    a.e("v_add_u32 v12, v12, v11")
    for i in range(9): a.vmem(f"buffer_load_dword v{GX+i}, v12, s[44:47], 0 offen offset:{128*i}", "G")
    for i in range(9): a.vmem(f"buffer_load_dword v{GW+i}, v11, s[48:51], 0 offen offset:{128*i}", "G")
    a.e("s_barrier")
    a.wait_vm("P")
    UK, UW, UV, TA, TP, OUT = 96, 108, 116, 122, 128, 136
    a.e("s_mov_b32 s42, 0xffff0000")
    for q in range(4):
        for r in range(6):
            a.e(f"v_lshlrev_b32 v{UK+2*r}, 16, v{KR+4*r+q}")
            a.e(f"v_and_b32 v{UK+2*r+1}, s42, v{KR+4*r+q}")
        for h in range(2):
            for t in range(2):
                src = SW + (2*q+h)*2 + t
                a.e(f"v_lshlrev_b32 v{UW+4*h+2*t}, 16, v{src}")
                a.e(f"v_and_b32 v{UW+4*h+2*t+1}, s42, v{src}")
        for r in range(3):
            a.e(f"v_lshlrev_b32 v{UV+2*r}, 16, v{VR+4*r+q}")
            a.e(f"v_and_b32 v{UV+2*r+1}, s42, v{VR+4*r+q}")
        ch = [(r, h) for r in range(3) for h in range(2)]
        def each(fn):
            for n, (r, h) in enumerate(ch): fn(n, r, h)
        each(lambda n, r, h: a.e(f"v_mul_f32 v{TA+n}, v{UK+2*(r+0)+h}, v{UW+4*h+3}"))
        each(lambda n, r, h: a.e(f"v_mul_f32 v{TP+n}, v{UK+2*(r+1)+h}, v{UW+4*h+2}"))
        each(lambda n, r, h: rnd(a, TA+n, TA+n))
        for t in (1, 2, 3):
            each(lambda n, r, h: rnd(a, TP+n, TP+n))
            each(lambda n, r, h: a.e(f"v_add_f32 v{TA+n}, v{TA+n}, v{TP+n}"))
            if t < 3:
                each(lambda n, r, h: a.e(f"v_mul_f32 v{TP+n}, v{UK+2*(r+t+1)+h}, v{UW+4*h+2-t}"))
            each(lambda n, r, h: rnd(a, TA+n, TA+n))
        each(lambda n, r, h: a.e(f"v_mul_f32 v{TA+n}, v{TA+n}, v{UV+2*r+h}"))
        for r in range(3):
            a.e(f"v_cvt_pk_bf16_f32 v{OUT+4*r+q}, v{TA+2*r}, v{TA+2*r+1}")
    a.e("v_mul_u32_u24 v13, 288, v3")
    a.e("v_lshl_add_u32 v13, v2, 4, v13")
    setexec(a, 0x3fffffffffffff)
    a.lds(f"ds_write_b128 v13, {v(OUT,4)} offset:{K1_PREP}")
    a.lds(f"ds_write_b128 v13, {v(OUT+4,4)} offset:{K1_PREP+288}")
    setexec(a, 0xfffffffff)
    a.lds(f"ds_write_b128 v13, {v(OUT+8,4)} offset:{K1_PREP+576}")
    a.e(f"v_mov_b32 v14, {K1_CNT}")
    a.e("v_mov_b32 v15, 1")
    a.wait_lds(None)
    a.e("s_mov_b64 exec, 1")
    a.lds("ds_add_u32 v14, v15 offset:36")
    a.e("s_mov_b64 exec, -1")
    a.e(f"v_mov_b32 v14, {K1_CNT}")
    a.wait_vm("G")
    a.e("v_mov_b32 v16, 0")
    a.e("v_mov_b32 v17, 0")
    for i in range(9):
        a.e(f"v_lshlrev_b32 v20, 16, v{GX+i}")
        a.e(f"v_and_b32 v21, s42, v{GX+i}")
        a.e(f"v_lshlrev_b32 v22, 16, v{GW+i}")
        a.e(f"v_and_b32 v23, s42, v{GW+i}")
        a.e("v_mul_f32 v20, v20, v22")
        a.e("v_mul_f32 v21, v21, v23")
        rnd(a, 20, 20); rnd(a, 21, 21)
        a.e("v_add_f32 v16, v16, v20")
        a.e("v_add_f32 v17, v17, v21")
    a.e("v_add_f32 v16, v16, v17")
    for m in (1, 2, 4, 8, 16):
        a.lds(f"ds_swizzle_b32 v17, v16 offset:{(m<<10)|0x1f}")
        a.wait_lds(None)
        a.e("v_add_f32 v16, v16, v17")
    rnd(a, 16, 16)
    a.e(f"v_mul_f32 v16, {f32(-1.4426950408889634)}, v16")
    a.e("v_exp_f32 v16, v16")
    a.e("s_nop 0")
    a.e("v_add_f32 v16, 1.0, v16")
    a.e("v_rcp_f32 v16, v16")
    a.e("s_nop 0")
    rnd(a, 16, 16)
    a.e("v_lshlrev_b32 v10, 2, v10")
    a.e(f"s_mov_b32 s23, {WS_G}")
    setexec(a, 0x100000001)
    a.vmem("buffer_store_dword v16, v10, s[36:39], s23 offen")
    a.e("s_mov_b64 exec, -1")
    a.label("k1_hspin")
    a.e("ds_read_b32 v15, v14 offset:36")
    a.e("s_waitcnt lgkmcnt(0)")
    a.e("v_readfirstlane_b32 s23, v15")
    a.e("s_cmp_ge_u32 s23, 4")
    a.e("s_cbranch_scc0 k1_hspin")
    a.lgkm = []
    a.e("v_lshrrev_b32 v1, 4, v0")
    a.e("v_bfe_u32 v2, v0, 2, 2")
    a.e("v_and_b32 v3, 3, v0")
    a.e("v_sub_u32 v2, 3, v2")
    a.e("v_lshl_add_u32 v2, v2, 2, v1")
    a.e("v_mul_u32_u24 v2, 288, v2")
    a.e("v_lshl_add_u32 v2, v3, 3, v2")
    a.e("s_lshl_b32 s19, s18, 5")
    a.e("v_add_u32 v2, s19, v2")
    a.e("v_and_b32 v4, 15, v0")
    a.e("s_mul_i32 s23, s21, 144")
    a.e("s_lshl_b32 s19, s18, 4")
    a.e("s_add_u32 s23, s23, s19")
    a.e("v_add_u32 v4, s23, v4")
    a.e("v_lshlrev_b32 v4, 12, v4")
    a.e("v_lshl_add_u32 v4, v1, 4, v4")
    a.e("s_lshl_b32 s23, s20, 6")
    a.e(f"s_add_u32 s23, s23, {WS_U}")
    for i in range(3):
        if i == 2:
            a.e("s_cmp_lg_u32 s18, 0")
            a.e("s_cbranch_scc1 k1_end")
        a.lds(f"ds_read_b64_tr_b16 {v(16+4*i,2)}, v2 offset:{K1_PREP+16*288+128*i}")
        a.lds(f"ds_read_b64_tr_b16 {v(18+4*i,2)}, v2 offset:{K1_PREP+128*i}")
        a.wait_lds(None)
        a.vmem(f"buffer_store_dwordx4 {v(16+4*i,4)}, v4, s[36:39], s23 offen")
        a.e(f"s_add_u32 s23, s23, {64*4096}")
    a.label("k1_end")
    a.e("s_endpgm")

CV_K = 0
CV_U = 4128 + 32
CV_SZ = CV_U + 4608 + 64
K2_LDS = 4 * CV_SZ
NCONV = 144

def gen_conv(a, D_s, LB_s, end_label):
    AF, E0, O0, BF = 16, 80, 128, 176
    a.e("v_lshlrev_b32 v1, 4, v0")
    a.e(f"s_lshl_b32 s20, s{D_s}, 12")
    for i in range(4):
        a.e(f"s_add_u32 m0, s{LB_s}, {CV_K+32}")
        a.e("s_nop 0")
        a.vmem(f"buffer_load_dwordx4 v1, s[24:27], s20 offen offset:{1024*i} lds", "K")
    a.e("v_sub_u32 v2, 63, v0")
    a.e("v_lshlrev_b32 v2, 6, v2")
    a.e(f"s_add_u32 s21, s20, {WS_U}")
    for rho in range(4):
        a.e(f"s_add_u32 m0, s{LB_s}, {CV_U+1152*rho}")
        a.e("s_nop 0")
        a.vmem(f"buffer_load_dwordx4 v2, s[28:31], s21 offen lds", "U")
        a.e("s_add_u32 s21, s21, 16")
    a.e(f"s_lshl_b32 s21, s{D_s}, 1")
    a.e("v_mov_b32 v3, s21")
    a.vmem("buffer_load_ushort v4, v3, s[32:35], 0 offen", "U")
    a.e("v_lshlrev_b32 v5, 2, v0")
    a.e(f"v_add_u32 v5, s{LB_s}, v5")
    a.e("v_mov_b32 v6, 0")
    setexec(a, 0xffffffff)
    for rho in range(4):
        a.lds(f"ds_write_b32 v5, v6 offset:{CV_U+1152*rho+1024}")
    setexec(a, 0xff)
    a.lds(f"ds_write_b32 v5, v6 offset:{CV_K}")
    a.e("s_mov_b64 exec, -1")
    a.e("v_lshrrev_b32 v7, 4, v0")
    a.e("v_bfe_u32 v8, v0, 2, 2")
    a.e("v_and_b32 v9, 3, v0")
    a.e("v_lshlrev_b32 v10, 3, v7")
    a.e("v_add3_u32 v10, v10, v8, v9")
    a.e("v_lshlrev_b32 v10, 3, v10")
    a.e(f"v_add_u32 v10, s{LB_s}, v10")
    a.e("v_and_b32 v11, 15, v0")
    a.e("v_lshlrev_b32 v12, 4, v7")
    a.e("v_lshlrev_b32 v13, 3, v11")
    a.e("v_sub_u32 v12, v12, v13")
    a.e(f"v_add_u32 v12, {2*508-64*14}, v12")
    a.e(f"v_add_u32 v12, s{LB_s}, v12")
    for t in range(8):
        for arr in (E0, O0):
            a.e(f"v_mov_b32 v{arr+6*t+4}, 0")
            a.e(f"v_mov_b32 v{arr+6*t+5}, 0")
    a.wait_vm("K")
    a.wait_lds(None)
    for kap in range(16):
        for hf in range(2):
            a.lds(f"ds_read_b64_tr_b16 {v(AF+4*kap+2*hf,2)}, v10 offset:{CV_K+8+256*kap+32*hf}", "A")
        if kap == 6: a.wait_lds(None)
    a.wait_vm("U")
    seq = [(rho, lam) for rho in range(4) for lam in range(-1, 15)]
    def rdB(i):
        rho, lam = seq[i]
        b = BF + 4 * (i % 4)
        for hf in range(2):
            a.lds(f"ds_read_b64 {v(b+2*hf,2)}, v12 offset:{CV_U+1152*rho+64*(14-lam)+8*hf}", f"B{i}")
    a.wait_lds(None)
    for i in range(3): rdB(i)
    for i, (rho, lam) in enumerate(seq):
        if i + 3 < len(seq): rdB(i + 3)
        a.wait_lds(f"B{i}")
        b = BF + 4 * (i % 4)
        for tau in range(8):
            kap = 2 * tau - lam
            if kap < 0 or kap > 15: continue
            arr = E0 if rho % 2 == 0 else O0
            w = arr + 6 * tau + (rho // 2) * 2
            first = (rho < 2 and lam == -1)
            a.e(f"v_mfma_f32_16x16x32_bf16 {v(w,4)}, {v(AF+4*kap,4)}, {v(b,4)}, {0 if first else v(w,4)}")
    UU = AF
    for i in range(32): a.e(f"v_mov_b32 v{UU+i}, 0")
    a.e("v_lshl_add_u32 v13, v11, 2, v7")
    a.e("v_lshlrev_b32 v13, 1, v13")
    a.e(f"v_sub_u32 v13, {2*511-128*7}, v13")
    a.e(f"v_add_u32 v13, s{LB_s}, v13")
    for tau in range(8):
        for i in range(4):
            a.lds(f"ds_read_u16_d16_hi v{UU+4*tau+i}, v13 offset:{CV_U+1152*i+128*(7-tau)}", f"u{tau}")
        if tau % 3 == 2: a.wait_lds(None)
    a.e("v_subrev_u32 v14, 16, v0")
    a.e("v_add_u32 v15, 47, v0")
    a.e("v_cmp_gt_u32 vcc, 16, v0")
    a.e("s_nop 1")
    a.e("v_cndmask_b32 v14, v14, v15, vcc")
    a.e("v_cmp_eq_u32 vcc, 0, v0")
    a.e("s_nop 1")
    a.e("v_cndmask_b32 v14, v14, 63, vcc")
    a.e("v_lshlrev_b32 v14, 2, v14")
    a.e("s_mov_b32 s40, 0")
    a.e("s_mov_b32 s41, 0x80000000")
    a.e("v_lshlrev_b32 v4, 16, v4")
    a.e("s_nop 4")
    for tau in range(8):
        e = E0 + 6 * tau; o = O0 + 6 * tau
        for i in range(5): a.e(f"v_add_f32 v{e+1+i}, v{e+1+i}, v{o+i}")
    Z = 48
    for tau in range(8):
        cur = [E0+6*tau+4, E0+6*tau+5, O0+6*tau+5]
        prv = [E0+6*(tau-1)+4, E0+6*(tau-1)+5, O0+6*(tau-1)+5]
        for j in range(3):
            a.e(f"v_cndmask_b32 v{Z+3*tau+j}, v{cur[j]}, {('v%d' % prv[j]) if tau else 0}, s[40:41]")
        for j in range(3):
            a.lds(f"ds_bpermute_b32 v{Z+3*tau+j}, v14, v{Z+3*tau+j}", f"z{tau}")
        if tau % 4 == 3: a.wait_lds(None)
    a.e("v_lshlrev_b32 v15, 5, v11")
    a.e("v_lshl_add_u32 v15, v7, 3, v15")
    a.e(f"s_add_u32 s21, s20, {WS_Z}")
    for tau in range(8):
        e = E0 + 6 * tau
        for j in range(3): a.e(f"v_add_f32 v{e+j}, v{e+j}, v{Z+3*tau+j}")
        for i in range(4): a.e(f"v_mul_f32 v{UU+4*tau+i}, v{UU+4*tau+i}, v4")
        for i in range(4): rnd(a, e+i, e+i)
        for i in range(4): rnd(a, UU+4*tau+i, UU+4*tau+i)
        for i in range(4): a.e(f"v_add_f32 v{e+i}, v{e+i}, v{UU+4*tau+i}")
        a.e(f"v_cvt_pk_bf16_f32 v{e}, v{e}, v{e+1}")
        a.e(f"v_cvt_pk_bf16_f32 v{e+1}, v{e+2}, v{e+3}")
        a.vmem(f"buffer_store_dwordx2 {v(e,2)}, v15, s[28:31], s21 offen offset:{512*tau}")

AT_K = 0
AT_V = 15360
NEGINF = "0xff800000"

def lane_mask(fn):
    m = 0
    for l in range(64):
        if fn(l): m |= 1 << l
    return m

def gen_attn_task(a, QT_s, T0_s, pfx):
    pass

def gen_k2(a):
    kernel_head(a, "k2_kernel")
    a.e(f"s_cmp_ge_u32 s2, {NCONV+512}")
    a.e("s_cbranch_scc1 k2_end")
    a.e("s_load_dwordx4 s[4:7], s[0:1], 56")
    a.e("s_load_dwordx2 s[16:17], s[0:1], 96")
    a.e("v_lshrrev_b32 v1, 6, v0")
    a.e("v_and_b32 v0, 63, v0")
    a.e("v_readfirstlane_b32 s18, v1")
    a.e("s_waitcnt lgkmcnt(0)")
    srd(a, 28, 16, WS_TOTAL)
    a.e(f"s_cmp_ge_u32 s2, {NCONV}")
    a.e("s_cbranch_scc1 k2_attn")
    srd(a, 24, 4, SZ)
    srd(a, 32, 6, 576*2)
    a.e("s_lshl_b32 s19, s2, 2")
    a.e("s_add_u32 s19, s19, s18")
    a.e(f"s_mul_i32 s22, s18, {CV_SZ}")
    gen_conv(a, 19, 22, "k2_end")
    a.e("s_endpgm")
    a.label("k2_attn")
    a.reset_counters()
    a.e(f"s_sub_u32 s19, s2, {NCONV}")
    a.e("s_and_b32 s20, s19, 31")
    a.e("s_lshr_b32 s21, s19, 5")
    a.e("s_lshr_b32 s22, s20, 1")
    a.e("s_and_b32 s23, s20, 1")
    a.e("s_mul_i32 s24, s22, 7680")
    a.e("s_mul_i32 s25, s23, 1280")
    a.e("s_add_u32 s24, s24, s25")
    a.e("s_lshl_b32 s25, s21, 2")
    a.e("s_sub_u32 s25, s25, 8")
    for q in range(4):
        a.e(f"s_add_u32 s26, s18, {4*q}")
        a.e("s_cmp_ge_u32 s26, 15")
        a.e("s_cselect_b32 s26, 11, s26")
        a.e("s_lshl_b32 s27, s26, 10")
        a.e("s_lshl_b32 s26, s26, 6")
        a.e("v_add_u32 v2, s26, v0")
        a.e("v_mul_u32_u24 v3, 3277, v2")
        a.e("v_lshrrev_b32 v3, 18, v3")
        a.e("v_mul_u32_u24 v4, 80, v3")
        a.e("v_sub_u32 v4, v2, v4")
        a.e("v_add_u32 v3, s25, v3")
        a.e("v_max_i32 v3, 0, v3")
        a.e("v_mul_u32_u24 v3, 122880, v3") if False else a.e("v_mul_u32_u24 v3, 0x1e000, v3")
        a.e("v_lshl_add_u32 v3, v4, 4, v3")
        a.e(f"s_add_u32 m0, s27, {AT_K}")
        a.e(f"s_add_u32 s26, s24, 2560")
        a.vmem("buffer_load_dwordx4 v3, s[28:31], s26 offen lds", "S")
        a.e(f"s_add_u32 m0, s27, {AT_V}")
        a.e(f"s_add_u32 s26, s24, 5120")
        a.vmem("buffer_load_dwordx4 v3, s[28:31], s26 offen lds", "S")
    Q1, Q2 = 8, 12
    KA, KB = 16, 24
    VF = 32
    S0, S1 = 48, 64
    P0 = 80
    OA = 96
    MD, MF = 112, 128
    NM = 40
    a.e("v_and_b32 v1, 31, v0")
    a.e("v_lshrrev_b32 v2, 5, v0")
    a.e("v_mul_u32_u24 v3, 40, v1")
    a.e("v_lshl_add_u32 v4, v2, 4, v3")
    a.e("s_lshl_b32 s25, s21, 2")
    a.e("s_add_u32 s25, s25, s18")
    a.e("s_mul_i32 s26, s25, 0x1e000")
    a.e("s_add_u32 s26, s26, s24")
    a.vmem(f"buffer_load_dwordx4 {v(Q1,4)}, v4, s[28:31], s26 offen", "Q")
    a.vmem(f"buffer_load_dword v{Q2}, v3, s[28:31], s26 offen offset:32", "Q")
    for ri in range(16):
        j, i = ri // 4, ri % 4
        md = lane_mask(lambda l: 8*j + 4*(l >> 5) + i <= (l & 31))
        a.e(f"s_mov_b32 s40, 0x{md & 0xffffffff:x}")
        a.e(f"s_mov_b32 s41, 0x{md >> 32:x}")
        a.e(f"v_mov_b32 v5, {NEGINF}")
        a.e(f"v_cndmask_b32 v{MD+ri}, v5, 0, s[40:41]")
        a.e(f"v_cndmask_b32 v{MF+ri}, 0, v5, s[40:41]")
    a.e("s_mul_i32 s26, s18, 1280")
    a.e("v_add_u32 v4, s26, v4")
    a.e("v_add_u32 v3, s26, v3")
    a.e("v_bfe_u32 v5, v0, 2, 2")
    a.e("v_lshl_add_u32 v5, v2, 2, v5")
    a.e("v_mul_u32_u24 v5, 40, v5")
    a.e("v_and_b32 v6, 3, v0")
    a.e("v_lshlrev_b32 v6, 3, v6")
    a.e("v_bfe_u32 v7, v0, 4, 1")
    a.e("v_cmp_eq_u32 vcc, 1, v7")
    a.e("s_nop 1")
    a.e("v_cndmask_b32 v6, v6, 32, vcc")
    a.e("v_add3_u32 v5, v5, v6, s26")
    a.e("s_sub_i32 s27, 8, s25")
    a.e("s_max_i32 s27, s27, 0")
    a.wait_vm(None)
    a.e("s_barrier")

    def rdK(buf, t):
        a.lds(f"ds_read_b64 {v(buf,2)}, v4 offset:{AT_K+1280*t}", f"K{t}")
        a.lds(f"ds_read_b64 {v(buf+2,2)}, v4 offset:{AT_K+1280*t+8}", f"K{t}")
        a.lds(f"ds_read_b64 {v(buf+4,2)}, v3 offset:{AT_K+1280*t+32}", f"K{t}")
    def rdV(t):
        for i in range(4):
            a.lds(f"ds_read_b64_tr_b16 {v(VF+2*i,2)}, v5 offset:{AT_V+1280*t+320*i}", f"V{t}")
    def qk(S, buf, t):
        c = v(MD, 16) if t == 8 else (v(MF, 16) if t == 0 else 0)
        a.e(f"v_mfma_f32_32x32x16_bf16 {v(S,16)}, {v(buf,4)}, {v(Q1,4)}, {c}")
        a.e(f"v_mfma_f32_32x32x8_bf16 {v(S,16)}, {v(buf+4,2)}, {v(Q2,2)}, {v(S,16)}")

    rdK(KA, 8)
    a.e("v_cmp_eq_u32 s[42:43], 0, v2")
    a.e("s_nop 1")
    a.e(f"v_cndmask_b32 v{Q2}, 0, v{Q2}, s[42:43]")
    a.wait_lds("K8")
    a.e(f"v_dot2_f32_bf16 v6, v{Q1}, v{KA}, 0")
    for i in range(1, 4): a.e(f"v_dot2_f32_bf16 v6, v{Q1+i}, v{KA+i}, v6")
    a.e(f"v_dot2_f32_bf16 v6, v{Q2}, v{KA+4}, v6")
    a.e("s_nop 3")
    a.e("v_mov_b32 v7, v6")
    a.e("s_nop 1")
    a.e("v_permlane32_swap_b32 v6, v7")
    a.e("s_nop 1")
    a.e("v_add_f32 v6, v6, v7")
    a.e("v_sub_f32 v6, 0, v6")
    a.e("v_cvt_pk_bf16_f32 v6, v6, 0")
    a.e(f"v_cndmask_b32 v{Q2+1}, 0, v6, s[42:43]")
    a.e("s_nop 1")

    def softmax_pass(sub, pfx):
        done = f"{pfx}_done"
        bufs = [KA, KB]; Ss = [S0, S1]
        qk(S0, KA, 8)
        for n, t in enumerate(range(8, -1, -1)):
            S = Ss[n % 2]
            last = f"{pfx}_last{t}"; join = f"{pfx}_join{t}"
            rdV(t)
            if t > 0:
                a.e(f"s_cmp_gt_u32 s27, {t-1}")
                a.e(f"s_cbranch_scc1 {last}")
                rdK(bufs[(n+1) % 2], t - 1)
                a.wait_lds(f"K{t-1}")
                qk(Ss[(n+1) % 2], bufs[(n+1) % 2], t - 1)
                a.label(last)
            a.e("s_nop 7")
            a.e("s_nop 3")
            for i in range(16):
                if sub: a.e(f"v_add_f32 v{S+i}, v{S+i}, v{NM}")
                a.e(f"v_exp_f32 v{S+i}, v{S+i}")
                if i % 2 == 1 and i >= 3:
                    a.e(f"v_cvt_pk_bf16_f32 v{P0+(i-3)//2}, v{S+i-3}, v{S+i-2}")
            a.e("s_nop 0")
            a.e(f"v_cvt_pk_bf16_f32 v{P0+7}, v{S+14}, v{S+15}")
            a.e("s_waitcnt lgkmcnt(0)"); a.lgkm = []
            a.e("s_nop 0")
            a.e(f"v_mfma_f32_32x32x16_bf16 {v(OA,16)}, {v(VF,4)}, {v(P0,4)}, {v(OA,16) if n else 0}")
            a.e(f"v_mfma_f32_32x32x16_bf16 {v(OA,16)}, {v(VF+4,4)}, {v(P0+4,4)}, {v(OA,16)}")
            if t > 0:
                a.e(f"s_cmp_gt_u32 s27, {t-1}")
                a.e(f"s_cbranch_scc1 {done}")
        a.label(done)
        a.e("s_nop 7")
        a.e("s_nop 3")

    softmax_pass(False, "k2a")
    a.e(f"v_mov_b32 v6, v{OA+10}")
    for i in range(10): a.e(f"v_fma_f32 v6, v{OA+i}, 0, v6")
    a.e(f"v_cmp_nge_f32 vcc, v6, {f32(2.0**-30)}") if False else None
    a.e(f"s_mov_b32 s40, {f32(2.0**-30)}")
    a.e(f"s_mov_b32 s41, {f32(2.0**100)}")
    a.e("v_cmp_nlt_f32 vcc, s40, v6")
    a.e("v_cmp_ngt_f32 s[44:45], s41, v6")
    a.e("s_or_b64 vcc, vcc, s[44:45]")
    a.e("s_cbranch_vccz k2_fin")
    a.e(f"v_mov_b32 v{Q2+1}, 0")
    a.e(f"v_mov_b32 v{NM}, {NEGINF}")
    for t in range(8, -1, -1):
        rdK(KA, t)
        a.wait_lds(None)
        qk(S0, KA, t)
        a.e("s_nop 7"); a.e("s_nop 3")
        for i in range(8): a.e(f"v_max3_f32 v{NM}, v{S0+2*i}, v{S0+2*i+1}, v{NM}")
        if t > 0:
            a.e(f"s_cmp_gt_u32 s27, {t-1}")
            a.e("s_cbranch_scc1 k2_maxdone")
    a.label("k2_maxdone")
    rdK(KA, 8)
    a.e(f"v_mov_b32 v7, v{NM}")
    a.e("s_nop 1")
    a.e(f"v_permlane32_swap_b32 v{NM}, v7")
    a.e("s_nop 1")
    a.e(f"v_max_f32 v{NM}, v{NM}, v7")
    a.e(f"v_sub_f32 v{NM}, 0, v{NM}")
    a.wait_lds(None)
    softmax_pass(True, "k2b")
    a.label("k2_fin")
    a.e(f"v_rcp_f32 v6, v{OA+10}")
    a.e("s_nop 0")
    for i in range(10): a.e(f"v_mul_f32 v{OA+i}, v{OA+i}, v6")
    for i in range(5): a.e(f"v_cvt_pk_bf16_f32 v{P0+i}, v{OA+2*i}, v{OA+2*i+1}")
    a.e(f"v_mov_b32 v{P0+5}, 0")
    a.e("s_lshl_b32 s26, s25, 5")
    a.e("v_add_u32 v6, s26, v1")
    a.e("v_mul_u32_u24 v6, 80, v6")
    a.e("v_lshl_add_u32 v7, v2, 3, v6")
    a.e("s_mul_i32 s26, s22, 163840")
    a.e("s_mul_i32 s40, s23, 40")
    a.e("s_add_u32 s26, s26, s40")
    a.e(f"s_add_u32 s26, s26, {WS_O}")
    a.vmem(f"buffer_store_dwordx2 {v(P0,2)}, v7, s[28:31], s26 offen")
    a.vmem(f"buffer_store_dwordx2 {v(P0+2,2)}, v7, s[28:31], s26 offen offset:16")
    setexec(a, 0xffffffff)
    a.vmem(f"buffer_store_dwordx2 {v(P0+4,2)}, v6, s[28:31], s26 offen offset:32")
    a.label("k2_end")
    a.e("s_endpgm")

K3_Z = 0
K3_W = 10240
K3_LDS = K3_W + 576 * 144 + 1024

def gen_k3(a):
    kernel_head(a, "k3_kernel")
    a.e("s_cmp_ge_u32 s2, 256")
    a.e("s_cbranch_scc1 k3_end")
    a.e("s_load_dwordx2 s[4:5], s[0:1], 0")
    a.e("s_load_dwordx2 s[6:7], s[0:1], 16")
    a.e("s_load_dwordx2 s[8:9], s[0:1], 80")
    a.e("s_load_dwordx2 s[16:17], s[0:1], 96")
    a.e("v_lshrrev_b32 v1, 6, v0")
    a.e("v_and_b32 v0, 63, v0")
    a.e("v_readfirstlane_b32 s18, v1")
    a.e("s_and_b32 s19, s2, 7")
    a.e("s_lshl_b32 s19, s19, 2")
    a.e("s_bfe_u32 s20, s2, 0x20003")
    a.e("s_add_u32 s19, s19, s20")
    a.e("s_lshr_b32 s20, s2, 5")
    OF, ACC, WF, WA, OA_ = 16, 96, 116, 160, 172
    a.e("v_and_b32 v2, 15, v0")
    a.e("v_lshrrev_b32 v3, 4, v0")
    a.e("s_lshl_b32 s21, s19, 6")
    a.e("s_lshl_b32 s22, s18, 4")
    a.e("s_add_u32 s21, s21, s22")
    a.e("v_add_u32 v4, s21, v2")
    a.e("v_mul_u32_u24 v5, 80, v4")
    a.e("s_mov_b32 s22, 163840")
    for k5 in range(5):
        a.e(f"v_add_u32 v6, {4*k5}, v3")
        a.e("v_mul_u32_u24 v7, 52, v6")
        a.e("v_lshrrev_b32 v7, 8, v7")
        a.e("v_mul_u32_u24 v8, 5, v7")
        a.e("v_sub_u32 v6, v6, v8")
        a.e("v_mul_lo_u32 v7, v7, s22")
        a.e("v_lshl_add_u32 v7, v6, 4, v7")
        a.e(f"v_add_u32 v{OA_+k5}, v7, v5")
    a.e("s_waitcnt lgkmcnt(0)")
    srd(a, 24, 4, SZ)
    a.e("s_mul_i32 s22, s20, 144")
    a.e("s_add_u32 s28, s6, s22")
    a.e("s_addc_u32 s29, s7, 0")
    a.e(f"s_sub_u32 s30, {576*1152}, s22")
    a.e("s_mov_b32 s31, 0x00020000")
    srd(a, 32, 8, SZ)
    srd(a, 36, 16, WS_TOTAL)
    for q in range(3):
        a.e(f"s_add_u32 s22, s18, {4*q}")
        a.e("s_cmp_ge_u32 s22, 9")
        a.e("s_cselect_b32 s22, s18, s22")
        a.e(f"s_lshl_b32 s{40+q}, s22, 10")
        a.e("s_lshl_b32 s22, s22, 6")
        a.e("v_add_u32 v6, s22, v0")
        a.e("v_mul_u32_u24 v7, 7282, v6")
        a.e("v_lshrrev_b32 v7, 16, v7")
        a.e("v_mul_u32_u24 v8, 9, v7")
        a.e("v_sub_u32 v8, v6, v8")
        a.e("v_mul_u32_u24 v7, 1152, v7")
        a.e(f"v_lshl_add_u32 v{9+q}, v8, 4, v7")
    for grp in range(9):
        a.e(f"s_mov_b32 s22, {grp*64*1152}")
        for q in range(3):
            a.e(f"s_add_u32 m0, s{40+q}, {K3_W+grp*9216}")
            a.e("s_nop 0")
            a.vmem(f"buffer_load_dwordx4 v{9+q}, s[28:31], s22 offen lds", "W")
    a.e("v_lshrrev_b32 v6, 3, v0")
    a.e("v_and_b32 v7, 7, v0")
    a.e("v_lshlrev_b32 v6, 12, v6")
    a.e("v_lshl_add_u32 v6, v7, 4, v6")
    a.e("s_mul_i32 s22, s20, 72")
    a.e("s_lshl_b32 s22, s22, 12")
    a.e("s_lshl_b32 s23, s19, 7")
    a.e("s_add_u32 s22, s22, s23")
    a.e(f"s_add_u32 s22, s22, {WS_Z}")
    for q in range(3):
        a.e(f"s_add_u32 m0, s{40+q}, {K3_Z}")
        a.e(f"s_lshl_b32 s23, s{40+q}, 5")
        a.e("s_add_u32 s23, s23, s22")
        a.vmem("buffer_load_dwordx4 v6, s[36:39], s23 offen lds", "W")
    for ks in range(20):
        if ks % 5 == 0: a.e(f"s_mov_b32 s22, {WS_O + (ks//5)*4*163840}")
        a.vmem(f"buffer_load_dwordx4 {v(OF+4*ks,4)}, v{OA_+ks%5}, s[36:39], s22 offen", "O")
    XE, GE = 180, 190
    a.e("v_mul_u32_u24 v5, 1152, v4")
    a.e("v_lshl_add_u32 v5, v3, 3, v5")
    a.e("s_mul_i32 s23, s20, 144")
    for mt in range(5):
        a.vmem(f"buffer_load_dwordx2 {v(XE+2*mt,2)}, v5, s[24:27], s23 offen offset:{32*mt}", "X")
    a.e("v_lshlrev_b32 v6, 2, v4")
    a.e(f"s_mov_b32 s22, {WS_G}")
    a.vmem(f"buffer_load_dword v{GE}, v6, s[36:39], s22 offen", "X")
    a.e("v_bfe_u32 v6, v0, 2, 2")
    a.e("v_and_b32 v7, 3, v0")
    for k5 in range(5):
        for hf in range(2):
            a.e(f"v_lshl_add_u32 v8, v3, 1, {8*k5+hf}")
            a.e("v_mul_u32_u24 v9, 26, v8")
            a.e("v_lshrrev_b32 v9, 8, v9")
            a.e("v_mul_u32_u24 v10, 10, v9")
            a.e("v_sub_u32 v8, v8, v10")
            a.e("v_cmp_eq_u32 vcc, 9, v8")
            a.e("v_lshlrev_b32 v8, 2, v8")
            a.e("v_mul_u32_u24 v9, 36, v9")
            a.e("v_cndmask_b32 v8, v8, 18, vcc")
            a.e("v_add3_u32 v8, v8, v9, v6")
            a.e("v_mul_u32_u24 v8, 144, v8")
            a.e(f"v_add_u32 v8, {K3_W}, v8")
            a.e(f"v_lshl_add_u32 v{WA+2*k5+hf}, v7, 3, v8")
    a.wait_vm("W")
    a.e("s_barrier")
    def rd(ks):
        b = WF + 20 * (ks % 2)
        for mt in range(5):
            for hf in range(2):
                a.lds(f"ds_read_b64_tr_b16 {v(b+4*mt+2*hf,2)}, v{WA+2*(ks%5)+hf} offset:{(ks//5)*144*144+32*mt}", f"F{ks}")
    rd(0)
    a.wait_vm("O")
    for ks in range(20):
        if ks + 1 < 20: rd(ks + 1)
        a.wait_lds(f"F{ks}")
        b = WF + 20 * (ks % 2)
        for mt in range(5):
            acc = v(ACC + 4*mt, 4)
            a.e(f"v_mfma_f32_16x16x32_bf16 {acc}, {v(b+4*mt,4)}, {v(OF+4*ks,4)}, {acc if ks else 0}")
    a.e("v_lshl_add_u32 v8, v3, 2, v6")
    a.e("v_lshlrev_b32 v8, 7, v8")
    a.e("v_lshl_add_u32 v8, v7, 3, v8")
    a.e("s_lshl_b32 s22, s18, 5")
    a.e("v_add_u32 v8, s22, v8")
    ZE = 16
    for mt in range(5):
        a.lds(f"ds_read_b64_tr_b16 {v(ZE+2*mt,2)}, v8 offset:{K3_Z+2048*mt}")
    a.wait_vm(None)
    a.e(f"v_sub_f32 v9, 1.0, v{GE}")
    rnd(a, 9, 9)
    a.e("s_mov_b32 s42, 0xffff0000")
    a.wait_lds(None)
    T = 32
    for mt in range(5):
        ac = ACC + 4*mt
        for i in range(4):
            op = "v_lshlrev_b32 v%d, 16, v%d" if i % 2 == 0 else "v_and_b32 v%d, s42, v%d"
            a.e(op % (T+i, XE+2*mt+i//2))
            a.e(op % (T+4+i, ZE+2*mt+i//2))
        for i in range(4): rnd(a, ac+i, ac+i)
        for i in range(4): a.e(f"v_mul_f32 v{T+i}, v{T+i}, v{T+4+i}")
        for i in range(4): a.e(f"v_mul_f32 v{ac+i}, v{ac+i}, v{GE}")
        for i in range(4): rnd(a, T+i, T+i)
        for i in range(4): rnd(a, ac+i, ac+i)
        for i in range(4): a.e(f"v_mul_f32 v{T+i}, v{T+i}, v9")
        for i in range(4): rnd(a, T+i, T+i)
        for i in range(4): a.e(f"v_add_f32 v{ac+i}, v{ac+i}, v{T+i}")
        a.e(f"v_cvt_pk_bf16_f32 v{ac}, v{ac}, v{ac+1}")
        a.e(f"v_cvt_pk_bf16_f32 v{ac+1}, v{ac+2}, v{ac+3}")
        if mt == 4: setexec(a, 0xffffffff)
        a.vmem(f"buffer_store_dwordx2 {v(ac,2)}, v5, s[32:35], s23 offen offset:{32*mt}")
    a.label("k3_end")
    a.e("s_endpgm")

def main(path):
    a = Asm()
    hdr = open(f"cdna_kernels/{NAME}.s.ref").read().split("\n")
    head = [l for l in hdr if l.startswith(";") and "@launch" not in l and "Override" not in l and "grid=ceil" not in l]
    for l in head: a.raw(l)
    a.raw(f"; @launch kernel=k1_kernel grid=(256,1,1) block=(512,1,1) lds={K1_LDS}")
    a.raw(f"; @launch kernel=k2_kernel grid=({NCONV+512},1,1) block=(256,1,1) lds={K2_LDS}")
    a.raw(f"; @launch kernel=k3_kernel grid=(256,1,1) block=(256,1,1) lds={K3_LDS}")
    a.raw('.amdgcn_target "amdgcn-amd-amdhsa--gfx950"')
    a.raw(".text")
    gen_k1(a); gen_k2(a); gen_k3(a)
    a.raw('.section .rodata,"a"')
    a.raw(kernel_desc("k1_kernel", 252))
    a.raw(kernel_desc("k2_kernel", 192))
    a.raw(kernel_desc("k3_kernel", 192))
    open(path, "w").write(a.text())

if __name__ == "__main__":
    main(sys.argv[1] if len(sys.argv) > 1 else f"cdna_kernels/{NAME}.s")
```

```python
class Asm:
    def __init__(self):
        self.lines = []
        self.lgkm = []
        self.vm = []
        self.uid = 0
    def e(self, s):
        self.lines.append("    " + s)
    def c(self, s):
        self.lines.append("    ; " + s)
    def label(self, s):
        self.lines.append(s + ":")
    def raw(self, s):
        self.lines.append(s)
    def newlabel(self, base):
        self.uid += 1
        return f"{base}_{self.uid}"
    def lds(self, s, tag=None):
        self.e(s); self.lgkm.append(tag)
    def vmem(self, s, tag=None):
        self.e(s); self.vm.append(tag)
        assert len(self.vm) <= 63, "too many VMEM outstanding"
    def wait_lds(self, tag=None):
        if tag is None:
            n = 0
        else:
            idx = [i for i, t in enumerate(self.lgkm) if t == tag]
            if not idx: return
            n = len(self.lgkm) - 1 - idx[-1]
        n_emit = min(n, 15)
        self.e(f"s_waitcnt lgkmcnt({n_emit})")
        self.lgkm = self.lgkm[len(self.lgkm) - n_emit:] if n_emit else []
    def wait_vm(self, tag=None):
        if tag is None:
            n = 0
        else:
            idx = [i for i, t in enumerate(self.vm) if t == tag]
            if not idx: return
            n = len(self.vm) - 1 - idx[-1]
        self.e(f"s_waitcnt vmcnt({n})")
        self.vm = self.vm[len(self.vm) - n:] if n else []
    def reset_counters(self):
        self.lgkm = []; self.vm = []
    def text(self):
        return "\n".join(self.lines) + "\n"

def v(b, n=1):
    return f"v{b}" if n == 1 else f"v[{b}:{b+n-1}]"
def s(b, n=1):
    return f"s{b}" if n == 1 else f"s[{b}:{b+n-1}]"

def srd(a, d, base, nbytes, add=0):
    if add:
        a.e(f"s_add_u32 s{d}, s{base}, {add}")
        a.e(f"s_addc_u32 s{d+1}, s{base+1}, 0")
    else:
        a.e(f"s_mov_b32 s{d}, s{base}")
        a.e(f"s_mov_b32 s{d+1}, s{base+1}")
    a.e(f"s_mov_b32 s{d+2}, {nbytes}")
    a.e(f"s_mov_b32 s{d+3}, 0x00020000")

def kernel_head(a, name):
    a.raw(f".globl {name}")
    a.raw(".p2align 8")
    a.raw(f".type {name},@function")
    a.label(name)
    a.reset_counters()

def kernel_desc(name, vgpr, sgpr=102, accum=None):
    if accum is None: accum = (vgpr + 3) // 4 * 4
    return f""".p2align 6
.amdhsa_kernel {name}
  .amdhsa_next_free_vgpr {vgpr}
  .amdhsa_next_free_sgpr {sgpr}
  .amdhsa_accum_offset {accum}
  .amdhsa_group_segment_fixed_size 0
  .amdhsa_kernarg_size 104
  .amdhsa_user_sgpr_count 2
  .amdhsa_user_sgpr_kernarg_segment_ptr 1
  .amdhsa_system_sgpr_workgroup_id_x 1
  .amdhsa_float_denorm_mode_32 3
.end_amdhsa_kernel
"""

def setexec(a, mask):
    a.e(f"s_mov_b32 exec_lo, 0x{mask & 0xffffffff:x}")
    a.e(f"s_mov_b32 exec_hi, 0x{mask >> 32:x}")

STAMP_ON = False
STAMP_BASE = 32 << 20
class Stamps:
    def __init__(self, a): self.a = a; self.n = 0; self.names = []
    def __call__(self, name):
        import asmlib
        if not asmlib.STAMP_ON: return
        assert self.n < 19
        self.a.e(f"s_memtime s[{60+2*self.n}:{61+2*self.n}]"); self.n += 1; self.names.append(name)
    def real(self, name):
        import asmlib
        if not asmlib.STAMP_ON: return
        self.a.e(f"s_memrealtime s[{60+2*self.n}:{61+2*self.n}]"); self.n += 1; self.names.append(name)
    def flush(self, ws_pair, wave_s, region):
        import asmlib
        if not asmlib.STAMP_ON: return
        a = self.a
        a.e("s_mov_b64 exec, -1")
        a.e("s_waitcnt lgkmcnt(0) vmcnt(0)")
        a.e(f"s_lshl_b32 s58, s2, 4")
        a.e(f"s_add_u32 s58, s58, s{wave_s}")
        a.e(f"s_lshl_b32 s58, s58, 7")
        a.e(f"s_add_u32 s58, s58, {STAMP_BASE + region*(4<<20)}")
        a.e(f"v_mov_b32 v1, s58")
        srd(a, 52, ws_pair, 64 << 20)
        for i in range(self.n):
            a.e(f"v_mov_b32 v2, s{60+2*i}")
            a.e(f"buffer_store_dword v2, v1, s[52:55], 0 offen offset:{4*i}")
        print("stamps region", region, self.names)
```

```python
import sys, struct
from asmlib import *
import asmlib

NAME = "gated_mix__sliding_block__ssm_conv_h3__prompt"
WS_QKV = 0
WS_U = 8 << 20
WS_G = 11 << 20
WS_O = 12 << 20
WS_Z = 15 << 20
WS_TOTAL = 18 << 20
SZ = 2048 * 576 * 2
def f32(x): return "0x%08x" % struct.unpack("<I", struct.pack("<f", x))[0]
QSCALE = 18 ** -0.5 * 1.4426950408889634

def rnd(a, dst, src):
    a.e(f"v_cvt_pk_bf16_f32 v{dst}, 0, v{src}")

K1_CNT = 0
K1_PREP = 64
K1_W = K1_PREP + 32 * 288
K1_LDS = K1_W + 138240 + 64

def gen_k1(a):
    kernel_head(a, "k1_kernel")
    a.e("s_cmp_ge_u32 s2, 256")
    a.e("s_cbranch_scc1 k1_end")
    st = Stamps(a); st.real("rt0"); st("t0")
    a.e("s_load_dwordx4 s[4:7], s[0:1], 0")
    a.e("s_load_dwordx4 s[8:11], s[0:1], 32")
    a.e("s_load_dwordx2 s[12:13], s[0:1], 48")
    a.e("s_load_dwordx2 s[14:15], s[0:1], 72")
    a.e("s_load_dwordx2 s[16:17], s[0:1], 96")
    a.e("v_lshrrev_b32 v1, 6, v0")
    a.e("v_and_b32 v0, 63, v0")
    a.e("v_readfirstlane_b32 s18, v1")
    a.e("s_cmp_ge_u32 s18, 4")
    a.e("s_cbranch_scc1 k1_helper")
    a.e("s_and_b32 s19, s2, 3")
    a.e("s_lshl_b32 s19, s19, 2")
    a.e("s_bfe_u32 s20, s2, 0x20003")
    a.e("s_add_u32 s19, s19, s20")
    a.e("s_bfe_u32 s20, s2, 0x10002")
    a.e("s_lshl_b32 s20, s20, 3")
    a.e("s_lshr_b32 s21, s2, 5")
    a.e("s_add_u32 s20, s20, s21")
    RB, HP = 19, 20
    X0, ACC0, WF0, WA0 = 16, 160, 216, 244
    DA0, XO0, FA, ONE, POLL = 1, 5, 7, 8, 9
    for q in range(4):
        a.e(f"s_add_u32 s21, s18, {4*q}")
        a.e("s_cmp_ge_u32 s21, 15")
        a.e("s_cselect_b32 s21, 11, s21")
        a.e(f"s_lshl_b32 s{24+q}, s21, 10")
        a.e("s_lshl_b32 s21, s21, 6")
        a.e("v_add_u32 v10, s21, v0")
        a.e("v_mul_u32_u24 v11, 4370, v10")
        a.e("v_lshrrev_b32 v11, 16, v11")
        a.e("v_mul_u32_u24 v12, 15, v11")
        a.e("v_sub_u32 v12, v10, v12")
        a.e("v_mul_u32_u24 v13, 52, v12")
        a.e("v_lshrrev_b32 v13, 8, v13")
        a.e("v_mul_u32_u24 v14, 5, v13")
        a.e("v_sub_u32 v12, v12, v14")
        a.e("v_and_b32 v14, 0x78, v11")
        a.e("v_and_b32 v15, 1, v11")
        a.e("v_lshl_or_b32 v14, v15, 2, v14")
        a.e("v_bfe_u32 v15, v11, 1, 2")
        a.e("v_or_b32 v14, v14, v15")
        a.e("v_mul_u32_u24 v14, 3456, v14")
        a.e("v_mul_u32_u24 v13, 1152, v13")
        a.e("v_lshlrev_b32 v12, 4, v12")
        a.e(f"v_add3_u32 v{DA0+q}, v14, v13, v12")
    a.e("v_and_b32 v10, 15, v0")
    a.e("v_lshrrev_b32 v11, 4, v0")
    a.e(f"s_lshl_b32 s21, s{RB}, 7")
    a.e("s_lshl_b32 s22, s18, 5")
    a.e("s_add_u32 s21, s21, s22")
    a.e("v_add_u32 v12, s21, v10")
    a.e("v_mul_u32_u24 v12, 1152, v12")
    a.e(f"v_lshl_add_u32 v{XO0}, v11, 4, v12")
    a.e(f"v_add_u32 v{XO0+1}, {16*1152}, v{XO0}")
    a.e("s_waitcnt lgkmcnt(0)")
    srd(a, 28, 4, SZ)
    a.e(f"s_mul_i32 s21, s{HP}, 72")
    a.e("s_add_u32 s32, s6, s21")
    a.e("s_addc_u32 s33, s7, 0")
    a.e(f"s_sub_u32 s34, {576*3456}, s21")
    a.e("s_mov_b32 s35, 0x00020000")
    srd(a, 36, 16, WS_TOTAL)
    def issue_chunk(c):
        a.e(f"s_mov_b32 s22, {c*64*3456}")
        for q in range(4):
            a.e(f"s_add_u32 m0, s{24+q}, {K1_W+c*15360}")
            a.e("s_nop 0")
            a.vmem(f"buffer_load_dwordx4 v{DA0+q}, s[32:35], s22 offen lds", f"W{c}")
        for ks in (2*c, 2*c+1):
            for nt in range(2):
                a.vmem(f"buffer_load_dwordx4 {v(X0+(ks*2+nt)*4,4)}, v{XO0+nt}, s[28:31], 0 offen offset:{64*ks}", f"X{c}")
    st("kernarg")
    for c in range(7): issue_chunk(c)
    st("issued")
    a.e("v_bfe_u32 v10, v0, 2, 2")
    a.e("v_and_b32 v12, 3, v0")
    a.e("v_lshlrev_b32 v13, 3, v11")
    a.e("v_lshl_add_u32 v13, v10, 1, v13")
    a.e("v_mul_u32_u24 v13, 240, v13")
    a.e(f"v_add_u32 v13, {K1_W}, v13")
    for mt in range(7):
        a.e(f"v_add_u32 v14, {4*mt}, v12")
        a.e("v_mul_u32_u24 v15, 57, v14")
        a.e("v_lshrrev_b32 v15, 9, v15")
        a.e("v_add_u32 v14, v14, v15")
        a.e(f"v_lshl_add_u32 v{WA0+mt}, v14, 3, v13")
    a.e(f"v_mov_b32 v{FA}, {K1_CNT}")
    a.e(f"v_mov_b32 v{ONE}, 1")
    a.e("s_barrier")
    def arrive(c):
        a.e("s_mov_b64 exec, 1")
        a.lds(f"ds_add_u32 v{FA}, v{ONE} offset:{4*c}", "arr")
        a.e("s_mov_b64 exec, -1")
    def poll_issue(c):
        a.lds(f"ds_read_b32 v{POLL}, v{FA} offset:{4*c}", f"poll{c}")
    def poll_check(c):
        a.wait_lds(f"poll{c}")
        l1 = a.newlabel("k1_spin"); l2 = a.newlabel("k1_go")
        a.label(l1)
        a.e(f"v_readfirstlane_b32 s23, v{POLL}")
        a.e("s_cmp_ge_u32 s23, 4")
        a.e(f"s_cbranch_scc1 {l2}")
        a.e(f"ds_read_b32 v{POLL}, v{FA} offset:{4*c}")
        a.e("s_waitcnt lgkmcnt(0)")
        a.e(f"s_branch {l1}")
        a.label(l2)
    def rd(ks, mt):
        base = ks if ks < 9 else ks - 9
        for hf in range(2):
            a.lds(f"ds_read_b64_tr_b16 {v(WF0+mt*4+2*hf,2)}, v{WA0+mt} offset:{(32*base+hf)*240}", f"F{ks}_{mt}")
    st("barrier")
    a.wait_vm("W0"); st("W0own"); arrive(0); poll_issue(0); poll_check(0)
    st("W0all")
    for mt in range(7): rd(0, mt)
    for ks in range(18):
        c = ks // 2
        if ks % 2 == 0:
            if c + 1 <= 8:
                a.wait_vm(f"W{c+1}"); arrive(c + 1)
            else:
                a.wait_vm(None)
            if c + 7 <= 8: issue_chunk(c + 7)
        for mt in range(7):
            a.wait_lds(f"F{ks}_{mt}")
            for nt in range(2):
                acc = v(ACC0 + (mt*2+nt)*4, 4)
                a.e(f"v_mfma_f32_16x16x32_bf16 {acc}, {v(WF0+mt*4,4)}, {v(X0+(ks*2+nt)*4,4)}, {acc if ks else 0}")
            if ks + 1 < 18:
                if ks + 1 == 9:
                    a.e(f"v_add_u32 v{WA0+mt}, {9*7680}, v{WA0+mt}")
                rd(ks + 1, mt)
            if ks % 2 == 0 and mt == 3 and c + 1 <= 8:
                poll_issue(c + 1)
        if ks % 2 == 0 and c + 1 <= 8:
            poll_check(c + 1)
        if ks % 3 == 2: st(f"ks{ks}")
    a.e("v_and_b32 v10, 15, v0")
    a.e("v_lshrrev_b32 v11, 4, v0")
    a.e("s_mul_i32 s21, s18, 7680")
    a.e(f"s_add_u32 s21, s21, {K1_W}")
    a.e("v_mul_u32_u24 v10, 40, v10")
    a.e("v_add_u32 v10, s21, v10")
    EA, EB = 16, 24
    for mt in range(7):
        a.e(f"v_add_u32 v12, {4*mt}, v11")
        a.e("v_mul_u32_u24 v13, 57, v12")
        a.e("v_lshrrev_b32 v13, 9, v13")
        a.e("v_mul_u32_u24 v14, 9, v13")
        a.e("v_sub_u32 v12, v12, v14")
        a.e("v_mul_u32_u24 v13, 2560, v13")
        a.e("v_lshl_add_u32 v13, v12, 3, v13")
        a.e("v_cmp_le_u32 vcc, 5, v12")
        a.e("v_mov_b32 v14, 1240")
        a.e("v_cmp_eq_u32 s[40:41], 4, v12")
        a.e("v_cndmask_b32 v14, 0, v14, vcc")
        a.e(f"v_add3_u32 v{EA+mt}, v13, v14, v10")
        if mt in (1, 3, 5):
            a.e("v_mov_b32 v14, 1280")
            a.e("v_cndmask_b32 v14, 4, v14, s[40:41]")
            a.e(f"v_add_u32 v{EB+mt}, v{EA+mt}, v14")
    a.e(f"s_mov_b32 s22, {f32(QSCALE)}")
    a.e("v_mov_b32 v12, s22")
    a.e("v_cmp_eq_u32 vcc, 0, v11")
    a.e("s_nop 1")
    a.e("v_cndmask_b32 v12, 1.0, v12, vcc")
    T = 32
    for mt in range(7):
        for nt in range(2):
            ac = ACC0 + (mt*2+nt)*4
            if mt < 2:
                for i in range(4): a.e(f"v_mul_f32 v{ac+i}, s22, v{ac+i}")
            elif mt == 2:
                for i in range(4): a.e(f"v_mul_f32 v{ac+i}, v12, v{ac+i}")
            t = T + (mt*2+nt)*2
            a.e(f"v_cvt_pk_bf16_f32 v{t}, v{ac}, v{ac+1}")
            a.e(f"v_cvt_pk_bf16_f32 v{t+1}, v{ac+2}, v{ac+3}")
            if mt == 6: setexec(a, 0xffffffffffff)
            if mt in (1, 3, 5):
                a.lds(f"ds_write_b32 v{EA+mt}, v{t} offset:{nt*640}")
                a.lds(f"ds_write_b32 v{EB+mt}, v{t+1} offset:{nt*640}")
            else:
                a.lds(f"ds_write_b64 v{EA+mt}, {v(t,2)} offset:{nt*640}")
            if mt == 6: a.e("s_mov_b64 exec, -1")
    a.e("v_mul_u32_u24 v13, 40, v0")
    a.e("v_add_u32 v13, s21, v13")
    a.e("v_mov_b32 v14, 0x3f80")
    for i in range(3):
        a.lds(f"ds_write_b32 v13, v14 offset:{36+i*2560}")
    a.wait_lds(None)
    a.e("v_lshlrev_b32 v13, 4, v0")
    a.e("v_add_u32 v14, s21, v13")
    for i in range(8):
        a.lds(f"ds_read_b128 {v(64+4*i,4)}, v14 offset:{1024*i}", f"E{i}")
    a.e(f"s_lshl_b32 s22, s{RB}, 2")
    a.e("s_add_u32 s22, s22, s18")
    a.e("s_lshl_b32 s22, s22, 4")
    a.e(f"s_add_u32 s22, s22, s{HP}")
    a.e("s_mul_i32 s22, s22, 7680")
    for i in range(8):
        a.wait_lds(f"E{i}")
        if i == 4: a.e("s_add_u32 s22, s22, 4096")
        if i == 7: setexec(a, 0xffffffff)
        a.vmem(f"buffer_store_dwordx4 {v(64+4*i,4)}, v13, s[36:39], s22 offen offset:{1024*(i%4)}")
    st("stored")
    if asmlib.STAMP_ON: a.e("s_waitcnt vmcnt(0)")
    st("drained"); st.real("rt1")
    st.flush(16, 18, 0)
    a.e("s_endpgm")
    a.label("k1_helper")
    a.reset_counters()
    a.e("s_sub_u32 s18, s18, 4")
    a.e(f"v_lshlrev_b32 v1, 2, v0")
    a.e("v_mov_b32 v2, 0")
    a.e("v_cmp_gt_u32 vcc, 16, v0")
    a.e("s_and_saveexec_b64 s[40:41], vcc")
    a.e(f"ds_write_b32 v1, v2 offset:{K1_CNT}")
    a.e("s_mov_b64 exec, -1")
    a.e("v_mul_u32_u24 v1, 57, v0")
    a.e("v_lshrrev_b32 v1, 10, v1")
    a.e("v_mul_u32_u24 v2, 18, v1")
    a.e("v_sub_u32 v2, v0, v2")
    a.e("v_mul_u32_u24 v3, 3, v1")
    a.e("s_lshl_b32 s19, s18, 3")
    a.e("v_add_u32 v3, s19, v3")
    a.e("s_lshr_b32 s20, s2, 2")
    a.e("s_and_b32 s21, s2, 3")
    a.e("s_lshl_b32 s22, s20, 5")
    a.e("v_add_u32 v4, s22, v3")
    a.e("v_mul_u32_u24 v4, 1152, v4")
    a.e("s_mul_i32 s23, s21, 288")
    a.e("v_lshl_add_u32 v5, v2, 4, s23")
    a.e("v_add_u32 v4, v4, v5")
    for i in range(3):
        a.e(f"v_subrev_u32 v{6+i}, {(3-i)*1152}, v4")
    a.e("v_lshlrev_b32 v9, 2, v5")
    a.e("s_waitcnt lgkmcnt(0)")
    srd(a, 24, 8, SZ)
    srd(a, 28, 10, SZ)
    srd(a, 32, 12, 576*8)
    srd(a, 36, 16, WS_TOTAL)
    srd(a, 44, 4, SZ)
    srd(a, 48, 14, 576*2)
    KR, VR, SW = 16, 40, 52
    GX, GW = 68, 78
    for i in range(3): a.vmem(f"buffer_load_dwordx4 {v(KR+4*i,4)}, v{6+i}, s[24:27], 0 offen", "P")
    for i in range(3): a.vmem(f"buffer_load_dwordx4 {v(KR+12+4*i,4)}, v4, s[24:27], 0 offen offset:{1152*i}", "P")
    for i in range(3): a.vmem(f"buffer_load_dwordx4 {v(VR+4*i,4)}, v4, s[28:31], 0 offen offset:{1152*i}", "P")
    for i in range(4): a.vmem(f"buffer_load_dwordx4 {v(SW+4*i,4)}, v9, s[32:35], 0 offen offset:{16*i}", "P")
    a.e("v_lshrrev_b32 v10, 5, v0")
    a.e("s_lshl_b32 s23, s2, 3")
    a.e("s_lshl_b32 s19, s18, 1")
    a.e("s_add_u32 s23, s23, s19")
    a.e("v_add_u32 v10, s23, v10")
    a.e("v_and_b32 v11, 31, v0")
    a.e("v_lshlrev_b32 v11, 2, v11")
    a.e("v_mul_u32_u24 v12, 1152, v10")
    a.e("v_add_u32 v12, v12, v11")
    for i in range(9): a.vmem(f"buffer_load_dword v{GX+i}, v12, s[44:47], 0 offen offset:{128*i}", "G")
    for i in range(9): a.vmem(f"buffer_load_dword v{GW+i}, v11, s[48:51], 0 offen offset:{128*i}", "G")
    a.e("s_barrier")
    a.wait_vm("P")
    UK, UW, UV, TA, TP, OUT = 96, 108, 116, 122, 128, 136
    a.e("s_mov_b32 s42, 0xffff0000")
    for q in range(4):
        for r in range(6):
            a.e(f"v_lshlrev_b32 v{UK+2*r}, 16, v{KR+4*r+q}")
            a.e(f"v_and_b32 v{UK+2*r+1}, s42, v{KR+4*r+q}")
        for h in range(2):
            for t in range(2):
                src = SW + (2*q+h)*2 + t
                a.e(f"v_lshlrev_b32 v{UW+4*h+2*t}, 16, v{src}")
                a.e(f"v_and_b32 v{UW+4*h+2*t+1}, s42, v{src}")
        for r in range(3):
            a.e(f"v_lshlrev_b32 v{UV+2*r}, 16, v{VR+4*r+q}")
            a.e(f"v_and_b32 v{UV+2*r+1}, s42, v{VR+4*r+q}")
        ch = [(r, h) for r in range(3) for h in range(2)]
        def each(fn):
            for n, (r, h) in enumerate(ch): fn(n, r, h)
        each(lambda n, r, h: a.e(f"v_mul_f32 v{TA+n}, v{UK+2*(r+0)+h}, v{UW+4*h+3}"))
        each(lambda n, r, h: a.e(f"v_mul_f32 v{TP+n}, v{UK+2*(r+1)+h}, v{UW+4*h+2}"))
        each(lambda n, r, h: rnd(a, TA+n, TA+n))
        for t in (1, 2, 3):
            each(lambda n, r, h: rnd(a, TP+n, TP+n))
            each(lambda n, r, h: a.e(f"v_add_f32 v{TA+n}, v{TA+n}, v{TP+n}"))
            if t < 3:
                each(lambda n, r, h: a.e(f"v_mul_f32 v{TP+n}, v{UK+2*(r+t+1)+h}, v{UW+4*h+2-t}"))
            each(lambda n, r, h: rnd(a, TA+n, TA+n))
        each(lambda n, r, h: a.e(f"v_mul_f32 v{TA+n}, v{TA+n}, v{UV+2*r+h}"))
        for r in range(3):
            a.e(f"v_cvt_pk_bf16_f32 v{OUT+4*r+q}, v{TA+2*r}, v{TA+2*r+1}")
    a.e("v_mul_u32_u24 v13, 288, v3")
    a.e("v_lshl_add_u32 v13, v2, 4, v13")
    setexec(a, 0x3fffffffffffff)
    a.lds(f"ds_write_b128 v13, {v(OUT,4)} offset:{K1_PREP}")
    a.lds(f"ds_write_b128 v13, {v(OUT+4,4)} offset:{K1_PREP+288}")
    setexec(a, 0xfffffffff)
    a.lds(f"ds_write_b128 v13, {v(OUT+8,4)} offset:{K1_PREP+576}")
    a.e(f"v_mov_b32 v14, {K1_CNT}")
    a.e("v_mov_b32 v15, 1")
    a.wait_lds(None)
    a.e("s_mov_b64 exec, 1")
    a.lds("ds_add_u32 v14, v15 offset:36")
    a.e("s_mov_b64 exec, -1")
    a.e(f"v_mov_b32 v14, {K1_CNT}")
    a.wait_vm("G")
    a.e("v_mov_b32 v16, 0")
    a.e("v_mov_b32 v17, 0")
    for i in range(9):
        a.e(f"v_lshlrev_b32 v20, 16, v{GX+i}")
        a.e(f"v_and_b32 v21, s42, v{GX+i}")
        a.e(f"v_lshlrev_b32 v22, 16, v{GW+i}")
        a.e(f"v_and_b32 v23, s42, v{GW+i}")
        a.e("v_mul_f32 v20, v20, v22")
        a.e("v_mul_f32 v21, v21, v23")
        rnd(a, 20, 20); rnd(a, 21, 21)
        a.e("v_add_f32 v16, v16, v20")
        a.e("v_add_f32 v17, v17, v21")
    a.e("v_add_f32 v16, v16, v17")
    for m in (1, 2, 4, 8, 16):
        a.lds(f"ds_swizzle_b32 v17, v16 offset:{(m<<10)|0x1f}")
        a.wait_lds(None)
        a.e("v_add_f32 v16, v16, v17")
    rnd(a, 16, 16)
    a.e(f"v_mul_f32 v16, {f32(-1.4426950408889634)}, v16")
    a.e("v_exp_f32 v16, v16")
    a.e("s_nop 0")
    a.e("v_add_f32 v16, 1.0, v16")
    a.e("v_rcp_f32 v16, v16")
    a.e("s_nop 0")
    rnd(a, 16, 16)
    a.e("v_lshlrev_b32 v10, 2, v10")
    a.e(f"s_mov_b32 s23, {WS_G}")
    setexec(a, 0x100000001)
    a.vmem("buffer_store_dword v16, v10, s[36:39], s23 offen")
    a.e("s_mov_b64 exec, -1")
    a.label("k1_hspin")
    a.e("ds_read_b32 v15, v14 offset:36")
    a.e("s_waitcnt lgkmcnt(0)")
    a.e("v_readfirstlane_b32 s23, v15")
    a.e("s_cmp_ge_u32 s23, 4")
    a.e("s_cbranch_scc0 k1_hspin")
    a.lgkm = []
    a.e("v_lshrrev_b32 v1, 4, v0")
    a.e("v_bfe_u32 v2, v0, 2, 2")
    a.e("v_and_b32 v3, 3, v0")
    a.e("v_sub_u32 v2, 3, v2")
    a.e("v_lshl_add_u32 v2, v2, 2, v1")
    a.e("v_mul_u32_u24 v2, 288, v2")
    a.e("v_lshl_add_u32 v2, v3, 3, v2")
    a.e("s_lshl_b32 s19, s18, 5")
    a.e("v_add_u32 v2, s19, v2")
    a.e("v_and_b32 v4, 15, v0")
    a.e("s_mul_i32 s23, s21, 144")
    a.e("s_lshl_b32 s19, s18, 4")
    a.e("s_add_u32 s23, s23, s19")
    a.e("v_add_u32 v4, s23, v4")
    a.e("v_lshlrev_b32 v4, 12, v4")
    a.e("v_lshl_add_u32 v4, v1, 4, v4")
    a.e("s_lshl_b32 s23, s20, 6")
    a.e(f"s_add_u32 s23, s23, {WS_U}")
    for i in range(3):
        if i == 2:
            a.e("s_cmp_lg_u32 s18, 0")
            a.e("s_cbranch_scc1 k1_end")
        a.lds(f"ds_read_b64_tr_b16 {v(16+4*i,2)}, v2 offset:{K1_PREP+16*288+128*i}")
        a.lds(f"ds_read_b64_tr_b16 {v(18+4*i,2)}, v2 offset:{K1_PREP+128*i}")
        a.wait_lds(None)
        a.vmem(f"buffer_store_dwordx4 {v(16+4*i,4)}, v4, s[36:39], s23 offen")
        a.e(f"s_add_u32 s23, s23, {64*4096}")
    a.label("k1_end")
    a.e("s_endpgm")

CV_K = 0
CV_U = 4128 + 32
CV_SZ = CV_U + 4608 + 64
K2_LDS = 4 * CV_SZ
NCONV = 144

def gen_conv(a, D_s, LB_s, end_label):
    AF, E0, O0, BF = 16, 80, 128, 176
    a.e("v_lshlrev_b32 v1, 4, v0")
    a.e(f"s_lshl_b32 s20, s{D_s}, 12")
    for i in range(4):
        a.e(f"s_add_u32 m0, s{LB_s}, {CV_K+32}")
        a.e("s_nop 0")
        a.vmem(f"buffer_load_dwordx4 v1, s[24:27], s20 offen offset:{1024*i} lds", "K")
    a.e("v_sub_u32 v2, 63, v0")
    a.e("v_lshlrev_b32 v2, 6, v2")
    a.e(f"s_add_u32 s21, s20, {WS_U}")
    for rho in range(4):
        a.e(f"s_add_u32 m0, s{LB_s}, {CV_U+1152*rho}")
        a.e("s_nop 0")
        a.vmem(f"buffer_load_dwordx4 v2, s[28:31], s21 offen lds", "U")
        a.e("s_add_u32 s21, s21, 16")
    a.e(f"s_lshl_b32 s21, s{D_s}, 1")
    a.e("v_mov_b32 v3, s21")
    a.vmem("buffer_load_ushort v4, v3, s[32:35], 0 offen", "U")
    a.e("v_lshlrev_b32 v5, 2, v0")
    a.e(f"v_add_u32 v5, s{LB_s}, v5")
    a.e("v_mov_b32 v6, 0")
    setexec(a, 0xffffffff)
    for rho in range(4):
        a.lds(f"ds_write_b32 v5, v6 offset:{CV_U+1152*rho+1024}")
    setexec(a, 0xff)
    a.lds(f"ds_write_b32 v5, v6 offset:{CV_K}")
    a.e("s_mov_b64 exec, -1")
    a.e("v_lshrrev_b32 v7, 4, v0")
    a.e("v_bfe_u32 v8, v0, 2, 2")
    a.e("v_and_b32 v9, 3, v0")
    a.e("v_lshlrev_b32 v10, 3, v7")
    a.e("v_add3_u32 v10, v10, v8, v9")
    a.e("v_lshlrev_b32 v10, 3, v10")
    a.e(f"v_add_u32 v10, s{LB_s}, v10")
    a.e("v_and_b32 v11, 15, v0")
    a.e("v_lshlrev_b32 v12, 4, v7")
    a.e("v_lshlrev_b32 v13, 3, v11")
    a.e("v_sub_u32 v12, v12, v13")
    a.e(f"v_add_u32 v12, {2*508-64*14}, v12")
    a.e(f"v_add_u32 v12, s{LB_s}, v12")
    for t in range(8):
        for arr in (E0, O0):
            a.e(f"v_mov_b32 v{arr+6*t+4}, 0")
            a.e(f"v_mov_b32 v{arr+6*t+5}, 0")
    a.wait_vm("K")
    a.wait_lds(None)
    for kap in range(16):
        for hf in range(2):
            a.lds(f"ds_read_b64_tr_b16 {v(AF+4*kap+2*hf,2)}, v10 offset:{CV_K+8+256*kap+32*hf}", "A")
        if kap == 6: a.wait_lds(None)
    a.wait_vm("U")
    seq = [(rho, lam) for rho in range(4) for lam in range(-1, 15)]
    def rdB(i):
        rho, lam = seq[i]
        b = BF + 4 * (i % 4)
        for hf in range(2):
            a.lds(f"ds_read_b64 {v(b+2*hf,2)}, v12 offset:{CV_U+1152*rho+64*(14-lam)+8*hf}", f"B{i}")
    a.wait_lds(None)
    for i in range(3): rdB(i)
    for i, (rho, lam) in enumerate(seq):
        if i + 3 < len(seq): rdB(i + 3)
        a.wait_lds(f"B{i}")
        b = BF + 4 * (i % 4)
        for tau in range(8):
            kap = 2 * tau - lam
            if kap < 0 or kap > 15: continue
            arr = E0 if rho % 2 == 0 else O0
            w = arr + 6 * tau + (rho // 2) * 2
            first = (rho < 2 and lam == -1)
            a.e(f"v_mfma_f32_16x16x32_bf16 {v(w,4)}, {v(AF+4*kap,4)}, {v(b,4)}, {0 if first else v(w,4)}")
    UU = AF
    for i in range(32): a.e(f"v_mov_b32 v{UU+i}, 0")
    a.e("v_lshl_add_u32 v13, v11, 2, v7")
    a.e("v_lshlrev_b32 v13, 1, v13")
    a.e(f"v_sub_u32 v13, {2*511-128*7}, v13")
    a.e(f"v_add_u32 v13, s{LB_s}, v13")
    for tau in range(8):
        for i in range(4):
            a.lds(f"ds_read_u16_d16_hi v{UU+4*tau+i}, v13 offset:{CV_U+1152*i+128*(7-tau)}", f"u{tau}")
        if tau % 3 == 2: a.wait_lds(None)
    a.e("v_subrev_u32 v14, 16, v0")
    a.e("v_add_u32 v15, 47, v0")
    a.e("v_cmp_gt_u32 vcc, 16, v0")
    a.e("s_nop 1")
    a.e("v_cndmask_b32 v14, v14, v15, vcc")
    a.e("v_cmp_eq_u32 vcc, 0, v0")
    a.e("s_nop 1")
    a.e("v_cndmask_b32 v14, v14, 63, vcc")
    a.e("v_lshlrev_b32 v14, 2, v14")
    a.e("s_mov_b32 s40, 0")
    a.e("s_mov_b32 s41, 0x80000000")
    a.e("v_lshlrev_b32 v4, 16, v4")
    a.e("s_nop 4")
    for tau in range(8):
        e = E0 + 6 * tau; o = O0 + 6 * tau
        for i in range(5): a.e(f"v_add_f32 v{e+1+i}, v{e+1+i}, v{o+i}")
    Z = 48
    for tau in range(8):
        cur = [E0+6*tau+4, E0+6*tau+5, O0+6*tau+5]
        prv = [E0+6*(tau-1)+4, E0+6*(tau-1)+5, O0+6*(tau-1)+5]
        for j in range(3):
            a.e(f"v_cndmask_b32 v{Z+3*tau+j}, v{cur[j]}, {('v%d' % prv[j]) if tau else 0}, s[40:41]")
        for j in range(3):
            a.lds(f"ds_bpermute_b32 v{Z+3*tau+j}, v14, v{Z+3*tau+j}", f"z{tau}")
        if tau % 4 == 3: a.wait_lds(None)
    a.e("v_lshlrev_b32 v15, 5, v11")
    a.e("v_lshl_add_u32 v15, v7, 3, v15")
    a.e(f"s_add_u32 s21, s20, {WS_Z}")
    for tau in range(8):
        e = E0 + 6 * tau
        for j in range(3): a.e(f"v_add_f32 v{e+j}, v{e+j}, v{Z+3*tau+j}")
        for i in range(4): a.e(f"v_mul_f32 v{UU+4*tau+i}, v{UU+4*tau+i}, v4")
        for i in range(4): rnd(a, e+i, e+i)
        for i in range(4): rnd(a, UU+4*tau+i, UU+4*tau+i)
        for i in range(4): a.e(f"v_add_f32 v{e+i}, v{e+i}, v{UU+4*tau+i}")
        a.e(f"v_cvt_pk_bf16_f32 v{e}, v{e}, v{e+1}")
        a.e(f"v_cvt_pk_bf16_f32 v{e+1}, v{e+2}, v{e+3}")
        a.vmem(f"buffer_store_dwordx2 {v(e,2)}, v15, s[28:31], s21 offen offset:{512*tau}")

AT_K = 0
AT_V = 15360
NEGINF = "0xff800000"

def lane_mask(fn):
    m = 0
    for l in range(64):
        if fn(l): m |= 1 << l
    return m

def gen_attn_task(a, QT_s, T0_s, pfx):
    pass

def gen_k2(a):
    kernel_head(a, "k2_kernel")
    a.e(f"s_cmp_ge_u32 s2, {NCONV+512}")
    a.e("s_cbranch_scc1 k2_end")
    a.e("s_load_dwordx4 s[4:7], s[0:1], 56")
    a.e("s_load_dwordx2 s[16:17], s[0:1], 96")
    a.e("v_lshrrev_b32 v1, 6, v0")
    a.e("v_and_b32 v0, 63, v0")
    a.e("v_readfirstlane_b32 s18, v1")
    a.e("s_waitcnt lgkmcnt(0)")
    srd(a, 28, 16, WS_TOTAL)
    a.e(f"s_cmp_ge_u32 s2, {NCONV}")
    a.e("s_cbranch_scc1 k2_attn")
    srd(a, 24, 4, SZ)
    srd(a, 32, 6, 576*2)
    a.e("s_lshl_b32 s19, s2, 2")
    a.e("s_add_u32 s19, s19, s18")
    a.e(f"s_mul_i32 s22, s18, {CV_SZ}")
    gen_conv(a, 19, 22, "k2_end")
    a.e("s_endpgm")
    a.label("k2_attn")
    a.reset_counters()
    a.e(f"s_sub_u32 s19, s2, {NCONV}")
    a.e("s_and_b32 s20, s19, 31")
    a.e("s_lshr_b32 s21, s19, 5")
    a.e("s_lshr_b32 s22, s20, 1")
    a.e("s_and_b32 s23, s20, 1")
    a.e("s_mul_i32 s24, s22, 7680")
    a.e("s_mul_i32 s25, s23, 1280")
    a.e("s_add_u32 s24, s24, s25")
    a.e("s_lshl_b32 s25, s21, 2")
    a.e("s_sub_u32 s25, s25, 8")
    for q in range(4):
        a.e(f"s_add_u32 s26, s18, {4*q}")
        a.e("s_cmp_ge_u32 s26, 15")
        a.e("s_cselect_b32 s26, 11, s26")
        a.e("s_lshl_b32 s27, s26, 10")
        a.e("s_lshl_b32 s26, s26, 6")
        a.e("v_add_u32 v2, s26, v0")
        a.e("v_mul_u32_u24 v3, 3277, v2")
        a.e("v_lshrrev_b32 v3, 18, v3")
        a.e("v_mul_u32_u24 v4, 80, v3")
        a.e("v_sub_u32 v4, v2, v4")
        a.e("v_add_u32 v3, s25, v3")
        a.e("v_max_i32 v3, 0, v3")
        a.e("v_mul_u32_u24 v3, 122880, v3") if False else a.e("v_mul_u32_u24 v3, 0x1e000, v3")
        a.e("v_lshl_add_u32 v3, v4, 4, v3")
        a.e(f"s_add_u32 m0, s27, {AT_K}")
        a.e(f"s_add_u32 s26, s24, 2560")
        a.vmem("buffer_load_dwordx4 v3, s[28:31], s26 offen lds", "S")
        a.e(f"s_add_u32 m0, s27, {AT_V}")
        a.e(f"s_add_u32 s26, s24, 5120")
        a.vmem("buffer_load_dwordx4 v3, s[28:31], s26 offen lds", "S")
    Q1, Q2 = 8, 12
    KA, KB = 16, 24
    VF = 32
    S0, S1 = 48, 64
    P0 = 80
    OA = 96
    MD, MF = 112, 128
    NM = 40
    a.e("v_and_b32 v1, 31, v0")
    a.e("v_lshrrev_b32 v2, 5, v0")
    a.e("v_mul_u32_u24 v3, 40, v1")
    a.e("v_lshl_add_u32 v4, v2, 4, v3")
    a.e("s_lshl_b32 s25, s21, 2")
    a.e("s_add_u32 s25, s25, s18")
    a.e("s_mul_i32 s26, s25, 0x1e000")
    a.e("s_add_u32 s26, s26, s24")
    a.vmem(f"buffer_load_dwordx4 {v(Q1,4)}, v4, s[28:31], s26 offen", "Q")
    a.vmem(f"buffer_load_dword v{Q2}, v3, s[28:31], s26 offen offset:32", "Q")
    for ri in range(16):
        j, i = ri // 4, ri % 4
        md = lane_mask(lambda l: 8*j + 4*(l >> 5) + i <= (l & 31))
        a.e(f"s_mov_b32 s40, 0x{md & 0xffffffff:x}")
        a.e(f"s_mov_b32 s41, 0x{md >> 32:x}")
        a.e(f"v_mov_b32 v5, {NEGINF}")
        a.e(f"v_cndmask_b32 v{MD+ri}, v5, 0, s[40:41]")
        a.e(f"v_cndmask_b32 v{MF+ri}, 0, v5, s[40:41]")
    a.e("s_mul_i32 s26, s18, 1280")
    a.e("v_add_u32 v4, s26, v4")
    a.e("v_add_u32 v3, s26, v3")
    a.e("v_bfe_u32 v5, v0, 2, 2")
    a.e("v_lshl_add_u32 v5, v2, 2, v5")
    a.e("v_mul_u32_u24 v5, 40, v5")
    a.e("v_and_b32 v6, 3, v0")
    a.e("v_lshlrev_b32 v6, 3, v6")
    a.e("v_bfe_u32 v7, v0, 4, 1")
    a.e("v_cmp_eq_u32 vcc, 1, v7")
    a.e("s_nop 1")
    a.e("v_cndmask_b32 v6, v6, 32, vcc")
    a.e("v_add3_u32 v5, v5, v6, s26")
    a.e("s_sub_i32 s27, 8, s25")
    a.e("s_max_i32 s27, s27, 0")
    a.wait_vm(None)
    a.e("s_barrier")

    def rdK(buf, t):
        a.lds(f"ds_read_b64 {v(buf,2)}, v4 offset:{AT_K+1280*t}", f"K{t}")
        a.lds(f"ds_read_b64 {v(buf+2,2)}, v4 offset:{AT_K+1280*t+8}", f"K{t}")
        a.lds(f"ds_read_b64 {v(buf+4,2)}, v3 offset:{AT_K+1280*t+32}", f"K{t}")
    def rdV(t):
        for i in range(4):
            a.lds(f"ds_read_b64_tr_b16 {v(VF+2*i,2)}, v5 offset:{AT_V+1280*t+320*i}", f"V{t}")
    def qk(S, buf, t):
        c = v(MD, 16) if t == 8 else (v(MF, 16) if t == 0 else 0)
        a.e(f"v_mfma_f32_32x32x16_bf16 {v(S,16)}, {v(buf,4)}, {v(Q1,4)}, {c}")
        a.e(f"v_mfma_f32_32x32x8_bf16 {v(S,16)}, {v(buf+4,2)}, {v(Q2,2)}, {v(S,16)}")

    rdK(KA, 8)
    a.e("v_cmp_eq_u32 s[42:43], 0, v2")
    a.e("s_nop 1")
    a.e(f"v_cndmask_b32 v{Q2}, 0, v{Q2}, s[42:43]")
    a.wait_lds("K8")
    a.e(f"v_dot2_f32_bf16 v6, v{Q1}, v{KA}, 0")
    for i in range(1, 4): a.e(f"v_dot2_f32_bf16 v6, v{Q1+i}, v{KA+i}, v6")
    a.e(f"v_dot2_f32_bf16 v6, v{Q2}, v{KA+4}, v6")
    a.e("s_nop 3")
    a.e("v_mov_b32 v7, v6")
    a.e("s_nop 1")
    a.e("v_permlane32_swap_b32 v6, v7")
    a.e("s_nop 1")
    a.e("v_add_f32 v6, v6, v7")
    a.e("v_sub_f32 v6, 0, v6")
    a.e("v_cvt_pk_bf16_f32 v6, v6, 0")
    a.e(f"v_cndmask_b32 v{Q2+1}, 0, v6, s[42:43]")
    a.e("s_nop 1")

    def softmax_pass(sub, pfx):
        done = f"{pfx}_done"
        bufs = [KA, KB]; Ss = [S0, S1]
        qk(S0, KA, 8)
        for n, t in enumerate(range(8, -1, -1)):
            S = Ss[n % 2]
            last = f"{pfx}_last{t}"; join = f"{pfx}_join{t}"
            rdV(t)
            if t > 0:
                a.e(f"s_cmp_gt_u32 s27, {t-1}")
                a.e(f"s_cbranch_scc1 {last}")
                rdK(bufs[(n+1) % 2], t - 1)
                a.wait_lds(f"K{t-1}")
                qk(Ss[(n+1) % 2], bufs[(n+1) % 2], t - 1)
                a.label(last)
            a.e("s_nop 7")
            a.e("s_nop 3")
            for i in range(16):
                if sub: a.e(f"v_add_f32 v{S+i}, v{S+i}, v{NM}")
                a.e(f"v_exp_f32 v{S+i}, v{S+i}")
                if i % 2 == 1 and i >= 3:
                    a.e(f"v_cvt_pk_bf16_f32 v{P0+(i-3)//2}, v{S+i-3}, v{S+i-2}")
            a.e("s_nop 0")
            a.e(f"v_cvt_pk_bf16_f32 v{P0+7}, v{S+14}, v{S+15}")
            a.e("s_waitcnt lgkmcnt(0)"); a.lgkm = []
            a.e("s_nop 0")
            a.e(f"v_mfma_f32_32x32x16_bf16 {v(OA,16)}, {v(VF,4)}, {v(P0,4)}, {v(OA,16) if n else 0}")
            a.e(f"v_mfma_f32_32x32x16_bf16 {v(OA,16)}, {v(VF+4,4)}, {v(P0+4,4)}, {v(OA,16)}")
            if t > 0:
                a.e(f"s_cmp_gt_u32 s27, {t-1}")
                a.e(f"s_cbranch_scc1 {done}")
        a.label(done)
        a.e("s_nop 7")
        a.e("s_nop 3")

    softmax_pass(False, "k2a")
    a.e(f"v_mov_b32 v6, v{OA+10}")
    for i in range(10): a.e(f"v_fma_f32 v6, v{OA+i}, 0, v6")
    a.e(f"v_cmp_nge_f32 vcc, v6, {f32(2.0**-30)}") if False else None
    a.e(f"s_mov_b32 s40, {f32(2.0**-30)}")
    a.e(f"s_mov_b32 s41, {f32(2.0**100)}")
    a.e("v_cmp_nlt_f32 vcc, s40, v6")
    a.e("v_cmp_ngt_f32 s[44:45], s41, v6")
    a.e("s_or_b64 vcc, vcc, s[44:45]")
    a.e("s_cbranch_vccz k2_fin")
    a.e(f"v_mov_b32 v{Q2+1}, 0")
    a.e(f"v_mov_b32 v{NM}, {NEGINF}")
    for t in range(8, -1, -1):
        rdK(KA, t)
        a.wait_lds(None)
        qk(S0, KA, t)
        a.e("s_nop 7"); a.e("s_nop 3")
        for i in range(8): a.e(f"v_max3_f32 v{NM}, v{S0+2*i}, v{S0+2*i+1}, v{NM}")
        if t > 0:
            a.e(f"s_cmp_gt_u32 s27, {t-1}")
            a.e("s_cbranch_scc1 k2_maxdone")
    a.label("k2_maxdone")
    rdK(KA, 8)
    a.e(f"v_mov_b32 v7, v{NM}")
    a.e("s_nop 1")
    a.e(f"v_permlane32_swap_b32 v{NM}, v7")
    a.e("s_nop 1")
    a.e(f"v_max_f32 v{NM}, v{NM}, v7")
    a.e(f"v_sub_f32 v{NM}, 0, v{NM}")
    a.wait_lds(None)
    softmax_pass(True, "k2b")
    a.label("k2_fin")
    a.e(f"v_rcp_f32 v6, v{OA+10}")
    a.e("s_nop 0")
    for i in range(10): a.e(f"v_mul_f32 v{OA+i}, v{OA+i}, v6")
    for i in range(5): a.e(f"v_cvt_pk_bf16_f32 v{P0+i}, v{OA+2*i}, v{OA+2*i+1}")
    a.e(f"v_mov_b32 v{P0+5}, 0")
    a.e("s_lshl_b32 s26, s25, 5")
    a.e("v_add_u32 v6, s26, v1")
    a.e("v_mul_u32_u24 v6, 80, v6")
    a.e("v_lshl_add_u32 v7, v2, 3, v6")
    a.e("s_mul_i32 s26, s22, 163840")
    a.e("s_mul_i32 s40, s23, 40")
    a.e("s_add_u32 s26, s26, s40")
    a.e(f"s_add_u32 s26, s26, {WS_O}")
    a.vmem(f"buffer_store_dwordx2 {v(P0,2)}, v7, s[28:31], s26 offen")
    a.vmem(f"buffer_store_dwordx2 {v(P0+2,2)}, v7, s[28:31], s26 offen offset:16")
    setexec(a, 0xffffffff)
    a.vmem(f"buffer_store_dwordx2 {v(P0+4,2)}, v6, s[28:31], s26 offen offset:32")
    a.label("k2_end")
    a.e("s_endpgm")

K3_Z = 0
K3_W = 10240
K3_LDS = K3_W + 576 * 144 + 1024

def gen_k3(a):
    kernel_head(a, "k3_kernel")
    a.e("s_cmp_ge_u32 s2, 256")
    a.e("s_cbranch_scc1 k3_end")
    a.e("s_load_dwordx2 s[4:5], s[0:1], 0")
    a.e("s_load_dwordx2 s[6:7], s[0:1], 16")
    a.e("s_load_dwordx2 s[8:9], s[0:1], 80")
    a.e("s_load_dwordx2 s[16:17], s[0:1], 96")
    a.e("v_lshrrev_b32 v1, 6, v0")
    a.e("v_and_b32 v0, 63, v0")
    a.e("v_readfirstlane_b32 s18, v1")
    a.e("s_and_b32 s19, s2, 7")
    a.e("s_lshl_b32 s19, s19, 2")
    a.e("s_bfe_u32 s20, s2, 0x20003")
    a.e("s_add_u32 s19, s19, s20")
    a.e("s_lshr_b32 s20, s2, 5")
    OF, ACC, WF, WA, OA_ = 16, 96, 116, 160, 172
    a.e("v_and_b32 v2, 15, v0")
    a.e("v_lshrrev_b32 v3, 4, v0")
    a.e("s_lshl_b32 s21, s19, 6")
    a.e("s_lshl_b32 s22, s18, 4")
    a.e("s_add_u32 s21, s21, s22")
    a.e("v_add_u32 v4, s21, v2")
    a.e("v_mul_u32_u24 v5, 80, v4")
    a.e("s_mov_b32 s22, 163840")
    for k5 in range(5):
        a.e(f"v_add_u32 v6, {4*k5}, v3")
        a.e("v_mul_u32_u24 v7, 52, v6")
        a.e("v_lshrrev_b32 v7, 8, v7")
        a.e("v_mul_u32_u24 v8, 5, v7")
        a.e("v_sub_u32 v6, v6, v8")
        a.e("v_mul_lo_u32 v7, v7, s22")
        a.e("v_lshl_add_u32 v7, v6, 4, v7")
        a.e(f"v_add_u32 v{OA_+k5}, v7, v5")
    a.e("s_waitcnt lgkmcnt(0)")
    srd(a, 24, 4, SZ)
    a.e("s_mul_i32 s22, s20, 144")
    a.e("s_add_u32 s28, s6, s22")
    a.e("s_addc_u32 s29, s7, 0")
    a.e(f"s_sub_u32 s30, {576*1152}, s22")
    a.e("s_mov_b32 s31, 0x00020000")
    srd(a, 32, 8, SZ)
    srd(a, 36, 16, WS_TOTAL)
    for q in range(3):
        a.e(f"s_add_u32 s22, s18, {4*q}")
        a.e("s_cmp_ge_u32 s22, 9")
        a.e("s_cselect_b32 s22, s18, s22")
        a.e(f"s_lshl_b32 s{40+q}, s22, 10")
        a.e("s_lshl_b32 s22, s22, 6")
        a.e("v_add_u32 v6, s22, v0")
        a.e("v_mul_u32_u24 v7, 7282, v6")
        a.e("v_lshrrev_b32 v7, 16, v7")
        a.e("v_mul_u32_u24 v8, 9, v7")
        a.e("v_sub_u32 v8, v6, v8")
        a.e("v_mul_u32_u24 v7, 1152, v7")
        a.e(f"v_lshl_add_u32 v{9+q}, v8, 4, v7")
    for grp in range(9):
        a.e(f"s_mov_b32 s22, {grp*64*1152}")
        for q in range(3):
            a.e(f"s_add_u32 m0, s{40+q}, {K3_W+grp*9216}")
            a.e("s_nop 0")
            a.vmem(f"buffer_load_dwordx4 v{9+q}, s[28:31], s22 offen lds", "W")
    a.e("v_lshrrev_b32 v6, 3, v0")
    a.e("v_and_b32 v7, 7, v0")
    a.e("v_lshlrev_b32 v6, 12, v6")
    a.e("v_lshl_add_u32 v6, v7, 4, v6")
    a.e("s_mul_i32 s22, s20, 72")
    a.e("s_lshl_b32 s22, s22, 12")
    a.e("s_lshl_b32 s23, s19, 7")
    a.e("s_add_u32 s22, s22, s23")
    a.e(f"s_add_u32 s22, s22, {WS_Z}")
    for q in range(3):
        a.e(f"s_add_u32 m0, s{40+q}, {K3_Z}")
        a.e(f"s_lshl_b32 s23, s{40+q}, 5")
        a.e("s_add_u32 s23, s23, s22")
        a.vmem("buffer_load_dwordx4 v6, s[36:39], s23 offen lds", "W")
    for ks in range(20):
        if ks % 5 == 0: a.e(f"s_mov_b32 s22, {WS_O + (ks//5)*4*163840}")
        a.vmem(f"buffer_load_dwordx4 {v(OF+4*ks,4)}, v{OA_+ks%5}, s[36:39], s22 offen", "O")
    XE, GE = 180, 190
    a.e("v_mul_u32_u24 v5, 1152, v4")
    a.e("v_lshl_add_u32 v5, v3, 3, v5")
    a.e("s_mul_i32 s23, s20, 144")
    for mt in range(5):
        a.vmem(f"buffer_load_dwordx2 {v(XE+2*mt,2)}, v5, s[24:27], s23 offen offset:{32*mt}", "X")
    a.e("v_lshlrev_b32 v6, 2, v4")
    a.e(f"s_mov_b32 s22, {WS_G}")
    a.vmem(f"buffer_load_dword v{GE}, v6, s[36:39], s22 offen", "X")
    a.e("v_bfe_u32 v6, v0, 2, 2")
    a.e("v_and_b32 v7, 3, v0")
    for k5 in range(5):
        for hf in range(2):
            a.e(f"v_lshl_add_u32 v8, v3, 1, {8*k5+hf}")
            a.e("v_mul_u32_u24 v9, 26, v8")
            a.e("v_lshrrev_b32 v9, 8, v9")
            a.e("v_mul_u32_u24 v10, 10, v9")
            a.e("v_sub_u32 v8, v8, v10")
            a.e("v_cmp_eq_u32 vcc, 9, v8")
            a.e("v_lshlrev_b32 v8, 2, v8")
            a.e("v_mul_u32_u24 v9, 36, v9")
            a.e("v_cndmask_b32 v8, v8, 18, vcc")
            a.e("v_add3_u32 v8, v8, v9, v6")
            a.e("v_mul_u32_u24 v8, 144, v8")
            a.e(f"v_add_u32 v8, {K3_W}, v8")
            a.e(f"v_lshl_add_u32 v{WA+2*k5+hf}, v7, 3, v8")
    a.wait_vm("W")
    a.e("s_barrier")
    def rd(ks):
        b = WF + 20 * (ks % 2)
        for mt in range(5):
            for hf in range(2):
                a.lds(f"ds_read_b64_tr_b16 {v(b+4*mt+2*hf,2)}, v{WA+2*(ks%5)+hf} offset:{(ks//5)*144*144+32*mt}", f"F{ks}")
    rd(0)
    a.wait_vm("O")
    for ks in range(20):
        if ks + 1 < 20: rd(ks + 1)
        a.wait_lds(f"F{ks}")
        b = WF + 20 * (ks % 2)
        for mt in range(5):
            acc = v(ACC + 4*mt, 4)
            a.e(f"v_mfma_f32_16x16x32_bf16 {acc}, {v(b+4*mt,4)}, {v(OF+4*ks,4)}, {acc if ks else 0}")
    a.e("v_lshl_add_u32 v8, v3, 2, v6")
    a.e("v_lshlrev_b32 v8, 7, v8")
    a.e("v_lshl_add_u32 v8, v7, 3, v8")
    a.e("s_lshl_b32 s22, s18, 5")
    a.e("v_add_u32 v8, s22, v8")
    ZE = 16
    for mt in range(5):
        a.lds(f"ds_read_b64_tr_b16 {v(ZE+2*mt,2)}, v8 offset:{K3_Z+2048*mt}")
    a.wait_vm(None)
    a.e(f"v_sub_f32 v9, 1.0, v{GE}")
    rnd(a, 9, 9)
    a.e("s_mov_b32 s42, 0xffff0000")
    a.wait_lds(None)
    T = 32
    for mt in range(5):
        ac = ACC + 4*mt
        for i in range(4):
            op = "v_lshlrev_b32 v%d, 16, v%d" if i % 2 == 0 else "v_and_b32 v%d, s42, v%d"
            a.e(op % (T+i, XE+2*mt+i//2))
            a.e(op % (T+4+i, ZE+2*mt+i//2))
        for i in range(4): rnd(a, ac+i, ac+i)
        for i in range(4): a.e(f"v_mul_f32 v{T+i}, v{T+i}, v{T+4+i}")
        for i in range(4): a.e(f"v_mul_f32 v{ac+i}, v{ac+i}, v{GE}")
        for i in range(4): rnd(a, T+i, T+i)
        for i in range(4): rnd(a, ac+i, ac+i)
        for i in range(4): a.e(f"v_mul_f32 v{T+i}, v{T+i}, v9")
        for i in range(4): rnd(a, T+i, T+i)
        for i in range(4): a.e(f"v_add_f32 v{ac+i}, v{ac+i}, v{T+i}")
        a.e(f"v_cvt_pk_bf16_f32 v{ac}, v{ac}, v{ac+1}")
        a.e(f"v_cvt_pk_bf16_f32 v{ac+1}, v{ac+2}, v{ac+3}")
        if mt == 4: setexec(a, 0xffffffff)
        a.vmem(f"buffer_store_dwordx2 {v(ac,2)}, v5, s[32:35], s23 offen offset:{32*mt}")
    a.label("k3_end")
    a.e("s_endpgm")

def main(path):
    a = Asm()
    hdr = open(f"cdna_kernels/{NAME}.s.ref").read().split("\n")
    head = [l for l in hdr if l.startswith(";") and "@launch" not in l and "Override" not in l and "grid=ceil" not in l]
    for l in head: a.raw(l)
    a.raw(f"; @launch kernel=k1_kernel grid=(256,1,1) block=(512,1,1) lds={K1_LDS}")
    a.raw(f"; @launch kernel=k2_kernel grid=({NCONV+512},1,1) block=(256,1,1) lds={K2_LDS}")
    a.raw(f"; @launch kernel=k3_kernel grid=(256,1,1) block=(256,1,1) lds={K3_LDS}")
    a.raw('.amdgcn_target "amdgcn-amd-amdhsa--gfx950"')
    a.raw(".text")
    gen_k1(a); gen_k2(a); gen_k3(a)
    a.raw('.section .rodata,"a"')
    a.raw(kernel_desc("k1_kernel", 252))
    a.raw(kernel_desc("k2_kernel", 192))
    a.raw(kernel_desc("k3_kernel", 192))
    open(path, "w").write(a.text())

if __name__ == "__main__":
    if len(sys.argv) > 2 and sys.argv[2] == "stamps": asmlib.STAMP_ON = True
    main(sys.argv[1] if len(sys.argv) > 1 else f"cdna_kernels/{NAME}.s")
```

```python
import sys, struct
from asmlib import *
import asmlib

NAME = "gated_mix__sliding_block__ssm_conv_h3__prompt"
SZ = 2048 * 576 * 2
WS_QKV = 0
QKV_BYTES = 432 * 16384
WS_U = QKV_BYTES
WS_O = WS_U + SZ
WS_Z = WS_O + SZ
WS_G = WS_Z + SZ
WS_TOTAL = WS_G + 8192
def f32(x): return "0x%08x" % struct.unpack("<I", struct.pack("<f", x))[0]
QSCALE = 18 ** -0.5 * 1.4426950408889634
NEGINF = "0xff800000"

def rnd(a, dst, src):
    a.e(f"v_cvt_pk_bf16_f32 v{dst}, 0, v{src}")

def lane_mask(fn):
    m = 0
    for l in range(64):
        if fn(l): m |= 1 << l
    return m

K1_U = 0
K1_PK = 8192
K1_RING = 24576
K1_LDS = K1_RING + 131072

def prep_issue(a, T_s, R):
    a.e(f"s_mul_i32 s40, s{T_s}, 7282")
    a.e("s_lshr_b32 s40, s40, 16")
    a.e("s_mul_i32 s41, s40, 9")
    a.e(f"s_sub_u32 s41, s{T_s}, s41")
    a.e(f"v_lshrrev_b32 v{R}, 3, v0")
    a.e(f"v_and_b32 v{R+1}, 7, v0")
    a.e("s_lshl_b32 s19, s40, 3")
    a.e("s_add_u32 s19, s19, s18")
    a.e(f"s_mul_i32 s19, s19, {8*1152}")
    a.e("s_lshl_b32 s20, s41, 7")
    a.e("s_add_u32 s19, s19, s20")
    a.e(f"v_mul_u32_u24 v{R+2}, 1152, v{R}")
    a.e(f"v_lshl_add_u32 v{R+2}, v{R+1}, 4, v{R+2}")
    a.e(f"v_add_u32 v{R+2}, s19, v{R+2}")
    a.e(f"v_subrev_u32 v{R+3}, {3*1152}, v{R+2}")
    a.e("s_lshl_b32 s21, s18, 11")
    a.e(f"s_add_u32 m0, s21, {K1_PK+512}")
    a.e(f"v_lshlrev_b32 v{R+4}, 4, v0")
    a.vmem(f"buffer_load_dwordx4 v{R+2}, s[24:27], 0 offen lds", "P")
    a.e(f"s_add_u32 m0, s21, {K1_PK+128}")
    setexec(a, 0xffffff)
    a.vmem(f"buffer_load_dwordx4 v{R+3}, s[24:27], 0 offen lds", "P")
    a.e(f"s_add_u32 m0, s21, {K1_PK+1536}")
    a.e("s_mov_b32 exec_lo, -1")
    a.e("s_lshl_b32 s20, s41, 9")
    a.vmem(f"buffer_load_dwordx4 v{R+4}, s[32:35], s20 offen lds", "P")
    a.e("s_mov_b64 exec, -1")
    a.vmem(f"buffer_load_dwordx4 {v(R+8,4)}, v{R+2}, s[28:31], 0 offen", "P")

def prep_compute(a, R, T):
    VR = R + 8
    KR, SW = T + 44, T + 60
    UK, UW, UV, TA, TP, OUT = T, T+16, T+32, T+36, T+40, T+76
    a.e("s_lshl_b32 s21, s18, 11")
    a.e(f"v_lshlrev_b32 v{T}, 4, v0")
    a.e(f"v_add_u32 v{T}, s21, v{T}")
    a.e(f"v_lshlrev_b32 v{T+1}, 6, v{R+1}")
    a.e(f"v_add_u32 v{T+1}, s21, v{T+1}")
    a.wait_vm("P")
    for j in range(4): a.lds(f"ds_read_b128 {v(KR+4*j,4)}, v{T} offset:{K1_PK+128+128*j}")
    for i in range(4): a.lds(f"ds_read_b128 {v(SW+4*i,4)}, v{T+1} offset:{K1_PK+1536+16*i}")
    a.e("s_mov_b32 s42, 0xffff0000")
    a.wait_lds(None)
    for half in range(2):
        for r in range(4):
            for qq in range(2):
                a.e(f"v_lshlrev_b32 v{UK+4*r+2*qq}, 16, v{KR+4*r+2*half+qq}")
                a.e(f"v_and_b32 v{UK+4*r+2*qq+1}, s42, v{KR+4*r+2*half+qq}")
        for c in range(4):
            for t in range(2):
                src = SW + (4*half+c)*2 + t
                a.e(f"v_lshlrev_b32 v{UW+4*c+2*t}, 16, v{src}")
                a.e(f"v_and_b32 v{UW+4*c+2*t+1}, s42, v{src}")
        for qq in range(2):
            a.e(f"v_lshlrev_b32 v{UV+2*qq}, 16, v{VR+2*half+qq}")
            a.e(f"v_and_b32 v{UV+2*qq+1}, s42, v{VR+2*half+qq}")
        C = range(4)
        for c in C: a.e(f"v_mul_f32 v{TA+c}, v{UK+c}, v{UW+4*c+3}")
        for c in C: a.e(f"v_mul_f32 v{TP+c}, v{UK+4+c}, v{UW+4*c+2}")
        for c in C: rnd(a, TA+c, TA+c)
        for t in (1, 2, 3):
            for c in C: rnd(a, TP+c, TP+c)
            for c in C: a.e(f"v_add_f32 v{TA+c}, v{TA+c}, v{TP+c}")
            if t < 3:
                for c in C: a.e(f"v_mul_f32 v{TP+c}, v{UK+4*(t+1)+c}, v{UW+4*c+2-t}")
            for c in C: rnd(a, TA+c, TA+c)
        for c in C: a.e(f"v_mul_f32 v{TA+c}, v{TA+c}, v{UV+c}")
        for qq in range(2):
            a.e(f"v_cvt_pk_bf16_f32 v{OUT+2*half+qq}, v{TA+2*qq}, v{TA+2*qq+1}")
    a.e(f"v_lshrrev_b32 v{T}, 2, v{R}")
    a.e("s_and_b32 s19, s18, 1")
    a.e("s_lshl_b32 s19, s19, 1")
    a.e(f"v_add_u32 v{T}, s19, v{T}")
    a.e(f"v_lshlrev_b32 v{T}, 1, v{T}")
    a.e(f"v_xor_b32 v{T}, v{T}, v{R+1}")
    a.e(f"v_lshlrev_b32 v{T}, 4, v{T}")
    a.e(f"v_lshl_add_u32 v{T}, v{R}, 7, v{T}")
    a.e("s_lshl_b32 s19, s18, 10")
    a.e(f"v_add_u32 v{T}, s19, v{T}")
    a.lds(f"ds_write_b128 v{T}, {v(OUT,4)} offset:{K1_U}")
    a.e(f"v_lshrrev_b32 v{T+1}, 4, v0")
    a.e(f"v_bfe_u32 v{T+2}, v0, 2, 2")
    a.e(f"v_sub_u32 v{T+2}, 3, v{T+2}")
    a.e("s_and_b32 s19, s18, 3")
    a.e(f"v_xor_b32 v{T+3}, s19, v{T+2}")
    a.e(f"v_lshlrev_b32 v{T+3}, 5, v{T+3}")
    a.e(f"v_lshl_add_u32 v{T+2}, v{T+2}, 2, v{T+1}")
    a.e(f"v_lshl_add_u32 v{T+3}, v{T+2}, 7, v{T+3}")
    a.e(f"v_and_b32 v{T+2}, 3, v0")
    a.e(f"v_lshl_add_u32 v{T+3}, v{T+2}, 3, v{T+3}")
    a.e("s_lshr_b32 s20, s18, 2")
    a.e("s_lshl_b32 s21, s20, 12")
    a.e(f"v_add_u32 v{T+3}, s21, v{T+3}")
    a.e(f"v_and_b32 v{T+4}, 15, v0")
    a.e("s_lshl_b32 s21, s41, 6")
    a.e("s_lshl_b32 s19, s19, 4")
    a.e("s_add_u32 s21, s21, s19")
    a.e(f"v_add_u32 v{T+4}, s21, v{T+4}")
    a.e(f"v_lshlrev_b32 v{T+4}, 12, v{T+4}")
    a.e(f"v_lshl_add_u32 v{T+4}, v{T+1}, 4, v{T+4}")
    a.e("s_lshl_b32 s21, s40, 1")
    a.e("s_add_u32 s21, s21, s20")
    a.e("s_lshl_b32 s21, s21, 6")
    a.e(f"s_add_u32 s59, s21, {WS_U}")
    a.wait_lds(None)

def prep_store(a, T):
    a.lds(f"ds_read_b64_tr_b16 {v(T+8,2)}, v{T+3} offset:{K1_U+16*128}", "PT")
    a.lds(f"ds_read_b64_tr_b16 {v(T+10,2)}, v{T+3} offset:{K1_U}", "PT")
    a.wait_lds("PT")
    a.vmem(f"buffer_store_dwordx4 {v(T+8,4)}, v{T+4}, s[36:39], s59 offen", "PS")

def gen_k1(a):
    kernel_head(a, "k1_kernel")
    a.e("s_cmp_ge_u32 s2, 256")
    a.e("s_cbranch_scc1 k1_end")
    st = Stamps(a); st.real("rt0"); st("t0")
    a.e("s_load_dwordx4 s[4:7], s[0:1], 0")
    a.e("s_load_dwordx4 s[8:11], s[0:1], 32")
    a.e("s_load_dwordx4 s[12:15], s[0:1], 48")
    a.e("s_load_dwordx2 s[16:17], s[0:1], 96")
    a.e("v_lshrrev_b32 v1, 6, v0")
    a.e("v_and_b32 v0, 63, v0")
    a.e("v_readfirstlane_b32 s18, v1")
    a.e("s_and_b32 s43, s2, 3")
    a.e("s_lshl_b32 s43, s43, 2")
    a.e("s_bfe_u32 s19, s2, 0x20003")
    a.e("s_add_u32 s43, s43, s19")
    a.e("s_bfe_u32 s44, s2, 0x10002")
    a.e("s_mul_i32 s44, s44, 7")
    a.e("s_lshr_b32 s45, s2, 5")
    a.e("s_add_u32 s44, s44, s45")
    RB, CT = 43, 44
    WD, XD = 2, 3
    a.e("v_lshrrev_b32 v4, 4, v0")
    a.e("s_lshl_b32 s19, s18, 2")
    a.e("v_add_u32 v5, s19, v4")
    a.e("v_bfe_u32 v6, v5, 3, 1")
    a.e("v_lshl_or_b32 v6, v6, 2, v4")
    a.e("v_lshlrev_b32 v6, 1, v6")
    a.e("v_and_b32 v7, 15, v0")
    a.e("v_xor_b32 v6, v6, v7")
    a.e("v_mul_u32_u24 v5, 3456, v5")
    a.e(f"v_lshl_add_u32 v{WD}, v6, 4, v5")
    a.e("v_lshrrev_b32 v4, 3, v0")
    a.e("s_lshl_b32 s19, s18, 3")
    a.e("v_add_u32 v4, s19, v4")
    a.e("v_and_b32 v5, 15, v4")
    a.e("v_bfe_u32 v6, v4, 4, 1")
    a.e("v_lshl_add_u32 v6, v5, 1, v6")
    a.e("v_and_b32 v7, 32, v4")
    a.e("v_add_u32 v6, v6, v7")
    a.e("v_mul_u32_u24 v6, 1152, v6")
    a.e("v_lshrrev_b32 v5, 1, v5")
    a.e("v_and_b32 v7, 7, v0")
    a.e("v_xor_b32 v5, v5, v7")
    a.e(f"v_lshl_add_u32 v{XD}, v5, 4, v6")
    a.e("s_lshr_b32 s46, s2, 3")
    a.e("s_mul_i32 s19, s46, 57")
    a.e("s_lshr_b32 s19, s19, 9")
    a.e("s_mul_i32 s19, s19, 9")
    a.e("s_sub_u32 s46, s46, s19")
    a.e("s_lshl_b32 s47, s18, 10")
    a.e("s_waitcnt lgkmcnt(0)")
    srd(a, 24, 8, SZ); srd(a, 28, 10, SZ); srd(a, 32, 12, 576*8); srd(a, 36, 16, WS_TOTAL)
    st("ka")
    PR, PT = 144, 156
    prep_issue(a, 2, PR)
    a.e("s_cmp_eq_u32 s45, 7")
    a.e("s_cbranch_scc1 k1_spare")
    a.e(f"s_mul_i32 s19, s{RB}, {128*1152}")
    a.e("s_add_u32 s48, s4, s19")
    a.e("s_addc_u32 s49, s5, 0")
    a.e(f"s_mov_b32 s50, {128*1152}")
    a.e("s_mov_b32 s51, 0x00020000")
    a.e(f"s_lshl_b32 s19, s{CT}, 8")
    a.e("s_add_u32 s52, s6, s19")
    a.e("s_addc_u32 s53, s7, 0")
    a.e(f"s_sub_u32 s54, {576*3456}, s19")
    a.e("s_mov_b32 s55, 0x00020000")
    def issue_parts(c):
        base = K1_RING + (c % 4) * 32768
        def p0():
            a.e(f"s_mul_i32 s19, s46, {64*3456}")
            a.e(f"s_add_u32 m0, s47, {base}")
            a.e("s_lshl_b32 s20, s46, 7")
            a.vmem(f"buffer_load_dwordx4 v{WD}, s[52:55], s19 offen lds", f"C{c}")
        def p1():
            a.e(f"s_add_u32 m0, s47, {base+16384}")
            a.e(f"s_add_u32 s19, s19, {32*3456}")
            a.vmem(f"buffer_load_dwordx4 v{XD}, s[48:51], s20 offen lds", f"C{c}")
        def p2():
            a.e(f"s_add_u32 m0, s47, {base+8192}")
            a.e(f"s_add_u32 s20, s20, {64*1152}")
            a.vmem(f"buffer_load_dwordx4 v{WD}, s[52:55], s19 offen lds", f"C{c}")
        def p3():
            a.e(f"s_add_u32 m0, s47, {base+24576}")
            a.e("s_add_u32 s46, s46, 1")
            a.vmem(f"buffer_load_dwordx4 v{XD}, s[48:51], s20 offen lds", f"C{c}")
            a.e("s_cmp_ge_u32 s46, 9")
            a.e("s_cselect_b32 s46, 0, s46")
        return [p0, p1, p2, p3]
    for c in range(4):
        for p in issue_parts(c): p()
    st("issued")
    WA, XA, ACC = 4, 8, 16
    FR = 48
    a.e("v_lshrrev_b32 v12, 4, v0")
    a.e("v_bfe_u32 v13, v0, 2, 2")
    a.e("v_and_b32 v14, 1, v12")
    a.e("v_lshl_or_b32 v14, v14, 2, v13")
    a.e("s_and_b32 s22, s18, 3")
    a.e("s_lshl_b32 s22, s22, 1")
    a.e("v_xor_b32 v14, s22, v14")
    a.e("v_lshl_add_u32 v15, v12, 3, v13")
    a.e("v_lshlrev_b32 v15, 8, v15")
    a.e("v_lshl_add_u32 v15, v14, 5, v15")
    a.e("v_and_b32 v14, 3, v0")
    a.e("v_lshl_add_u32 v15, v14, 3, v15")
    a.e(f"v_add_u32 v{WA}, {K1_RING}, v15")
    a.e(f"v_xor_b32 v{WA+1}, 32, v{WA}")
    a.e(f"v_add_u32 v{WA+2}, 0x10000, v{WA}")
    a.e(f"v_add_u32 v{WA+3}, 0x10000, v{WA+1}")
    a.e("v_and_b32 v13, 15, v0")
    a.e("v_lshrrev_b32 v14, 1, v13")
    a.e("v_xor_b32 v14, v14, v12")
    a.e("s_lshr_b32 s23, s18, 2")
    a.e("s_lshl_b32 s21, s23, 13")
    a.e(f"s_add_u32 s21, s21, {K1_RING+16384}")
    a.e("v_lshlrev_b32 v15, 7, v13")
    a.e("v_lshl_add_u32 v15, v14, 4, v15")
    a.e(f"v_add_u32 v{XA}, s21, v15")
    a.e(f"v_xor_b32 v{XA+1}, 64, v{XA}")
    a.e(f"v_add_u32 v{XA+2}, 0x10000, v{XA}")
    a.e(f"v_add_u32 v{XA+3}, 0x10000, v{XA+1}")
    SO = 1
    a.e(f"s_lshl_b32 s21, s{CT}, 5")
    a.e("s_lshl_b32 s22, s22, 2")
    a.e("s_add_u32 s56, s21, s22")
    a.e("v_add_u32 v14, s56, v12")
    a.e("v_lshlrev_b32 v14, 14, v14")
    a.e(f"s_lshl_b32 s21, s{RB}, 10")
    a.e("s_lshl_b32 s23, s23, 9")
    a.e("s_add_u32 s21, s21, s23")
    a.e("v_lshl_add_u32 v14, v13, 4, v14")
    a.e(f"v_add_u32 v{SO}, s21, v14")
    prep_compute(a, PR, PT)
    st("prep")
    def reads(c):
        f = FR + 48 * (c % 2); slot = c % 4; hb = 2 * (slot // 2); ob = 32768 * (slot % 2)
        out = []
        for kh in range(2):
            for mt in range(2):
                for hf in range(2):
                    out.append(lambda kh=kh, mt=mt, hf=hf: a.lds(f"ds_read_b64_tr_b16 {v(f+8*kh+4*mt+2*hf,2)}, v{WA+hb+mt} offset:{ob+(32*kh+4*hf)*256}", f"F{c}"))
            for nt in range(4):
                out.append(lambda kh=kh, nt=nt: a.lds(f"ds_read_b128 {v(f+16+16*kh+4*nt,4)}, v{XA+hb+kh} offset:{ob+2048*nt}", f"F{c}"))
        return out
    a.wait_vm("C0")
    a.e("s_barrier")
    for r_ in reads(0): r_()
    prep_store(a, PT)
    for c in range(9):
        f = FR + 48 * (c % 2)
        fill = []
        if c + 1 < 9:
            a.wait_vm(f"C{c+1}")
            a.wait_lds(None)
            a.e("s_barrier")
            fill += reads(c + 1)
            if c + 4 < 9:
                ip = issue_parts(c + 4)
                fill = fill[:4] + [ip[0]] + fill[4:8] + [ip[1]] + fill[8:12] + [ip[2]] + fill[12:] + [ip[3]]
        else:
            a.wait_lds(None)
        n = 0
        for kh in range(2):
            for nt in range(4):
                for mt in range(2):
                    acc = v(ACC + (mt*4+nt)*4, 4)
                    first = (c == 0 and kh == 0)
                    a.e(f"v_mfma_f32_16x16x32_bf16 {acc}, {v(f+8*kh+4*mt,4)}, {v(f+16+16*kh+4*nt,4)}, {0 if first else acc}")
                    n += 1
                    want = (len(fill) * n + 13) // 14 if n < 14 else len(fill)
                    while fill and getattr(a, "_done", 0) < want:
                        pass
                        break
                    k_ = 2 if n <= 4 else 1
                    for _ in range(k_):
                        if fill: fill.pop(0)()
        while fill: fill.pop(0)()
        if c in (2, 5): st(f"c{c}")
    st("loop")
    srd(a, 48, 16, QKV_BYTES)
    a.e(f"s_mov_b32 s20, {f32(QSCALE)}")
    for mt in range(2):
        a.e(f"s_add_u32 s19, s56, {4*mt}")
        a.e("s_cmp_lt_u32 s19, 144")
        a.e("s_cselect_b32 s21, s20, 1.0")
        for nt in range(4):
            ac = ACC + (mt*4+nt)*4
            for i in range(4): a.e(f"v_mul_f32 v{ac+i}, s21, v{ac+i}")
            t = 64 + (mt*4+nt)*2
            a.e(f"v_cvt_pk_bf16_f32 v{t}, v{ac}, v{ac+1}")
            a.e(f"v_cvt_pk_bf16_f32 v{t+1}, v{ac+2}, v{ac+3}")
        a.e(f"s_mov_b32 s19, {mt*65536}")
        a.vmem(f"buffer_store_dwordx4 {v(64+mt*8,4)}, v{SO}, s[48:51], s19 offen")
        a.vmem(f"buffer_store_dwordx4 {v(64+mt*8+4,4)}, v{SO}, s[48:51], s19 offen offset:256")
    st("stored")
    if asmlib.STAMP_ON: a.e("s_waitcnt vmcnt(0)")
    st("drained"); st.real("rt1")
    st.flush(16, 18, 0)
    a.e("s_endpgm")
    a.label("k1_spare")
    a.lgkm = []; a.vm = ["P"] * 4
    a.e("s_load_dwordx2 s[20:21], s[0:1], 72")
    a.e("s_load_dwordx2 s[22:23], s[0:1], 16")
    a.e("s_and_b32 s46, s2, 31")
    a.e("s_waitcnt lgkmcnt(0)")
    srd(a, 48, 4, SZ)
    srd(a, 52, 20, 576*2)
    srd(a, 4, 22, 576*1152)
    GX, GW = 16, 52
    a.e("v_lshrrev_b32 v10, 5, v0")
    a.e("s_lshl_b32 s19, s46, 6")
    a.e("s_lshl_b32 s20, s18, 3")
    a.e("s_add_u32 s19, s19, s20")
    a.e("v_add_u32 v10, s19, v10")
    a.e("v_and_b32 v11, 31, v0")
    a.e("v_lshlrev_b32 v11, 2, v11")
    a.e("v_mul_u32_u24 v12, 1152, v10")
    a.e("v_add_u32 v12, v12, v11")
    for i in range(9): a.vmem(f"buffer_load_dword v{GW+i}, v11, s[52:55], 0 offen offset:{128*i}", "G")
    for it in range(4):
        a.e(f"s_mov_b32 s19, {it*2304}")
        for i in range(9): a.vmem(f"buffer_load_dword v{GX+9*it+i}, v12, s[48:51], s19 offen offset:{128*i}", "G")
    prep_compute(a, PR, PT)
    a.e("s_add_u32 s47, s46, 256")
    a.e("s_barrier")
    prep_store(a, PT)
    prep_issue(a, 47, PR)
    a.wait_vm("G")
    for i in range(9):
        a.e(f"v_lshlrev_b32 v{64+2*i}, 16, v{GW+i}")
        a.e(f"v_and_b32 v{65+2*i}, s42, v{GW+i}")
    for it in range(4):
        A0 = 84 + it
        for i in range(9):
            a.e(f"v_lshlrev_b32 v4, 16, v{GX+9*it+i}")
            a.e(f"v_and_b32 v5, s42, v{GX+9*it+i}")
            a.e(f"v_mul_f32 v4, v4, v{64+2*i}")
            a.e(f"v_mul_f32 v5, v5, v{65+2*i}")
            rnd(a, 4, 4); rnd(a, 5, 5)
            if i == 0: a.e(f"v_add_f32 v{A0}, v4, v5")
            else: a.e(f"v_add_f32 v{A0}, v{A0}, v4"); a.e(f"v_add_f32 v{A0}, v{A0}, v5")
    for m in (1, 2, 4, 8, 16):
        for it in range(4): a.lds(f"ds_swizzle_b32 v{88+it}, v{84+it} offset:{(m<<10)|0x1f}")
        a.wait_lds(None)
        for it in range(4): a.e(f"v_add_f32 v{84+it}, v{84+it}, v{88+it}")
    for it in range(4): rnd(a, 84+it, 84+it)
    for it in range(4): a.e(f"v_mul_f32 v{84+it}, {f32(-1.4426950408889634)}, v{84+it}")
    for it in range(4): a.e(f"v_exp_f32 v{84+it}, v{84+it}")
    for it in range(4): a.e(f"v_add_f32 v{84+it}, 1.0, v{84+it}")
    for it in range(4): a.e(f"v_rcp_f32 v{84+it}, v{84+it}")
    for it in range(4): rnd(a, 84+it, 84+it)
    a.e("v_lshlrev_b32 v10, 2, v10")
    a.e(f"s_mov_b32 s19, {WS_G}")
    setexec(a, 0x100000001)
    for it in range(4): a.vmem(f"buffer_store_dword v{84+it}, v10, s[36:39], s19 offen offset:{8*it}")
    a.e("s_mov_b64 exec, -1")
    srd(a, 52, 14, SZ)
    a.e("v_lshlrev_b32 v4, 4, v0")
    a.e("s_lshl_b32 s19, s46, 3")
    a.e("s_add_u32 s19, s19, s18")
    a.e("s_mul_i32 s20, s19, 9216")
    a.e("s_mul_i32 s21, s19, 2592")
    for i in range(9):
        a.vmem(f"buffer_load_dwordx4 {v(16+4*i,4)}, v4, s[52:55], s20 offen", "PF")
        a.e("s_add_u32 s20, s20, 1024")
    for i in range(3):
        a.vmem(f"buffer_load_dwordx4 {v(52+4*i,4)}, v4, s[4:7], s21 offen offset:{1024*i}", "PF")
    a.e("s_barrier")
    prep_compute(a, PR, PT)
    a.e("s_barrier")
    prep_store(a, PT)
    a.label("k1_end")
    a.e("s_endpgm")

CV_K = 0
CV_U = 4128 + 32
CV_SZ = CV_U + 4608 + 64
NCONV = 144
PL = 3072
K2_LDS = max(4 * CV_SZ, 11 * PL)

from gen1 import gen_conv as _gc
import gen1
gen1.WS_U = WS_U; gen1.WS_Z = WS_Z

def gen_k2(a):
    kernel_head(a, "k2_kernel")
    a.e(f"s_cmp_ge_u32 s2, {NCONV+512}")
    a.e("s_cbranch_scc1 k2_end")
    st = Stamps(a); st.real("rt0"); st("t0")
    a.e("s_load_dwordx4 s[4:7], s[0:1], 56")
    a.e("s_load_dwordx2 s[16:17], s[0:1], 96")
    a.e("v_lshrrev_b32 v1, 6, v0")
    a.e("v_and_b32 v0, 63, v0")
    a.e("v_readfirstlane_b32 s18, v1")
    a.e("s_waitcnt lgkmcnt(0)")
    srd(a, 28, 16, WS_TOTAL)
    a.e(f"s_cmp_ge_u32 s2, {NCONV}")
    a.e("s_cbranch_scc1 k2_attn")
    srd(a, 24, 4, SZ)
    srd(a, 32, 6, 576*2)
    a.e("s_lshl_b32 s19, s2, 2")
    a.e("s_add_u32 s19, s19, s18")
    a.e(f"s_mul_i32 s22, s18, {CV_SZ}")
    n0 = st.n
    _gc(a, 19, 22, "k2_end")
    st("a"); st("b"); st("c"); st("convdone")
    if asmlib.STAMP_ON: a.e("s_waitcnt vmcnt(0)")
    st("drained"); st.real("rt1"); st.flush(16, 18, 1)
    a.e("s_endpgm")
    st.n = n0; st.names = st.names[:n0]
    a.label("k2_attn")
    a.reset_counters()
    a.e(f"s_sub_u32 s19, s2, {NCONV}")
    a.e("s_and_b32 s20, s19, 31")
    a.e("s_lshr_b32 s21, s19, 5")
    a.e("s_lshr_b32 s22, s20, 1")
    a.e("s_and_b32 s23, s20, 1")
    a.e("s_mul_i32 s24, s22, 9")
    a.e("s_mul_i32 s25, s23, 5")
    a.e("s_add_u32 s25, s25, s24")
    a.e("s_add_u32 s24, s24, 4")
    a.e("v_lshlrev_b32 v2, 4, v0")
    for i in range(3):
        a.e(f"s_sub_i32 s{32+i}, s21, {2-i}")
        a.e(f"s_max_i32 s{32+i}, s{32+i}, 0")
        a.e(f"s_lshl_b32 s{32+i}, s{32+i}, 10")
    a.e("s_add_u32 s26, s25, s18")
    a.e("s_lshl_b32 s26, s26, 14")
    a.e(f"s_mul_i32 s27, s18, {PL}")
    for ty in range(2):
        for i in range(3):
            a.e(f"s_add_u32 m0, s27, {ty*5*PL + i*1024}")
            a.e(f"s_add_u32 s35, s26, s{32+i}")
            a.e(f"s_add_u32 s35, s35, {(144+144*ty)*16384}")
            a.vmem("buffer_load_dwordx4 v2, s[28:31], s35 offen lds", "S")
    a.e("s_cmp_ge_u32 s18, 2")
    a.e("s_cbranch_scc1 k2_notail")
    a.e("s_mul_i32 s26, s18, 144")
    a.e("s_add_u32 s26, s26, s24")
    a.e("s_add_u32 s26, s26, 144")
    a.e("s_lshl_b32 s26, s26, 14")
    a.e(f"s_mul_i32 s27, s18, {5*PL}")
    for i in range(3):
        a.e(f"s_add_u32 m0, s27, {4*PL + i*1024}")
        a.e(f"s_add_u32 s35, s26, s{32+i}")
        a.e("buffer_load_dwordx4 v2, s[28:31], s35 offen lds")
    a.label("k2_notail")
    Q1, Q2 = 8, 12
    KA, KB = 16, 24
    VF = 32
    S0, S1 = 48, 64
    P0 = 80
    OA = 96
    MD, MF = 112, 128
    NM = 40
    a.e("v_and_b32 v1, 31, v0")
    a.e("v_lshrrev_b32 v2, 5, v0")
    a.e("s_lshl_b32 s26, s21, 2")
    a.e("s_add_u32 s26, s26, s18")
    a.e("s_lshl_b32 s27, s26, 8")
    a.e("v_lshlrev_b32 v3, 3, v1")
    a.e("v_lshl_add_u32 v4, v2, 15, v3")
    a.e("s_lshl_b32 s35, s25, 14")
    a.e("s_add_u32 s35, s35, s27")
    a.vmem(f"buffer_load_dwordx2 {v(Q1,2)}, v4, s[28:31], s35 offen", "Q")
    a.e("s_add_u32 s35, s35, 16384")
    a.vmem(f"buffer_load_dwordx2 {v(Q1+2,2)}, v4, s[28:31], s35 offen", "Q")
    a.e("s_lshl_b32 s35, s24, 14")
    a.e("s_add_u32 s35, s35, s27")
    a.vmem(f"buffer_load_dwordx2 {v(Q2,2)}, v3, s[28:31], s35 offen", "Q")
    a.e("v_mov_b32 v5, 0x3f803f80")
    a.e("v_lshlrev_b32 v6, 2, v0")
    a.e("s_lshl_b32 s35, s18, 8")
    a.e("v_add_u32 v6, s35, v6")
    for i in range(3): a.lds(f"ds_write_b32 v6, v5 offset:{10*PL+1024*i}")
    a.e(f"v_mov_b32 v5, {NEGINF}")
    for ri in range(16):
        j, i = ri // 4, ri % 4
        md = lane_mask(lambda l: 8*j + 4*(l >> 5) + i <= (l & 31))
        a.e(f"s_mov_b32 s40, 0x{md & 0xffffffff:x}")
        a.e(f"s_mov_b32 s41, 0x{md >> 32:x}")
        a.e(f"v_cndmask_b32 v{MD+ri}, v5, 0, s[40:41]")
        a.e(f"v_cndmask_b32 v{MF+ri}, 0, v5, s[40:41]")
    a.e(f"v_mul_u32_u24 v4, {2*PL}, v2")
    a.e("v_add3_u32 v4, v4, v3, s35")
    a.e(f"v_mul_u32_u24 v5, {6*PL}, v2")
    a.e("v_add3_u32 v3, v5, v3, s35")
    a.e("v_bfe_u32 v5, v0, 2, 2")
    a.e("v_lshl_add_u32 v5, v2, 2, v5")
    a.e("v_lshlrev_b32 v5, 3, v5")
    a.e("v_and_b32 v6, 3, v0")
    a.e("v_min_u32 v7, 1, v6")
    a.e("v_add_u32 v7, 4, v7")
    a.e(f"s_mov_b32 s40, 0x{lane_mask(lambda l: (l>>4)&1) & 0xffffffff:x}")
    a.e("s_mov_b32 s41, s40")
    a.e("v_cndmask_b32 v6, v6, v7, s[40:41]")
    a.e(f"v_mul_u32_u24 v6, {PL}, v6")
    a.e("v_add3_u32 v5, v5, v6, s35")
    a.e("s_sub_i32 s27, 8, s26")
    a.e("s_max_i32 s27, s27, 0")
    a.e("s_waitcnt vmcnt(0) lgkmcnt(0)"); a.reset_counters()
    a.e("s_barrier")
    st("staged")

    def rdK(buf, t):
        a.lds(f"ds_read_b64 {v(buf,2)}, v4 offset:{256*t}", f"K{t}")
        a.lds(f"ds_read_b64 {v(buf+2,2)}, v4 offset:{256*t+PL}", f"K{t}")
        a.lds(f"ds_read_b64 {v(buf+4,2)}, v3 offset:{256*t+4*PL}", f"K{t}")
    def rdV(t):
        for i in range(4):
            a.lds(f"ds_read_b64_tr_b16 {v(VF+2*i,2)}, v5 offset:{5*PL+256*t+64*i}", f"V{t}")
    def qk(S, buf, t):
        c = v(MD, 16) if t == 8 else (v(MF, 16) if t == 0 else 0)
        a.e(f"v_mfma_f32_32x32x16_bf16 {v(S,16)}, {v(buf,4)}, {v(Q1,4)}, {c}")
        a.e(f"v_mfma_f32_32x32x8_bf16 {v(S,16)}, {v(buf+4,2)}, {v(Q2,2)}, {v(S,16)}")

    rdK(KA, 8)
    a.e("s_cmp_eq_u32 s23, 0")
    a.e("s_cselect_b32 s40, -1, 0")
    a.e("s_mov_b32 s41, 0")
    a.e("s_cselect_b32 s42, 0, -1")
    a.e("s_mov_b32 s43, 0")
    a.e(f"v_cndmask_b32 v{Q2}, 0, v{Q2}, s[40:41]")
    a.e(f"v_cndmask_b32 v{Q2+1}, 0, v{Q2+1}, s[42:43]")
    a.wait_lds("K8")
    a.e(f"v_dot2_f32_bf16 v6, v{Q1}, v{KA}, 0")
    for i in range(1, 6): a.e(f"v_dot2_f32_bf16 v6, v{Q1+i}, v{KA+i}, v6")
    a.e("s_nop 3")
    a.e("v_mov_b32 v7, v6")
    a.e("s_nop 1")
    a.e("v_permlane32_swap_b32 v6, v7")
    a.e("s_nop 1")
    a.e("v_add_f32 v6, v6, v7")
    a.e("v_sub_f32 v6, 0, v6")
    a.e("v_cvt_pk_bf16_f32 v6, v6, 0")
    a.e("s_mov_b32 s42, 0")
    a.e("s_mov_b32 s43, -1")
    a.e(f"v_cndmask_b32 v{Q2}, v{Q2}, v6, s[42:43]")
    a.e("s_nop 1")

    def softmax_pass(sub, pfx):
        done = f"{pfx}_done"
        bufs = [KA, KB]; Ss = [S0, S1]
        qk(S0, KA, 8)
        for n, t in enumerate(range(8, -1, -1)):
            S = Ss[n % 2]
            last = f"{pfx}_last{t}"
            rdV(t)
            if t > 0:
                a.e(f"s_cmp_gt_u32 s27, {t-1}")
                a.e(f"s_cbranch_scc1 {last}")
                rdK(bufs[(n+1) % 2], t - 1)
                a.wait_lds(f"K{t-1}")
                qk(Ss[(n+1) % 2], bufs[(n+1) % 2], t - 1)
                a.label(last)
            a.e("s_nop 7")
            a.e("s_nop 3")
            for i in range(16):
                if sub: a.e(f"v_add_f32 v{S+i}, v{S+i}, v{NM}")
                a.e(f"v_exp_f32 v{S+i}, v{S+i}")
                if i % 2 == 1 and i >= 3:
                    a.e(f"v_cvt_pk_bf16_f32 v{P0+(i-3)//2}, v{S+i-3}, v{S+i-2}")
            a.e("s_nop 0")
            a.e(f"v_cvt_pk_bf16_f32 v{P0+7}, v{S+14}, v{S+15}")
            a.e("s_waitcnt lgkmcnt(0)"); a.lgkm = []
            a.e("s_nop 0")
            a.e(f"v_mfma_f32_32x32x16_bf16 {v(OA,16)}, {v(VF,4)}, {v(P0,4)}, {v(OA,16) if n else 0}")
            a.e(f"v_mfma_f32_32x32x16_bf16 {v(OA,16)}, {v(VF+4,4)}, {v(P0+4,4)}, {v(OA,16)}")
            if t > 0:
                a.e(f"s_cmp_gt_u32 s27, {t-1}")
                a.e(f"s_cbranch_scc1 {done}")
        a.label(done)
        a.e("s_nop 7")
        a.e("s_nop 3")

    softmax_pass(False, "k2a")
    st("soft")
    a.e(f"v_mov_b32 v6, v{OA+12}")
    for i in range(12): a.e(f"v_fma_f32 v6, v{OA+i}, 0, v6")
    a.e(f"s_mov_b32 s40, {f32(2.0**-30)}")
    a.e(f"s_mov_b32 s41, {f32(2.0**100)}")
    a.e("v_cmp_nlt_f32 vcc, s40, v6")
    a.e("v_cmp_ngt_f32 s[44:45], s41, v6")
    a.e("s_or_b64 vcc, vcc, s[44:45]")
    a.e("s_cbranch_vccz k2_fin")
    a.e(f"v_cndmask_b32 v{Q2}, v{Q2}, 0, s[42:43]")
    a.e(f"v_mov_b32 v{NM}, {NEGINF}")
    for t in range(8, -1, -1):
        rdK(KA, t)
        a.wait_lds(None)
        qk(S0, KA, t)
        a.e("s_nop 7"); a.e("s_nop 3")
        for i in range(8): a.e(f"v_max3_f32 v{NM}, v{S0+2*i}, v{S0+2*i+1}, v{NM}")
        if t > 0:
            a.e(f"s_cmp_gt_u32 s27, {t-1}")
            a.e("s_cbranch_scc1 k2_maxdone")
    a.label("k2_maxdone")
    rdK(KA, 8)
    a.e(f"v_mov_b32 v7, v{NM}")
    a.e("s_nop 1")
    a.e(f"v_permlane32_swap_b32 v{NM}, v7")
    a.e("s_nop 1")
    a.e(f"v_max_f32 v{NM}, v{NM}, v7")
    a.e(f"v_sub_f32 v{NM}, 0, v{NM}")
    a.wait_lds(None)
    softmax_pass(True, "k2b")
    a.label("k2_fin")
    a.e(f"v_rcp_f32 v6, v{OA+12}")
    a.e("s_nop 0")
    for i in range(12): a.e(f"v_mul_f32 v{OA+i}, v{OA+i}, v6")
    for i in range(6): a.e(f"v_cvt_pk_bf16_f32 v{P0+i}, v{OA+2*i}, v{OA+2*i+1}")
    a.e("v_lshrrev_b32 v6, 4, v1")
    a.e("v_mul_u32_u24 v6, 18432, v6")
    a.e("v_and_b32 v7, 15, v1")
    a.e("v_lshl_add_u32 v6, v7, 4, v6")
    a.e("v_lshl_add_u32 v7, v2, 8, v6")
    a.e("s_mul_i32 s26, s26, 36864")
    a.e(f"s_add_u32 s26, s26, {WS_O}")
    a.e("s_lshl_b32 s40, s20, 9")
    a.e("s_add_u32 s40, s40, s26")
    a.vmem(f"buffer_store_dwordx4 {v(P0,4)}, v7, s[28:31], s40 offen")
    a.e("s_lshr_b32 s40, s20, 2")
    a.e("s_lshl_b32 s40, s40, 8")
    a.e("s_and_b32 s41, s20, 3")
    a.e("s_lshl_b32 s41, s41, 2")
    a.e("s_add_u32 s40, s40, s41")
    a.e("s_add_u32 s40, s40, s26")
    a.e("s_add_u32 s40, s40, 16384")
    a.e("s_cmp_eq_u32 s23, 0")
    a.e("s_cbranch_scc1 k2_ev")
    a.e(f"v_mov_b32 v{P0+4}, v{P0+5}")
    a.label("k2_ev")
    setexec(a, 0xffffffff)
    a.vmem(f"buffer_store_dword v{P0+4}, v6, s[28:31], s40 offen")
    st("x"); st("stored")
    if asmlib.STAMP_ON: a.e("s_waitcnt vmcnt(0)")
    st("drained"); st.real("rt1"); st.flush(16, 18, 1)
    a.label("k2_end")
    a.e("s_endpgm")

K3_Z = 0
K3_W = 8192
K3_LDS = K3_W + 576 * 128

def gen_k3(a):
    kernel_head(a, "k3_kernel")
    a.e("s_cmp_ge_u32 s2, 288")
    a.e("s_cbranch_scc1 k3_end")
    st = Stamps(a); st.real("rt0"); st("t0")
    a.e("s_load_dwordx2 s[4:5], s[0:1], 0")
    a.e("s_load_dwordx2 s[6:7], s[0:1], 16")
    a.e("s_load_dwordx2 s[8:9], s[0:1], 80")
    a.e("s_load_dwordx2 s[16:17], s[0:1], 96")
    a.e("v_lshrrev_b32 v1, 6, v0")
    a.e("v_and_b32 v0, 63, v0")
    a.e("v_readfirstlane_b32 s18, v1")
    a.e("s_and_b32 s19, s2, 7")
    a.e("s_lshl_b32 s19, s19, 2")
    a.e("s_bfe_u32 s20, s2, 0x20003")
    a.e("s_add_u32 s19, s19, s20")
    a.e("s_lshr_b32 s20, s2, 5")
    OF, ACC, WF = 16, 88, 104
    a.e("v_lshrrev_b32 v2, 3, v0")
    a.e("v_and_b32 v3, 7, v0")
    a.e("v_lshrrev_b32 v4, 1, v2")
    a.e("v_lshlrev_b32 v4, 1, v4")
    a.e("v_xor_b32 v3, v3, v4")
    a.e("v_mul_u32_u24 v5, 1152, v2")
    a.e("v_lshl_add_u32 v5, v3, 4, v5")
    a.e("v_lshlrev_b32 v6, 12, v2")
    a.e("v_lshl_add_u32 v6, v3, 4, v6")
    a.e("v_lshlrev_b32 v7, 4, v0")
    a.e("s_waitcnt lgkmcnt(0)")
    srd(a, 24, 4, SZ)
    a.e("s_lshl_b32 s22, s20, 7")
    a.e("s_add_u32 s28, s6, s22")
    a.e("s_addc_u32 s29, s7, 0")
    a.e(f"s_sub_u32 s30, {576*1152}, s22")
    a.e("s_mov_b32 s31, 0x00020000")
    srd(a, 32, 8, SZ)
    srd(a, 36, 16, WS_TOTAL)
    st("ka")
    a.e("s_lshl_b32 s21, s19, 2")
    a.e("s_add_u32 s21, s21, s18")
    a.e("s_mul_i32 s22, s21, 18432")
    a.e(f"s_add_u32 s22, s22, {WS_O}")
    a.e(f"s_mul_i32 s23, s18, {8*1152}")
    a.e("s_lshl_b32 s40, s18, 10")
    for ks in range(18):
        a.e(f"s_add_u32 m0, s40, {K3_W + ks*4096}")
        a.vmem(f"buffer_load_dwordx4 {v(OF+4*ks,4)}, v7, s[36:39], s22 offen offset:{1024*(ks%4)}", "O")
        a.vmem(f"buffer_load_dwordx4 v5, s[28:31], s23 offen lds", "W")
        a.e(f"s_add_u32 s23, s23, {32*1152}")
        if ks % 4 == 3: a.e("s_add_u32 s22, s22, 4096")
    a.e("s_lshl_b32 s22, s20, 6")
    a.e("s_lshl_b32 s23, s18, 3")
    a.e("s_add_u32 s22, s22, s23")
    a.e("s_lshl_b32 s22, s22, 12")
    a.e("s_lshl_b32 s23, s19, 7")
    a.e("s_add_u32 s22, s22, s23")
    a.e(f"s_add_u32 s22, s22, {WS_Z}")
    for q in range(2):
        a.e(f"s_add_u32 m0, s40, {K3_Z + q*4096}")
        a.e("s_nop 0")
        a.vmem("buffer_load_dwordx4 v6, s[36:39], s22 offen lds", "W")
        a.e(f"s_add_u32 s22, s22, {32*4096}")
    XE, GE = 136, 144
    a.e("v_and_b32 v2, 15, v0")
    a.e("v_lshrrev_b32 v3, 4, v0")
    a.e("s_lshl_b32 s21, s21, 4")
    a.e("v_add_u32 v4, s21, v2")
    a.e("v_mul_u32_u24 v5, 1152, v4")
    a.e("v_lshl_add_u32 v5, v3, 3, v5")
    a.e("s_lshl_b32 s23, s20, 7")
    for mt in range(4):
        a.vmem(f"buffer_load_dwordx2 {v(XE+2*mt,2)}, v5, s[24:27], s23 offen offset:{32*mt}", "X")
    a.e("v_lshlrev_b32 v6, 2, v4")
    a.e(f"s_mov_b32 s22, {WS_G}")
    a.vmem(f"buffer_load_dword v{GE}, v6, s[36:39], s22 offen", "X")
    st("issued")
    a.e("v_bfe_u32 v6, v0, 2, 2")
    a.e("v_and_b32 v7, 3, v0")
    WA = 148
    a.e("v_lshrrev_b32 v8, 1, v3")
    a.e("v_mul_u32_u24 v8, 20, v8")
    a.e("v_and_b32 v9, 1, v3")
    a.e("v_lshl_add_u32 v8, v9, 2, v8")
    a.e("v_add_u32 v8, v8, v6")
    a.e("v_bfe_u32 v9, v8, 1, 2")
    a.e("v_lshlrev_b32 v8, 7, v8")
    a.e("v_lshl_add_u32 v8, v7, 3, v8")
    a.e(f"v_add_u32 v8, {K3_W}, v8")
    MA = 148
    for mt in range(4):
        a.e(f"v_xor_b32 v10, {mt}, v9")
        a.e(f"v_lshl_add_u32 v{MA+mt}, v10, 5, v8")
    a.e("v_mul_u32_u24 v8, 72, v3")
    a.e("v_add3_u32 v8, v8, v6, 16")
    a.e("v_bfe_u32 v9, v8, 1, 2")
    a.e("v_lshlrev_b32 v8, 7, v8")
    a.e("v_lshl_add_u32 v8, v7, 3, v8")
    a.e(f"v_add_u32 v8, {K3_W}, v8")
    TA_ = 152
    for mt in range(4):
        a.e(f"v_xor_b32 v10, {mt}, v9")
        a.e(f"v_lshl_add_u32 v{TA_+mt}, v10, 5, v8")
    a.wait_vm("W")
    a.e("s_barrier")
    st("landed")
    def rd(ks):
        b = WF + 16 * (ks % 2)
        for mt in range(4):
            for hf in range(2):
                if ks < 16:
                    kk = ks if ks < 12 else ks - 12
                    ar = MA + (mt ^ (2 * (ks & 1))); off = (36*kk + 8*hf) * 128
                else:
                    ar = TA_ + (mt ^ (2 * hf)); off = (288*(ks-16) + 36*hf) * 128
                a.lds(f"ds_read_b64_tr_b16 {v(b+4*mt+2*hf,2)}, v{ar} offset:{off}", f"F{ks}")
    rd(0)
    for ks in range(18):
        if ks + 1 == 12:
            for mt in range(4): a.e(f"v_add_u32 v{MA+mt}, {12*36*128}, v{MA+mt}")
        if ks + 1 < 18: rd(ks + 1)
        a.wait_lds(f"F{ks}")
        b = WF + 16 * (ks % 2)
        for mt in range(4):
            acc = v(ACC + 4*mt, 4)
            a.e(f"v_mfma_f32_16x16x32_bf16 {acc}, {v(b+4*mt,4)}, {v(OF+4*ks,4)}, {acc if ks else 0}")
    st("mfma")
    a.e("v_lshl_add_u32 v8, v3, 2, v6")
    a.e("v_bfe_u32 v9, v8, 1, 2")
    a.e("v_xor_b32 v9, s18, v9")
    a.e("v_lshlrev_b32 v8, 7, v8")
    a.e("v_lshl_add_u32 v8, v9, 5, v8")
    a.e("v_lshl_add_u32 v8, v7, 3, v8")
    ZE = 16
    for mt in range(4):
        a.lds(f"ds_read_b64_tr_b16 {v(ZE+2*mt,2)}, v8 offset:{K3_Z+2048*mt}")
    a.wait_vm(None)
    a.e(f"v_sub_f32 v9, 1.0, v{GE}")
    rnd(a, 9, 9)
    a.e("s_mov_b32 s42, 0xffff0000")
    a.wait_lds(None)
    T = 32
    for mt in range(4):
        ac = ACC + 4*mt
        for i in range(4):
            op = "v_lshlrev_b32 v%d, 16, v%d" if i % 2 == 0 else "v_and_b32 v%d, s42, v%d"
            a.e(op % (T+i, XE+2*mt+i//2))
            a.e(op % (T+4+i, ZE+2*mt+i//2))
        for i in range(4): rnd(a, ac+i, ac+i)
        for i in range(4): a.e(f"v_mul_f32 v{T+i}, v{T+i}, v{T+4+i}")
        for i in range(4): a.e(f"v_mul_f32 v{ac+i}, v{ac+i}, v{GE}")
        for i in range(4): rnd(a, T+i, T+i)
        for i in range(4): rnd(a, ac+i, ac+i)
        for i in range(4): a.e(f"v_mul_f32 v{T+i}, v{T+i}, v9")
        for i in range(4): rnd(a, T+i, T+i)
        for i in range(4): a.e(f"v_add_f32 v{ac+i}, v{ac+i}, v{T+i}")
        a.e(f"v_cvt_pk_bf16_f32 v{ac}, v{ac}, v{ac+1}")
        a.e(f"v_cvt_pk_bf16_f32 v{ac+1}, v{ac+2}, v{ac+3}")
        a.vmem(f"buffer_store_dwordx2 {v(ac,2)}, v5, s[32:35], s23 offen offset:{32*mt}")
    st("stored")
    if asmlib.STAMP_ON: a.e("s_waitcnt vmcnt(0)")
    st("drained"); st.real("rt1"); st.flush(16, 18, 2)
    a.label("k3_end")
    a.e("s_endpgm")

def main(path):
    a = Asm()
    hdr = open(f"cdna_kernels/{NAME}.s.ref").read().split("\n")
    head = [l for l in hdr if l.startswith(";") and "@launch" not in l and "Override" not in l and "grid=ceil" not in l]
    for l in head: a.raw(l)
    a.raw(f"; @launch kernel=k1_kernel grid=(256,1,1) block=(512,1,1) lds={K1_LDS}")
    a.raw(f"; @launch kernel=k2_kernel grid=({NCONV+512},1,1) block=(256,1,1) lds={K2_LDS}")
    a.raw(f"; @launch kernel=k3_kernel grid=(288,1,1) block=(256,1,1) lds={K3_LDS}")
    a.raw('.amdgcn_target "amdgcn-amd-amdhsa--gfx950"')
    a.raw(".text")
    gen_k1(a); gen_k2(a); gen_k3(a)
    a.raw('.section .rodata,"a"')
    a.raw(kernel_desc("k1_kernel", 240))
    a.raw(kernel_desc("k2_kernel", 192))
    a.raw(kernel_desc("k3_kernel", 160))
    open(path, "w").write(a.text())

if __name__ == "__main__":
    if len(sys.argv) > 2 and sys.argv[2] == "stamps": asmlib.STAMP_ON = True
    main(sys.argv[1] if len(sys.argv) > 1 else f"cdna_kernels/{NAME}.s")
```

```python
class Asm:
    def __init__(self):
        self.lines = []
        self.lgkm = []
        self.vm = []
        self.uid = 0
    def e(self, s):
        self.lines.append("    " + s)
    def c(self, s):
        self.lines.append("    ; " + s)
    def label(self, s):
        self.lines.append(s + ":")
    def raw(self, s):
        self.lines.append(s)
    def newlabel(self, base):
        self.uid += 1
        return f"{base}_{self.uid}"
    def lds(self, s, tag=None):
        self.e(s); self.lgkm.append(tag)
    def vmem(self, s, tag=None):
        self.e(s); self.vm.append(tag)
        assert len(self.vm) <= 63, "too many VMEM outstanding"
    def wait_lds(self, tag=None):
        if tag is None:
            n = 0
        else:
            idx = [i for i, t in enumerate(self.lgkm) if t == tag]
            if not idx: return
            n = len(self.lgkm) - 1 - idx[-1]
        n_emit = min(n, 15)
        self.e(f"s_waitcnt lgkmcnt({n_emit})")
        self.lgkm = self.lgkm[len(self.lgkm) - n_emit:] if n_emit else []
    def wait_vm(self, tag=None):
        if tag is None:
            n = 0
        else:
            idx = [i for i, t in enumerate(self.vm) if t == tag]
            if not idx: return
            n = len(self.vm) - 1 - idx[-1]
        self.e(f"s_waitcnt vmcnt({n})")
        self.vm = self.vm[len(self.vm) - n:] if n else []
    def reset_counters(self):
        self.lgkm = []; self.vm = []
    def text(self):
        return "\n".join(self.lines) + "\n"

def v(b, n=1):
    return f"v{b}" if n == 1 else f"v[{b}:{b+n-1}]"
def s(b, n=1):
    return f"s{b}" if n == 1 else f"s[{b}:{b+n-1}]"

def srd(a, d, base, nbytes, add=0):
    if add:
        a.e(f"s_add_u32 s{d}, s{base}, {add}")
        a.e(f"s_addc_u32 s{d+1}, s{base+1}, 0")
    else:
        a.e(f"s_mov_b32 s{d}, s{base}")
        a.e(f"s_mov_b32 s{d+1}, s{base+1}")
    a.e(f"s_mov_b32 s{d+2}, {nbytes}")
    a.e(f"s_mov_b32 s{d+3}, 0x00020000")

def kernel_head(a, name):
    a.raw(f".globl {name}")
    a.raw(".p2align 8")
    a.raw(f".type {name},@function")
    a.label(name)
    a.reset_counters()

def kernel_desc(name, vgpr, sgpr=102, accum=None):
    if accum is None: accum = (vgpr + 3) // 4 * 4
    return f""".p2align 6
.amdhsa_kernel {name}
  .amdhsa_next_free_vgpr {vgpr}
  .amdhsa_next_free_sgpr {sgpr}
  .amdhsa_accum_offset {accum}
  .amdhsa_group_segment_fixed_size 0
  .amdhsa_kernarg_size 104
  .amdhsa_user_sgpr_count 2
  .amdhsa_user_sgpr_kernarg_segment_ptr 1
  .amdhsa_system_sgpr_workgroup_id_x 1
  .amdhsa_float_denorm_mode_32 3
.end_amdhsa_kernel
"""

def setexec(a, mask):
    a.e(f"s_mov_b32 exec_lo, 0x{mask & 0xffffffff:x}")
    a.e(f"s_mov_b32 exec_hi, 0x{mask >> 32:x}")

STAMP_ON = False
STAMP_BASE = 32 << 20
class Stamps:
    def __init__(self, a): self.a = a; self.n = 0; self.names = []
    def __call__(self, name):
        import asmlib
        if not asmlib.STAMP_ON: return
        assert self.n < 19
        self.a.e(f"s_memtime s[{60+2*self.n}:{61+2*self.n}]"); self.n += 1; self.names.append(name)
    def real(self, name):
        import asmlib
        if not asmlib.STAMP_ON: return
        self.a.e(f"s_memrealtime s[{60+2*self.n}:{61+2*self.n}]"); self.n += 1; self.names.append(name)
    def flush(self, ws_pair, wave_s, region):
        import asmlib
        if not asmlib.STAMP_ON: return
        a = self.a
        a.e("s_mov_b64 exec, -1")
        a.e("s_waitcnt lgkmcnt(0) vmcnt(0)")
        a.e(f"s_lshl_b32 s58, s2, 4")
        a.e(f"s_add_u32 s58, s58, s{wave_s}")
        a.e(f"s_lshl_b32 s58, s58, 7")
        a.e(f"s_add_u32 s58, s58, {STAMP_BASE + region*(4<<20)}")
        a.e(f"v_mov_b32 v1, s58")
        srd(a, 52, ws_pair, 64 << 20)
        for i in range(self.n):
            a.e(f"v_mov_b32 v2, s{60+2*i}")
            a.e(f"buffer_store_dword v2, v1, s[52:55], 0 offen offset:{4*i}")
        print("stamps region", region, self.names)

class Rec:
    def __init__(self, a): self.a = a; self.ops = []
    def __getattr__(self, name):
        def f(*args, **kw):
            self.ops.append(lambda: getattr(self.a, name)(*args, **kw))
        return f
```

```python
import sys, struct
from asmlib import *
import asmlib

NAME = "gated_mix__sliding_block__ssm_conv_h3__prompt"
SZ = 2048 * 576 * 2
WS_QKV = 0
QKV_BYTES = 432 * 16384
WS_U = QKV_BYTES
WS_O = WS_U + SZ
WS_Z = WS_O + SZ
WS_G = WS_Z + SZ
WS_TOTAL = WS_G + 8192
def f32(x): return "0x%08x" % struct.unpack("<I", struct.pack("<f", x))[0]
QSCALE = 18 ** -0.5 * 1.4426950408889634
NEGINF = "0xff800000"

def rnd(a, dst, src):
    a.e(f"v_cvt_pk_bf16_f32 v{dst}, 0, v{src}")

def lane_mask(fn):
    m = 0
    for l in range(64):
        if fn(l): m |= 1 << l
    return m

K1_U = 0
K1_PK = 8192
K1_PSZ = 20480 + 0
K1_RING = 24576
K1_LDS = K1_RING + 131072

def prep_tile(a, T_s):
    a.e(f"s_mul_i32 s40, s{T_s}, 7282")
    a.e("s_lshr_b32 s40, s40, 16")
    a.e("s_mul_i32 s41, s40, 9")
    a.e(f"s_sub_u32 s41, s{T_s}, s41")

def prep_issue(a, G_s, B_s, R, tag):
    a.e("s_lshl_b32 s22, s40, 2")
    a.e(f"s_add_u32 s22, s22, s{G_s}")
    a.e(f"s_mul_i32 s22, s22, {16*1152}")
    a.e("s_lshl_b32 s23, s41, 7")
    a.e("s_add_u32 s22, s22, s23")
    a.e(f"v_lshrrev_b32 v{R}, 3, v0")
    a.e(f"v_and_b32 v{R+1}, 7, v0")
    a.e(f"v_lshl_add_u32 v{R+1}, v{R+1}, 4, s22")
    a.e(f"v_mul_u32_u24 v{R}, 1152, v{R}")
    a.e(f"v_lshl_add_u32 v{R+3}, v{R}, 1, v{R+1}")
    a.e(f"v_add_u32 v{R}, v{R}, v{R+1}")
    a.e(f"v_subrev_u32 v{R+1}, {3*1152}, v{R}")
    a.e(f"s_mul_i32 s57, s{G_s}, 3072")
    a.e(f"s_add_u32 s57, s57, s{B_s}")
    a.e(f"s_add_u32 m0, s57, {K1_PK+512}")
    a.e(f"v_lshlrev_b32 v{R+2}, 4, v0")
    a.vmem(f"buffer_load_dwordx4 v{R}, s[24:27], 0 offen lds", tag)
    a.e(f"s_add_u32 m0, s57, {K1_PK+1536}")
    a.e(f"s_mov_b32 s23, {8*1152}")
    a.vmem(f"buffer_load_dwordx4 v{R}, s[24:27], s23 offen lds", tag)
    a.e(f"s_add_u32 m0, s57, {K1_PK+128}")
    setexec(a, 0xffffff)
    a.vmem(f"buffer_load_dwordx4 v{R+1}, s[24:27], 0 offen lds", tag)
    a.e(f"s_add_u32 m0, s57, {K1_PK+2560}")
    a.e("s_mov_b32 exec_lo, -1")
    a.e("s_lshl_b32 s23, s41, 9")
    a.vmem(f"buffer_load_dwordx4 v{R+2}, s[32:35], s23 offen lds", tag)
    a.e("s_mov_b64 exec, -1")
    a.vmem(f"buffer_load_dwordx4 {v(R+4,4)}, v{R+3}, s[28:31], 0 offen", tag)
    a.vmem(f"buffer_load_dwordx4 {v(R+8,4)}, v{R+3}, s[28:31], 0 offen offset:1152", tag)

def prep_compute(a, G_s, B_s, R, T, tag):
    VR = R + 4
    KR, SW = T + 52, T + 72
    UK, UW, UV, TA, OUT = T, T+20, T+36, T+44, T+88
    a.e(f"s_mul_i32 s57, s{G_s}, 3072")
    a.e(f"s_add_u32 s57, s57, s{B_s}")
    a.e(f"v_lshrrev_b32 v{T}, 3, v0")
    a.e(f"v_and_b32 v{T+1}, 7, v0")
    a.e(f"v_lshlrev_b32 v{T}, 8, v{T}")
    a.e(f"v_lshl_add_u32 v{T}, v{T+1}, 4, v{T}")
    a.e(f"v_add_u32 v{T}, s57, v{T}")
    a.e(f"v_lshl_add_u32 v{T+1}, v{T+1}, 6, s57")
    a.wait_vm(tag)
    for j in range(5): a.lds(f"ds_read_b128 {v(KR+4*j,4)}, v{T} offset:{K1_PK+128+128*j}", "PK")
    for i in range(4): a.lds(f"ds_read_b128 {v(SW+4*i,4)}, v{T+1} offset:{K1_PK+2560+16*i}", "PK")
    a.e("s_mov_b32 s42, 0xffff0000")
    a.wait_lds("PK")
    for half in range(2):
        for r in range(5):
            for qq in range(2):
                a.e(f"v_lshlrev_b32 v{UK+4*r+2*qq}, 16, v{KR+4*r+2*half+qq}")
                a.e(f"v_and_b32 v{UK+4*r+2*qq+1}, s42, v{KR+4*r+2*half+qq}")
        for c in range(4):
            for t in range(2):
                src = SW + (4*half+c)*2 + t
                a.e(f"v_lshlrev_b32 v{UW+4*c+2*t}, 16, v{src}")
                a.e(f"v_and_b32 v{UW+4*c+2*t+1}, s42, v{src}")
        for r in range(2):
            for qq in range(2):
                a.e(f"v_lshlrev_b32 v{UV+4*r+2*qq}, 16, v{VR+4*r+2*half+qq}")
                a.e(f"v_and_b32 v{UV+4*r+2*qq+1}, s42, v{VR+4*r+2*half+qq}")
        RC = [(r, c) for r in range(2) for c in range(4)]
        for r, c in RC: a.e(f"v_mul_f32 v{TA+4*r+c}, v{UK+4*r+c}, v{UW+4*c+3}")
        for t in (1, 2, 3):
            for r, c in RC: a.e(f"v_fmac_f32 v{TA+4*r+c}, v{UK+4*(r+t)+c}, v{UW+4*c+3-t}")
        for r, c in RC: rnd(a, TA+4*r+c, TA+4*r+c)
        for r, c in RC: a.e(f"v_mul_f32 v{TA+4*r+c}, v{TA+4*r+c}, v{UV+4*r+c}")
        for r in range(2):
            for qq in range(2):
                a.e(f"v_cvt_pk_bf16_f32 v{OUT+4*r+2*half+qq}, v{TA+4*r+2*qq}, v{TA+4*r+2*qq+1}")
    a.e(f"v_lshrrev_b32 v{T}, 4, v0")
    a.e(f"v_lshlrev_b32 v{T}, 5, v{T}")
    a.e(f"v_and_b32 v{T+1}, 7, v0")
    a.e(f"v_lshlrev_b32 v{T+1}, 4, v{T+1}")
    a.e(f"v_xor_b32 v{T}, v{T}, v{T+1}")
    a.e(f"v_lshrrev_b32 v{T+1}, 3, v0")
    a.e(f"v_lshl_add_u32 v{T}, v{T+1}, 8, v{T}")
    a.e(f"s_lshl_b32 s22, s{G_s}, 11")
    a.e(f"s_add_u32 s22, s22, s{B_s}")
    a.e(f"v_add_u32 v{T}, s22, v{T}")
    a.lds(f"ds_write_b128 v{T}, {v(OUT,4)} offset:{K1_U}")
    a.lds(f"ds_write_b128 v{T}, {v(OUT+4,4)} offset:{K1_U+128}")

def prep_store(a, D_s, B_s, T):
    a.e(f"v_lshrrev_b32 v{T+1}, 4, v0")
    a.e(f"v_bfe_u32 v{T+2}, v0, 2, 2")
    a.e(f"v_sub_u32 v{T+2}, 3, v{T+2}")
    a.e(f"v_xor_b32 v{T+3}, s{D_s}, v{T+2}")
    a.e(f"v_lshlrev_b32 v{T+3}, 5, v{T+3}")
    a.e(f"v_lshl_add_u32 v{T+2}, v{T+2}, 2, v{T+1}")
    a.e(f"v_lshl_add_u32 v{T+3}, v{T+2}, 7, v{T+3}")
    a.e(f"v_and_b32 v{T+2}, 3, v0")
    a.e(f"v_lshl_add_u32 v{T+3}, v{T+2}, 3, v{T+3}")
    a.e(f"v_and_b32 v{T+4}, 15, v0")
    a.e("s_lshl_b32 s57, s41, 6")
    a.e(f"s_lshl_b32 s22, s{D_s}, 4")
    a.e("s_add_u32 s57, s57, s22")
    a.e(f"v_add_u32 v{T+4}, s57, v{T+4}")
    a.e(f"v_lshlrev_b32 v{T+4}, 12, v{T+4}")
    a.e(f"v_lshl_add_u32 v{T+4}, v{T+1}, 4, v{T+4}")
    a.e("s_lshl_b32 s57, s40, 7")
    a.e(f"s_add_u32 s57, s57, {WS_U}")
    a.e(f"v_add_u32 v{T+3}, s{B_s}, v{T+3}")
    blks = [0, 1]
    for b in blks:
        a.lds(f"ds_read_b64_tr_b16 {v(T+8+4*b,2)}, v{T+3} offset:{K1_U+4096*b+16*128}", f"PT{b}")
        a.lds(f"ds_read_b64_tr_b16 {v(T+10+4*b,2)}, v{T+3} offset:{K1_U+4096*b}", f"PT{b}")
    for b in blks:
        a.wait_lds(f"PT{b}")
        a.vmem(f"buffer_store_dwordx4 {v(T+8+4*b,4)}, v{T+4}, s[36:39], s57 offen offset:{64*b}", "PS")

def gen_k1(a):
    kernel_head(a, "k1_kernel")
    a.e("s_cmp_ge_u32 s2, 256")
    a.e("s_cbranch_scc1 k1_end")
    st = Stamps(a); st.real("rt0"); st("t0")
    a.e("s_load_dwordx4 s[4:7], s[0:1], 0")
    a.e("s_load_dwordx4 s[8:11], s[0:1], 32")
    a.e("s_load_dwordx4 s[12:15], s[0:1], 48")
    a.e("s_load_dwordx2 s[16:17], s[0:1], 96")
    a.e("v_lshrrev_b32 v1, 6, v0")
    a.e("v_and_b32 v0, 63, v0")
    a.e("v_readfirstlane_b32 s18, v1")
    a.e("s_and_b32 s43, s2, 3")
    a.e("s_lshl_b32 s43, s43, 2")
    a.e("s_bfe_u32 s19, s2, 0x20003")
    a.e("s_add_u32 s43, s43, s19")
    a.e("s_bfe_u32 s44, s2, 0x10002")
    a.e("s_mul_i32 s44, s44, 7")
    a.e("s_lshr_b32 s45, s2, 5")
    a.e("s_add_u32 s44, s44, s45")
    RB, CT = 43, 44
    a.e("s_cmp_eq_u32 s45, 7")
    a.e("s_cbranch_scc1 k1_spare")
    a.e("s_cmp_ge_u32 s18, 4")
    a.e("s_cbranch_scc1 k1_mma")
    n0 = st.n
    WD, XD = 2, 3
    a.e("v_lshrrev_b32 v4, 4, v0")
    a.e("s_lshl_b32 s19, s18, 2")
    a.e("v_add_u32 v5, s19, v4")
    a.e("v_bfe_u32 v6, v5, 3, 1")
    a.e("v_lshl_or_b32 v6, v6, 2, v4")
    a.e("v_lshlrev_b32 v6, 1, v6")
    a.e("v_and_b32 v7, 15, v0")
    a.e("v_xor_b32 v6, v6, v7")
    a.e("v_mul_u32_u24 v5, 3456, v5")
    a.e(f"v_lshl_add_u32 v{WD}, v6, 4, v5")
    a.e("v_lshrrev_b32 v4, 3, v0")
    a.e("s_lshl_b32 s19, s18, 3")
    a.e("v_add_u32 v4, s19, v4")
    a.e("v_and_b32 v5, 15, v4")
    a.e("v_lshrrev_b32 v6, 4, v4")
    a.e("v_lshl_add_u32 v6, v5, 1, v6")
    a.e("v_mul_u32_u24 v6, 1152, v6")
    a.e("v_lshrrev_b32 v5, 1, v5")
    a.e("v_and_b32 v7, 7, v0")
    a.e("v_xor_b32 v5, v5, v7")
    a.e(f"v_lshl_add_u32 v{XD}, v5, 4, v6")
    a.e("s_lshr_b32 s46, s2, 3")
    a.e("s_mul_i32 s19, s46, 57")
    a.e("s_lshr_b32 s19, s19, 9")
    a.e("s_mul_i32 s19, s19, 9")
    a.e("s_sub_u32 s46, s46, s19")
    a.e("s_lshl_b32 s47, s18, 10")
    a.e(f"s_mul_i32 s19, s{RB}, {128*1152}")
    a.e(f"s_lshl_b32 s20, s{CT}, 8")
    a.e("s_waitcnt lgkmcnt(0)")
    a.e("s_add_u32 s48, s4, s19")
    a.e("s_addc_u32 s49, s5, 0")
    a.e(f"s_mov_b32 s50, {128*1152}")
    a.e("s_mov_b32 s51, 0x00020000")
    a.e("s_add_u32 s52, s6, s20")
    a.e("s_addc_u32 s53, s7, 0")
    a.e(f"s_sub_u32 s54, {576*3456}, s20")
    a.e("s_mov_b32 s55, 0x00020000")
    st("ka")
    def issue(c):
        base = K1_RING + (c % 4) * 32768
        a.e(f"s_mul_i32 s19, s46, {64*3456}")
        a.e("s_lshl_b32 s20, s46, 7")
        for q in range(4):
            a.e(f"s_add_u32 m0, s47, {base+4096*q}")
            if q: a.e(f"s_add_u32 s20, s20, {32*1152}")
            else: a.e("s_add_u32 s46, s46, 1")
            a.vmem(f"buffer_load_dwordx4 v{WD}, s[52:55], s19 offen lds", f"C{c}")
            a.e(f"s_add_u32 m0, s47, {base+16384+4096*q}")
            a.e(f"s_add_u32 s19, s19, {16*3456}")
            a.vmem(f"buffer_load_dwordx4 v{XD}, s[48:51], s20 offen lds", f"C{c}")
        a.e("s_cmp_ge_u32 s46, 9")
        a.e("s_cselect_b32 s46, 0, s46")
    issue(0); issue(1)
    srd(a, 24, 8, SZ); srd(a, 28, 10, SZ); srd(a, 32, 12, 576*8); srd(a, 36, 16, WS_TOTAL)
    prep_tile(a, 2)
    a.e("s_mov_b32 s58, 0")
    PR0, PT = 8, 20
    rec = Rec(a)
    prep_compute(rec, 18, 58, PR0, PT, "P0"); pq = rec.ops
    piece = (len(pq) + 4) // 5
    for c in range(9):
        a.wait_vm(f"C{c}")
        if c == 8: a.wait_lds(None)
        a.e("s_barrier")
        if c in (0, 2, 5, 8): st(f"b{c}")
        if c == 0: issue(2)
        if c + 3 < 9: issue(c + 3)
        if c == 1:
            prep_issue(a, 18, 58, PR0, "P0")
        if c >= 3:
            for _ in range(piece):
                if pq: pq.pop(0)()
    assert not pq
    prep_store(a, 18, 58, PT)
    st("x"); st("stored")
    if asmlib.STAMP_ON: a.e("s_waitcnt vmcnt(0)")
    st("drained"); st.real("rt1")
    st.flush(16, 18, 0)
    a.e("s_endpgm")
    a.label("k1_mma")
    a.reset_counters()
    st.n = n0; st.names = st.names[:n0]
    a.e("s_setprio 2")
    WA, XA, ACC, FR = 2, 10, 16, 80
    a.e("v_lshrrev_b32 v12, 4, v0")
    a.e("v_bfe_u32 v13, v0, 2, 2")
    a.e("v_and_b32 v14, 1, v12")
    a.e("v_lshl_or_b32 v14, v14, 2, v13")
    a.e("s_and_b32 s22, s18, 1")
    a.e("s_lshl_b32 s22, s22, 2")
    a.e("v_xor_b32 v14, s22, v14")
    a.e("v_lshl_add_u32 v15, v12, 3, v13")
    a.e("v_lshlrev_b32 v15, 8, v15")
    a.e("v_lshl_add_u32 v15, v14, 5, v15")
    a.e("v_and_b32 v14, 3, v0")
    a.e("v_lshl_add_u32 v15, v14, 3, v15")
    a.e(f"v_add_u32 v{WA}, {K1_RING}, v15")
    for mt in range(1, 4): a.e(f"v_xor_b32 v{WA+mt}, {32*mt}, v{WA}")
    for mt in range(4): a.e(f"v_add_u32 v{WA+4+mt}, 0x10000, v{WA+mt}")
    SO = 1
    a.e("v_and_b32 v13, 15, v0")
    a.e(f"s_lshl_b32 s21, s{CT}, 5")
    a.e("s_lshl_b32 s22, s22, 2")
    a.e("s_add_u32 s56, s21, s22")
    a.e("v_add_u32 v14, s56, v12")
    a.e("v_lshlrev_b32 v14, 14, v14")
    a.e("s_bfe_u32 s23, s18, 0x10001")
    a.e(f"s_lshl_b32 s21, s{RB}, 10")
    a.e("s_lshl_b32 s22, s23, 9")
    a.e("s_add_u32 s21, s21, s22")
    a.e("v_lshl_add_u32 v14, v13, 4, v14")
    a.e(f"v_add_u32 v{SO}, s21, v14")
    a.e("v_lshrrev_b32 v14, 1, v13")
    a.e("v_xor_b32 v14, v14, v12")
    a.e("s_lshl_b32 s21, s23, 13")
    a.e(f"s_add_u32 s21, s21, {K1_RING+16384}")
    a.e("v_lshlrev_b32 v15, 7, v13")
    a.e("v_lshl_add_u32 v15, v14, 4, v15")
    a.e(f"v_add_u32 v{XA}, s21, v15")
    a.e(f"v_xor_b32 v{XA+1}, 64, v{XA}")
    a.e(f"v_add_u32 v{XA+2}, 0x10000, v{XA}")
    a.e(f"v_add_u32 v{XA+3}, 0x10000, v{XA+1}")
    a.e("s_waitcnt lgkmcnt(0)")
    srd(a, 48, 16, QKV_BYTES)
    st("ka")
    def reads(c):
        f = FR + 64 * (c % 2); slot = c % 4; hb = slot // 2; ob = 32768 * (slot % 2)
        out = []
        for kh in range(2):
            for i in range(4):
                for hf in range(2):
                    out.append(lambda kh=kh, mt=i, hf=hf: a.lds(f"ds_read_b64_tr_b16 {v(f+16*kh+4*mt+2*hf,2)}, v{WA+4*hb+mt} offset:{ob+(32*kh+4*hf)*256}", f"F{c}_{kh}"))
                out.append(lambda kh=kh, nt=i: a.lds(f"ds_read_b128 {v(f+32+16*kh+4*nt,4)}, v{XA+2*hb+kh} offset:{ob+2048*nt}", f"F{c}_{kh}"))
        return out
    a.e("s_barrier")
    st("b0")
    for r_ in reads(0): r_()
    for c in range(9):
        f = FR + 64 * (c % 2)
        fill = []
        a.wait_lds(None)
        if c + 1 < 9:
            a.e("s_barrier")
            fill = reads(c + 1)
        if c in (1, 4, 7): st(f"b{c+1}")
        for kh in range(2):
            for nt in range(4):
                for mt in range(4):
                    acc = v(ACC + (mt*4+nt)*4, 4)
                    first = (c == 0 and kh == 0)
                    a.e(f"v_mfma_f32_16x16x32_bf16 {acc}, {v(f+16*kh+4*mt,4)}, {v(f+32+16*kh+4*nt,4)}, {0 if first else acc}")
                    if fill: fill.pop(0)()
    st("loop")
    a.e(f"s_mov_b32 s20, {f32(QSCALE)}")
    a.e("s_cmp_lt_u32 s56, 144")
    a.e("s_cselect_b32 s21, s20, 1.0")
    a.e("s_nop 3")
    for mt in range(4):
        for nt in range(4):
            ac = ACC + (mt*4+nt)*4
            for i in range(4): a.e(f"v_mul_f32 v{ac+i}, s21, v{ac+i}")
            t = FR + 64 + (mt*4+nt)*2
            a.e(f"v_cvt_pk_bf16_f32 v{t}, v{ac}, v{ac+1}")
            a.e(f"v_cvt_pk_bf16_f32 v{t+1}, v{ac+2}, v{ac+3}")
        a.e(f"s_mov_b32 s19, {mt*65536}")
        a.vmem(f"buffer_store_dwordx4 {v(FR+64+mt*8,4)}, v{SO}, s[48:51], s19 offen")
        a.vmem(f"buffer_store_dwordx4 {v(FR+64+mt*8+4,4)}, v{SO}, s[48:51], s19 offen offset:256")
    st("stored")
    if asmlib.STAMP_ON: a.e("s_waitcnt vmcnt(0)")
    st("drained"); st.real("rt1")
    st.flush(16, 18, 0)
    a.e("s_endpgm")
    a.label("k1_spare")
    a.reset_counters()
    a.e("s_load_dwordx2 s[20:21], s[0:1], 72")
    a.e("s_load_dwordx2 s[44:45], s[0:1], 16")
    a.e("s_and_b32 s46, s2, 31")
    a.e("s_and_b32 s58, s18, 3")
    a.e("s_lshr_b32 s59, s18, 2")
    a.e("s_waitcnt lgkmcnt(0)")
    srd(a, 24, 8, SZ); srd(a, 28, 10, SZ); srd(a, 32, 12, 576*8); srd(a, 36, 16, WS_TOTAL)
    srd(a, 48, 4, SZ)
    srd(a, 52, 20, 576*2)
    srd(a, 4, 44, 576*1152)
    PR, PT = 96, 108
    a.e("s_add_u32 s47, s46, 256")
    a.e("s_cmp_eq_u32 s59, 0")
    a.e("s_cselect_b32 s47, s2, s47")
    a.e(f"s_mul_i32 s59, s59, {K1_RING}")
    prep_tile(a, 47)
    prep_issue(a, 58, 59, PR, "P")
    GX, GW = 16, 52
    a.e("v_lshrrev_b32 v10, 5, v0")
    a.e("s_lshl_b32 s19, s46, 6")
    a.e("s_lshl_b32 s20, s18, 3")
    a.e("s_add_u32 s19, s19, s20")
    a.e("v_add_u32 v10, s19, v10")
    a.e("v_and_b32 v11, 31, v0")
    a.e("v_lshlrev_b32 v11, 2, v11")
    a.e("v_mul_u32_u24 v12, 1152, v10")
    a.e("v_add_u32 v12, v12, v11")
    for i in range(9): a.vmem(f"buffer_load_dword v{GW+i}, v11, s[52:55], 0 offen offset:{128*i}", "G")
    for it in range(4):
        a.e(f"s_mov_b32 s19, {it*2304}")
        for i in range(9): a.vmem(f"buffer_load_dword v{GX+9*it+i}, v12, s[48:51], s19 offen offset:{128*i}", "G")
    prep_compute(a, 58, 59, PR, PT, "P")
    a.wait_lds(None)
    a.e("s_barrier")
    prep_store(a, 58, 59, PT)
    a.wait_vm("G")
    for i in range(9):
        a.e(f"v_lshlrev_b32 v{64+2*i}, 16, v{GW+i}")
        a.e(f"v_and_b32 v{65+2*i}, s42, v{GW+i}")
    for it in range(4):
        A0 = 84 + it
        for i in range(9):
            a.e(f"v_lshlrev_b32 v4, 16, v{GX+9*it+i}")
            a.e(f"v_and_b32 v5, s42, v{GX+9*it+i}")
            a.e(f"v_mul_f32 v4, v4, v{64+2*i}")
            a.e(f"v_mul_f32 v5, v5, v{65+2*i}")
            rnd(a, 4, 4); rnd(a, 5, 5)
            if i == 0: a.e(f"v_add_f32 v{A0}, v4, v5")
            else: a.e(f"v_add_f32 v{A0}, v{A0}, v4"); a.e(f"v_add_f32 v{A0}, v{A0}, v5")
    for m in (1, 2, 4, 8, 16):
        for it in range(4): a.lds(f"ds_swizzle_b32 v{88+it}, v{84+it} offset:{(m<<10)|0x1f}")
        a.wait_lds(None)
        for it in range(4): a.e(f"v_add_f32 v{84+it}, v{84+it}, v{88+it}")
    for it in range(4): rnd(a, 84+it, 84+it)
    for it in range(4): a.e(f"v_mul_f32 v{84+it}, {f32(-1.4426950408889634)}, v{84+it}")
    for it in range(4): a.e(f"v_exp_f32 v{84+it}, v{84+it}")
    for it in range(4): a.e(f"v_add_f32 v{84+it}, 1.0, v{84+it}")
    for it in range(4): a.e(f"v_rcp_f32 v{84+it}, v{84+it}")
    for it in range(4): rnd(a, 84+it, 84+it)
    a.e("v_lshlrev_b32 v10, 2, v10")
    a.e(f"s_mov_b32 s19, {WS_G}")
    setexec(a, 0x100000001)
    for it in range(4): a.vmem(f"buffer_store_dword v{84+it}, v10, s[36:39], s19 offen offset:{8*it}")
    a.e("s_mov_b64 exec, -1")
    srd(a, 52, 14, SZ)
    a.e("v_lshlrev_b32 v4, 4, v0")
    a.e("s_lshl_b32 s19, s46, 3")
    a.e("s_add_u32 s19, s19, s18")
    a.e("s_mul_i32 s20, s19, 9216")
    a.e("s_mul_i32 s21, s19, 2592")
    for i in range(9):
        a.vmem(f"buffer_load_dwordx4 {v(16+4*i,4)}, v4, s[52:55], s20 offen", "PF")
        a.e("s_add_u32 s20, s20, 1024")
    for i in range(3):
        a.vmem(f"buffer_load_dwordx4 {v(52+4*i,4)}, v4, s[4:7], s21 offen offset:{1024*i}", "PF")
    a.label("k1_end")
    a.e("s_endpgm")

CV_U = 0
CV_USZ = 1216
CV_K = 4 * CV_USZ
CV_KSZ = 8192
NCONV = 576
PL = 3072
K2_LDS = max(CV_K + 4 * CV_KSZ, 11 * PL)

def gen_conv(a, st):
    AF, ACC, BF = 16, 80, 112
    a.e("s_lshl_b32 s20, s3, 12")
    a.e("s_add_u32 s24, s4, s20")
    a.e("s_addc_u32 s25, s5, 0")
    a.e("s_mov_b32 s26, 4096")
    a.e("s_mov_b32 s27, 0x00020000")
    srd(a, 32, 6, 576*2)
    a.e("s_lshl_b32 s22, s18, 13")
    a.e(f"s_mul_i32 s23, s18, {CV_USZ}")
    a.e("s_lshl_b32 s21, s18, 1")
    a.e("v_lshlrev_b32 v1, 4, v0")
    a.e("v_subrev_u32 v1, s21, v1")
    a.e(f"s_add_u32 m0, s22, {CV_K+32}")
    a.e("v_add_u32 v2, 1024, v1")
    a.vmem("buffer_load_dwordx4 v1, s[24:27], 0 offen lds", "K")
    a.e(f"s_add_u32 m0, s22, {CV_K+32+1024}")
    a.e("v_lshlrev_b32 v3, 1, v0")
    for i in range(3):
        a.vmem(f"buffer_load_dwordx4 v2, s[24:27], 0 offen offset:{1024*i} lds", "K")
    a.e("v_subrev_u32 v4, s21, v3")
    a.e("v_subrev_u32 v4, 32, v4")
    a.vmem("buffer_load_ushort v5, v4, s[24:27], 0 offen", "K")
    a.e("v_sub_u32 v2, 63, v0")
    a.e("v_lshlrev_b32 v2, 6, v2")
    a.e("s_lshl_b32 s21, s18, 4")
    a.e("s_add_u32 s21, s21, s20")
    a.e("s_mov_b32 m0, s23")
    a.e(f"s_add_u32 s21, s21, {WS_U}")
    a.vmem("buffer_load_dwordx4 v2, s[28:31], s21 offen lds", "U")
    a.e("s_lshl_b32 s21, s3, 1")
    a.e("v_mov_b32 v6, s21")
    a.vmem("buffer_load_ushort v6, v6, s[32:35], 0 offen", "U")
    a.e("v_add_u32 v4, s23, v3")
    a.e("v_mov_b32 v7, 0")
    a.lds("ds_write_b16 v4, v7 offset:1024")
    a.e("v_add_u32 v3, s22, v3")
    a.e("v_lshrrev_b32 v7, 4, v0")
    a.e("v_bfe_u32 v8, v0, 2, 2")
    a.e("v_and_b32 v9, 3, v0")
    a.e("v_lshlrev_b32 v10, 3, v7")
    a.e("v_add3_u32 v10, v10, v8, v9")
    a.e("v_lshl_add_u32 v10, v10, 3, s22")
    a.e("v_and_b32 v11, 15, v0")
    a.e("v_lshlrev_b32 v12, 4, v7")
    a.e("v_lshlrev_b32 v13, 3, v11")
    a.e("v_sub_u32 v12, v12, v13")
    a.e(f"v_add_u32 v12, {2*508-64*14}, v12")
    a.e("v_add_u32 v12, s23, v12")
    a.wait_vm("K")
    setexec(a, 0xffffff)
    a.lds(f"ds_write_b16 v3, v5 offset:{CV_K}")
    a.e("s_mov_b64 exec, -1")
    st("k")
    def rdA(kap):
        for hf in range(2):
            a.lds(f"ds_read_b64_tr_b16 {v(AF+4*kap+2*hf,2)}, v10 offset:{CV_K+8+256*kap+32*hf}", f"A{kap}")
    lams = []
    lo, hi = -1, 14
    while lo <= hi:
        lams.append(hi); hi -= 1
        if lo <= hi: lams.append(lo); lo += 1
    def rdB(i):
        lam = lams[i]; b = BF + 4 * (i % 4)
        for hf in range(2):
            a.lds(f"ds_read_b64 {v(b+2*hf,2)}, v12 offset:{64*(14-lam)+8*hf}", f"B{i}")
    for kap in (0, 1, 3, 5, 7, 9): rdA(kap)
    a.wait_vm("U")
    st("u")
    rdB(0); rdB(1)
    restA = [11, 13, 15, 2, 4, 6, 8, 10, 12, 14]
    seen = set()
    for i, lam in enumerate(lams):
        if i + 2 < len(lams): rdB(i + 2)
        a.wait_lds(f"B{i}")
        b = BF + 4 * (i % 4)
        for tau in range(8):
            kap = 2 * tau - lam
            if kap < 0 or kap > 15: continue
            a.wait_lds(f"A{kap}")
            w = v(ACC + 4*tau, 4)
            a.e(f"v_mfma_f32_16x16x32_bf16 {w}, {v(AF+4*kap,4)}, {v(b,4)}, {w if tau in seen else 0}")
            seen.add(tau)
            if restA: rdA(restA.pop(0))
    st("mfma")
    a.e("v_lshlrev_b32 v13, 4, v0")
    a.e("v_add_u32 v14, s22, v13")
    a.e("s_lshl_b32 s21, s18, 11")
    a.e("v_add_u32 v15, s21, v13")
    for i in range(8): a.e(f"v_mov_b32 v{AF+32+i}, 0")
    for tau in range(8):
        a.lds(f"ds_write_b128 v14, {v(ACC+4*tau,4)} offset:{CV_K+1024*tau}")
    a.e("v_lshl_add_u32 v13, v11, 2, v7")
    a.e("v_lshlrev_b32 v13, 1, v13")
    a.e(f"v_sub_u32 v13, {2*511-128}, v13")
    a.e("s_lshl_b32 s21, s18, 8")
    a.e("v_subrev_u32 v13, s21, v13")
    a.e("v_lshlrev_b32 v6, 16, v6")
    a.e("v_lshlrev_b32 v14, 5, v11")
    a.e("v_lshl_add_u32 v14, v7, 3, v14")
    a.e("s_lshl_b32 s21, s18, 10")
    a.e("s_add_u32 s21, s21, s20")
    a.e(f"s_add_u32 s21, s21, {WS_Z}")
    a.wait_lds(None)
    a.e("s_barrier")
    for j in range(2):
        for sw in range(4):
            a.lds(f"ds_read_b128 {v(AF+16*j+4*sw,4)}, v15 offset:{CV_K+CV_KSZ*sw+1024*j}", f"R{j}")
        for i in range(4):
            a.lds(f"ds_read_u16_d16_hi v{AF+32+4*j+i}, v13 offset:{CV_USZ*i+128*(1-j)}", f"R{j}")
    for j in range(2):
        a.wait_lds(f"R{j}")
        y = AF + 16*j; u = AF + 32 + 4*j
        for i in range(4): a.e(f"v_add_f32 v{y+i}, v{y+i}, v{y+4+i}")
        for i in range(4): a.e(f"v_add_f32 v{y+8+i}, v{y+8+i}, v{y+12+i}")
        for i in range(4): a.e(f"v_mul_f32 v{u+i}, v{u+i}, v6")
        for i in range(4): a.e(f"v_add_f32 v{y+i}, v{y+i}, v{y+8+i}")
        for i in range(4): rnd(a, u+i, u+i)
        for i in range(4): rnd(a, y+i, y+i)
        for i in range(4): a.e(f"v_add_f32 v{y+i}, v{y+i}, v{u+i}")
        a.e(f"v_cvt_pk_bf16_f32 v{y}, v{y}, v{y+1}")
        a.e(f"v_cvt_pk_bf16_f32 v{y+1}, v{y+2}, v{y+3}")
        a.vmem(f"buffer_store_dwordx2 {v(y,2)}, v14, s[28:31], s21 offen offset:{512*j}")

def gen_k2(a):
    kernel_head(a, "k2_kernel")
    a.e("s_cmp_ge_u32 s2, 1024")
    a.e("s_cbranch_scc1 k2_end")
    st = Stamps(a); st.real("rt0"); st("t0")
    a.e("s_load_dwordx4 s[4:7], s[0:1], 56")
    a.e("s_load_dwordx2 s[16:17], s[0:1], 96")
    a.e("v_lshrrev_b32 v1, 6, v0")
    a.e("v_and_b32 v0, 63, v0")
    a.e("v_readfirstlane_b32 s18, v1")
    a.e("s_cmp_ge_u32 s2, 512")
    a.e("s_cbranch_scc1 k2_attn")
    a.e("s_mov_b32 s3, s2")
    a.e("s_waitcnt lgkmcnt(0)")
    srd(a, 28, 16, WS_TOTAL)
    n0 = st.n
    a.label("k2_cloop")
    gen_conv(a, st)
    a.e("s_add_u32 s3, s3, 512")
    a.e(f"s_cmp_ge_u32 s3, {NCONV}")
    a.e("s_cbranch_scc1 k2_cdone")
    a.e("s_barrier")
    a.e("s_branch k2_cloop")
    a.label("k2_cdone")
    st("convdone")
    if asmlib.STAMP_ON: a.e("s_waitcnt vmcnt(0)")
    st("drained"); st.real("rt1"); st.flush(16, 18, 1)
    a.e("s_endpgm")
    st.n = n0; st.names = st.names[:n0]
    a.label("k2_attn")
    a.reset_counters()
    a.e("s_and_b32 s20, s2, 31")
    a.e("s_bfe_u32 s21, s2, 0x40005")
    a.e("s_setprio 2")
    a.e("s_lshr_b32 s22, s20, 1")
    a.e("s_and_b32 s23, s20, 1")
    a.e("s_mul_i32 s24, s22, 9")
    a.e("s_mul_i32 s25, s23, 5")
    a.e("s_add_u32 s25, s25, s24")
    a.e("s_add_u32 s24, s24, 4")
    a.e("v_lshlrev_b32 v2, 4, v0")
    for i in range(3):
        a.e(f"s_sub_i32 s{32+i}, s21, {2-i}")
        a.e(f"s_max_i32 s{32+i}, s{32+i}, 0")
        a.e(f"s_lshl_b32 s{32+i}, s{32+i}, 10")
    a.e("s_add_u32 s26, s25, s18")
    a.e("s_lshl_b32 s26, s26, 14")
    a.e(f"s_mul_i32 s27, s18, {PL}")
    Q1, Q2 = 8, 12
    KB_ = [16, 22]
    VB_ = [28, 36]
    SS = [44, 60]
    PP = [76, 84]
    OA = 92
    NM = 14
    a.e("v_and_b32 v1, 31, v0")
    a.e("v_lshrrev_b32 v15, 5, v0")
    a.e("s_lshl_b32 s36, s21, 2")
    a.e("s_add_u32 s36, s36, s18")
    a.e("s_lshl_b32 s37, s36, 8")
    a.e("v_lshlrev_b32 v3, 3, v1")
    a.e("v_lshl_add_u32 v4, v15, 15, v3")
    a.e("s_lshl_b32 s35, s25, 14")
    a.e("s_add_u32 s35, s35, s37")
    a.e("s_waitcnt lgkmcnt(0)")
    srd(a, 28, 16, WS_TOTAL)
    a.vmem(f"buffer_load_dwordx2 {v(Q1,2)}, v4, s[28:31], s35 offen", "Q")
    a.e("s_add_u32 s35, s35, 16384")
    a.vmem(f"buffer_load_dwordx2 {v(Q1+2,2)}, v4, s[28:31], s35 offen", "Q")
    a.e("s_lshl_b32 s35, s24, 14")
    a.e("s_add_u32 s35, s35, s37")
    a.vmem(f"buffer_load_dwordx2 {v(Q2,2)}, v3, s[28:31], s35 offen", "Q")
    for i in (2, 1, 0):
        for ty in range(2):
            a.e(f"s_add_u32 m0, s27, {ty*5*PL + i*1024}")
            a.e(f"s_add_u32 s35, s26, s{32+i}")
            a.e(f"s_add_u32 s35, s35, {(144+144*ty)*16384}")
            a.vmem("buffer_load_dwordx4 v2, s[28:31], s35 offen lds", "S")
    a.e("s_cmp_ge_u32 s18, 2")
    a.e("s_cbranch_scc1 k2_notail")
    a.e("s_mul_i32 s26, s18, 144")
    a.e("s_add_u32 s26, s26, s24")
    a.e("s_add_u32 s26, s26, 144")
    a.e("s_lshl_b32 s26, s26, 14")
    a.e(f"s_mul_i32 s27, s18, {5*PL}")
    for i in range(3):
        a.e(f"s_add_u32 m0, s27, {4*PL + i*1024}")
        a.e(f"s_add_u32 s35, s26, s{32+i}")
        a.e("buffer_load_dwordx4 v2, s[28:31], s35 offen lds")
    a.label("k2_notail")
    a.e("v_mov_b32 v5, 0x3f803f80")
    a.e("v_lshlrev_b32 v6, 2, v0")
    a.e("s_lshl_b32 s35, s18, 8")
    a.e("v_add_u32 v6, s35, v6")
    for i in range(3): a.lds(f"ds_write_b32 v6, v5 offset:{10*PL+1024*i}")
    a.e(f"v_mul_u32_u24 v4, {2*PL}, v15")
    a.e("v_add3_u32 v4, v4, v3, s35")
    a.e(f"v_mul_u32_u24 v5, {6*PL}, v15")
    a.e("v_add3_u32 v3, v5, v3, s35")
    a.e("v_bfe_u32 v5, v0, 2, 2")
    a.e("v_lshl_add_u32 v5, v15, 2, v5")
    a.e("v_lshlrev_b32 v5, 3, v5")
    a.e("v_and_b32 v6, 3, v0")
    a.e("v_min_u32 v7, 1, v6")
    a.e("v_add_u32 v7, 4, v7")
    a.e(f"s_mov_b32 s40, 0x{lane_mask(lambda l: (l>>4)&1) & 0xffffffff:x}")
    a.e("s_mov_b32 s41, s40")
    a.e("v_cndmask_b32 v6, v6, v7, s[40:41]")
    a.e(f"v_mul_u32_u24 v6, {PL}, v6")
    a.e("v_add3_u32 v5, v5, v6, s35")
    a.e("s_sub_i32 s27, 8, s36")
    a.e("s_max_i32 s27, s27, 0")
    a.e(f"v_mov_b32 v2, {NEGINF}")
    def mask_ops(S, diag):
        ops = []
        for ri in range(16):
            j, i = ri // 4, ri % 4
            md = lane_mask(lambda l: 8*j + 4*(l >> 5) + i <= (l & 31))
            def f(ri=ri, md=md):
                a.e(f"s_mov_b32 s40, 0x{md & 0xffffffff:x}")
                a.e(f"s_mov_b32 s41, 0x{md >> 32:x}")
                if diag: a.e(f"v_cndmask_b32 v{S+ri}, v2, 0, s[40:41]")
                else: a.e(f"v_cndmask_b32 v{S+ri}, 0, v2, s[40:41]")
            ops.append(f)
        return ops
    for f in mask_ops(SS[0], True): f()
    a.e("s_cmp_eq_u32 s23, 0")
    a.e("s_cselect_b32 s40, -1, 0")
    a.e("s_mov_b32 s41, 0")
    a.e("s_cselect_b32 s42, 0, -1")
    a.e("s_mov_b32 s43, 0")
    a.wait_vm("Q")
    a.e(f"v_cndmask_b32 v{Q2}, 0, v{Q2}, s[40:41]")
    a.e(f"v_cndmask_b32 v{Q2+1}, 0, v{Q2+1}, s[42:43]")
    a.e("s_mov_b32 s42, 0")
    a.e("s_mov_b32 s43, -1")
    a.e("s_waitcnt vmcnt(0) lgkmcnt(0)"); a.reset_counters()
    a.e("s_barrier")
    st("staged")

    def rdK(t):
        buf = KB_[t % 2]
        return [lambda: a.lds(f"ds_read_b64 {v(buf,2)}, v4 offset:{256*t}", f"K{t}"),
                lambda: a.lds(f"ds_read_b64 {v(buf+2,2)}, v4 offset:{256*t+PL}", f"K{t}"),
                lambda: a.lds(f"ds_read_b64 {v(buf+4,2)}, v3 offset:{256*t+4*PL}", f"K{t}")]
    def rdV(t):
        buf = VB_[t % 2]
        return [lambda i=i: a.lds(f"ds_read_b64_tr_b16 {v(buf+2*i,2)}, v5 offset:{5*PL+256*t+64*i}", f"V{t}") for i in range(4)]
    def qk1(t):
        S = SS[t % 2]; buf = KB_[t % 2]
        a.e(f"v_mfma_f32_32x32x16_bf16 {v(S,16)}, {v(buf,4)}, {v(Q1,4)}, {v(S,16) if t in (0, 8) else 0}")
    def qk2(t):
        S = SS[t % 2]; buf = KB_[t % 2]
        a.e(f"v_mfma_f32_32x32x8_bf16 {v(S,16)}, {v(buf+4,2)}, {v(Q2,2)}, {v(S,16)}")
    def pv(t, h):
        a.e(f"v_mfma_f32_32x32x16_bf16 {v(OA,16)}, {v(VB_[t%2]+4*h,4)}, {v(PP[t%2]+4*h,4)}, {0 if (t == 8 and h == 0) else v(OA,16)}")
    def kill(t, pfx):
        l = f"{pfx}_k{t}"
        a.e(f"s_cmp_lg_u32 s27, {t+1}")
        a.e(f"s_cbranch_scc1 {l}")
        a.e("v_mov_b32 v6, 0xff7f")
        a.e(f"v_cndmask_b32 v{Q2}, v{Q2}, v6, s[42:43]")
        a.label(l)

    for f in rdK(8) + rdK(7): f()
    a.wait_lds("K8")
    KA = KB_[0]
    a.e(f"v_dot2_f32_bf16 v6, v{Q1}, v{KA}, 0")
    for i in range(1, 6): a.e(f"v_dot2_f32_bf16 v6, v{Q1+i}, v{KA+i}, v6")
    qk1(8)
    a.e("s_nop 2")
    a.e("v_mov_b32 v7, v6")
    a.e("s_nop 1")
    a.e("v_permlane32_swap_b32 v6, v7")
    a.e("s_nop 1")
    a.e("v_add_f32 v6, v6, v7")
    a.e("v_sub_f32 v6, 0, v6")
    a.e("v_cvt_pk_bf16_f32 v6, v6, 0")
    a.e(f"v_cndmask_b32 v{Q2}, v{Q2}, v6, s[42:43]")
    a.e("s_nop 1")

    def softmax_pass(sub, pfx):
        qk2(8)
        for f in rdV(8): f()
        kill(7, pfx)
        a.e("s_nop 3")
        for t in range(8, -1, -1):
            S = SS[t % 2]; P = PP[t % 2]
            valu = []
            for i in range(16):
                if sub: valu.append(lambda i=i: a.e(f"v_add_f32 v{S+i}, v{S+i}, v{NM}"))
                valu.append(lambda i=i: a.e(f"v_exp_f32 v{S+i}, v{S+i}"))
                if i % 2 == 1 and i >= 3:
                    valu.append(lambda i=i: a.e(f"v_cvt_pk_bf16_f32 v{P+(i-3)//2}, v{S+i-3}, v{S+i-2}"))
            valu.append(lambda: a.e("s_nop 0"))
            valu.append(lambda: a.e(f"v_cvt_pk_bf16_f32 v{P+7}, v{S+14}, v{S+15}"))
            q = len(valu) // 4
            def run(n):
                for _ in range(n):
                    if valu: valu.pop(0)()
            if t == 1:
                for f in mask_ops(SS[0], False): f()
                a.e("s_nop 1")
            if t > 0:
                a.wait_lds(f"K{t-1}")
                qk1(t - 1)
            else:
                a.e("s_nop 3")
            run(q)
            if t > 0: qk2(t - 1)
            if t > 1:
                for f in rdK(t - 2): f()
                kill(t - 2, pfx)
            run(q)
            if t < 8:
                a.wait_lds(f"V{t+1}")
                pv(t + 1, 0)
            run(q)
            if t < 8: pv(t + 1, 1)
            if t > 0:
                for f in rdV(t - 1): f()
            run(100)
        a.wait_lds(None)
        a.e("s_nop 0")
        pv(0, 0); pv(0, 1)
        a.e("s_nop 7")
        a.e("s_nop 3")

    softmax_pass(False, "k2a")
    st("soft")
    a.e(f"v_mov_b32 v6, v{OA+12}")
    for i in range(12): a.e(f"v_fma_f32 v6, v{OA+i}, 0, v6")
    a.e(f"s_mov_b32 s40, {f32(2.0**-30)}")
    a.e(f"s_mov_b32 s41, {f32(2.0**100)}")
    a.e("v_cmp_nlt_f32 vcc, s40, v6")
    a.e("v_cmp_ngt_f32 s[44:45], s41, v6")
    a.e("s_or_b64 vcc, vcc, s[44:45]")
    a.e("s_cbranch_vccz k2_fin")
    a.e(f"v_cndmask_b32 v{Q2}, v{Q2}, 0, s[42:43]")
    a.e(f"v_mov_b32 v{NM}, {NEGINF}")
    for t in range(8, -1, -1):
        for f in rdK(t): f()
        if t in (0, 8):
            for f in mask_ops(SS[0], t == 8): f()
        if t < 8: kill(t, "k2m")
        a.wait_lds(None)
        a.e("s_nop 1")
        qk1(t); qk2(t)
        a.e("s_nop 7"); a.e("s_nop 3")
        S = SS[t % 2]
        for i in range(8): a.e(f"v_max3_f32 v{NM}, v{S+2*i}, v{S+2*i+1}, v{NM}")
    for f in rdK(8) + rdK(7): f()
    a.e(f"v_cndmask_b32 v{Q2}, v{Q2}, 0, s[42:43]")
    a.e(f"v_mov_b32 v7, v{NM}")
    a.e("s_nop 1")
    a.e(f"v_permlane32_swap_b32 v{NM}, v7")
    a.e("s_nop 1")
    a.e(f"v_max_f32 v{NM}, v{NM}, v7")
    a.e(f"v_sub_f32 v{NM}, 0, v{NM}")
    for f in mask_ops(SS[0], True): f()
    a.wait_lds("K8")
    a.e("s_nop 1")
    qk1(8)
    softmax_pass(True, "k2b")
    a.label("k2_fin")
    P0 = PP[0]
    a.e(f"v_rcp_f32 v6, v{OA+12}")
    a.e("s_nop 0")
    for i in range(12): a.e(f"v_mul_f32 v{OA+i}, v{OA+i}, v6")
    for i in range(6): a.e(f"v_cvt_pk_bf16_f32 v{P0+i}, v{OA+2*i}, v{OA+2*i+1}")
    a.e("v_lshrrev_b32 v6, 4, v1")
    a.e("v_mul_u32_u24 v6, 18432, v6")
    a.e("v_and_b32 v7, 15, v1")
    a.e("v_lshl_add_u32 v6, v7, 4, v6")
    a.e("v_lshl_add_u32 v7, v15, 8, v6")
    a.e("s_mul_i32 s26, s36, 36864")
    a.e(f"s_add_u32 s26, s26, {WS_O}")
    a.e("s_lshl_b32 s40, s20, 9")
    a.e("s_add_u32 s40, s40, s26")
    a.vmem(f"buffer_store_dwordx4 {v(P0,4)}, v7, s[28:31], s40 offen")
    a.e("s_lshr_b32 s40, s20, 2")
    a.e("s_lshl_b32 s40, s40, 8")
    a.e("s_and_b32 s41, s20, 3")
    a.e("s_lshl_b32 s41, s41, 2")
    a.e("s_add_u32 s40, s40, s41")
    a.e("s_add_u32 s40, s40, s26")
    a.e("s_add_u32 s40, s40, 16384")
    a.e("s_cmp_eq_u32 s23, 0")
    a.e("s_cbranch_scc1 k2_ev")
    a.e(f"v_mov_b32 v{P0+4}, v{P0+5}")
    a.label("k2_ev")
    setexec(a, 0xffffffff)
    a.vmem(f"buffer_store_dword v{P0+4}, v6, s[28:31], s40 offen")
    st("x"); st("stored")
    if asmlib.STAMP_ON: a.e("s_waitcnt vmcnt(0)")
    st("drained"); st.real("rt1"); st.flush(16, 18, 1)
    a.label("k2_end")
    a.e("s_endpgm")

K3_Z = 0
K3_W = 10240
K3_LDS = K3_W + 576 * 128
K3_WG = 252

def gen_k3(a):
    kernel_head(a, "k3_kernel")
    a.e(f"s_cmp_ge_u32 s2, {K3_WG}")
    a.e("s_cbranch_scc1 k3_end")
    st = Stamps(a); st.real("rt0"); st("t0")
    a.e("s_load_dwordx2 s[4:5], s[0:1], 0")
    a.e("s_load_dwordx2 s[6:7], s[0:1], 16")
    a.e("s_load_dwordx2 s[8:9], s[0:1], 80")
    a.e("s_load_dwordx2 s[16:17], s[0:1], 96")
    a.e("v_lshrrev_b32 v1, 6, v0")
    a.e("v_and_b32 v0, 63, v0")
    a.e("v_readfirstlane_b32 s18, v1")
    a.e("s_mul_i32 s20, s2, 2341")
    a.e("s_lshr_b32 s20, s20, 16")
    a.e("s_lshl_b32 s41, s20, 7")
    a.e("s_cmp_lt_u32 s18, 5")
    a.e("s_cbranch_scc1 k3_cons")
    a.e("s_sub_u32 s18, s18, 5")
    a.e("v_lshrrev_b32 v2, 3, v0")
    a.e("v_and_b32 v3, 7, v0")
    a.e("v_lshrrev_b32 v4, 1, v2")
    a.e("v_lshlrev_b32 v4, 1, v4")
    a.e("v_xor_b32 v3, v3, v4")
    a.e("v_mul_u32_u24 v5, 1152, v2")
    a.e("v_lshl_add_u32 v5, v3, 4, v5")
    a.e(f"s_mul_i32 s23, s18, {8*1152}")
    a.e("s_lshl_b32 s40, s18, 10")
    a.e("s_waitcnt lgkmcnt(0)")
    a.e("s_add_u32 s28, s6, s41")
    a.e("s_addc_u32 s29, s7, 0")
    a.e(f"s_sub_u32 s30, {576*1152}, s41")
    a.e("s_mov_b32 s31, 0x00020000")
    def wissue(c):
        for q in range(4):
            a.e(f"s_add_u32 m0, s40, {K3_W + (c*12+3*q)*1024}")
            a.e("s_nop 0")
            a.vmem(f"buffer_load_dwordx4 v5, s[28:31], s23 offen lds", f"W{c}")
            a.e(f"s_add_u32 s23, s23, {24*1152}")
    wissue(0); wissue(1); wissue(2)
    for c in range(6):
        a.wait_vm(f"W{c}")
        a.e("s_barrier")
        if c + 3 < 6: wissue(c + 3)
    a.e("s_endpgm")
    a.label("k3_cons")
    a.reset_counters()
    a.e("s_mul_i32 s19, s20, 28")
    a.e("s_sub_u32 s19, s2, s19")
    a.e("s_mul_i32 s21, s19, 5")
    a.e("s_lshl_b32 s22, s19, 2")
    a.e("s_add_u32 s22, s22, 16")
    a.e("s_cmp_lt_u32 s19, 16")
    a.e("s_cselect_b32 s19, s21, s22")
    a.e("s_cselect_b32 s43, 5, 4")
    a.e("s_cmp_ge_u32 s18, s43")
    a.e("s_cbranch_scc1 k3_end")
    OF, ACC, WF = 16, 88, 104
    a.e("v_lshlrev_b32 v7, 4, v0")
    a.e("s_add_u32 s21, s19, s18")
    a.e("s_mul_i32 s22, s21, 18432")
    a.e(f"s_add_u32 s22, s22, {WS_O}")
    a.e("s_add_u32 s23, s22, 16384")
    a.e("s_waitcnt lgkmcnt(0)")
    srd(a, 36, 16, WS_TOTAL)
    st("ka")
    order = [0, 1, 2, 3, 4, 5, 6, 7, 16, 8, 9, 10, 11, 12, 13, 14, 15, 17]
    for ks in order:
        if ks >= 16:
            a.vmem(f"buffer_load_dwordx4 {v(OF+4*ks,4)}, v7, s[36:39], s23 offen offset:{1024*(ks%4)}", f"O{ks}")
        else:
            a.vmem(f"buffer_load_dwordx4 {v(OF+4*ks,4)}, v7, s[36:39], s22 offen offset:{1024*(ks%4)}", f"O{ks}")
            if ks % 4 == 3: a.e("s_add_u32 s22, s22, 4096")
        if ks == 3:
            srd(a, 24, 4, SZ)
            a.e("v_lshrrev_b32 v6, 1, v0")
            a.e("v_lshlrev_b32 v6, 12, v6")
            a.e("v_and_b32 v8, 1, v0")
            a.e("v_lshl_add_u32 v6, v8, 4, v6")
            a.e("s_lshl_b32 s45, s20, 18")
            a.e("s_lshl_b32 s46, s21, 5")
            a.e("s_add_u32 s45, s45, s46")
            a.e(f"s_add_u32 s45, s45, {WS_Z}")
            a.e("s_lshl_b32 s44, s18, 11")
            for q in range(2):
                a.e(f"s_add_u32 m0, s44, {K3_Z + q*1024}")
                a.e("s_nop 0")
                a.vmem("buffer_load_dwordx4 v6, s[36:39], s45 offen lds", "X")
                a.e(f"s_add_u32 s45, s45, {32*4096}")
            XE, GE = 136, 144
            a.e("v_and_b32 v2, 15, v0")
            a.e("v_lshrrev_b32 v3, 4, v0")
            a.e("s_lshl_b32 s21, s21, 4")
            a.e("v_add_u32 v4, s21, v2")
            a.e("v_mul_u32_u24 v5, 1152, v4")
            a.e("v_lshl_add_u32 v5, v3, 3, v5")
            for mt in range(4):
                a.vmem(f"buffer_load_dwordx2 {v(XE+2*mt,2)}, v5, s[24:27], s41 offen offset:{32*mt}", "X")
            a.e("v_lshlrev_b32 v6, 2, v4")
            a.e(f"s_mov_b32 s45, {WS_G}")
            a.vmem(f"buffer_load_dword v{GE}, v6, s[36:39], s45 offen", "X")
        if ks == 7: break
    st("issued")
    rest = order[8:]
    def oissue(ks):
        if ks >= 16:
            a.vmem(f"buffer_load_dwordx4 {v(OF+4*ks,4)}, v7, s[36:39], s23 offen offset:{1024*(ks%4)}", f"O{ks}")
        else:
            a.vmem(f"buffer_load_dwordx4 {v(OF+4*ks,4)}, v7, s[36:39], s22 offen offset:{1024*(ks%4)}", f"O{ks}")
            if ks % 4 == 3: a.e("s_add_u32 s22, s22, 4096")
    srd(a, 32, 8, SZ)
    a.e("v_bfe_u32 v6, v0, 2, 2")
    a.e("v_and_b32 v11, 3, v0")
    a.e("v_lshrrev_b32 v8, 1, v3")
    a.e("v_mul_u32_u24 v8, 20, v8")
    a.e("v_and_b32 v9, 1, v3")
    a.e("v_lshl_add_u32 v8, v9, 2, v8")
    a.e("v_add_u32 v8, v8, v6")
    a.e("v_bfe_u32 v9, v8, 1, 2")
    a.e("v_lshlrev_b32 v8, 7, v8")
    a.e("v_lshl_add_u32 v8, v11, 3, v8")
    a.e(f"v_add_u32 v8, {K3_W}, v8")
    MA = 148
    for mt in range(4):
        a.e(f"v_xor_b32 v10, {mt}, v9")
        a.e(f"v_lshl_add_u32 v{MA+mt}, v10, 5, v8")
    a.e("v_mul_u32_u24 v8, 72, v3")
    a.e("v_add3_u32 v8, v8, v6, 16")
    a.e("v_bfe_u32 v9, v8, 1, 2")
    a.e("v_lshlrev_b32 v8, 7, v8")
    a.e("v_lshl_add_u32 v8, v11, 3, v8")
    a.e(f"v_add_u32 v8, {K3_W}, v8")
    TA_ = 152
    for mt in range(4):
        a.e(f"v_xor_b32 v10, {mt}, v9")
        a.e(f"v_lshl_add_u32 v{TA_+mt}, v10, 5, v8")
    a.e("v_lshl_add_u32 v8, v3, 2, v6")
    a.e("v_lshlrev_b32 v8, 5, v8")
    a.e("v_lshl_add_u32 v8, v11, 3, v8")
    a.e("v_add_u32 v8, s44, v8")
    def rd(n):
        ks = order[n]
        b = WF + 16 * (n % 2)
        for mt in range(4):
            for hf in range(2):
                if ks < 16:
                    kk = ks if ks < 12 else ks - 12
                    ar = MA + (mt ^ (2 * (ks & 1))); off = (36*kk + 8*hf) * 128
                else:
                    ar = TA_ + (mt ^ (2 * hf)); off = (288*(ks-16) + 36*hf) * 128
                a.lds(f"ds_read_b64_tr_b16 {v(b+4*mt+2*hf,2)}, v{ar} offset:{off}", f"F{n}")
    def lastrow(ks): return 36*ks + 35 if ks < 16 else 288*(ks-15) - 1
    have = [-1]
    def need(n):
        c = lastrow(order[n]) // 96
        while have[0] < c:
            a.e("s_barrier"); have[0] += 1
            if have[0] == 0: st("landed")
    BP, ZE, T = 156, 172, 180
    rec = Rec(a)
    rec.wait_vm("X")
    for mt in range(4):
        rec.lds(f"ds_read_b64_tr_b16 {v(ZE+2*mt,2)}, v8 offset:{K3_Z+512*mt}", "Z")
    rec.e(f"v_sub_f32 v9, 1.0, v{GE}")
    rnd(rec, 9, 9)
    rec.e("s_mov_b32 s42, 0xffff0000")
    rec.wait_lds("Z")
    for mt in range(4):
        B = BP + 4*mt
        for i in range(4):
            op = "v_lshlrev_b32 v%d, 16, v%d" if i % 2 == 0 else "v_and_b32 v%d, s42, v%d"
            rec.e(op % (B+i, XE+2*mt+i//2))
            rec.e(op % (T+i, ZE+2*mt+i//2))
        for i in range(4): rec.e(f"v_mul_f32 v{B+i}, v{B+i}, v{T+i}")
        for i in range(4): rnd(rec, B+i, B+i)
        for i in range(4): rec.e(f"v_mul_f32 v{B+i}, v{B+i}, v9")
        for i in range(4): rnd(rec, B+i, B+i)
    bq = rec.ops
    need(0); rd(0)
    for n in range(18):
        ks = order[n]
        if n + 1 < 18:
            if order[n+1] == 12:
                for mt in range(4): a.e(f"v_add_u32 v{MA+mt}, {12*36*128}, v{MA+mt}")
            need(n + 1); rd(n + 1)
        for _ in range(2):
            if rest: oissue(rest.pop(0))
        a.wait_vm(f"O{ks}")
        a.wait_lds(f"F{n}")
        b = WF + 16 * (n % 2)
        for mt in range(4):
            acc = v(ACC + 4*mt, 4)
            a.e(f"v_mfma_f32_16x16x32_bf16 {acc}, {v(b+4*mt,4)}, {v(OF+4*ks,4)}, {acc if n else 0}")
            if n >= 5:
                for _ in range(3):
                    if bq: bq.pop(0)()
    assert not bq and have[0] == 5
    st("mfma")
    a.e("s_nop 4")
    for mt in range(4):
        ac = ACC + 4*mt
        for i in range(4): rnd(a, ac+i, ac+i)
        for i in range(4): a.e(f"v_mul_f32 v{ac+i}, v{ac+i}, v{GE}")
        for i in range(4): rnd(a, ac+i, ac+i)
        for i in range(4): a.e(f"v_add_f32 v{ac+i}, v{ac+i}, v{BP+4*mt+i}")
        a.e(f"v_cvt_pk_bf16_f32 v{ac}, v{ac}, v{ac+1}")
        a.e(f"v_cvt_pk_bf16_f32 v{ac+1}, v{ac+2}, v{ac+3}")
        a.vmem(f"buffer_store_dwordx2 {v(ac,2)}, v5, s[32:35], s41 offen offset:{32*mt}")
    st("stored")
    if asmlib.STAMP_ON: a.e("s_waitcnt vmcnt(0)")
    st("drained"); st.real("rt1"); st.flush(16, 18, 2)
    a.label("k3_end")
    a.e("s_endpgm")

def main(path):
    a = Asm()
    hdr = open(f"cdna_kernels/{NAME}.s.ref").read().split("\n")
    head = [l for l in hdr if l.startswith(";") and "@launch" not in l and "Override" not in l and "grid=ceil" not in l]
    for l in head: a.raw(l)
    a.raw(f"; @launch kernel=k1_kernel grid=(256,1,1) block=(512,1,1) lds={K1_LDS}")
    a.raw(f"; @launch kernel=k2_kernel grid=(1024,1,1) block=(256,1,1) lds={K2_LDS}")
    a.raw(f"; @launch kernel=k3_kernel grid=({K3_WG},1,1) block=(512,1,1) lds={K3_LDS}")
    a.raw('.amdgcn_target "amdgcn-amd-amdhsa--gfx950"')
    a.raw(".text")
    gen_k1(a); gen_k2(a); gen_k3(a)
    a.raw('.section .rodata,"a"')
    a.raw(kernel_desc("k1_kernel", 208))
    a.raw(kernel_desc("k2_kernel", 128))
    a.raw(kernel_desc("k3_kernel", 184))
    open(path, "w").write(a.text())

if __name__ == "__main__":
    if len(sys.argv) > 2 and sys.argv[2] == "stamps": asmlib.STAMP_ON = True
    main(sys.argv[1] if len(sys.argv) > 1 else f"cdna_kernels/{NAME}.s")
```

```python
class Asm:
    def __init__(self):
        self.lines = []
        self.lgkm = []
        self.vm = []
        self.uid = 0
    def e(self, s):
        self.lines.append("    " + s)
    def c(self, s):
        self.lines.append("    ; " + s)
    def label(self, s):
        self.lines.append(s + ":")
    def raw(self, s):
        self.lines.append(s)
    def newlabel(self, base):
        self.uid += 1
        return f"{base}_{self.uid}"
    def lds(self, s, tag=None):
        self.e(s); self.lgkm.append(tag)
    def vmem(self, s, tag=None):
        self.e(s); self.vm.append(tag)
        assert len(self.vm) <= 63, "too many VMEM outstanding"
    def wait_lds(self, tag=None):
        if tag is None:
            n = 0
        else:
            idx = [i for i, t in enumerate(self.lgkm) if t == tag]
            if not idx: return
            n = len(self.lgkm) - 1 - idx[-1]
        n_emit = min(n, 15)
        self.e(f"s_waitcnt lgkmcnt({n_emit})")
        self.lgkm = self.lgkm[len(self.lgkm) - n_emit:] if n_emit else []
    def wait_vm(self, tag=None):
        if tag is None:
            n = 0
        else:
            idx = [i for i, t in enumerate(self.vm) if t == tag]
            if not idx: return
            n = len(self.vm) - 1 - idx[-1]
        self.e(f"s_waitcnt vmcnt({n})")
        self.vm = self.vm[len(self.vm) - n:] if n else []
    def reset_counters(self):
        self.lgkm = []; self.vm = []
    def text(self):
        return "\n".join(self.lines) + "\n"

def v(b, n=1):
    return f"v{b}" if n == 1 else f"v[{b}:{b+n-1}]"
def s(b, n=1):
    return f"s{b}" if n == 1 else f"s[{b}:{b+n-1}]"

def srd(a, d, base, nbytes, add=0):
    if add:
        a.e(f"s_add_u32 s{d}, s{base}, {add}")
        a.e(f"s_addc_u32 s{d+1}, s{base+1}, 0")
    else:
        a.e(f"s_mov_b32 s{d}, s{base}")
        a.e(f"s_mov_b32 s{d+1}, s{base+1}")
    a.e(f"s_mov_b32 s{d+2}, {nbytes}")
    a.e(f"s_mov_b32 s{d+3}, 0x00020000")

def kernel_head(a, name):
    a.raw(f".globl {name}")
    a.raw(".p2align 8")
    a.raw(f".type {name},@function")
    a.label(name)
    a.reset_counters()

def kernel_desc(name, vgpr, sgpr=102, accum=None):
    if accum is None: accum = (vgpr + 3) // 4 * 4
    return f""".p2align 6
.amdhsa_kernel {name}
  .amdhsa_next_free_vgpr {vgpr}
  .amdhsa_next_free_sgpr {sgpr}
  .amdhsa_accum_offset {accum}
  .amdhsa_group_segment_fixed_size 0
  .amdhsa_kernarg_size 104
  .amdhsa_user_sgpr_count 2
  .amdhsa_user_sgpr_kernarg_segment_ptr 1
  .amdhsa_system_sgpr_workgroup_id_x 1
  .amdhsa_float_denorm_mode_32 3
.end_amdhsa_kernel
"""

def setexec(a, mask):
    a.e(f"s_mov_b32 exec_lo, 0x{mask & 0xffffffff:x}")
    a.e(f"s_mov_b32 exec_hi, 0x{mask >> 32:x}")

STAMP_ON = False
STAMP_FILTER = None
STAMP_BASE = 32 << 20
class Stamps:
    def __init__(self, a): self.a = a; self.n = 0; self.names = []
    def __call__(self, name):
        import asmlib
        if not asmlib.STAMP_ON: return
        if asmlib.STAMP_FILTER is not None and name != "t0" and name not in asmlib.STAMP_FILTER: return
        assert self.n < 19
        self.a.e(f"s_memtime s[{60+2*self.n}:{61+2*self.n}]"); self.n += 1; self.names.append(name)
    def real(self, name):
        import asmlib
        if not asmlib.STAMP_ON: return
        self.a.e(f"s_memrealtime s[{60+2*self.n}:{61+2*self.n}]"); self.n += 1; self.names.append(name)
    def flush(self, ws_pair, wave_s, region):
        import asmlib
        if not asmlib.STAMP_ON: return
        a = self.a
        a.e("s_mov_b64 exec, -1")
        a.e("s_waitcnt lgkmcnt(0) vmcnt(0)")
        a.e(f"s_lshl_b32 s58, s2, 4")
        a.e(f"s_add_u32 s58, s58, s{wave_s}")
        a.e(f"s_lshl_b32 s58, s58, 7")
        a.e(f"s_add_u32 s58, s58, {STAMP_BASE + region*(4<<20)}")
        a.e(f"v_mov_b32 v1, s58")
        srd(a, 52, ws_pair, 64 << 20)
        for i in range(self.n):
            a.e(f"v_mov_b32 v2, s{60+2*i}")
            a.e(f"buffer_store_dword v2, v1, s[52:55], 0 offen offset:{4*i}")
        print("stamps region", region, self.names)

class Rec:
    def __init__(self, a): self.a = a; self.ops = []
    def __getattr__(self, name):
        def f(*args, **kw):
            self.ops.append(lambda: getattr(self.a, name)(*args, **kw))
        return f

class NStamps:
    def __init__(self, a):
        import asmlib
        self.a = a; self.n = 0; self.names = []
        self.slots = ["rt0", "t0"] + list(asmlib.STAMP_FILTER or []) + ["rt1"]
        assert len(self.slots) <= 15
        if asmlib.STAMP_ON:
            for i in range(len(self.slots)): a.e(f"s_mov_b32 s{60+2*i}, 0")
    def __call__(self, name, op="s_memtime"):
        import asmlib
        if not asmlib.STAMP_ON or name not in self.slots: return
        i = self.slots.index(name)
        self.a.e(f"{op} s[{60+2*i}:{61+2*i}]")
    def real(self, name): self(name, "s_memrealtime")
    def flush(self, ws_pair, wave_s, region):
        self.n = len(self.slots); self.names = self.slots
        Stamps.flush(self, ws_pair, wave_s, region)
```

```python
import sys, struct
from asmlib import *
import asmlib

NAME = "gated_mix__sliding_block__ssm_conv_h3__prompt"
SZ = 2048 * 576 * 2
WS_QKV = 0
QKV_BYTES = 432 * 16384
WS_U = QKV_BYTES
WS_O = WS_U + SZ
WS_Z = WS_O + SZ
WS_G = WS_Z + SZ
WS_F = WS_G + 8192
WS_E = WS_F + 32768
WS_TOTAL = WS_E + 128
def f32(x): return "0x%08x" % struct.unpack("<I", struct.pack("<f", x))[0]
QSCALE = 18 ** -0.5 * 1.4426950408889634
NEGINF = "0xff800000"
SC = "sc1"
SPIN_MAX = 200000

def rnd(a, dst, src):
    a.e(f"v_cvt_pk_bf16_f32 v{dst}, 0, v{src}")
def lane_mask(fn):
    m = 0
    for l in range(64):
        if fn(l): m |= 1 << l
    return m

L_U = 0
UP = 576
L_PK = 9728
L_CNT = 22016
L_RING = 24576
L_CVK = L_RING + 32768
PL = 3072
L_KP = L_RING
L_ONE = L_KP + 9 * PL
L_WO = L_ONE + PL
L_VP = 163840 - 9 * PL
LDS_TOTAL = 163840
assert L_WO + 73728 <= L_VP
CV_USZ = 1216

TAG = 88
ROLE, CVK, CVU, GCNT, ROUNDS, RHO, GTGT, PBASE = 90, 91, 92, 93, 94, 95, 96, 98

PW = 20480
def prep_task(a, T_s):
    a.e(f"s_mul_i32 s40, s{T_s}, 7282")
    a.e("s_lshr_b32 s40, s40, 16")
    a.e("s_mul_i32 s41, s40, 9")
    a.e(f"s_sub_u32 s41, s{T_s}, s41")

PB = 200
def prep_setup(a):
    a.e(f"v_lshrrev_b32 v{PB+8}, 3, v0")
    a.e(f"v_and_b32 v{PB+9}, 7, v0")
    a.e(f"v_mul_u32_u24 v{PB}, 1152, v{PB+8}")
    a.e(f"v_lshlrev_b32 v{PB+1}, 1, v{PB}")
    a.e(f"v_lshl_add_u32 v{PB}, v{PB+9}, 4, v{PB}")
    a.e(f"v_lshl_add_u32 v{PB+1}, v{PB+9}, 4, v{PB+1}")
    a.e(f"v_lshlrev_b32 v{PB+2}, 4, v0")

def prep_issue(a, R):
    a.e(f"s_mul_i32 s22, s40, {32*1152}")
    a.e("s_lshl_b32 s23, s41, 7")
    a.e("s_add_u32 s22, s22, s23")
    a.e(f"v_add_u32 v{PB+3}, s22, v{PB}")
    a.e(f"v_subrev_u32 v{PB+3}, {3*1152}, v{PB+3}")
    for i in range(4):
        a.e(f"s_add_u32 m0, s{PBASE}, {512+1024*i}")
        a.e(f"s_add_u32 s23, s22, {8*1152*i}")
        a.e(f"buffer_load_dwordx4 v{PB}, s[24:27], s23 offen lds")
    a.e(f"s_add_u32 m0, s{PBASE}, 128")
    setexec(a, 0xffffff)
    a.e(f"buffer_load_dwordx4 v{PB+3}, s[24:27], 0 offen lds")
    a.e(f"s_add_u32 m0, s{PBASE}, 4608")
    a.e("s_mov_b32 exec_lo, -1")
    a.e("s_lshl_b32 s23, s41, 9")
    a.e(f"buffer_load_dwordx4 v{PB+2}, s[32:35], s23 offen lds")
    a.e("s_mov_b64 exec, -1")
    a.e(f"s_add_u32 s23, s22, {16*1152}")
    for h in range(2):
        a.e(f"buffer_load_dwordx4 {v(R+8*h,4)}, v{PB+1}, s[28:31], {'s23' if h else 's22'} offen")
        a.e(f"buffer_load_dwordx4 {v(R+8*h+4,4)}, v{PB+1}, s[28:31], {'s23' if h else 's22'} offen offset:1152")

def prep_compute(a, VR, T):
    KR, SW = T + 68, T + 88
    UK, UW, UV, TA, OUT = T, T+20, T+52, T+60, T+104
    A0, A1, A2, A3, A4 = PB, PB+1, PB+2, PB+3, PB+4
    a.e(f"v_lshlrev_b32 v{A0}, 8, v{PB+8}")
    a.e(f"v_lshl_add_u32 v{A0}, v{PB+9}, 4, v{A0}")
    a.e(f"v_add_u32 v{A0}, s{PBASE}, v{A0}")
    a.e(f"v_lshl_add_u32 v{A1}, v{PB+9}, 6, s{PBASE}")
    for i in range(4): a.lds(f"ds_read_b128 {v(SW+4*i,4)}, v{A1} offset:{4608+16*i}", "PW")
    a.e("s_mov_b32 s42, 0xffff0000")
    a.e(f"v_lshrrev_b32 v{A2}, 4, v0")
    a.e(f"v_mul_u32_u24 v{A2}, {UP}, v{A2}")
    a.e(f"v_and_b32 v{A3}, 1, v{PB+8}")
    a.e(f"v_lshl_add_u32 v{A2}, v{A3}, 2, v{A2}")
    a.e(f"v_add_u32 v{A2}, v{A2}, v{A1}")
    a.e(f"v_add_u32 v{A2}, 5120, v{A2}")
    for h in range(2):
        for j in range(5): a.lds(f"ds_read_b128 {v(KR+4*j,4)}, v{A0} offset:{128+2048*h+128*j}", "PK")
        if h == 0:
            a.wait_lds("PW")
            for c in range(8):
                for t in range(2):
                    a.e(f"v_lshlrev_b32 v{UW+4*c+2*t}, 16, v{SW+2*c+t}")
                    a.e(f"v_and_b32 v{UW+4*c+2*t+1}, s42, v{SW+2*c+t}")
        a.wait_lds("PK")
        for half in range(2):
            for r in range(5):
                for qq in range(2):
                    a.e(f"v_lshlrev_b32 v{UK+4*r+2*qq}, 16, v{KR+4*r+2*half+qq}")
                    a.e(f"v_and_b32 v{UK+4*r+2*qq+1}, s42, v{KR+4*r+2*half+qq}")
            for r in range(2):
                for qq in range(2):
                    a.e(f"v_lshlrev_b32 v{UV+4*r+2*qq}, 16, v{VR+8*h+4*r+2*half+qq}")
                    a.e(f"v_and_b32 v{UV+4*r+2*qq+1}, s42, v{VR+8*h+4*r+2*half+qq}")
            RC = [(r, c) for r in range(2) for c in range(4)]
            W_ = UW + 16*half
            for r, c in RC: a.e(f"v_mul_f32 v{TA+4*r+c}, v{UK+4*r+c}, v{W_+4*c+3}")
            for t in (1, 2, 3):
                for r, c in RC: a.e(f"v_fmac_f32 v{TA+4*r+c}, v{UK+4*(r+t)+c}, v{W_+4*c+3-t}")
            for r, c in RC: rnd(a, TA+4*r+c, TA+4*r+c)
            for r, c in RC: a.e(f"v_mul_f32 v{TA+4*r+c}, v{TA+4*r+c}, v{UV+4*r+c}")
            for c in range(4):
                a.e(f"v_cvt_pk_bf16_f32 v{OUT+4*half+c}, v{TA+c}, v{TA+4+c}")
        if h: a.e(f"v_add_u32 v{A2}, {4*UP}, v{A2}")
        for c in range(0, 8, 2):
            a.lds(f"ds_write2_b32 v{A2}, v{OUT+c}, v{OUT+c+1} offset0:{2*c} offset1:{2*c+2}")
    a.e(f"v_bfe_u32 v{A3}, v0, 2, 2")
    a.e(f"v_sub_u32 v{A3}, 3, v{A3}")
    a.e(f"v_mul_u32_u24 v{A3}, {UP}, v{A3}")
    a.e(f"v_lshrrev_b32 v{A4}, 4, v0")
    a.e(f"v_lshl_add_u32 v{A3}, v{A4}, 5, v{A3}")
    a.e(f"v_and_b32 v{A4}, 3, v0")
    a.e(f"v_lshl_add_u32 v{A3}, v{A4}, 3, v{A3}")
    a.e(f"v_add_u32 v{A3}, s{PBASE}, v{A3}")
    a.e(f"v_lshrrev_b32 v{A0}, 2, v0")
    a.e(f"v_lshlrev_b32 v{A0}, 12, v{A0}")
    a.e(f"v_lshl_add_u32 v{A0}, v{A4}, 4, v{A0}")
    a.e("s_lshl_b32 s22, s41, 18")
    a.e("s_lshl_b32 s23, s40, 6")
    a.e("s_add_u32 s22, s22, s23")
    a.e(f"s_add_u32 s22, s22, {WS_U}")
    for d in range(4):
        a.lds(f"ds_read_b64_tr_b16 {v(T+4*d,2)}, v{A3} offset:{5120+4*UP+128*d}", f"PT{d}")
        a.lds(f"ds_read_b64_tr_b16 {v(T+4*d+2,2)}, v{A3} offset:{5120+128*d}", f"PT{d}")
    for d in range(4):
        a.wait_lds(f"PT{d}")
        a.e(f"buffer_store_dwordx4 {v(T+4*d,4)}, v{A0}, s[36:39], s22 offen {SC}")
        a.e(f"s_add_u32 s22, s22, {16*4096}")

def tag_fetch_to_lds(a, T):
    a.e("s_load_dwordx2 s[20:21], s[0:1], 88")
    a.e(f"v_mov_b32 v{T}, 0")
    a.e("s_waitcnt lgkmcnt(0)"); a.lgkm = []
    srd(a, 24, 20, 256)
    l = a.newlabel("tagspin"); d = a.newlabel("tagdone")
    a.e(f"s_mov_b32 s97, {SPIN_MAX}")
    a.label(l)
    a.e(f"buffer_load_dwordx2 {v(T+2,2)}, v{T}, s[24:27], 0 offen sc0 sc1")
    a.e("s_sub_u32 s97, s97, 1")
    a.e(f"s_cbranch_scc1 {d}")
    a.e("s_waitcnt vmcnt(0)"); a.vm = []
    a.e(f"v_cmp_gt_i32 vcc, 0, v{T+3}")
    a.e(f"s_cbranch_vccz {l}")
    a.label(d)
    a.e("s_waitcnt vmcnt(0)")
    a.e(f"v_mov_b32 v{T}, {L_CNT+192}")
    a.lds(f"ds_write_b64 v{T}, {v(T+2,2)}")

def tag_from_lds(a, T):
    a.e(f"v_mov_b32 v{T}, {L_CNT+192}")
    a.lds(f"ds_read_b64 {v(T+2,2)}, v{T}", "TG")
    a.wait_lds("TG")
    a.e(f"v_readfirstlane_b32 s{TAG}, v{T+2}")
    a.e(f"v_readfirstlane_b32 s{TAG+1}, v{T+3}")

def flag_write(a, stage, T):
    a.e("s_lshl_b32 s22, s2, 7")
    a.e(f"s_add_u32 s22, s22, {WS_F + 8*stage}")
    a.e(f"v_mov_b32 v{T}, s22")
    a.e(f"v_mov_b32 v{T+2}, s{TAG}")
    a.e(f"v_mov_b32 v{T+3}, s{TAG+1}")
    a.e("s_mov_b64 exec, 1")
    a.vmem(f"buffer_store_dwordx2 {v(T+2,2)}, v{T}, s[36:39], 0 offen sc0 sc1", "FL")
    a.e("s_mov_b64 exec, -1")

def flag_wait(a, stage, W, T, sleep=2):
    a.e(f"v_lshlrev_b32 v{W}, 7, v{W}")
    a.e(f"s_mov_b32 s22, {WS_F + 8*stage}")
    l = a.newlabel("fspin"); d = a.newlabel("fdone")
    a.e(f"s_mov_b32 s97, {SPIN_MAX}")
    a.label(l)
    a.e(f"buffer_load_dwordx2 {v(T,2)}, v{W}, s[36:39], s22 offen sc0 sc1")
    a.e("s_waitcnt vmcnt(0)"); a.vm = []
    a.e(f"v_cmp_ne_u64 vcc, s[{TAG}:{TAG+1}], {v(T,2)}")
    a.e(f"s_cbranch_vccz {d}")
    a.e(f"s_sleep {sleep}")
    a.e("s_sub_u32 s97, s97, 1")
    a.e(f"s_cbranch_scc0 {l}")
    a.label(d)

def group_barrier(a, T):
    a.e(f"v_mov_b32 v{T}, s{GCNT}")
    a.e(f"v_mov_b32 v{T+1}, 1")
    a.e(f"s_add_u32 s{GTGT}, s{GTGT}, 4")
    a.wait_lds(None)
    a.e("s_mov_b64 exec, 1")
    a.e(f"ds_add_u32 v{T}, v{T+1}")
    a.e("s_mov_b64 exec, -1")
    lds_spin(a, T, f"s{GTGT}")

def lds_spin(a, T, target):
    l = a.newlabel("gb"); d = a.newlabel("gbd")
    a.e(f"s_mov_b32 s97, {SPIN_MAX*8}")
    a.label(l)
    a.e(f"ds_read_b32 v{T+1}, v{T}")
    a.e("s_sub_u32 s97, s97, 1")
    a.e(f"s_cbranch_scc1 {d}")
    a.e("s_waitcnt lgkmcnt(0)")
    a.e(f"v_readfirstlane_b32 s22, v{T+1}")
    a.e(f"s_cmp_ge_u32 s22, {target}")
    a.e(f"s_cbranch_scc1 {d}")
    a.e("s_sleep 1")
    a.e(f"s_branch {l}")
    a.label(d)
    a.e("s_waitcnt lgkmcnt(0)")

L_Q = L_RING + 3 * 32768

def convk_issue(a, CH_s, RH, R, tag):
    a.e(f"s_lshl_b32 s20, s{CH_s}, 12")
    a.e("s_add_u32 s24, s14, s20")
    a.e("s_addc_u32 s25, s15, 0")
    a.e("s_mov_b32 s26, 4096")
    a.e("s_mov_b32 s27, 0x00020000")
    a.e(f"s_add_u32 s21, s{RH}, 1")
    a.e("s_lshr_b32 s21, s21, 1")
    a.e("s_lshl_b32 s21, s21, 2")
    a.e("v_lshlrev_b32 v4, 4, v0")
    a.e("v_subrev_u32 v4, s21, v4")
    a.e("v_add_u32 v5, 1024, v4")
    a.e("v_add_u32 v6, 16, v4")
    a.vmem(f"buffer_load_dwordx4 {v(R,4)}, v4, s[24:27], 0 offen", tag)
    for i in range(3): a.vmem(f"buffer_load_dwordx4 {v(R+6+6*i,4)}, v5, s[24:27], 0 offen offset:{1024*i}", tag)
    for i in range(4): a.vmem(f"buffer_load_dword v{R+6*i+4}, v6, s[24:27], 0 offen offset:{1024*i}", tag)
    a.e("v_lshlrev_b32 v4, 1, v0")
    a.e(f"s_lshl_b32 s21, s{RH}, 1")
    a.e("v_subrev_u32 v4, s21, v4")
    a.e("v_subrev_u32 v4, 32, v4")
    a.vmem(f"buffer_load_ushort v{R+24}, v4, s[24:27], 0 offen", tag)

def convk_write(a, RH, KD, koff, R, tag):
    a.e(f"s_and_b32 s21, s{RH}, 1")
    a.e("s_lshl_b32 s21, s21, 4")
    a.e(f"v_lshl_add_u32 v4, v0, 4, s{KD}")
    a.e(f"v_lshl_add_u32 v5, v0, 1, s{KD}")
    a.wait_vm(tag)
    for i in range(4):
        for j in range(4):
            a.e(f"v_alignbit_b32 v{R+6*i+j}, v{R+6*i+j+1}, v{R+6*i+j}, s21")
        a.lds(f"ds_write_b128 v4, {v(R+6*i,4)} offset:{koff+32+1024*i}")
    setexec(a, 0xffffff)
    a.lds(f"ds_write_b16 v5, v{R+24} offset:{koff}")
    a.e("s_mov_b64 exec, -1")

def convu_wait(a):
    a.e("s_lshr_b32 s21, s3, 6")
    a.e("v_mul_u32_u24 v8, 9, v0")
    a.e("v_add_u32 v8, s21, v8")
    a.e("v_and_b32 v9, 31, v8")
    a.e("v_add_u32 v9, 224, v9")
    a.e("v_cmp_gt_u32 vcc, 256, v8")
    a.e("v_subrev_u32 v8, 256, v8")
    a.e("v_lshrrev_b32 v8, 1, v8")
    a.e("v_cndmask_b32 v8, v8, v9, vcc")
    flag_wait(a, 0, 8, 10, 6)

def convu_issue(a, CH_s, UD, rhos, tag):
    a.e("v_sub_u32 v4, 63, v0")
    a.e("v_lshlrev_b32 v4, 6, v4")
    a.e(f"s_lshl_b32 s21, s{CH_s}, 12")
    a.e(f"s_add_u32 s21, s21, {WS_U}")
    a.e(f"s_mov_b32 s23, s{UD}")
    if rhos[0] == 's':
        a.e(f"s_lshl_b32 s20, s{rhos[1]}, 4")
        a.e("s_add_u32 s21, s21, s20")
        a.e(f"s_mul_i32 s20, s{rhos[1]}, {CV_USZ}")
        a.e("s_add_u32 s23, s23, s20")
        rhos = [0]
    a.e("v_lshl_add_u32 v5, v0, 1, s23")
    a.e("v_mov_b32 v6, 0")
    for r in rhos:
        a.e(f"s_add_u32 m0, s23, {CV_USZ*r}")
        a.lds(f"ds_write_b16 v5, v6 offset:{1024+CV_USZ*r}")
        a.vmem(f"buffer_load_dwordx4 v4, s[36:39], s21 offen {SC} lds", tag)
        a.e("s_add_u32 s21, s21, 16")

def lds_add(a, T, off):
    a.e("s_mov_b64 exec, 1")
    a.lds(f"ds_add_u32 v{T}, v{T+1} offset:{off}")
    a.e("s_mov_b64 exec, -1")
PW2 = 9728
VD = 180
FULL, FREE = 64, 100
AUX_AFTER = 3

def gen(a):
    K = NAME + "_kernel"
    kernel_head(a, K)
    a.e("s_cmp_ge_u32 s2, 256")
    a.e("s_cbranch_scc1 L_end")
    st = NStamps(a); st.real("rt0"); st("t0")
    a.e("s_load_dwordx4 s[4:7], s[0:1], 0")
    a.e("s_load_dwordx4 s[8:11], s[0:1], 32")
    a.e("s_load_dwordx4 s[12:15], s[0:1], 48")
    a.e("s_load_dwordx2 s[16:17], s[0:1], 96")
    a.e("v_lshrrev_b32 v1, 6, v0")
    a.e("v_and_b32 v0, 63, v0")
    a.e("v_readfirstlane_b32 s18, v1")
    a.e("v_lshlrev_b32 v12, 2, v0")
    a.e("v_mov_b32 v13, 0")
    a.e(f"ds_write_b32 v12, v13 offset:{L_CNT}")
    a.e("s_and_b32 s43, s2, 3")
    a.e("s_lshl_b32 s43, s43, 2")
    a.e("s_bfe_u32 s19, s2, 0x20003")
    a.e("s_add_u32 s43, s43, s19")
    a.e("s_bfe_u32 s44, s2, 0x10002")
    a.e("s_mul_i32 s44, s44, 7")
    a.e("s_lshr_b32 s45, s2, 5")
    a.e("s_add_u32 s44, s44, s45")
    RB, CT = 43, 44
    a.e(f"s_and_b32 s{RHO}, s18, 3")
    a.e("s_lshr_b32 s19, s18, 2")
    a.e(f"s_lshl_b32 s{CVK}, s18, 13")
    a.e(f"s_add_u32 s{CVK}, s{CVK}, {L_CVK}")
    a.e(f"s_mul_i32 s{CVU}, s19, {4*CV_USZ}")
    a.e(f"s_lshl_b32 s{GCNT}, s19, 2")
    a.e(f"s_add_u32 s{GCNT}, s{GCNT}, {L_CNT}")
    a.e(f"s_mov_b32 s{GTGT}, 0")
    a.e(f"s_mov_b32 s{ROLE}, s19")
    a.e(f"s_mov_b32 s{ROUNDS}, 1")
    a.e("s_lshl_b32 s3, s2, 1")
    a.e("s_add_u32 s3, s3, s19")
    a.e("s_add_u32 s3, s3, 128")
    a.e("s_lshl_b32 s19, s18, 5")
    a.e("s_and_b32 s20, s2, 31")
    a.e("s_add_u32 s19, s19, s20")
    a.e("s_lshl_b32 s20, s2, 1")
    a.e("s_add_u32 s20, s20, s18")
    a.e("s_add_u32 s20, s20, 254")
    a.e("s_and_b32 s21, s18, 6")
    a.e("s_cmp_eq_u32 s21, 2")
    a.e("s_cselect_b32 s20, s20, -1")
    a.e("s_cmp_lt_u32 s2, 160")
    a.e("s_cselect_b32 s20, s20, -1")
    a.e("s_and_b32 s21, s18, 1")
    a.e(f"s_mul_i32 s21, s21, {PW2}")
    a.e(f"s_mul_i32 s{PBASE}, s18, {PW2}")
    a.e(f"s_add_u32 s{PBASE}, s{PBASE}, {L_RING}")
    a.e("s_cmp_eq_u32 s45, 7")
    a.e("s_cselect_b32 s99, s19, s20")
    a.e(f"s_cselect_b32 s{PBASE}, s{PBASE}, s21")
    prep_setup(a)
    prep_task(a, 99)
    a.e("s_waitcnt lgkmcnt(0)")
    a.e("s_cmp_eq_u32 s99, -1")
    a.e("s_cbranch_scc1 L_nopi")
    srd(a, 24, 8, SZ); srd(a, 28, 10, SZ); srd(a, 32, 12, 576*8)
    prep_issue(a, VD)
    a.label("L_nopi")
    a.e("s_barrier")
    a.e("s_cmp_eq_u32 s45, 7")
    a.e("s_cbranch_scc1 L_spare")
    a.e("s_cmp_ge_u32 s18, 4")
    a.e("s_cbranch_scc1 L_mma")
    n0 = st.n
    a.e("s_setprio 3")
    a.e("v_lshrrev_b32 v4, 4, v0")
    a.e("v_lshlrev_b32 v6, 1, v4")
    a.e("v_and_b32 v7, 15, v0")
    a.e("v_xor_b32 v6, v6, v7")
    a.e("v_mul_u32_u24 v5, 3456, v4")
    a.e("v_lshl_add_u32 v2, v6, 4, v5")
    a.e("v_xor_b32 v6, 8, v6")
    a.e("v_lshl_add_u32 v3, v6, 4, v5")
    a.e("v_lshrrev_b32 v5, 3, v0")
    a.e("v_mul_u32_u24 v6, 2304, v5")
    a.e("v_lshrrev_b32 v5, 1, v5")
    a.e("v_and_b32 v7, 7, v0")
    a.e("v_xor_b32 v5, v5, v7")
    a.e("v_lshl_add_u32 v8, v5, 4, v6")
    a.e("v_xor_b32 v5, 4, v5")
    a.e("v_lshl_add_u32 v9, v5, 4, v6")
    a.e(f"v_add_u32 v9, {8*2304}, v9")
    a.e("s_lshr_b32 s46, s2, 3")
    a.e("s_mul_i32 s19, s46, 57")
    a.e("s_lshr_b32 s19, s19, 9")
    a.e("s_mul_i32 s19, s19, 9")
    a.e("s_sub_u32 s46, s46, s19")
    a.e(f"s_mul_i32 s19, s{RB}, {128*1152}")
    a.e(f"s_lshl_b32 s20, s{CT}, 8")
    a.e("s_add_u32 s48, s4, s19")
    a.e("s_addc_u32 s49, s5, 0")
    a.e(f"s_mov_b32 s50, {128*1152}")
    a.e("s_mov_b32 s51, 0x00020000")
    a.e("s_add_u32 s52, s6, s20")
    a.e("s_addc_u32 s53, s7, 0")
    a.e(f"s_sub_u32 s54, {576*3456}, s20")
    a.e("s_mov_b32 s55, 0x00020000")
    a.e("s_load_dwordx2 s[28:29], s[0:1], 72")
    a.e("v_and_b32 v13, 3, v0")
    a.e("v_bfe_u32 v14, v0, 3, 1")
    a.e("v_lshl_or_b32 v13, v14, 2, v13")
    a.e("v_xor_b32 v13, 4, v13")
    a.e("v_lshlrev_b32 v13, 5, v13")
    a.e("v_lshl_add_u32 v14, v0, 8, v13")
    a.e("v_lshlrev_b32 v15, 1, v0")
    a.e("s_mov_b32 s58, s18")
    a.e(f"v_mov_b32 v10, {L_CNT}")
    a.e("v_mov_b32 v11, 1")
    srd(a, 36, 16, WS_TOTAL)
    a.label("L_ld_issue")
    a.e("s_add_u32 s59, s46, s58")
    a.e("s_sub_u32 s19, s59, 9")
    a.e("s_cmp_ge_u32 s59, 9")
    a.e("s_cselect_b32 s59, s19, s59")
    a.e("s_and_b32 s47, s58, 3")
    a.e("s_lshl_b32 s47, s47, 15")
    a.e(f"s_add_u32 s47, s47, {L_RING}")
    a.e(f"s_mul_i32 s19, s59, {64*3456}")
    a.e("s_lshl_b32 s20, s59, 7")
    a.e(f"v_mov_b32 v12, {L_CNT+24}")
    lds_spin(a, 12, "s58")
    for i in range(16):
        a.e(f"s_add_u32 m0, s47, {1024*i}")
        if i and i % 2 == 0: a.e(f"s_add_u32 s20, s20, {1152 if (i//2) % 2 else 31*1152}")
        else: a.e("s_nop 0")
        a.e(f"buffer_load_dwordx4 v{3 if (i//2) % 2 else 2}, s[52:55], s19 offen lds")
        a.e(f"s_add_u32 m0, s47, {16384+1024*i}")
        a.e(f"s_add_u32 s19, s19, {4*3456}")
        a.e(f"buffer_load_dwordx4 v{8 + i % 2}, s[48:51], s20 offen lds")
    lds_add(a, 10, 24)
    a.e(f"s_cmp_lg_u32 s{CT}, 13")
    a.e("s_cbranch_scc1 L_ld_ng")
    a.e("s_mov_b32 s30, 1152")
    a.e("s_mov_b32 s31, 0x00020000")
    a.e("s_lshl_b32 s20, s59, 7")
    a.e("buffer_load_ushort v16, v15, s[28:31], s20 offen")
    a.e("v_add_u32 v17, s47, v14")
    a.e("s_waitcnt vmcnt(0)")
    a.e("ds_write_b16 v17, v16")
    a.label("L_ld_ng")
    a.e("s_lshl_b32 s19, s58, 2")
    a.e("v_add_u32 v12, s19, v10")
    a.e("s_waitcnt vmcnt(0)")
    a.e("s_mov_b64 exec, 1")
    a.e(f"ds_add_u32 v12, v11 offset:{FULL}")
    a.e("s_mov_b64 exec, -1")
    a.e("s_cmp_ge_u32 s18, 2")
    a.e("s_cbranch_scc1 L_aux")
    a.e("s_cmp_lt_u32 s58, 4")
    a.e("s_cselect_b32 s19, 4, 2")
    a.e("s_add_u32 s58, s58, s19")
    a.e("s_cmp_gt_u32 s58, 8")
    a.e("s_cbranch_scc1 L_ld_done")
    a.e("s_lshl_b32 s19, s58, 2")
    a.e(f"s_add_u32 s19, s19, {L_CNT+FREE-16}")
    a.e("v_mov_b32 v12, s19")
    lds_spin(a, 12, 4)
    a.e("s_branch L_ld_issue")
    a.label("L_ld_done")
    a.e("s_setprio 0")
    st("b8")
    a.e("s_branch L_cvwait")
    a.label("L_aux")
    a.reset_counters()
    st.n = n0; st.names = st.names[:n0]
    a.e("s_setprio 2")
    a.e("s_and_b32 s46, s18, 1")
    a.e("s_cmp_eq_u32 s99, -1")
    a.e("s_cbranch_scc1 L_aux2")
    st("m3")
    prep_compute(a, VD, 64)
    st("m4")
    tag_fetch_to_lds(a, 8)
    a.e(f"v_readfirstlane_b32 s{TAG}, v10")
    a.e(f"v_readfirstlane_b32 s{TAG+1}, v11")
    a.e(f"v_mov_b32 v2, {L_CNT}")
    a.e("v_mov_b32 v3, 1")
    a.e("s_mov_b64 exec, 1")
    a.e("ds_add_rtn_u32 v4, v2, v3 offset:12")
    a.e("s_mov_b64 exec, -1")
    a.e("s_waitcnt lgkmcnt(0)"); a.lgkm = []
    a.e("v_readfirstlane_b32 s22, v4")
    a.e("s_cmp_lg_u32 s22, 1")
    a.e("s_cbranch_scc1 L_aux1")
    flag_write(a, 0, 8)
    a.vm.pop()
    a.label("L_aux1")
    a.e(f"v_mov_b32 v4, {L_CNT+12}")
    lds_spin(a, 4, 2)
    a.label("L_aux2")
    a.e(f"v_mov_b32 v4, {L_CNT+24}")
    lds_spin(a, 4, 9)
    a.e("s_add_u32 s56, s3, s46")
    a.e("s_lshl_b32 s20, s56, 12")
    srd(a, 48, 14, SZ)
    a.e("v_lshlrev_b32 v4, 4, v0")
    KX = 128
    for i in range(4): a.vmem(f"buffer_load_dwordx4 {v(KX+4*i,4)}, v4, s[48:51], s20 offen offset:{1024*i}", "K")
    a.e("v_mov_b32 v3, 1")
    st("m0")
    tag_fetch_to_lds(a, 8)
    a.e(f"v_readfirstlane_b32 s{TAG}, v10")
    a.e(f"v_readfirstlane_b32 s{TAG+1}, v11")
    st("m1")
    convu_wait(a)
    st("m2")
    a.e(f"s_mul_i32 s41, s46, {4*CV_USZ}")
    convu_issue(a, 56, 41, [0, 1, 2, 3], "U")
    for i in range(4):
        X = KX + 4*i; R1, R2, R3 = 64+12*i, 68+12*i, 72+12*i
        a.e("v_mov_b32 v6, 0"); a.e("v_mov_b32 v7, 0")
        if i:
            a.e(f"v_readlane_b32 s20, v{X-2}, 63")
            a.e(f"v_readlane_b32 s21, v{X-1}, 63")
            a.e("s_nop 1")
            a.e("v_mov_b32 v6, s20"); a.e("v_mov_b32 v7, s21")
        a.e("s_nop 1")
        a.e(f"v_mov_b32_dpp v6, v{X+2} wave_shr:1 row_mask:0xf bank_mask:0xf")
        a.e(f"v_mov_b32_dpp v7, v{X+3} wave_shr:1 row_mask:0xf bank_mask:0xf")
        a.e(f"v_alignbit_b32 v{R1}, v{X}, v7, 16")
        for j in range(1, 4): a.e(f"v_alignbit_b32 v{R1+j}, v{X+j}, v{X+j-1}, 16")
        a.e(f"v_mov_b32 v{R2}, v7")
        for j in range(1, 4): a.e(f"v_mov_b32 v{R2+j}, v{X+j-1}")
        a.e(f"v_alignbit_b32 v{R3}, v7, v6, 16")
        for j in range(1, 4): a.e(f"v_mov_b32 v{R3+j}, v{R1+j-1}")
    a.e("s_lshl_b32 s21, s46, 2")
    a.e(f"s_add_u32 s21, s21, {L_CNT+FREE+20}")
    a.e("v_mov_b32 v4, s21")
    lds_spin(a, 4, 4)
    st("m5")
    a.e("s_lshl_b32 s41, s46, 15")
    a.e(f"s_add_u32 s41, s41, {L_CVK}")
    a.e("v_lshl_add_u32 v4, v0, 4, s41")
    for i in range(4):
        for (r, R_) in ((0, KX+4*i), (1, 64+12*i), (2, 68+12*i), (3, 72+12*i)):
            a.lds(f"ds_write_b128 v4, {v(R_,4)} offset:{8192*r+32+1024*i}")
    a.e("v_mov_b32 v6, 0"); a.e("v_mov_b32 v7, 0")
    a.e("v_lshl_add_u32 v4, v0, 3, s41")
    setexec(a, 0xf)
    for r in range(4): a.lds(f"ds_write_b64 v4, v[6:7] offset:{8192*r}")
    a.e("s_mov_b64 exec, -1")
    st("m6")
    a.wait_vm(None)
    st("m7"); st("m8")
    a.e("s_lshl_b32 s21, s46, 2")
    a.e(f"s_add_u32 s21, s21, {L_CNT+16}")
    a.e("v_mov_b32 v4, s21")
    a.lds("ds_write_b32 v4, v3")
    a.e("s_setprio 0")
    a.label("L_cvwait")
    st("cvk")
    a.e(f"s_lshl_b32 s21, s{ROLE}, 2")
    a.e(f"s_add_u32 s21, s21, {L_CNT+16}")
    a.e("v_mov_b32 v1, s21")
    lds_spin(a, 1, 1)
    tag_from_lds(a, 8)
    st("f1")
    a.e("s_branch L_conv")
    a.label("L_mma")
    a.reset_counters()
    st.n = n0; st.names = st.names[:n0]
    a.e("s_setprio 1")
    WA, XA, ACC, FR = 2, 10, 16, 80
    a.e("v_lshrrev_b32 v12, 4, v0")
    a.e("v_bfe_u32 v13, v0, 2, 2")
    a.e("v_and_b32 v14, 1, v12")
    a.e("v_lshl_or_b32 v14, v14, 2, v13")
    a.e("s_and_b32 s22, s18, 1")
    a.e("s_lshl_b32 s22, s22, 2")
    a.e("v_xor_b32 v14, s22, v14")
    a.e("v_lshl_add_u32 v15, v12, 3, v13")
    a.e("v_lshlrev_b32 v15, 8, v15")
    a.e("v_lshl_add_u32 v15, v14, 5, v15")
    a.e("v_and_b32 v14, 3, v0")
    a.e("v_lshl_add_u32 v15, v14, 3, v15")
    a.e(f"v_add_u32 v{WA}, {L_RING}, v15")
    for mt in range(1, 4): a.e(f"v_xor_b32 v{WA+mt}, {32*mt}, v{WA}")
    for mt in range(4): a.e(f"v_add_u32 v{WA+4+mt}, 0x10000, v{WA+mt}")
    SO = 1
    a.e("v_and_b32 v13, 15, v0")
    a.e(f"s_lshl_b32 s21, s{CT}, 5")
    a.e("s_lshl_b32 s22, s22, 2")
    a.e("s_add_u32 s56, s21, s22")
    a.e("v_add_u32 v14, s56, v12")
    a.e("v_lshlrev_b32 v14, 14, v14")
    a.e("s_bfe_u32 s23, s18, 0x10001")
    a.e(f"s_lshl_b32 s21, s{RB}, 10")
    a.e("s_lshl_b32 s22, s23, 9")
    a.e("s_add_u32 s21, s21, s22")
    a.e("v_lshl_add_u32 v14, v13, 4, v14")
    a.e(f"v_add_u32 v{SO}, s21, v14")
    a.e("v_lshrrev_b32 v14, 1, v13")
    a.e("v_xor_b32 v14, v14, v12")
    a.e("s_lshl_b32 s21, s23, 13")
    a.e(f"s_add_u32 s21, s21, {L_RING+16384}")
    a.e("v_lshlrev_b32 v15, 7, v13")
    a.e("v_lshl_add_u32 v15, v14, 4, v15")
    a.e(f"v_add_u32 v{XA}, s21, v15")
    a.e(f"v_xor_b32 v{XA+1}, 64, v{XA}")
    a.e(f"v_add_u32 v{XA+2}, 0x10000, v{XA}")
    a.e(f"v_add_u32 v{XA+3}, 0x10000, v{XA+1}")
    a.e("s_waitcnt lgkmcnt(0)"); a.lgkm = []
    srd(a, 48, 16, QKV_BYTES)
    srd(a, 36, 16, WS_TOTAL)
    def reads(c):
        f = FR + 64 * (c % 2); slot = c % 4; hb = slot // 2; ob = 32768 * (slot % 2)
        out = []
        for kh in range(2):
            for i in range(4):
                for hf in range(2):
                    out.append(lambda kh=kh, mt=i, hf=hf: a.lds(f"ds_read_b64_tr_b16 {v(f+16*kh+4*mt+2*hf,2)}, v{WA+4*hb+mt} offset:{ob+(32*kh+4*hf)*256}", f"F{c}_{kh}"))
                out.append(lambda kh=kh, nt=i: a.lds(f"ds_read_b128 {v(f+32+16*kh+4*nt,4)}, v{XA+2*hb+kh} offset:{ob+2048*nt}", f"F{c}_{kh}"))
        return out
    a.e(f"v_mov_b32 v208, {L_CNT}")
    a.e("v_mov_b32 v209, 1")
    def poll_issue(c): a.lds(f"ds_read_b32 v210, v208 offset:{FULL+4*c}", f"poll{c}")
    def poll_check(c):
        a.wait_lds(f"poll{c}")
        if 1 <= c <= 7: lds_add(a, 208, FREE + 4*(c-1))
        d = a.newlabel("full")
        a.e("v_readfirstlane_b32 s22, v210")
        a.e("s_cmp_ge_u32 s22, 1")
        a.e(f"s_cbranch_scc1 {d}")
        a.e(f"v_add_u32 v210, {FULL+4*c}, v208")
        lds_spin(a, 210, 1)
        a.label(d)
        st(f"m{c}")
    poll_issue(0); poll_check(0)
    for r_ in reads(0): r_()
    poll_issue(1)
    for c in range(9):
        f = FR + 64 * (c % 2)
        fill = []
        if c + 1 < 9:
            poll_check(c + 1)
            fill = reads(c + 1)
            if c + 2 < 9: fill += [None, None, None, lambda c=c: poll_issue(c + 2)]
        else:
            a.wait_lds(None)
        if c == 7: st("b8")
        for kh in range(2):
            for nt in range(4):
                for mt in range(4):
                    acc = v(ACC + (mt*4+nt)*4, 4)
                    first = (c == 0 and kh == 0)
                    a.e(f"v_mfma_f32_16x16x32_bf16 {acc}, {v(f+16*kh+4*mt,4)}, {v(f+32+16*kh+4*nt,4)}, {0 if first else acc}")
                    if fill:
                        x_ = fill.pop(0)
                        if x_: x_()
    a.e("s_cmp_lt_u32 s56, 432")
    a.e("s_cbranch_scc1 L_qkv")
    a.e("s_nop 7")
    G0 = 208
    for nt in range(4): rnd(a, G0+nt, ACC+4*nt)
    for nt in range(4): a.e(f"v_mul_f32 v{G0+nt}, {f32(-1.4426950408889634)}, v{G0+nt}")
    for nt in range(4): a.e(f"v_exp_f32 v{G0+nt}, v{G0+nt}")
    for nt in range(4): a.e(f"v_add_f32 v{G0+nt}, 1.0, v{G0+nt}")
    for nt in range(4): a.e(f"v_rcp_f32 v{G0+nt}, v{G0+nt}")
    for nt in range(4): rnd(a, G0+nt, G0+nt)
    a.e(f"v_and_b32 v2, 0x3fff, v{SO}")
    a.e("v_lshrrev_b32 v2, 1, v2")
    a.e(f"s_mov_b32 s19, {WS_G}")
    setexec(a, 0xffff)
    a.e(f"buffer_store_dwordx2 {v(G0,2)}, v2, s[36:39], s19 offen {SC}")
    a.e(f"buffer_store_dwordx2 {v(G0+2,2)}, v2, s[36:39], s19 offen offset:128 {SC}")
    a.e("s_mov_b64 exec, -1")
    a.e("s_branch L_mdone")
    a.label("L_qkv")
    a.e(f"s_mov_b32 s20, {f32(QSCALE)}")
    a.e("s_cmp_lt_u32 s56, 144")
    a.e("s_cselect_b32 s21, s20, 1.0")
    a.e("s_nop 3")
    for mt in range(4):
        for nt in range(4):
            ac = ACC + (mt*4+nt)*4
            for i in range(4): a.e(f"v_mul_f32 v{ac+i}, s21, v{ac+i}")
            t = FR + 64 + (mt*4+nt)*2
            a.e(f"v_cvt_pk_bf16_f32 v{t}, v{ac}, v{ac+1}")
            a.e(f"v_cvt_pk_bf16_f32 v{t+1}, v{ac+2}, v{ac+3}")
        a.e(f"s_mov_b32 s19, {mt*65536}")
        a.vmem(f"buffer_store_dwordx4 {v(FR+64+mt*8,4)}, v{SO}, s[48:51], s19 offen {SC}")
        a.vmem(f"buffer_store_dwordx4 {v(FR+64+mt*8+4,4)}, v{SO}, s[48:51], s19 offen offset:256 {SC}")
    a.label("L_mdone")
    a.e("s_setprio 0")
    a.e(f"v_mov_b32 v1, {L_CNT+196}")
    lds_spin(a, 1, "0x80000000")
    tag_from_lds(a, 8)
    a.e("s_waitcnt vmcnt(0)")
    a.e(f"v_mov_b32 v1, {L_CNT+8}")
    a.e("v_mov_b32 v2, 1")
    a.e("s_mov_b64 exec, 1")
    a.e("ds_add_rtn_u32 v2, v1, v2")
    a.e("s_mov_b64 exec, -1")
    a.e("s_waitcnt lgkmcnt(0)")
    a.e("v_readfirstlane_b32 s22, v2")
    a.e("s_cmp_lg_u32 s22, 3")
    a.e("s_cbranch_scc1 L_cvwait")
    flag_write(a, 1, 120); a.vm.pop()
    a.e("s_branch L_cvwait")
    a.label("L_spare")
    a.reset_counters()
    st.n = n0; st.names = st.names[:n0]
    a.e("s_load_dwordx2 s[44:45], s[0:1], 88")
    a.e("s_and_b32 s46, s2, 31")
    a.e("s_and_b32 s58, s18, 3")
    a.e("s_lshr_b32 s59, s18, 2")
    a.e("s_lshl_b32 s3, s46, 2")
    a.e("s_add_u32 s3, s3, s59")
    a.e(f"s_mov_b32 s{ROUNDS}, 2")
    a.e(f"s_add_u32 s{ROLE}, s{ROLE}, 2")
    a.e("s_waitcnt lgkmcnt(0)"); a.lgkm = []
    srd(a, 36, 16, WS_TOTAL)
    a.e("s_cmp_lg_u32 s2, 224")
    a.e("s_cbranch_scc1 L_nomk")
    a.e("s_cmp_lg_u32 s18, 7")
    a.e("s_cbranch_scc1 L_nomk")
    srd(a, 24, 44, 256)
    a.e(f"v_mov_b32 v2, {WS_E}")
    a.e("v_mov_b32 v3, 0")
    a.e("buffer_load_dwordx2 v[4:5], v2, s[36:39], 0 offen sc0 sc1")
    a.e("s_waitcnt vmcnt(0)")
    a.e("v_add_co_u32 v4, vcc, 1, v4")
    a.e("s_nop 1")
    a.e("v_addc_co_u32 v5, vcc, 0, v5, vcc")
    a.e("v_or_b32 v5, 0x80000000, v5")
    a.e("s_mov_b64 exec, 1")
    a.e("buffer_store_dwordx2 v[4:5], v3, s[24:27], 0 offen sc0 sc1")
    a.e("buffer_store_dwordx2 v[4:5], v2, s[36:39], 0 offen sc0 sc1")
    a.e("s_mov_b64 exec, -1")
    a.label("L_nomk")
    a.e("s_waitcnt vmcnt(0)")
    st("m1")
    prep_compute(a, VD, 64)
    st("m6")
    a.reset_counters()
    a.e("s_cmp_lg_u32 s18, 0")
    a.e("s_cbranch_scc1 L_sp1")
    tag_fetch_to_lds(a, 8)
    a.label("L_sp1")
    a.e("s_waitcnt vmcnt(0) lgkmcnt(0)"); a.reset_counters()
    st("m7")
    a.e("s_barrier")
    st("b8")
    tag_from_lds(a, 8)
    a.e("s_cmp_lg_u32 s18, 0")
    a.e("s_cbranch_scc1 L_spc")
    flag_write(a, 0, 8)
    a.label("L_spc")
    a.reset_counters()
    convk_issue(a, 3, RHO, 120, "KA")
    convk_write(a, RHO, CVK, 0, 120, "KA")
    st("cvk")
    convu_wait(a)
    st("f1")
    convu_issue(a, 3, CVU, ['s', RHO], "U")
    a.wait_vm(None)
    a.label("L_conv")
    a.reset_counters()
    st("cv0")
    AF, ACC, BF = 16, 80, 112
    a.e("s_load_dwordx2 s[6:7], s[0:1], 64")
    a.e("s_lshl_b32 s20, s3, 12")
    a.e(f"s_mul_i32 s23, s{RHO}, {CV_USZ}")
    a.e(f"s_add_u32 s23, s23, s{CVU}")
    a.e("v_lshlrev_b32 v13, 4, v0")
    a.e(f"v_add_u32 v14, s{CVK}, v13")
    a.e("v_lshrrev_b32 v7, 4, v0")
    a.e("v_bfe_u32 v8, v0, 2, 2")
    a.e("v_and_b32 v9, 3, v0")
    a.e("v_lshlrev_b32 v10, 3, v7")
    a.e("v_add3_u32 v10, v10, v8, v9")
    a.e(f"v_lshl_add_u32 v10, v10, 3, s{CVK}")
    a.e("v_and_b32 v11, 15, v0")
    a.e("v_lshlrev_b32 v12, 4, v7")
    a.e("v_lshlrev_b32 v8, 3, v11")
    a.e("v_sub_u32 v12, v12, v8")
    a.e(f"v_add_u32 v12, {2*508-64*14}, v12")
    a.e("v_add_u32 v12, s23, v12")
    a.e("s_lshr_b32 s21, s3, 1")
    a.e("s_lshl_b32 s21, s21, 2")
    a.e("s_waitcnt lgkmcnt(0)")
    a.e("s_load_dword s24, s[6:7], s21")
    def rdA(kap):
        for hf in range(2):
            a.lds(f"ds_read_b64_tr_b16 {v(AF+4*kap+2*hf,2)}, v10 offset:{8+256*kap+32*hf}", f"A{kap}")
    lams = []
    lo, hi = -1, 14
    while lo <= hi:
        lams.append(hi); hi -= 1
        if lo <= hi: lams.append(lo); lo += 1
    def rdB(i):
        lam = lams[i]; b = BF + 4 * (i % 4)
        for hf in range(2):
            a.lds(f"ds_read_b64 {v(b+2*hf,2)}, v12 offset:{64*(14-lam)+8*hf}", f"B{i}")
    rdA(0); rdB(0); rdB(1)
    for kap in (1, 3, 5, 7): rdA(kap)
    restA = [9, 11, 13, 15, 2, 4, 6, 8, 10, 12, 14]
    seen = set()
    for i, lam in enumerate(lams):
        if i + 2 < len(lams): rdB(i + 2)
        a.wait_lds(f"B{i}")
        b = BF + 4 * (i % 4)
        for tau in range(8):
            kap = 2 * tau - lam
            if kap < 0 or kap > 15: continue
            assert kap not in restA
            a.wait_lds(f"A{kap}")
            w = v(ACC + 4*tau, 4)
            a.e(f"v_mfma_f32_16x16x32_bf16 {w}, {v(AF+4*kap,4)}, {v(b,4)}, {w if tau in seen else 0}")
            seen.add(tau)
            for _ in range(2 if i == 0 else 1):
                if restA: rdA(restA.pop(0))
    st("cv1")
    a.e(f"s_lshl_b32 s21, s{RHO}, 13")
    a.e(f"s_sub_u32 s22, s{CVK}, s21")
    a.e(f"s_lshl_b32 s21, s{RHO}, 11")
    a.e("s_add_u32 s22, s22, s21")
    a.e("v_add_u32 v15, s22, v13")
    for i in range(8): a.e(f"v_mov_b32 v{AF+32+i}, 0")
    for tau in range(8):
        a.lds(f"ds_write_b128 v14, {v(ACC+4*tau,4)} offset:{1024*tau}")
    a.e("v_lshl_add_u32 v13, v11, 2, v7")
    a.e("v_lshlrev_b32 v13, 1, v13")
    a.e(f"v_sub_u32 v13, {2*511-128}, v13")
    a.e(f"s_lshl_b32 s21, s{RHO}, 8")
    a.e(f"s_sub_u32 s21, s{CVU}, s21")
    a.e("v_add_u32 v13, s21, v13")
    a.e("v_lshlrev_b32 v14, 5, v11")
    a.e("v_lshl_add_u32 v14, v7, 3, v14")
    a.e(f"s_lshl_b32 s21, s{RHO}, 10")
    a.e("s_add_u32 s21, s21, s20")
    a.e(f"s_add_u32 s21, s21, {WS_Z}")
    st("cv2")
    group_barrier(a, 1)
    st("cv3")
    a.e("s_lshl_b32 s25, s24, 16")
    a.e("s_and_b32 s24, s24, 0xffff0000")
    a.e("s_bitcmp1_b32 s3, 0")
    a.e("s_cselect_b32 s24, s24, s25")
    for j in range(2):
        for sw in range(4):
            a.lds(f"ds_read_b128 {v(AF+16*j+4*sw,4)}, v15 offset:{8192*sw+1024*j}", f"R{j}")
        for i in range(4):
            a.lds(f"ds_read_u16_d16_hi v{AF+32+4*j+i}, v13 offset:{CV_USZ*i+128*(1-j)}", f"R{j}")
    for j in range(2):
        a.wait_lds(f"R{j}")
        y = AF + 16*j; u = AF + 32 + 4*j
        for i in range(4): a.e(f"v_add_f32 v{y+i}, v{y+i}, v{y+4+i}")
        for i in range(4): a.e(f"v_add_f32 v{y+8+i}, v{y+8+i}, v{y+12+i}")
        for i in range(4): a.e(f"v_mul_f32 v{u+i}, s24, v{u+i}")
        for i in range(4): a.e(f"v_add_f32 v{y+i}, v{y+i}, v{y+8+i}")
        for i in range(4): rnd(a, u+i, u+i)
        for i in range(4): rnd(a, y+i, y+i)
        for i in range(4): a.e(f"v_add_f32 v{y+i}, v{y+i}, v{u+i}")
        a.e(f"v_cvt_pk_bf16_f32 v{y}, v{y}, v{y+1}")
        a.e(f"v_cvt_pk_bf16_f32 v{y+1}, v{y+2}, v{y+3}")
        a.vmem(f"buffer_store_dwordx2 {v(y,2)}, v14, s[36:39], s21 offen offset:{512*j} {SC}")
    a.e(f"s_sub_u32 s{ROUNDS}, s{ROUNDS}, 1")
    a.e(f"s_cmp_eq_u32 s{ROUNDS}, 0")
    a.e("s_cbranch_scc1 L_attn")
    group_barrier(a, 1)
    a.e("s_add_u32 s3, s3, 2")
    a.e("s_branch L_spc")
    a.label("L_attn")
    a.reset_counters()
    st("conv")
    a.e("s_and_b32 s22, s2, 7")
    a.e("s_lshl_b32 s22, s22, 1")
    a.e("s_bfe_u32 s19, s2, 0x10003")
    a.e("s_add_u32 s40, s22, s19")
    a.e("s_lshr_b32 s41, s2, 4")
    a.e("s_lshr_b32 s23, s18, 2")
    a.e("s_mul_i32 s24, s40, 9")
    for i in range(3):
        a.e(f"s_sub_i32 s{32+i}, s41, {2-i}")
        a.e(f"s_max_i32 s{32+i}, s{32+i}, 0")
    Q1, Q2 = 8, 12
    KB_ = [16, 22]; VB_ = [28, 36]; SS = [44, 60]; PP = [76, 84]; OA = 92; NM = 14
    a.e("s_cmp_ge_u32 s18, 4")
    a.e("s_cbranch_scc1 L_nostage")
    a.e("v_lshrrev_b32 v1, 3, v0")
    a.e("v_min_u32 v1, 2, v1")
    a.e("v_mul_u32_u24 v1, 144, v1")
    a.e("v_bfe_u32 v2, v0, 2, 1")
    a.e("v_lshl_add_u32 v1, v2, 3, v1")
    a.e("v_add_u32 v1, s24, v1")
    a.e("v_lshrrev_b32 v1, 5, v1")
    a.e("v_and_b32 v2, 3, v0")
    a.e("v_min_u32 v2, 2, v2")
    a.e("v_sub_u32 v2, s41, v2")
    a.e("v_max_i32 v2, 0, v2")
    a.e("v_cmp_lt_u32 vcc, 6, v1")
    a.e("v_subrev_u32 v3, 7, v1")
    a.e("v_lshrrev_b32 v4, 2, v2")
    a.e("v_cndmask_b32 v1, v1, v3, vcc")
    a.e("v_add_u32 v3, 4, v4")
    a.e("v_cndmask_b32 v4, v4, v3, vcc")
    a.e("v_and_b32 v2, 3, v2")
    a.e("v_lshl_add_u32 v1, v1, 2, v2")
    a.e("v_lshl_add_u32 v1, v1, 3, v4")
    for i in range(3): a.e(f"s_lshl_b32 s{32+i}, s{32+i}, 10")
    a.e("s_add_u32 s26, s24, s18")
    a.e("s_lshl_b32 s26, s26, 14")
    a.e(f"s_mul_i32 s27, s18, {PL}")
    a.e("s_lshl_b32 s28, s18, 10")
    a.e("s_add_u32 s29, s24, 8")
    a.e("s_lshl_b32 s29, s29, 14")
    combos = [(0, 2, L_Q, 1024), (1, 2, L_KP+2048, PL), (2, 2, L_VP+2048, PL), (1, 1, L_KP+1024, PL), (2, 1, L_VP+1024, PL), (1, 0, L_KP, PL), (2, 0, L_VP, PL)]
    for n in range(2):
        so, do = 48 + 2*n, 49 + 2*n
        for jj in range(4):
            ty, i, dst, stride = combos[min(4*n + jj, 6)]
            if jj == 0:
                a.e(f"s_add_u32 s{so}, s{32+i}, {ty*144*16384}")
                a.e(f"s_mov_b32 s{do}, {dst+8*stride}")
            else:
                a.e(f"s_add_u32 s19, s{32+i}, {ty*144*16384}")
                a.e(f"s_cmp_eq_u32 s18, {jj}")
                a.e(f"s_cselect_b32 s{so}, s19, s{so}")
                a.e(f"s_cselect_b32 s{do}, {dst+8*stride}, s{do}")
        a.e(f"s_add_u32 s{so}, s{so}, s29")
    flag_wait(a, 1, 1, 2)
    a.e(f"s_cmp_lg_u32 s{ROLE}, 0")
    a.e("s_cbranch_scc1 L_ns0")
    a.e(f"v_mov_b32 v1, {L_CNT+8}")
    lds_spin(a, 1, 4)
    a.label("L_ns0")
    a.e("v_lshlrev_b32 v2, 4, v0")
    for n, (ty, i, dst, stride) in enumerate(combos):
        for q in range(2):
            a.e(f"s_add_u32 m0, s{28 if stride == 1024 else 27}, {dst + 4*q*stride}")
            a.e(f"s_add_u32 s35, s26, s{32+i}")
            a.e(f"s_add_u32 s35, s35, {(ty*144+4*q)*16384}")
            a.vmem(f"buffer_load_dwordx4 v2, s[36:39], s35 offen {SC} lds", "S")
        if n in (2, 5):
            k_ = 0 if n == 2 else 1
            a.e(f"s_mov_b32 m0, s{49+2*k_}")
            a.e("s_nop 0")
            a.vmem(f"buffer_load_dwordx4 v2, s[36:39], s{48+2*k_} offen {SC} lds", "S")
    a.e("v_mov_b32 v5, 0x3f803f80")
    a.e("v_lshlrev_b32 v6, 2, v0")
    a.e("s_lshl_b32 s35, s18, 8")
    a.e("v_add_u32 v6, s35, v6")
    for i in range(3): a.lds(f"ds_write_b32 v6, v5 offset:{L_ONE+1024*i}")
    a.label("L_nostage")
    st("f2")
    a.e("v_and_b32 v1, 31, v0")
    a.e("v_lshrrev_b32 v15, 5, v0")
    a.e("s_lshl_b32 s46, s41, 2")
    a.e(f"s_add_u32 s46, s46, s{RHO}")
    a.e("v_lshlrev_b32 v3, 3, v1")
    a.e("s_mul_i32 s25, s23, 5")
    a.e(f"s_lshl_b32 s35, s{RHO}, 8")
    a.e("s_lshl_b32 s26, s25, 10")
    a.e("s_add_u32 s26, s26, s35")
    a.e(f"s_add_u32 s26, s26, {L_Q}")
    a.e("v_lshl_add_u32 v108, v15, 11, v3")
    a.e("v_add_u32 v108, s26, v108")
    a.e(f"s_add_u32 s26, s35, {L_Q+4096}")
    a.e("v_add_u32 v109, s26, v3")
    a.e(f"s_lshl_b32 s35, s{RHO}, 8")
    a.e(f"s_mul_i32 s25, s25, {PL}")
    a.e("s_add_u32 s26, s25, s35")
    a.e(f"s_add_u32 s26, s26, {L_KP}")
    a.e(f"v_mul_u32_u24 v4, {2*PL}, v15")
    a.e("v_add3_u32 v4, v4, v3, s26")
    a.e(f"v_mul_u32_u24 v5, {5*PL}, v15")
    a.e(f"s_add_u32 s26, s35, {L_KP+4*PL}")
    a.e("v_add3_u32 v3, v5, v3, s26")
    a.e("v_bfe_u32 v5, v0, 2, 2")
    a.e("v_lshl_add_u32 v5, v15, 2, v5")
    a.e("v_lshlrev_b32 v5, 3, v5")
    a.e("v_and_b32 v6, 3, v0")
    a.e(f"v_mul_u32_u24 v7, {PL}, v6")
    a.e(f"s_add_u32 s26, s25, {L_VP}")
    a.e("v_add_u32 v7, s26, v7")
    a.e(f"v_mov_b32 v2, {L_VP+4*PL}")
    m1 = lane_mask(lambda l: (l >> 4) & 1 and (l & 3) == 0); m2 = lane_mask(lambda l: (l >> 4) & 1 and (l & 3) != 0)
    a.e(f"s_mov_b32 s20, 0x{m1 & 0xffffffff:x}"); a.e("s_mov_b32 s21, s20")
    a.e("v_cndmask_b32 v7, v7, v2, s[20:21]")
    a.e(f"v_mov_b32 v2, {L_ONE}")
    a.e(f"s_mov_b32 s20, 0x{m2 & 0xffffffff:x}"); a.e("s_mov_b32 s21, s20")
    a.e("v_cndmask_b32 v7, v7, v2, s[20:21]")
    a.e("v_add3_u32 v5, v5, v7, s35")
    a.e("s_sub_i32 s27, 8, s46")
    a.e("s_max_i32 s27, s27, 0")
    a.e(f"v_mov_b32 v2, {NEGINF}")
    def mask_ops(S, diag):
        ops = []
        for ri in range(16):
            j, i = ri // 4, ri % 4
            md = lane_mask(lambda l: 8*j + 4*(l >> 5) + i <= (l & 31))
            def f(ri=ri, md=md):
                a.e(f"s_mov_b32 s20, 0x{md & 0xffffffff:x}")
                a.e(f"s_mov_b32 s21, 0x{md >> 32:x}")
                if diag: a.e(f"v_cndmask_b32 v{S+ri}, v2, 0, s[20:21]")
                else: a.e(f"v_cndmask_b32 v{S+ri}, 0, v2, s[20:21]")
            ops.append(f)
        return ops
    for f in mask_ops(SS[0], True): f()
    a.e("s_cmp_eq_u32 s23, 0")
    a.e("s_cselect_b32 s48, -1, 0")
    a.e("s_mov_b32 s49, 0")
    a.e("s_cselect_b32 s50, 0, -1")
    a.e("s_mov_b32 s51, 0")
    a.e("s_mov_b32 s42, 0")
    a.e("s_mov_b32 s43, -1")
    a.e("s_load_dwordx2 s[6:7], s[0:1], 16")
    a.e("s_min_u32 s19, s2, 251")
    a.e("s_mul_i32 s56, s19, 2341")
    a.e("s_lshr_b32 s56, s56, 16")
    a.e("s_lshl_b32 s57, s56, 7")
    a.e("v_lshrrev_b32 v110, 3, v0")
    a.e("v_and_b32 v111, 7, v0")
    a.e("v_lshrrev_b32 v112, 1, v110")
    a.e("v_lshlrev_b32 v112, 1, v112")
    a.e("v_xor_b32 v111, v111, v112")
    a.e("v_mul_u32_u24 v110, 1152, v110")
    a.e("v_lshl_add_u32 v110, v111, 4, v110")
    a.e("s_waitcnt vmcnt(0) lgkmcnt(0)"); a.reset_counters()
    a.e("s_barrier")
    st("staged")
    a.e("s_cmp_lg_u32 s18, 0")
    a.e("s_cbranch_scc1 L_nf3")
    flag_write(a, 2, 112); a.vm.pop()
    a.label("L_nf3")

    def rdK(t):
        buf = KB_[t % 2]
        return [lambda: a.lds(f"ds_read_b64 {v(buf,2)}, v4 offset:{256*t}", f"K{t}"),
                lambda: a.lds(f"ds_read_b64 {v(buf+2,2)}, v4 offset:{256*t+PL}", f"K{t}"),
                lambda: a.lds(f"ds_read_b64 {v(buf+4,2)}, v3 offset:{256*t}", f"K{t}")]
    def rdV(t):
        buf = VB_[t % 2]
        return [lambda i=i: a.lds(f"ds_read_b64_tr_b16 {v(buf+2*i,2)}, v5 offset:{256*t+64*i}", f"V{t}") for i in range(4)]
    def qk1(t):
        S = SS[t % 2]; buf = KB_[t % 2]
        a.e(f"v_mfma_f32_32x32x16_bf16 {v(S,16)}, {v(buf,4)}, {v(Q1,4)}, {v(S,16) if t in (0, 8) else 0}")
    def qk2(t):
        S = SS[t % 2]; buf = KB_[t % 2]
        a.e(f"v_mfma_f32_32x32x8_bf16 {v(S,16)}, {v(buf+4,2)}, {v(Q2,2)}, {v(S,16)}")
    def pv(t, h):
        a.e(f"v_mfma_f32_32x32x16_bf16 {v(OA,16)}, {v(VB_[t%2]+4*h,4)}, {v(PP[t%2]+4*h,4)}, {0 if (t == 8 and h == 0) else v(OA,16)}")
    def kill(t, pfx):
        l = f"{pfx}_k{t}"
        a.e(f"s_cmp_lg_u32 s27, {t+1}")
        a.e(f"s_cbranch_scc1 {l}")
        a.e("v_mov_b32 v6, 0xff7f")
        a.e(f"v_cndmask_b32 v{Q2}, v{Q2}, v6, s[42:43]")
        a.label(l)
    a.lds(f"ds_read_b64 {v(Q1,2)}, v108", "Q")
    a.lds(f"ds_read_b64 {v(Q1+2,2)}, v108 offset:1024", "Q")
    a.lds(f"ds_read_b64 {v(Q2,2)}, v109", "Q")
    for f in rdK(8) + rdK(7): f()
    a.e("s_add_u32 s28, s6, s57")
    a.e("s_addc_u32 s29, s7, 0")
    a.e(f"s_sub_u32 s30, {576*1152}, s57")
    a.e("s_mov_b32 s31, 0x00020000")
    a.e(f"s_mul_i32 s58, s18, {8*1152}")
    a.e("s_lshl_b32 s59, s18, 10")
    def wo_dma(j):
        a.e(f"s_add_u32 m0, s59, {L_WO + j*8192}")
        a.e("s_nop 0")
        a.vmem("buffer_load_dwordx4 v110, s[28:31], s58 offen lds", "WO")
        a.e(f"s_add_u32 s58, s58, {64*1152}")
    a.wait_lds("K8")
    a.e("s_barrier")
    a.e(f"v_cndmask_b32 v{Q2}, 0, v{Q2}, s[48:49]")
    a.e(f"v_cndmask_b32 v{Q2+1}, 0, v{Q2+1}, s[50:51]")
    KA = KB_[0]
    a.e(f"v_dot2_f32_bf16 v6, v{Q1}, v{KA}, 0")
    for i in range(1, 6): a.e(f"v_dot2_f32_bf16 v6, v{Q1+i}, v{KA+i}, v6")
    qk1(8)
    a.e("s_nop 2")
    a.e("v_mov_b32 v7, v6")
    a.e("s_nop 1")
    a.e("v_permlane32_swap_b32 v6, v7")
    a.e("s_nop 1")
    a.e("v_add_f32 v6, v6, v7")
    a.e("v_sub_f32 v6, 0, v6")
    a.e("v_cvt_pk_bf16_f32 v6, v6, 0")
    a.e(f"v_cndmask_b32 v{Q2}, v{Q2}, v6, s[42:43]")
    a.e("s_nop 1")

    def softmax_pass(sub, pfx):
        qk2(8)
        for f in rdV(8): f()
        kill(7, pfx)
        a.e("s_nop 3")
        for t in range(8, -1, -1):
            S = SS[t % 2]; P = PP[t % 2]
            valu = []
            for i in range(16):
                if sub: valu.append(lambda i=i: a.e(f"v_add_f32 v{S+i}, v{S+i}, v{NM}"))
                valu.append(lambda i=i: a.e(f"v_exp_f32 v{S+i}, v{S+i}"))
                if i % 2 == 1 and i >= 3:
                    valu.append(lambda i=i: a.e(f"v_cvt_pk_bf16_f32 v{P+(i-3)//2}, v{S+i-3}, v{S+i-2}"))
            valu.append(lambda: a.e("s_nop 0"))
            valu.append(lambda: a.e(f"v_cvt_pk_bf16_f32 v{P+7}, v{S+14}, v{S+15}"))
            q = len(valu) // 4
            def run(n):
                for _ in range(n):
                    if valu: valu.pop(0)()
            if t == 1:
                for f in mask_ops(SS[0], False): f()
                a.e("s_nop 1")
            if t > 0:
                a.wait_lds(f"K{t-1}")
                qk1(t - 1)
            else:
                a.e("s_nop 3")
            run(q)
            if t > 0: qk2(t - 1)
            if t > 1:
                for f in rdK(t - 2): f()
                kill(t - 2, pfx)
            run(q)
            if t < 8:
                a.wait_lds(f"V{t+1}")
                pv(t + 1, 0)
            run(q)
            if t < 8: pv(t + 1, 1)
            if t > 0:
                for f in rdV(t - 1): f()
            if not sub: wo_dma(8 - t)
            run(100)
        a.wait_lds(None)
        a.e("s_nop 0")
        pv(0, 0); pv(0, 1)
        a.e("s_nop 7")
        a.e("s_nop 3")

    softmax_pass(False, "sa")
    st("soft")
    a.e(f"v_mov_b32 v6, v{OA+12}")
    for i in range(12): a.e(f"v_fma_f32 v6, v{OA+i}, 0, v6")
    a.e(f"s_mov_b32 s20, {f32(2.0**-30)}")
    a.e(f"s_mov_b32 s21, {f32(2.0**100)}")
    a.e("v_cmp_nlt_f32 vcc, s20, v6")
    a.e("v_cmp_ngt_f32 s[44:45], s21, v6")
    a.e("s_or_b64 vcc, vcc, s[44:45]")
    a.e("s_cbranch_vccnz L_fallback")
    a.label("L_fin")
    P0 = PP[0]
    a.e(f"v_rcp_f32 v6, v{OA+12}")
    a.e("s_nop 0")
    for i in range(12): a.e(f"v_mul_f32 v{OA+i}, v{OA+i}, v6")
    for i in range(6): a.e(f"v_cvt_pk_bf16_f32 v{P0+i}, v{OA+2*i}, v{OA+2*i+1}")
    a.e("v_lshrrev_b32 v6, 4, v1")
    a.e("v_mul_u32_u24 v6, 18432, v6")
    a.e("v_and_b32 v7, 15, v1")
    a.e("v_lshl_add_u32 v6, v7, 4, v6")
    a.e("v_lshl_add_u32 v7, v15, 8, v6")
    a.e("s_mul_i32 s26, s46, 36864")
    a.e(f"s_add_u32 s26, s26, {WS_O}")
    a.e("s_lshl_b32 s19, s40, 1")
    a.e("s_add_u32 s19, s19, s23")
    a.e("s_lshl_b32 s20, s19, 9")
    a.e("s_add_u32 s20, s20, s26")
    a.vmem(f"buffer_store_dwordx4 {v(P0,4)}, v7, s[36:39], s20 offen {SC}")
    a.e("s_lshr_b32 s20, s19, 2")
    a.e("s_lshl_b32 s20, s20, 8")
    a.e("s_and_b32 s21, s19, 3")
    a.e("s_lshl_b32 s21, s21, 2")
    a.e("s_add_u32 s20, s20, s21")
    a.e("s_add_u32 s20, s20, s26")
    a.e("s_add_u32 s20, s20, 16384")
    a.e("s_cmp_eq_u32 s23, 0")
    a.e("s_cbranch_scc1 L_ev")
    a.e(f"v_mov_b32 v{P0+4}, v{P0+5}")
    a.label("L_ev")
    setexec(a, 0xffffffff)
    a.vmem(f"buffer_store_dword v{P0+4}, v6, s[36:39], s20 offen {SC}")
    a.e("s_mov_b64 exec, -1")
    a.e("s_load_dwordx2 s[4:5], s[0:1], 0")
    a.e("s_load_dwordx2 s[8:9], s[0:1], 80")
    a.e("s_mul_i32 s19, s56, 28")
    a.e("s_sub_u32 s19, s2, s19")
    a.e("s_mul_i32 s21, s19, 5")
    a.e("s_lshl_b32 s22, s19, 2")
    a.e("s_add_u32 s22, s22, 16")
    a.e("s_cmp_lt_u32 s19, 16")
    a.e("s_cselect_b32 s19, s21, s22")
    a.e("s_cselect_b32 s43, 5, 4")
    a.e("s_cmp_ge_u32 s2, 252")
    a.e("s_cselect_b32 s43, 0, s43")
    a.e("s_add_u32 s21, s19, s18")
    OF, ACC, WF = 16, 88, 104
    XE, GE = 136, 144
    a.e("s_min_u32 s21, s21, 127")
    a.e("v_and_b32 v2, 15, v0")
    a.e("v_lshrrev_b32 v3, 4, v0")
    a.e("s_lshl_b32 s40, s21, 4")
    a.e("v_add_u32 v4, s40, v2")
    a.e("v_mul_u32_u24 v5, 1152, v4")
    a.e("v_lshl_add_u32 v5, v3, 3, v5")
    a.e("s_waitcnt lgkmcnt(0)")
    srd(a, 24, 4, SZ)
    srd(a, 32, 8, SZ)
    for mt in range(4):
        a.vmem(f"buffer_load_dwordx2 {v(XE+2*mt,2)}, v5, s[24:27], s57 offen offset:{32*mt}", "X")
    a.e("s_lshl_b32 s19, s56, 6")
    a.e("v_add_u32 v6, s19, v0")
    a.e("v_lshrrev_b32 v7, 2, v6")
    a.e("v_add_u32 v7, 224, v7")
    a.e("v_subrev_u32 v8, 128, v6")
    a.e("v_lshrrev_b32 v8, 1, v8")
    a.e("v_cmp_gt_u32 vcc, 128, v6")
    a.e("s_lshr_b32 s19, s40, 9")
    a.e("s_bfe_u32 s20, s40, 0x20007")
    a.e("s_lshl_b32 s20, s20, 3")
    a.e("s_add_u32 s19, s19, s20")
    a.e("s_add_u32 s19, s19, 196")
    a.e("v_cndmask_b32 v6, v8, v7, vcc")
    a.e("v_mov_b32 v7, s19")
    a.e("s_mov_b32 s44, 0xaaaaaaaa")
    a.e("s_mov_b32 s45, 0xaaaaaaaa")
    a.e("v_cndmask_b32 v6, v6, v7, s[44:45]")
    a.e("s_waitcnt vmcnt(4)")
    a.e("s_barrier")
    st("ost")
    a.e("s_cmp_lg_u32 s18, 7")
    a.e("s_cbranch_scc1 L_nf4")
    flag_write(a, 3, 8); a.vm.pop()
    a.label("L_nf4")
    a.e("s_cmp_ge_u32 s18, s43")
    a.e("s_cbranch_scc1 L_end")
    flag_wait(a, 2, 6, 8)
    a.e("v_lshrrev_b32 v6, 1, v0")
    a.e("v_lshlrev_b32 v6, 12, v6")
    a.e("v_and_b32 v8, 1, v0")
    a.e("v_lshl_add_u32 v6, v8, 4, v6")
    a.e("s_lshl_b32 s45, s56, 18")
    a.e("s_lshl_b32 s46, s21, 5")
    a.e("s_add_u32 s45, s45, s46")
    a.e(f"s_add_u32 s45, s45, {WS_Z}")
    a.e("s_lshl_b32 s44, s18, 11")
    for q in range(2):
        a.e(f"s_add_u32 m0, s44, {q*1024}")
        a.e("s_nop 0")
        a.vmem(f"buffer_load_dwordx4 v6, s[36:39], s45 offen {SC} lds", "X")
        a.e(f"s_add_u32 s45, s45, {32*4096}")
    a.e("v_lshlrev_b32 v6, 2, v4")
    a.e(f"s_mov_b32 s45, {WS_G}")
    a.vmem(f"buffer_load_dword v{GE}, v6, s[36:39], s45 offen {SC}", "X")
    a.e("v_bfe_u32 v6, v0, 2, 2")
    a.e("v_and_b32 v11, 3, v0")
    a.e("v_lshrrev_b32 v8, 1, v3")
    a.e("v_mul_u32_u24 v8, 20, v8")
    a.e("v_and_b32 v9, 1, v3")
    a.e("v_lshl_add_u32 v8, v9, 2, v8")
    a.e("v_add_u32 v8, v8, v6")
    a.e("v_bfe_u32 v9, v8, 1, 2")
    a.e("v_lshlrev_b32 v8, 7, v8")
    a.e("v_lshl_add_u32 v8, v11, 3, v8")
    a.e(f"v_add_u32 v8, {L_WO}, v8")
    MA = 148
    for mt in range(4):
        a.e(f"v_xor_b32 v10, {mt}, v9")
        a.e(f"v_lshl_add_u32 v{MA+mt}, v10, 5, v8")
    a.e("v_mul_u32_u24 v8, 72, v3")
    a.e("v_add3_u32 v8, v8, v6, 16")
    a.e("v_bfe_u32 v9, v8, 1, 2")
    a.e("v_lshlrev_b32 v8, 7, v8")
    a.e("v_lshl_add_u32 v8, v11, 3, v8")
    a.e(f"v_add_u32 v8, {L_WO}, v8")
    TA_ = 152
    for mt in range(4):
        a.e(f"v_xor_b32 v10, {mt}, v9")
        a.e(f"v_lshl_add_u32 v{TA_+mt}, v10, 5, v8")
    a.e("v_lshl_add_u32 v8, v3, 2, v6")
    a.e("v_lshlrev_b32 v8, 5, v8")
    a.e("v_lshl_add_u32 v8, v11, 3, v8")
    a.e("v_add_u32 v8, s44, v8")
    BP, ZE, T = 156, 172, 180
    a.wait_vm(None)
    for mt in range(4):
        a.lds(f"ds_read_b64_tr_b16 {v(ZE+2*mt,2)}, v8 offset:{512*mt}", "Z")
    a.e(f"v_sub_f32 v9, 1.0, v{GE}")
    rnd(a, 9, 9)
    a.e("s_mov_b32 s42, 0xffff0000")
    a.wait_lds("Z")
    for mt in range(4):
        B = BP + 4*mt
        for i in range(4):
            op = "v_lshlrev_b32 v%d, 16, v%d" if i % 2 == 0 else "v_and_b32 v%d, s42, v%d"
            a.e(op % (B+i, XE+2*mt+i//2))
            a.e(op % (T+i, ZE+2*mt+i//2))
        for i in range(4): a.e(f"v_mul_f32 v{B+i}, v{B+i}, v{T+i}")
        for i in range(4): rnd(a, B+i, B+i)
        for i in range(4): a.e(f"v_mul_f32 v{B+i}, v{B+i}, v9")
        for i in range(4): rnd(a, B+i, B+i)
    def rd(ks):
        b = WF + 16 * (ks % 2)
        for mt in range(4):
            for hf in range(2):
                if ks < 16:
                    kk = ks if ks < 12 else ks - 12
                    ar = MA + (mt ^ (2 * (ks & 1))); off = (36*kk + 8*hf) * 128
                else:
                    ar = TA_ + (mt ^ (2 * hf)); off = (288*(ks-16) + 36*hf) * 128
                a.lds(f"ds_read_b64_tr_b16 {v(b+4*mt+2*hf,2)}, v{ar} offset:{off}", f"F{ks}")
    rd(0)
    a.e("s_lshr_b32 s19, s21, 3")
    a.e("s_lshl_b32 s19, s19, 4")
    a.e("v_add_u32 v6, s19, v2")
    flag_wait(a, 3, 6, 10)
    st("f4")
    a.e("v_lshlrev_b32 v7, 4, v0")
    a.e("s_mul_i32 s22, s21, 18432")
    a.e(f"s_add_u32 s22, s22, {WS_O}")
    for ks in range(18):
        a.vmem(f"buffer_load_dwordx4 {v(OF+4*ks,4)}, v7, s[36:39], s22 offen offset:{1024*(ks%4)} {SC}", f"O{ks}")
        if ks % 4 == 3: a.e("s_add_u32 s22, s22, 4096")
    for ks in range(18):
        if ks + 1 == 12:
            for mt in range(4): a.e(f"v_add_u32 v{MA+mt}, {12*36*128}, v{MA+mt}")
        if ks + 1 < 18: rd(ks + 1)
        a.wait_vm(f"O{ks}")
        a.wait_lds(f"F{ks}")
        b = WF + 16 * (ks % 2)
        for mt in range(4):
            acc = v(ACC + 4*mt, 4)
            a.e(f"v_mfma_f32_16x16x32_bf16 {acc}, {v(b+4*mt,4)}, {v(OF+4*ks,4)}, {acc if ks else 0}")
    a.e("s_nop 4")
    for mt in range(4):
        ac = ACC + 4*mt
        for i in range(4): rnd(a, ac+i, ac+i)
        for i in range(4): a.e(f"v_mul_f32 v{ac+i}, v{ac+i}, v{GE}")
        for i in range(4): rnd(a, ac+i, ac+i)
        for i in range(4): a.e(f"v_add_f32 v{ac+i}, v{ac+i}, v{BP+4*mt+i}")
        a.e(f"v_cvt_pk_bf16_f32 v{ac}, v{ac}, v{ac+1}")
        a.e(f"v_cvt_pk_bf16_f32 v{ac+1}, v{ac+2}, v{ac+3}")
        a.vmem(f"buffer_store_dwordx2 {v(ac,2)}, v5, s[32:35], s57 offen offset:{32*mt}")
    st("end"); st.real("rt1"); st.flush(16, 18, 0)
    a.label("L_end")
    a.e("s_endpgm")
    a.label("L_fallback")
    a.reset_counters()
    a.e(f"v_cndmask_b32 v{Q2}, v{Q2}, 0, s[42:43]")
    a.e(f"v_mov_b32 v{NM}, {NEGINF}")
    for t in range(8, -1, -1):
        for f in rdK(t): f()
        if t in (0, 8):
            for f in mask_ops(SS[0], t == 8): f()
        if t < 8: kill(t, "sm")
        a.wait_lds(None)
        a.e("s_nop 1")
        qk1(t); qk2(t)
        a.e("s_nop 7"); a.e("s_nop 3")
        S = SS[t % 2]
        for i in range(8): a.e(f"v_max3_f32 v{NM}, v{S+2*i}, v{S+2*i+1}, v{NM}")
    for f in rdK(8) + rdK(7): f()
    a.e(f"v_cndmask_b32 v{Q2}, v{Q2}, 0, s[42:43]")
    a.e(f"v_mov_b32 v7, v{NM}")
    a.e("s_nop 1")
    a.e(f"v_permlane32_swap_b32 v{NM}, v7")
    a.e("s_nop 1")
    a.e(f"v_max_f32 v{NM}, v{NM}, v7")
    a.e(f"v_sub_f32 v{NM}, 0, v{NM}")
    for f in mask_ops(SS[0], True): f()
    a.wait_lds("K8")
    a.e("s_nop 1")
    qk1(8)
    softmax_pass(True, "sb")
    a.e("s_branch L_fin")

def main(path):
    a = Asm()
    hdr = open(f"cdna_kernels/{NAME}.s.ref").read().split("\n")
    head = [l for l in hdr if l.startswith(";") and "@launch" not in l and "Override" not in l and "grid=ceil" not in l]
    for l in head: a.raw(l)
    a.raw(f"; @launch grid=(256,1,1) block=(512,1,1) lds={LDS_TOTAL}")
    a.raw('.amdgcn_target "amdgcn-amd-amdhsa--gfx950"')
    a.raw(".text")
    gen(a)
    a.raw('.section .rodata,"a"')
    a.raw(kernel_desc(NAME + "_kernel", 216))
    open(path, "w").write(a.text())

if __name__ == "__main__":
    if len(sys.argv) > 2 and sys.argv[2] == "stamps":
        asmlib.STAMP_ON = True
        asmlib.STAMP_FILTER = list((sys.argv[3] if len(sys.argv) > 3 else "b8,cvk,f1,cv1,cv3,conv,f2,staged,soft,ost,f4,end").split(","))
    main(sys.argv[1] if len(sys.argv) > 1 else f"fused.s")
```

```python
import sys, struct
from asmlib import *
import asmlib

NAME = "gated_mix__sliding_block__ssm_conv_h3__prompt"
SZ = 2048 * 576 * 2
WS_QKV = 0
QKV_BYTES = 432 * 16384
WS_U = QKV_BYTES
WS_O = WS_U + SZ
WS_Z = WS_O + SZ
WS_G = WS_Z + SZ
WS_F = WS_G + 8192
WS_E = WS_F + 32768
WS_TOTAL = WS_E + 128
def f32(x): return "0x%08x" % struct.unpack("<I", struct.pack("<f", x))[0]
QSCALE = 18 ** -0.5 * 1.4426950408889634
NEGINF = "0xff800000"
SC = "sc1"
SPIN_MAX = 200000

def rnd(a, dst, src):
    a.e(f"v_cvt_pk_bf16_f32 v{dst}, 0, v{src}")
def lane_mask(fn):
    m = 0
    for l in range(64):
        if fn(l): m |= 1 << l
    return m

L_U = 0
UP = 288
L_PK = 9728
L_CNT = 22016
L_RING = 24576
L_CVK = L_RING + 32768
PL = 3072
L_KP = L_RING
L_ONE = L_KP + 9 * PL
L_WO = L_ONE + PL
L_VP = 163840 - 9 * PL
LDS_TOTAL = 163840
assert L_WO + 73728 <= L_VP
CV_USZ = 1216

TAG = 88
ROLE, CVK, CVU, GCNT, ROUNDS, RHO, GTGT, PBASE = 90, 91, 92, 93, 94, 95, 96, 98

def prep_task(a, T_s):
    a.e(f"s_mul_i32 s40, s{T_s}, 3641")
    a.e("s_lshr_b32 s40, s40, 16")
    a.e("s_mul_i32 s41, s40, 18")
    a.e(f"s_sub_u32 s41, s{T_s}, s41")

PB = 200
def prep_setup(a):
    a.e(f"v_lshrrev_b32 v{PB+8}, 2, v0")
    a.e(f"v_and_b32 v{PB+9}, 3, v0")
    a.e(f"v_mul_u32_u24 v{PB}, 1152, v{PB+8}")
    a.e(f"v_lshlrev_b32 v{PB+1}, 1, v{PB}")
    a.e(f"v_lshl_add_u32 v{PB}, v{PB+9}, 4, v{PB}")
    a.e(f"v_lshl_add_u32 v{PB+1}, v{PB+9}, 4, v{PB+1}")
    a.e(f"v_lshlrev_b32 v{PB+2}, 4, v0")

def prep_issue(a, R):
    a.e(f"s_mul_i32 s22, s40, {32*1152}")
    a.e("s_lshl_b32 s23, s41, 6")
    a.e("s_add_u32 s22, s22, s23")
    a.e(f"v_add_u32 v{PB+3}, s22, v{PB}")
    a.e(f"v_subrev_u32 v{PB+3}, {3*1152}, v{PB+3}")
    for i in range(2):
        a.e(f"s_add_u32 m0, s{PBASE}, {256+1024*i}")
        a.e(f"s_add_u32 s23, s22, {16*1152*i}")
        a.e(f"buffer_load_dwordx4 v{PB}, s[24:27], s23 offen lds")
    a.e(f"buffer_load_dwordx4 {v(R,4)}, v{PB+1}, s[28:31], s22 offen")
    a.e(f"buffer_load_dwordx4 {v(R+4,4)}, v{PB+1}, s[28:31], s22 offen offset:1152")
    a.e(f"s_add_u32 m0, s{PBASE}, 64")
    setexec(a, 0xfff)
    a.e(f"buffer_load_dwordx4 v{PB+3}, s[24:27], 0 offen lds")
    a.e(f"s_add_u32 m0, s{PBASE}, 2304")
    a.e("s_mov_b32 exec_lo, 0xffff")
    a.e("s_lshl_b32 s23, s41, 8")
    a.e(f"buffer_load_dwordx4 v{PB+2}, s[32:35], s23 offen lds")
    a.e("s_mov_b64 exec, -1")

def prep_compute(a, VR, T):
    KR, SW = T + 52, T + 72
    UK, UW, UV, TA, OUT = T, T+20, T+36, T+44, T+88
    A0, A1, A2, A3, A4 = PB, PB+1, PB+2, PB+3, PB+4
    a.e(f"v_lshlrev_b32 v{A0}, 7, v{PB+8}")
    a.e(f"v_lshl_add_u32 v{A0}, v{PB+9}, 4, v{A0}")
    a.e(f"v_add_u32 v{A0}, s{PBASE}, v{A0}")
    a.e(f"v_lshl_add_u32 v{A1}, v{PB+9}, 6, s{PBASE}")
    for j in range(5): a.lds(f"ds_read_b128 {v(KR+4*j,4)}, v{A0} offset:{64+64*j}", "PK")
    for i in range(4): a.lds(f"ds_read_b128 {v(SW+4*i,4)}, v{A1} offset:{2304+16*i}", "PW")
    a.e("s_mov_b32 s42, 0xffff0000")
    a.e(f"v_lshrrev_b32 v{A2}, 3, v0")
    a.e(f"v_mul_u32_u24 v{A2}, {UP}, v{A2}")
    a.e(f"v_and_b32 v{A3}, 1, v{PB+8}")
    a.e(f"v_lshl_add_u32 v{A2}, v{A3}, 2, v{A2}")
    a.e(f"v_add_u32 v{A2}, v{A2}, v{A1}")
    a.e(f"v_add_u32 v{A2}, 2560, v{A2}")
    a.e(f"v_bfe_u32 v{A3}, v0, 2, 2")
    a.e(f"v_sub_u32 v{A3}, 3, v{A3}")
    a.e(f"v_mul_u32_u24 v{A3}, {UP}, v{A3}")
    a.e(f"v_lshrrev_b32 v{A4}, 4, v0")
    a.e(f"v_lshl_add_u32 v{A3}, v{A4}, 5, v{A3}")
    a.e(f"v_lshl_add_u32 v{A3}, v{PB+9}, 3, v{A3}")
    a.e(f"v_add_u32 v{A3}, s{PBASE}, v{A3}")
    a.e(f"v_lshlrev_b32 v{A4}, 12, v{PB+8}")
    a.e(f"v_lshl_add_u32 v{A4}, v{PB+9}, 4, v{A4}")
    a.e("s_lshl_b32 s22, s41, 17")
    a.e("s_lshl_b32 s23, s40, 6")
    a.e("s_add_u32 s22, s22, s23")
    a.e(f"s_add_u32 s22, s22, {WS_U}")
    a.e(f"s_add_u32 s23, s22, {16*4096}")
    for half in range(2):
        for r in range(2):
            for qq in range(2):
                a.e(f"v_lshlrev_b32 v{UV+4*r+2*qq}, 16, v{VR+4*r+2*half+qq}")
                a.e(f"v_and_b32 v{UV+4*r+2*qq+1}, s42, v{VR+4*r+2*half+qq}")
        a.wait_lds("PK")
        for r in range(5):
            for qq in range(2):
                a.e(f"v_lshlrev_b32 v{UK+4*r+2*qq}, 16, v{KR+4*r+2*half+qq}")
                a.e(f"v_and_b32 v{UK+4*r+2*qq+1}, s42, v{KR+4*r+2*half+qq}")
        a.wait_lds("PW")
        for c in range(4):
            for t in range(2):
                src = SW + (4*half+c)*2 + t
                a.e(f"v_lshlrev_b32 v{UW+4*c+2*t}, 16, v{src}")
                a.e(f"v_and_b32 v{UW+4*c+2*t+1}, s42, v{src}")
        RC = [(r, c) for r in range(2) for c in range(4)]
        for r, c in RC: a.e(f"v_mul_f32 v{TA+4*r+c}, v{UK+4*r+c}, v{UW+4*c+3}")
        for t in (1, 2, 3):
            for r, c in RC: a.e(f"v_fmac_f32 v{TA+4*r+c}, v{UK+4*(r+t)+c}, v{UW+4*c+3-t}")
        for r, c in RC: rnd(a, TA+4*r+c, TA+4*r+c)
        for r, c in RC: a.e(f"v_mul_f32 v{TA+4*r+c}, v{TA+4*r+c}, v{UV+4*r+c}")
        for c in range(4):
            a.e(f"v_cvt_pk_bf16_f32 v{OUT+4*half+c}, v{TA+c}, v{TA+4+c}")
        for c in range(4*half, 4*half+4, 2):
            a.lds(f"ds_write2_b32 v{A2}, v{OUT+c}, v{OUT+c+1} offset0:{2*c} offset1:{2*c+2}")
    for d in range(2):
        a.lds(f"ds_read_b64_tr_b16 {v(T+4*d,2)}, v{A3} offset:{2560+4*UP+128*d}", f"PT{d}")
        a.lds(f"ds_read_b64_tr_b16 {v(T+4*d+2,2)}, v{A3} offset:{2560+128*d}", f"PT{d}")
    for d in range(2):
        a.wait_lds(f"PT{d}")
        a.e(f"buffer_store_dwordx4 {v(T+4*d,4)}, v{A4}, s[36:39], s{22+d} offen {SC}")

def tag_fetch_to_lds(a, T):
    a.e("s_load_dwordx2 s[20:21], s[0:1], 88")
    a.e(f"v_mov_b32 v{T}, 0")
    a.e("s_waitcnt lgkmcnt(0)"); a.lgkm = []
    srd(a, 24, 20, 256)
    l = a.newlabel("tagspin"); d = a.newlabel("tagdone")
    a.e(f"s_mov_b32 s97, {SPIN_MAX}")
    a.label(l)
    a.e(f"buffer_load_dwordx2 {v(T+2,2)}, v{T}, s[24:27], 0 offen sc0 sc1")
    a.e("s_sub_u32 s97, s97, 1")
    a.e(f"s_cbranch_scc1 {d}")
    a.e("s_waitcnt vmcnt(0)"); a.vm = []
    a.e(f"v_cmp_gt_i32 vcc, 0, v{T+3}")
    a.e(f"s_cbranch_vccnz {d}")
    a.e("s_sleep 8")
    a.e(f"s_branch {l}")
    a.label(d)
    a.e("s_waitcnt vmcnt(0)")
    a.e(f"v_mov_b32 v{T}, {L_CNT+192}")
    a.lds(f"ds_write_b64 v{T}, {v(T+2,2)}")

def tag_from_lds(a, T):
    a.e(f"v_mov_b32 v{T}, {L_CNT+192}")
    a.lds(f"ds_read_b64 {v(T+2,2)}, v{T}", "TG")
    a.wait_lds("TG")
    a.e(f"v_readfirstlane_b32 s{TAG}, v{T+2}")
    a.e(f"v_readfirstlane_b32 s{TAG+1}, v{T+3}")

def flag_write(a, stage, T):
    a.e("s_lshl_b32 s22, s2, 7")
    a.e(f"s_add_u32 s22, s22, {WS_F + 8*stage}")
    a.e(f"v_mov_b32 v{T}, s22")
    a.e(f"v_mov_b32 v{T+2}, s{TAG}")
    a.e(f"v_mov_b32 v{T+3}, s{TAG+1}")
    a.e("s_mov_b64 exec, 1")
    a.vmem(f"buffer_store_dwordx2 {v(T+2,2)}, v{T}, s[36:39], 0 offen sc0 sc1", "FL")
    a.e("s_mov_b64 exec, -1")

def flag_wait(a, stage, W, T, sleep=2):
    a.e(f"v_lshlrev_b32 v{W}, 7, v{W}")
    a.e(f"s_mov_b32 s22, {WS_F + 8*stage}")
    l = a.newlabel("fspin"); d = a.newlabel("fdone")
    a.e(f"s_mov_b32 s97, {SPIN_MAX}")
    a.label(l)
    a.e(f"buffer_load_dwordx2 {v(T,2)}, v{W}, s[36:39], s22 offen sc0 sc1")
    a.e("s_waitcnt vmcnt(0)"); a.vm = []
    a.e(f"v_cmp_ne_u64 vcc, s[{TAG}:{TAG+1}], {v(T,2)}")
    a.e(f"s_cbranch_vccz {d}")
    a.e(f"s_sleep {sleep}")
    a.e("s_sub_u32 s97, s97, 1")
    a.e(f"s_cbranch_scc0 {l}")
    a.label(d)

def group_barrier(a, T):
    a.e(f"v_mov_b32 v{T}, s{GCNT}")
    a.e(f"v_mov_b32 v{T+1}, 1")
    a.e(f"s_add_u32 s{GTGT}, s{GTGT}, 4")
    a.wait_lds(None)
    a.e("s_mov_b64 exec, 1")
    a.e(f"ds_add_u32 v{T}, v{T+1}")
    a.e("s_mov_b64 exec, -1")
    lds_spin(a, T, f"s{GTGT}")

def lds_spin(a, T, target):
    l = a.newlabel("gb"); d = a.newlabel("gbd")
    a.e(f"s_mov_b32 s97, {SPIN_MAX*8}")
    a.label(l)
    a.e(f"ds_read_b32 v{T+1}, v{T}")
    a.e("s_sub_u32 s97, s97, 1")
    a.e(f"s_cbranch_scc1 {d}")
    a.e("s_waitcnt lgkmcnt(0)")
    a.e(f"v_readfirstlane_b32 s22, v{T+1}")
    a.e(f"s_cmp_ge_u32 s22, {target}")
    a.e(f"s_cbranch_scc1 {d}")
    a.e("s_sleep 1")
    a.e(f"s_branch {l}")
    a.label(d)
    a.e("s_waitcnt lgkmcnt(0)")

L_Q = L_RING + 3 * 32768

def convk_issue(a, CH_s, RH, R, tag):
    a.e(f"s_lshl_b32 s20, s{CH_s}, 12")
    a.e("s_add_u32 s24, s14, s20")
    a.e("s_addc_u32 s25, s15, 0")
    a.e("s_mov_b32 s26, 4096")
    a.e("s_mov_b32 s27, 0x00020000")
    a.e(f"s_add_u32 s21, s{RH}, 1")
    a.e("s_lshr_b32 s21, s21, 1")
    a.e("s_lshl_b32 s21, s21, 2")
    a.e("v_lshlrev_b32 v4, 4, v0")
    a.e("v_subrev_u32 v4, s21, v4")
    a.e("v_add_u32 v5, 1024, v4")
    a.e("v_add_u32 v6, 16, v4")
    a.vmem(f"buffer_load_dwordx4 {v(R,4)}, v4, s[24:27], 0 offen", tag)
    for i in range(3): a.vmem(f"buffer_load_dwordx4 {v(R+6+6*i,4)}, v5, s[24:27], 0 offen offset:{1024*i}", tag)
    for i in range(4): a.vmem(f"buffer_load_dword v{R+6*i+4}, v6, s[24:27], 0 offen offset:{1024*i}", tag)
    a.e("v_lshlrev_b32 v4, 1, v0")
    a.e(f"s_lshl_b32 s21, s{RH}, 1")
    a.e("v_subrev_u32 v4, s21, v4")
    a.e("v_subrev_u32 v4, 32, v4")
    a.vmem(f"buffer_load_ushort v{R+24}, v4, s[24:27], 0 offen", tag)

def convk_write(a, RH, KD, koff, R, tag):
    a.e(f"s_and_b32 s21, s{RH}, 1")
    a.e("s_lshl_b32 s21, s21, 4")
    a.e(f"v_lshl_add_u32 v4, v0, 4, s{KD}")
    a.e(f"v_lshl_add_u32 v5, v0, 1, s{KD}")
    a.wait_vm(tag)
    for i in range(4):
        for j in range(4):
            a.e(f"v_alignbit_b32 v{R+6*i+j}, v{R+6*i+j+1}, v{R+6*i+j}, s21")
        a.lds(f"ds_write_b128 v4, {v(R+6*i,4)} offset:{koff+32+1024*i}")
    setexec(a, 0xffffff)
    a.lds(f"ds_write_b16 v5, v{R+24} offset:{koff}")
    a.e("s_mov_b64 exec, -1")

def convu_wait(a):
    a.e("s_lshr_b32 s21, s3, 5")
    a.e("v_mul_u32_u24 v8, 18, v0")
    a.e("v_add_u32 v8, s21, v8")
    a.e("v_and_b32 v9, 31, v8")
    a.e("v_add_u32 v9, 224, v9")
    a.e("v_cmp_gt_u32 vcc, 256, v8")
    a.e("v_subrev_u32 v8, 256, v8")
    a.e("v_lshrrev_b32 v8, 2, v8")
    a.e("v_cndmask_b32 v8, v8, v9, vcc")
    flag_wait(a, 0, 8, 10, 6)

def convu_issue(a, CH_s, UD, rhos, tag):
    a.e("v_sub_u32 v4, 63, v0")
    a.e("v_lshlrev_b32 v4, 6, v4")
    a.e(f"s_lshl_b32 s21, s{CH_s}, 12")
    a.e(f"s_add_u32 s21, s21, {WS_U}")
    a.e(f"s_mov_b32 s23, s{UD}")
    if rhos[0] == 's':
        a.e(f"s_lshl_b32 s20, s{rhos[1]}, 4")
        a.e("s_add_u32 s21, s21, s20")
        a.e(f"s_mul_i32 s20, s{rhos[1]}, {CV_USZ}")
        a.e("s_add_u32 s23, s23, s20")
        rhos = [0]
    a.e("v_lshl_add_u32 v5, v0, 1, s23")
    a.e("v_mov_b32 v6, 0")
    for r in rhos:
        a.e(f"s_add_u32 m0, s23, {CV_USZ*r}")
        a.lds(f"ds_write_b16 v5, v6 offset:{1024+CV_USZ*r}")
        a.vmem(f"buffer_load_dwordx4 v4, s[36:39], s21 offen {SC} lds", tag)
        a.e("s_add_u32 s21, s21, 16")

def lds_add(a, T, off):
    a.e("s_mov_b64 exec, 1")
    a.lds(f"ds_add_u32 v{T}, v{T+1} offset:{off}")
    a.e("s_mov_b64 exec, -1")
PW2 = 4864
VD = 180
FULL, FREE = 64, 100
F1_AT = 2

def gen(a):
    K = NAME + "_kernel"
    kernel_head(a, K)
    a.e("s_cmp_ge_u32 s2, 256")
    a.e("s_cbranch_scc1 L_end")
    st = NStamps(a); st.real("rt0"); st("t0")
    a.e("s_load_dwordx4 s[4:7], s[0:1], 0")
    a.e("s_load_dwordx4 s[8:11], s[0:1], 32")
    a.e("s_load_dwordx4 s[12:15], s[0:1], 48")
    a.e("s_load_dwordx2 s[16:17], s[0:1], 96")
    a.e("v_lshrrev_b32 v1, 6, v0")
    a.e("v_and_b32 v0, 63, v0")
    a.e("v_readfirstlane_b32 s18, v1")
    a.e("v_lshlrev_b32 v12, 2, v0")
    a.e("v_mov_b32 v13, 0")
    a.e(f"ds_write_b32 v12, v13 offset:{L_CNT}")
    a.e("s_and_b32 s43, s2, 3")
    a.e("s_lshl_b32 s43, s43, 2")
    a.e("s_bfe_u32 s19, s2, 0x20003")
    a.e("s_add_u32 s43, s43, s19")
    a.e("s_bfe_u32 s44, s2, 0x10002")
    a.e("s_mul_i32 s44, s44, 7")
    a.e("s_lshr_b32 s45, s2, 5")
    a.e("s_add_u32 s44, s44, s45")
    RB, CT = 43, 44
    a.e(f"s_and_b32 s{RHO}, s18, 3")
    a.e("s_lshr_b32 s19, s18, 2")
    a.e(f"s_lshl_b32 s{CVK}, s18, 13")
    a.e(f"s_add_u32 s{CVK}, s{CVK}, {L_CVK}")
    a.e(f"s_mul_i32 s{CVU}, s19, {4*CV_USZ}")
    a.e(f"s_lshl_b32 s{GCNT}, s19, 2")
    a.e(f"s_add_u32 s{GCNT}, s{GCNT}, {L_CNT}")
    a.e(f"s_mov_b32 s{GTGT}, 0")
    a.e(f"s_mov_b32 s{ROLE}, s19")
    a.e(f"s_mov_b32 s{ROUNDS}, 1")
    a.e("s_lshl_b32 s3, s2, 1")
    a.e("s_add_u32 s3, s3, s19")
    a.e("s_add_u32 s3, s3, 128")
    a.e("s_lshl_b32 s19, s18, 5")
    a.e("s_and_b32 s20, s2, 31")
    a.e("s_add_u32 s19, s19, s20")
    a.e("s_lshl_b32 s20, s2, 2")
    a.e("s_add_u32 s20, s20, s18")
    a.e("s_add_u32 s20, s20, 252")
    a.e("s_cmp_ge_u32 s18, 4")
    a.e("s_cselect_b32 s20, s20, -1")
    a.e(f"s_mul_i32 s21, s{RHO}, {PW2}")
    a.e(f"s_mul_i32 s{PBASE}, s18, {PW2}")
    a.e(f"s_add_u32 s{PBASE}, s{PBASE}, {L_RING}")
    a.e("s_cmp_eq_u32 s45, 7")
    a.e("s_cselect_b32 s99, s19, s20")
    a.e(f"s_cselect_b32 s{PBASE}, s{PBASE}, s21")
    prep_setup(a)
    prep_task(a, 99)
    a.e("s_waitcnt lgkmcnt(0)")
    a.e("s_cmp_eq_u32 s99, -1")
    a.e("s_cbranch_scc1 L_nopi")
    srd(a, 24, 8, SZ); srd(a, 28, 10, SZ); srd(a, 32, 12, 576*8)
    prep_issue(a, VD)
    a.label("L_nopi")
    a.e("s_barrier")
    a.e("s_cmp_eq_u32 s45, 7")
    a.e("s_cbranch_scc1 L_spare")
    a.e("s_cmp_ge_u32 s18, 4")
    a.e("s_cbranch_scc1 L_mma")
    n0 = st.n
    a.label("L_ld")
    a.e("s_cmp_lg_u32 s2, 223")
    a.e("s_cbranch_scc1 L_nomk")
    a.e("s_cmp_lg_u32 s18, 3")
    a.e("s_cbranch_scc1 L_nomk")
    a.e("s_load_dwordx2 s[20:21], s[0:1], 88")
    a.e("s_waitcnt lgkmcnt(0)")
    srd(a, 24, 20, 256)
    srd(a, 36, 16, WS_TOTAL)
    a.e(f"v_mov_b32 v2, {WS_E}")
    a.e("v_mov_b32 v3, 0")
    a.e("buffer_load_dwordx2 v[4:5], v2, s[36:39], 0 offen sc0 sc1")
    a.e("s_waitcnt vmcnt(0)")
    a.e("v_add_co_u32 v4, vcc, 1, v4")
    a.e("s_nop 1")
    a.e("v_addc_co_u32 v5, vcc, 0, v5, vcc")
    a.e("v_or_b32 v5, 0x80000000, v5")
    a.e("s_mov_b64 exec, 1")
    a.e("buffer_store_dwordx2 v[4:5], v3, s[24:27], 0 offen sc0 sc1")
    a.e("buffer_store_dwordx2 v[4:5], v2, s[36:39], 0 offen sc0 sc1")
    a.e("s_mov_b64 exec, -1")
    a.label("L_nomk")
    a.e("s_setprio 3")
    a.e("v_lshrrev_b32 v4, 4, v0")
    a.e("v_lshlrev_b32 v6, 1, v4")
    a.e("v_and_b32 v7, 15, v0")
    a.e("v_xor_b32 v6, v6, v7")
    a.e("v_mul_u32_u24 v5, 3456, v4")
    a.e("v_lshl_add_u32 v2, v6, 4, v5")
    a.e("v_xor_b32 v6, 8, v6")
    a.e("v_lshl_add_u32 v3, v6, 4, v5")
    a.e("v_lshrrev_b32 v5, 3, v0")
    a.e("v_mul_u32_u24 v6, 2304, v5")
    a.e("v_lshrrev_b32 v5, 1, v5")
    a.e("v_and_b32 v7, 7, v0")
    a.e("v_xor_b32 v5, v5, v7")
    a.e("v_lshl_add_u32 v8, v5, 4, v6")
    a.e("v_xor_b32 v5, 4, v5")
    a.e("v_lshl_add_u32 v9, v5, 4, v6")
    a.e(f"v_add_u32 v9, {8*2304}, v9")
    a.e("s_lshr_b32 s46, s2, 3")
    a.e("s_mul_i32 s19, s46, 57")
    a.e("s_lshr_b32 s19, s19, 9")
    a.e("s_mul_i32 s19, s19, 9")
    a.e("s_sub_u32 s46, s46, s19")
    a.e(f"s_mul_i32 s19, s{RB}, {128*1152}")
    a.e(f"s_lshl_b32 s20, s{CT}, 8")
    a.e("s_add_u32 s48, s4, s19")
    a.e("s_addc_u32 s49, s5, 0")
    a.e(f"s_mov_b32 s50, {128*1152}")
    a.e("s_mov_b32 s51, 0x00020000")
    a.e("s_add_u32 s52, s6, s20")
    a.e("s_addc_u32 s53, s7, 0")
    a.e(f"s_sub_u32 s54, {576*3456}, s20")
    a.e("s_mov_b32 s55, 0x00020000")
    a.e("s_load_dwordx2 s[28:29], s[0:1], 72")
    a.e("v_and_b32 v13, 3, v0")
    a.e("v_bfe_u32 v14, v0, 3, 1")
    a.e("v_lshl_or_b32 v13, v14, 2, v13")
    a.e("v_xor_b32 v13, 4, v13")
    a.e("v_lshlrev_b32 v13, 5, v13")
    a.e("v_lshl_add_u32 v14, v0, 8, v13")
    a.e("v_lshlrev_b32 v15, 1, v0")
    a.e(f"v_mov_b32 v10, {L_CNT}")
    a.e("v_mov_b32 v11, 1")
    srd(a, 36, 16, WS_TOTAL)
    a.e("s_mov_b32 s58, s18")
    a.e("s_branch L_ld_go")
    a.label("L_ld_issue")
    a.e("s_mov_b64 exec, 1")
    a.e("ds_add_rtn_u32 v12, v10, v11 offset:28")
    a.e("s_mov_b64 exec, -1")
    a.e("s_waitcnt lgkmcnt(0)")
    a.e("v_readfirstlane_b32 s58, v12")
    a.e("s_add_u32 s58, s58, 4")
    a.e("s_cmp_gt_u32 s58, 8")
    a.e("s_cbranch_scc1 L_ld_done")
    a.e("s_lshl_b32 s19, s58, 2")
    a.e(f"s_add_u32 s19, s19, {L_CNT+FREE-16}")
    a.e("v_mov_b32 v12, s19")
    lds_spin(a, 12, 4)
    a.label("L_ld_go")
    a.e("s_add_u32 s59, s46, s58")
    a.e("s_sub_u32 s19, s59, 9")
    a.e("s_cmp_ge_u32 s59, 9")
    a.e("s_cselect_b32 s59, s19, s59")
    a.e("s_and_b32 s47, s58, 3")
    a.e("s_lshl_b32 s47, s47, 15")
    a.e(f"s_add_u32 s47, s47, {L_RING}")
    a.e(f"s_mul_i32 s19, s59, {64*3456}")
    a.e("s_lshl_b32 s20, s59, 7")
    a.e(f"v_mov_b32 v12, {L_CNT+24}")
    lds_spin(a, 12, "s58")
    for i in range(16):
        a.e(f"s_add_u32 m0, s47, {1024*i}")
        if i and i % 2 == 0: a.e(f"s_add_u32 s20, s20, {1152 if (i//2) % 2 else 31*1152}")
        else: a.e("s_nop 0")
        a.e(f"buffer_load_dwordx4 v{3 if (i//2) % 2 else 2}, s[52:55], s19 offen lds")
        a.e(f"s_add_u32 m0, s47, {16384+1024*i}")
        a.e(f"s_add_u32 s19, s19, {4*3456}")
        a.e(f"buffer_load_dwordx4 v{8 + i % 2}, s[48:51], s20 offen lds")
    lds_add(a, 10, 24)
    a.e(f"s_cmp_lg_u32 s{CT}, 13")
    a.e("s_cbranch_scc1 L_ld_ng")
    a.e("s_mov_b32 s30, 1152")
    a.e("s_mov_b32 s31, 0x00020000")
    a.e("s_lshl_b32 s20, s59, 7")
    a.e("buffer_load_ushort v16, v15, s[28:31], s20 offen")
    a.e("v_add_u32 v17, s47, v14")
    a.e("s_waitcnt vmcnt(0)")
    a.e("ds_write_b16 v17, v16")
    a.label("L_ld_ng")
    a.e("s_lshl_b32 s19, s58, 2")
    a.e("v_add_u32 v12, s19, v10")
    a.e("s_waitcnt vmcnt(0)")
    a.e("s_mov_b64 exec, 1")
    a.e(f"ds_add_u32 v12, v11 offset:{FULL}")
    a.e("s_mov_b64 exec, -1")
    a.e("s_branch L_ld_issue")
    a.label("L_ld_done")
    a.e("s_setprio 0")
    st("b8")
    a.e("s_cmp_ge_u32 s18, 2")
    a.e("s_cbranch_scc1 L_aux2")
    a.e("s_branch L_cvwait")
    a.label("L_aux2")
    a.reset_counters()
    a.e(f"v_mov_b32 v20, {L_CNT+196}")
    lds_spin(a, 20, "0x80000000")
    tag_from_lds(a, 20)
    a.e("s_and_b32 s46, s18, 1")
    a.e(f"v_mov_b32 v4, {L_CNT+12}")
    lds_spin(a, 4, 4)
    a.e("s_add_u32 s56, s3, s46")
    a.e("s_lshl_b32 s20, s56, 12")
    srd(a, 48, 14, SZ)
    a.e("v_lshlrev_b32 v4, 4, v0")
    KX = 128
    for i in range(4): a.vmem(f"buffer_load_dwordx4 {v(KX+4*i,4)}, v4, s[48:51], s20 offen offset:{1024*i}", "K")
    a.e("v_mov_b32 v3, 1")
    st("m0")
    convu_wait(a)
    st("m2")
    a.e(f"s_mul_i32 s41, s46, {4*CV_USZ}")
    convu_issue(a, 56, 41, [0, 1, 2, 3], "U")
    for i in range(4):
        X = KX + 4*i; R1, R2, R3 = 64+12*i, 68+12*i, 72+12*i
        a.e("v_mov_b32 v6, 0"); a.e("v_mov_b32 v7, 0")
        if i:
            a.e(f"v_readlane_b32 s20, v{X-2}, 63")
            a.e(f"v_readlane_b32 s21, v{X-1}, 63")
            a.e("s_nop 1")
            a.e("v_mov_b32 v6, s20"); a.e("v_mov_b32 v7, s21")
        a.e("s_nop 1")
        a.e(f"v_mov_b32_dpp v6, v{X+2} wave_shr:1 row_mask:0xf bank_mask:0xf")
        a.e(f"v_mov_b32_dpp v7, v{X+3} wave_shr:1 row_mask:0xf bank_mask:0xf")
        a.e(f"v_alignbit_b32 v{R1}, v{X}, v7, 16")
        for j in range(1, 4): a.e(f"v_alignbit_b32 v{R1+j}, v{X+j}, v{X+j-1}, 16")
        a.e(f"v_mov_b32 v{R2}, v7")
        for j in range(1, 4): a.e(f"v_mov_b32 v{R2+j}, v{X+j-1}")
        a.e(f"v_alignbit_b32 v{R3}, v7, v6, 16")
        for j in range(1, 4): a.e(f"v_mov_b32 v{R3+j}, v{R1+j-1}")
    a.e("s_lshl_b32 s21, s46, 2")
    a.e(f"s_add_u32 s21, s21, {L_CNT+FREE+20}")
    a.e("v_mov_b32 v4, s21")
    lds_spin(a, 4, 4)
    st("m5")
    a.e("s_lshl_b32 s41, s46, 15")
    a.e(f"s_add_u32 s41, s41, {L_CVK}")
    a.e("v_lshl_add_u32 v4, v0, 4, s41")
    for i in range(4):
        for (r, R_) in ((0, KX+4*i), (1, 64+12*i), (2, 68+12*i), (3, 72+12*i)):
            a.lds(f"ds_write_b128 v4, {v(R_,4)} offset:{8192*r+32+1024*i}")
    a.e("v_mov_b32 v6, 0"); a.e("v_mov_b32 v7, 0")
    a.e("v_lshl_add_u32 v4, v0, 3, s41")
    setexec(a, 0xf)
    for r in range(4): a.lds(f"ds_write_b64 v4, v[6:7] offset:{8192*r}")
    a.e("s_mov_b64 exec, -1")
    st("m6")
    a.wait_vm(None)
    st("m7"); st("m8")
    a.e("s_lshl_b32 s21, s46, 2")
    a.e(f"s_add_u32 s21, s21, {L_CNT+16}")
    a.e("v_mov_b32 v4, s21")
    a.lds("ds_write_b32 v4, v3")
    a.e("s_setprio 0")
    a.label("L_cvwait")
    st("cvk")
    a.e(f"s_lshl_b32 s21, s{ROLE}, 2")
    a.e(f"s_add_u32 s21, s21, {L_CNT+16}")
    a.e("v_mov_b32 v1, s21")
    lds_spin(a, 1, 1)
    tag_from_lds(a, 8)
    st("f1")
    a.e("s_branch L_conv")
    a.label("L_mma")
    a.reset_counters()
    st.n = n0; st.names = st.names[:n0]
    a.e("s_setprio 1")
    srd(a, 36, 16, WS_TOTAL)
    a.e("s_cmp_eq_u32 s99, -1")
    a.e("s_cbranch_scc1 L_mnp")
    a.e("s_waitcnt vmcnt(0)")
    st("p0")
    prep_compute(a, VD, 64)
    st("p1")
    a.label("L_mnp")
    a.reset_counters()
    WA, XA, ACC, FR = 2, 10, 16, 80
    a.e("v_lshrrev_b32 v12, 4, v0")
    a.e("v_bfe_u32 v13, v0, 2, 2")
    a.e("v_and_b32 v14, 1, v12")
    a.e("v_lshl_or_b32 v14, v14, 2, v13")
    a.e("s_and_b32 s22, s18, 1")
    a.e("s_lshl_b32 s22, s22, 2")
    a.e("v_xor_b32 v14, s22, v14")
    a.e("v_lshl_add_u32 v15, v12, 3, v13")
    a.e("v_lshlrev_b32 v15, 8, v15")
    a.e("v_lshl_add_u32 v15, v14, 5, v15")
    a.e("v_and_b32 v14, 3, v0")
    a.e("v_lshl_add_u32 v15, v14, 3, v15")
    a.e(f"v_add_u32 v{WA}, {L_RING}, v15")
    for mt in range(1, 4): a.e(f"v_xor_b32 v{WA+mt}, {32*mt}, v{WA}")
    for mt in range(4): a.e(f"v_add_u32 v{WA+4+mt}, 0x10000, v{WA+mt}")
    SO = 1
    a.e("v_and_b32 v13, 15, v0")
    a.e(f"s_lshl_b32 s21, s{CT}, 5")
    a.e("s_lshl_b32 s22, s22, 2")
    a.e("s_add_u32 s56, s21, s22")
    a.e("v_add_u32 v14, s56, v12")
    a.e("v_lshlrev_b32 v14, 14, v14")
    a.e("s_bfe_u32 s23, s18, 0x10001")
    a.e(f"s_lshl_b32 s21, s{RB}, 10")
    a.e("s_lshl_b32 s22, s23, 9")
    a.e("s_add_u32 s21, s21, s22")
    a.e("v_lshl_add_u32 v14, v13, 4, v14")
    a.e(f"v_add_u32 v{SO}, s21, v14")
    a.e("v_lshrrev_b32 v14, 1, v13")
    a.e("v_xor_b32 v14, v14, v12")
    a.e("s_lshl_b32 s21, s23, 13")
    a.e(f"s_add_u32 s21, s21, {L_RING+16384}")
    a.e("v_lshlrev_b32 v15, 7, v13")
    a.e("v_lshl_add_u32 v15, v14, 4, v15")
    a.e(f"v_add_u32 v{XA}, s21, v15")
    a.e(f"v_xor_b32 v{XA+1}, 64, v{XA}")
    a.e(f"v_add_u32 v{XA+2}, 0x10000, v{XA}")
    a.e(f"v_add_u32 v{XA+3}, 0x10000, v{XA+1}")
    a.e("s_waitcnt lgkmcnt(0)"); a.lgkm = []
    srd(a, 48, 16, QKV_BYTES)
    srd(a, 36, 16, WS_TOTAL)
    def reads(c):
        f = FR + 64 * (c % 2); slot = c % 4; hb = slot // 2; ob = 32768 * (slot % 2)
        out = []
        for kh in range(2):
            for i in range(4):
                for hf in range(2):
                    out.append(lambda kh=kh, mt=i, hf=hf: a.lds(f"ds_read_b64_tr_b16 {v(f+16*kh+4*mt+2*hf,2)}, v{WA+4*hb+mt} offset:{ob+(32*kh+4*hf)*256}", f"F{c}_{kh}"))
                out.append(lambda kh=kh, nt=i: a.lds(f"ds_read_b128 {v(f+32+16*kh+4*nt,4)}, v{XA+2*hb+kh} offset:{ob+2048*nt}", f"F{c}_{kh}"))
        return out
    a.e(f"v_mov_b32 v208, {L_CNT}")
    a.e("v_mov_b32 v209, 1")
    def poll_issue(c): a.lds(f"ds_read_b32 v210, v208 offset:{FULL+4*c}", f"poll{c}")
    def poll_check(c):
        a.wait_lds(f"poll{c}")
        d = a.newlabel("full")
        a.e("v_readfirstlane_b32 s22, v210")
        a.e("s_cmp_ge_u32 s22, 1")
        a.e(f"s_cbranch_scc1 {d}")
        a.e(f"v_add_u32 v210, {FULL+4*c}, v208")
        lds_spin(a, 210, 1)
        a.label(d)
        st(f"m{c}")
    a.e("s_load_dwordx2 s[20:21], s[0:1], 88")
    a.e("v_mov_b32 v212, 0")
    a.e("s_waitcnt lgkmcnt(0)")
    srd(a, 24, 20, 256)
    a.e("s_cmp_eq_u32 s99, -1")
    a.e("s_cbranch_scc1 L_ntag")
    a.e("buffer_load_dwordx2 v[214:215], v212, s[24:27], 0 offen sc0 sc1")
    a.label("L_ntag")
    poll_issue(0); poll_check(0)
    for r_ in reads(0): r_()
    a.wait_lds(None)
    lds_add(a, 208, FREE)
    poll_issue(1)
    for c in range(9):
        f = FR + 64 * (c % 2)
        fill = []
        if c + 1 < 9:
            poll_check(c + 1)
            rr = reads(c + 1)
            fill = [(lambda x=rr[2*i], y=rr[2*i+1]: (x(), y())) for i in range(12)] + [None] * 5
            def free_(c=c):
                a.wait_lds(None)
                if c + 1 < 7: lds_add(a, 208, FREE + 4*(c+1))
            fill += [free_] + [None] * 8
            if c + 2 < 9: fill += [lambda c=c: poll_issue(c + 2)]
        else:
            a.wait_lds(None)
        if c == 7: st("b8")
        if c == F1_AT:
            a.e("s_cmp_eq_u32 s99, -1")
            a.e("s_cbranch_scc1 L_nf1")
            a.e("s_waitcnt vmcnt(0)")
            a.e("v_cmp_gt_i32 vcc, 0, v215")
            a.e("s_cbranch_vccnz L_tagok")
            sv = list(a.lgkm)
            tag_fetch_to_lds(a, 212)
            a.lgkm = sv
            a.label("L_tagok")
            a.e(f"v_mov_b32 v212, {L_CNT+192}")
            a.e("ds_write_b64 v212, v[214:215]")
            a.e(f"v_readfirstlane_b32 s{TAG}, v214")
            a.e(f"v_readfirstlane_b32 s{TAG+1}, v215")
            a.e("s_mov_b64 exec, 1")
            a.e("ds_add_rtn_u32 v212, v208, v209 offset:12")
            a.e("s_mov_b64 exec, -1")
            a.e("s_waitcnt lgkmcnt(0)")
            a.e("v_readfirstlane_b32 s22, v212")
            a.e("s_cmp_lg_u32 s22, 3")
            a.e("s_cbranch_scc1 L_nf1")
            flag_write(a, 0, 212); a.vm.pop()
            a.label("L_nf1")
        for kh in range(2):
            for nt in range(4):
                for mt in range(4):
                    acc = v(ACC + (mt*4+nt)*4, 4)
                    first = (c == 0 and kh == 0)
                    a.e(f"v_mfma_f32_16x16x32_bf16 {acc}, {v(f+16*kh+4*mt,4)}, {v(f+32+16*kh+4*nt,4)}, {0 if first else acc}")
                    if fill:
                        x_ = fill.pop(0)
                        if x_: x_()
    a.e("s_cmp_lt_u32 s56, 432")
    a.e("s_cbranch_scc1 L_qkv")
    a.e("s_nop 7")
    G0 = 208
    for nt in range(4): rnd(a, G0+nt, ACC+4*nt)
    for nt in range(4): a.e(f"v_mul_f32 v{G0+nt}, {f32(-1.4426950408889634)}, v{G0+nt}")
    for nt in range(4): a.e(f"v_exp_f32 v{G0+nt}, v{G0+nt}")
    for nt in range(4): a.e(f"v_add_f32 v{G0+nt}, 1.0, v{G0+nt}")
    for nt in range(4): a.e(f"v_rcp_f32 v{G0+nt}, v{G0+nt}")
    for nt in range(4): rnd(a, G0+nt, G0+nt)
    a.e(f"v_and_b32 v2, 0x3fff, v{SO}")
    a.e("v_lshrrev_b32 v2, 1, v2")
    a.e(f"s_mov_b32 s19, {WS_G}")
    setexec(a, 0xffff)
    a.e(f"buffer_store_dwordx2 {v(G0,2)}, v2, s[36:39], s19 offen {SC}")
    a.e(f"buffer_store_dwordx2 {v(G0+2,2)}, v2, s[36:39], s19 offen offset:128 {SC}")
    a.e("s_mov_b64 exec, -1")
    a.e("s_branch L_mdone")
    a.label("L_qkv")
    a.e(f"s_mov_b32 s20, {f32(QSCALE)}")
    a.e("s_cmp_lt_u32 s56, 144")
    a.e("s_cselect_b32 s21, s20, 1.0")
    a.e("s_nop 3")
    for mt in range(4):
        for nt in range(4):
            ac = ACC + (mt*4+nt)*4
            for i in range(4): a.e(f"v_mul_f32 v{ac+i}, s21, v{ac+i}")
            t = FR + 64 + (mt*4+nt)*2
            a.e(f"v_cvt_pk_bf16_f32 v{t}, v{ac}, v{ac+1}")
            a.e(f"v_cvt_pk_bf16_f32 v{t+1}, v{ac+2}, v{ac+3}")
        a.e(f"s_mov_b32 s19, {mt*65536}")
        a.vmem(f"buffer_store_dwordx4 {v(FR+64+mt*8,4)}, v{SO}, s[48:51], s19 offen {SC}")
        a.vmem(f"buffer_store_dwordx4 {v(FR+64+mt*8+4,4)}, v{SO}, s[48:51], s19 offen offset:256 {SC}")
    a.label("L_mdone")
    a.e("s_setprio 0")
    a.e(f"v_mov_b32 v1, {L_CNT+196}")
    lds_spin(a, 1, "0x80000000")
    tag_from_lds(a, 8)
    a.e("s_waitcnt vmcnt(0)")
    a.e(f"v_mov_b32 v1, {L_CNT+8}")
    a.e("v_mov_b32 v2, 1")
    a.e("s_mov_b64 exec, 1")
    a.e("ds_add_rtn_u32 v2, v1, v2")
    a.e("s_mov_b64 exec, -1")
    a.e("s_waitcnt lgkmcnt(0)")
    a.e("v_readfirstlane_b32 s22, v2")
    a.e("s_cmp_lg_u32 s22, 3")
    a.e("s_cbranch_scc1 L_cvwait")
    flag_write(a, 1, 120); a.vm.pop()
    a.e("s_branch L_cvwait")
    a.label("L_spare")
    a.reset_counters()
    st.n = n0; st.names = st.names[:n0]
    a.e("s_and_b32 s46, s2, 31")
    a.e("s_and_b32 s58, s18, 3")
    a.e("s_lshr_b32 s59, s18, 2")
    a.e("s_lshl_b32 s3, s46, 2")
    a.e("s_add_u32 s3, s3, s59")
    a.e(f"s_mov_b32 s{ROUNDS}, 2")
    a.e(f"s_add_u32 s{ROLE}, s{ROLE}, 2")
    a.e("s_waitcnt lgkmcnt(0)"); a.lgkm = []
    srd(a, 36, 16, WS_TOTAL)
    srd(a, 48, 14, SZ)
    a.e("v_lshlrev_b32 v2, 7, v0")
    a.e("s_lshl_b32 s19, s46, 3")
    a.e("s_add_u32 s19, s19, s18")
    a.e("s_mul_i32 s19, s19, 9216")
    a.e("buffer_load_dword v210, v2, s[48:51], s19 offen")
    a.e("s_add_u32 s19, s19, 8192")
    setexec(a, 0xff)
    a.e("buffer_load_dword v211, v2, s[48:51], s19 offen")
    a.e("s_mov_b64 exec, -1")
    a.e("s_waitcnt vmcnt(2)")
    st("m1")
    prep_compute(a, VD, 64)
    st("m6")

    a.reset_counters()
    a.e("s_cmp_lg_u32 s18, 4")
    a.e("s_cbranch_scc1 L_sp1")
    tag_fetch_to_lds(a, 8)
    a.label("L_sp1")
    convk_issue(a, 3, RHO, 120, "KA")
    a.e("s_add_u32 s56, s3, 2")
    convk_issue(a, 56, RHO, 146, "KB")
    a.e("s_waitcnt vmcnt(18) lgkmcnt(0)"); a.reset_counters()
    st("m7")
    a.e("s_barrier")
    st("b8")
    tag_from_lds(a, 8)
    a.e("s_cmp_lg_u32 s18, 0")
    a.e("s_cbranch_scc1 L_spc")
    flag_write(a, 0, 8)
    a.label("L_spc")
    a.reset_counters()
    a.e("s_waitcnt vmcnt(0)")
    a.e(f"s_mov_b32 s100, s{CVK}")
    a.e(f"s_mov_b32 s101, s{CVU}")
    convk_write(a, RHO, CVK, 0, 146, "KB")
    a.e("s_lshl_b32 s19, s59, 16")
    a.e(f"s_add_u32 s{CVK}, s{CVK}, s19")
    a.e(f"s_sub_u32 s{CVK}, s{CVK}, 32768")
    a.e(f"s_add_u32 s{CVU}, s{CVU}, {8*CV_USZ}")
    convk_write(a, RHO, CVK, 0, 120, "KA")
    st("cvk")
    convu_wait(a)
    st("f1")
    convu_issue(a, 3, CVU, ['s', RHO], "U")
    convu_issue(a, 56, 101, ['s', RHO], "U2")
    a.wait_vm(None)
    a.label("L_conv")
    a.reset_counters()
    st("cv0")
    AF, ACC, BF = 16, 80, 112
    a.e("s_load_dwordx2 s[6:7], s[0:1], 64")
    a.e("s_lshl_b32 s20, s3, 12")
    a.e(f"s_mul_i32 s23, s{RHO}, {CV_USZ}")
    a.e(f"s_add_u32 s23, s23, s{CVU}")
    a.e("v_lshlrev_b32 v13, 4, v0")
    a.e(f"v_add_u32 v14, s{CVK}, v13")
    a.e("v_lshrrev_b32 v7, 4, v0")
    a.e("v_bfe_u32 v8, v0, 2, 2")
    a.e("v_and_b32 v9, 3, v0")
    a.e("v_lshlrev_b32 v10, 3, v7")
    a.e("v_add3_u32 v10, v10, v8, v9")
    a.e(f"v_lshl_add_u32 v10, v10, 3, s{CVK}")
    a.e("v_and_b32 v11, 15, v0")
    a.e("v_lshlrev_b32 v12, 4, v7")
    a.e("v_lshlrev_b32 v8, 3, v11")
    a.e("v_sub_u32 v12, v12, v8")
    a.e(f"v_add_u32 v12, {2*508-64*14}, v12")
    a.e("v_add_u32 v12, s23, v12")
    a.e("s_lshr_b32 s21, s3, 1")
    a.e("s_lshl_b32 s21, s21, 2")
    a.e("s_waitcnt lgkmcnt(0)")
    a.e("s_load_dword s24, s[6:7], s21")
    def rdA(kap):
        for hf in range(2):
            a.lds(f"ds_read_b64_tr_b16 {v(AF+4*kap+2*hf,2)}, v10 offset:{8+256*kap+32*hf}", f"A{kap}")
    lams = []
    lo, hi = -1, 14
    while lo <= hi:
        lams.append(hi); hi -= 1
        if lo <= hi: lams.append(lo); lo += 1
    def rdB(i):
        lam = lams[i]; b = BF + 4 * (i % 4)
        for hf in range(2):
            a.lds(f"ds_read_b64 {v(b+2*hf,2)}, v12 offset:{64*(14-lam)+8*hf}", f"B{i}")
    rdA(0); rdB(0); rdB(1)
    for kap in (1, 3, 5, 7): rdA(kap)
    restA = [9, 11, 13, 15, 2, 4, 6, 8, 10, 12, 14]
    seen = set()
    for i, lam in enumerate(lams):
        if i + 2 < len(lams): rdB(i + 2)
        a.wait_lds(f"B{i}")
        b = BF + 4 * (i % 4)
        for tau in range(8):
            kap = 2 * tau - lam
            if kap < 0 or kap > 15: continue
            assert kap not in restA
            a.wait_lds(f"A{kap}")
            w = v(ACC + 4*tau, 4)
            a.e(f"v_mfma_f32_16x16x32_bf16 {w}, {v(AF+4*kap,4)}, {v(b,4)}, {w if tau in seen else 0}")
            seen.add(tau)
            for _ in range(2 if i == 0 else 1):
                if restA: rdA(restA.pop(0))
    st("cv1")
    a.e(f"s_lshl_b32 s21, s{RHO}, 13")
    a.e(f"s_sub_u32 s22, s{CVK}, s21")
    a.e(f"s_lshl_b32 s21, s{RHO}, 11")
    a.e("s_add_u32 s22, s22, s21")
    a.e("v_add_u32 v15, s22, v13")
    for i in range(8): a.e(f"v_mov_b32 v{AF+32+i}, 0")
    for tau in range(8):
        a.lds(f"ds_write_b128 v14, {v(ACC+4*tau,4)} offset:{1024*tau}")
    a.e("v_lshl_add_u32 v13, v11, 2, v7")
    a.e("v_lshlrev_b32 v13, 1, v13")
    a.e(f"v_sub_u32 v13, {2*511-128}, v13")
    a.e(f"s_lshl_b32 s21, s{RHO}, 8")
    a.e(f"s_sub_u32 s21, s{CVU}, s21")
    a.e("v_add_u32 v13, s21, v13")
    a.e("v_lshlrev_b32 v14, 5, v11")
    a.e("v_lshl_add_u32 v14, v7, 3, v14")
    a.e(f"s_lshl_b32 s21, s{RHO}, 10")
    a.e("s_add_u32 s21, s21, s20")
    a.e(f"s_add_u32 s21, s21, {WS_Z}")
    st("cv2")
    group_barrier(a, 1)
    st("cv3")
    a.e("s_lshl_b32 s25, s24, 16")
    a.e("s_and_b32 s24, s24, 0xffff0000")
    a.e("s_bitcmp1_b32 s3, 0")
    a.e("s_cselect_b32 s24, s24, s25")
    for j in range(2):
        for sw in range(4):
            a.lds(f"ds_read_b128 {v(AF+16*j+4*sw,4)}, v15 offset:{8192*sw+1024*j}", f"R{j}")
        for i in range(4):
            a.lds(f"ds_read_u16_d16_hi v{AF+32+4*j+i}, v13 offset:{CV_USZ*i+128*(1-j)}", f"R{j}")
    for j in range(2):
        a.wait_lds(f"R{j}")
        y = AF + 16*j; u = AF + 32 + 4*j
        for i in range(4): a.e(f"v_add_f32 v{y+i}, v{y+i}, v{y+4+i}")
        for i in range(4): a.e(f"v_add_f32 v{y+8+i}, v{y+8+i}, v{y+12+i}")
        for i in range(4): a.e(f"v_mul_f32 v{u+i}, s24, v{u+i}")
        for i in range(4): a.e(f"v_add_f32 v{y+i}, v{y+i}, v{y+8+i}")
        for i in range(4): rnd(a, u+i, u+i)
        for i in range(4): rnd(a, y+i, y+i)
        for i in range(4): a.e(f"v_add_f32 v{y+i}, v{y+i}, v{u+i}")
        a.e(f"v_cvt_pk_bf16_f32 v{y}, v{y}, v{y+1}")
        a.e(f"v_cvt_pk_bf16_f32 v{y+1}, v{y+2}, v{y+3}")
        a.vmem(f"buffer_store_dwordx2 {v(y,2)}, v14, s[36:39], s21 offen offset:{512*j} {SC}")
    a.e(f"s_sub_u32 s{ROUNDS}, s{ROUNDS}, 1")
    a.e(f"s_cmp_eq_u32 s{ROUNDS}, 0")
    a.e("s_cbranch_scc1 L_attn")
    group_barrier(a, 1)
    a.e("s_add_u32 s3, s3, 2")
    a.e(f"s_mov_b32 s{CVK}, s100")
    a.e(f"s_mov_b32 s{CVU}, s101")
    a.e("s_branch L_conv")
    a.label("L_attn")
    a.reset_counters()
    st("conv")
    a.e("s_and_b32 s22, s2, 7")
    a.e("s_lshl_b32 s22, s22, 1")
    a.e("s_bfe_u32 s19, s2, 0x10003")
    a.e("s_add_u32 s40, s22, s19")
    a.e("s_lshr_b32 s41, s2, 4")
    a.e("s_lshr_b32 s23, s18, 2")
    a.e("s_mul_i32 s24, s40, 9")
    for i in range(3):
        a.e(f"s_sub_i32 s{32+i}, s41, {2-i}")
        a.e(f"s_max_i32 s{32+i}, s{32+i}, 0")
    Q1, Q2 = 8, 12
    KB_ = [16, 22]; VB_ = [28, 36]; SS = [44, 60]; PP = [76, 84]; OA = 92; NM = 14
    a.e("s_cmp_ge_u32 s18, 4")
    a.e("s_cbranch_scc1 L_nostage")
    a.e("v_lshrrev_b32 v1, 3, v0")
    a.e("v_min_u32 v1, 2, v1")
    a.e("v_mul_u32_u24 v1, 144, v1")
    a.e("v_bfe_u32 v2, v0, 2, 1")
    a.e("v_lshl_add_u32 v1, v2, 3, v1")
    a.e("v_add_u32 v1, s24, v1")
    a.e("v_lshrrev_b32 v1, 5, v1")
    a.e("v_and_b32 v2, 3, v0")
    a.e("v_min_u32 v2, 2, v2")
    a.e("v_sub_u32 v2, s41, v2")
    a.e("v_max_i32 v2, 0, v2")
    a.e("v_cmp_lt_u32 vcc, 6, v1")
    a.e("v_subrev_u32 v3, 7, v1")
    a.e("v_lshrrev_b32 v4, 2, v2")
    a.e("v_cndmask_b32 v1, v1, v3, vcc")
    a.e("v_add_u32 v3, 4, v4")
    a.e("v_cndmask_b32 v4, v4, v3, vcc")
    a.e("v_and_b32 v2, 3, v2")
    a.e("v_lshl_add_u32 v1, v1, 2, v2")
    a.e("v_lshl_add_u32 v1, v1, 3, v4")
    for i in range(3): a.e(f"s_lshl_b32 s{32+i}, s{32+i}, 10")
    a.e("s_add_u32 s26, s24, s18")
    a.e("s_lshl_b32 s26, s26, 14")
    a.e(f"s_mul_i32 s27, s18, {PL}")
    a.e("s_lshl_b32 s28, s18, 10")
    a.e("s_add_u32 s29, s24, 8")
    a.e("s_lshl_b32 s29, s29, 14")
    combos = [(0, 2, L_Q, 1024), (1, 2, L_KP+2048, PL), (2, 2, L_VP+2048, PL), (1, 1, L_KP+1024, PL), (2, 1, L_VP+1024, PL), (1, 0, L_KP, PL), (2, 0, L_VP, PL)]
    for n in range(2):
        so, do = 48 + 2*n, 49 + 2*n
        for jj in range(4):
            ty, i, dst, stride = combos[min(4*n + jj, 6)]
            if jj == 0:
                a.e(f"s_add_u32 s{so}, s{32+i}, {ty*144*16384}")
                a.e(f"s_mov_b32 s{do}, {dst+8*stride}")
            else:
                a.e(f"s_add_u32 s19, s{32+i}, {ty*144*16384}")
                a.e(f"s_cmp_eq_u32 s18, {jj}")
                a.e(f"s_cselect_b32 s{so}, s19, s{so}")
                a.e(f"s_cselect_b32 s{do}, {dst+8*stride}, s{do}")
        a.e(f"s_add_u32 s{so}, s{so}, s29")
    a.e("s_cmp_lg_u32 s18, 0")
    a.e("s_cbranch_scc1 L_w2_o")
    flag_wait(a, 1, 1, 2, 2)
    a.e(f"v_mov_b32 v2, {L_CNT+36}")
    a.e("v_mov_b32 v3, 1")
    a.e("ds_write_b32 v2, v3")
    a.e("s_branch L_w2_j")
    a.label("L_w2_o")
    a.e(f"v_mov_b32 v2, {L_CNT+36}")
    lds_spin(a, 2, 1)
    a.label("L_w2_j")
    a.e(f"s_cmp_eq_u32 s{ROLE}, 0")
    a.e("s_cselect_b32 s19, 8, 4")
    a.e("s_cselect_b32 s20, 4, 8")
    a.e(f"s_add_u32 s19, s19, {L_CNT}")
    a.e("v_mov_b32 v1, s19")
    lds_spin(a, 1, "s20")
    a.e("v_lshlrev_b32 v2, 4, v0")
    for n, (ty, i, dst, stride) in enumerate(combos):
        for q in range(2):
            a.e(f"s_add_u32 m0, s{28 if stride == 1024 else 27}, {dst + 4*q*stride}")
            a.e(f"s_add_u32 s35, s26, s{32+i}")
            a.e(f"s_add_u32 s35, s35, {(ty*144+4*q)*16384}")
            a.vmem(f"buffer_load_dwordx4 v2, s[36:39], s35 offen {SC} lds", "S")
        if n in (2, 5):
            k_ = 0 if n == 2 else 1
            a.e(f"s_mov_b32 m0, s{49+2*k_}")
            a.e("s_nop 0")
            a.vmem(f"buffer_load_dwordx4 v2, s[36:39], s{48+2*k_} offen {SC} lds", "S")
    a.e("v_mov_b32 v5, 0x3f803f80")
    a.e("v_lshlrev_b32 v6, 2, v0")
    a.e("s_lshl_b32 s35, s18, 8")
    a.e("v_add_u32 v6, s35, v6")
    for i in range(3): a.lds(f"ds_write_b32 v6, v5 offset:{L_ONE+1024*i}")
    a.label("L_nostage")
    st("f2")
    a.e("v_and_b32 v1, 31, v0")
    a.e("v_lshrrev_b32 v15, 5, v0")
    a.e("s_lshl_b32 s46, s41, 2")
    a.e(f"s_add_u32 s46, s46, s{RHO}")
    a.e("v_lshlrev_b32 v3, 3, v1")
    a.e("s_mul_i32 s25, s23, 5")
    a.e(f"s_lshl_b32 s35, s{RHO}, 8")
    a.e("s_lshl_b32 s26, s25, 10")
    a.e("s_add_u32 s26, s26, s35")
    a.e(f"s_add_u32 s26, s26, {L_Q}")
    a.e("v_lshl_add_u32 v108, v15, 11, v3")
    a.e("v_add_u32 v108, s26, v108")
    a.e(f"s_add_u32 s26, s35, {L_Q+4096}")
    a.e("v_add_u32 v109, s26, v3")
    a.e(f"s_lshl_b32 s35, s{RHO}, 8")
    a.e(f"s_mul_i32 s25, s25, {PL}")
    a.e("s_add_u32 s26, s25, s35")
    a.e(f"s_add_u32 s26, s26, {L_KP}")
    a.e(f"v_mul_u32_u24 v4, {2*PL}, v15")
    a.e("v_add3_u32 v4, v4, v3, s26")
    a.e(f"v_mul_u32_u24 v5, {5*PL}, v15")
    a.e(f"s_add_u32 s26, s35, {L_KP+4*PL}")
    a.e("v_add3_u32 v3, v5, v3, s26")
    a.e("v_bfe_u32 v5, v0, 2, 2")
    a.e("v_lshl_add_u32 v5, v15, 2, v5")
    a.e("v_lshlrev_b32 v5, 3, v5")
    a.e("v_and_b32 v6, 3, v0")
    a.e(f"v_mul_u32_u24 v7, {PL}, v6")
    a.e(f"s_add_u32 s26, s25, {L_VP}")
    a.e("v_add_u32 v7, s26, v7")
    a.e(f"v_mov_b32 v2, {L_VP+4*PL}")
    m1 = lane_mask(lambda l: (l >> 4) & 1 and (l & 3) == 0); m2 = lane_mask(lambda l: (l >> 4) & 1 and (l & 3) != 0)
    a.e(f"s_mov_b32 s20, 0x{m1 & 0xffffffff:x}"); a.e("s_mov_b32 s21, s20")
    a.e("v_cndmask_b32 v7, v7, v2, s[20:21]")
    a.e(f"v_mov_b32 v2, {L_ONE}")
    a.e(f"s_mov_b32 s20, 0x{m2 & 0xffffffff:x}"); a.e("s_mov_b32 s21, s20")
    a.e("v_cndmask_b32 v7, v7, v2, s[20:21]")
    a.e("v_add3_u32 v5, v5, v7, s35")
    a.e("s_sub_i32 s27, 8, s46")
    a.e("s_max_i32 s27, s27, 0")
    a.e(f"v_mov_b32 v2, {NEGINF}")
    def mask_ops(S, diag):
        ops = []
        for ri in range(16):
            j, i = ri // 4, ri % 4
            md = lane_mask(lambda l: 8*j + 4*(l >> 5) + i <= (l & 31))
            def f(ri=ri, md=md):
                a.e(f"s_mov_b32 s20, 0x{md & 0xffffffff:x}")
                a.e(f"s_mov_b32 s21, 0x{md >> 32:x}")
                if diag: a.e(f"v_cndmask_b32 v{S+ri}, v2, 0, s[20:21]")
                else: a.e(f"v_cndmask_b32 v{S+ri}, 0, v2, s[20:21]")
            ops.append(f)
        return ops
    for f in mask_ops(SS[0], True): f()
    a.e("s_cmp_eq_u32 s23, 0")
    a.e("s_cselect_b32 s48, -1, 0")
    a.e("s_mov_b32 s49, 0")
    a.e("s_cselect_b32 s50, 0, -1")
    a.e("s_mov_b32 s51, 0")
    a.e("s_mov_b32 s42, 0")
    a.e("s_mov_b32 s43, -1")
    a.e("s_load_dwordx2 s[6:7], s[0:1], 16")
    a.e("s_min_u32 s19, s2, 251")
    a.e("s_mul_i32 s56, s19, 2341")
    a.e("s_lshr_b32 s56, s56, 16")
    a.e("s_lshl_b32 s57, s56, 7")
    a.e("v_lshrrev_b32 v110, 3, v0")
    a.e("v_and_b32 v111, 7, v0")
    a.e("v_lshrrev_b32 v112, 1, v110")
    a.e("v_lshlrev_b32 v112, 1, v112")
    a.e("v_xor_b32 v111, v111, v112")
    a.e("v_mul_u32_u24 v110, 1152, v110")
    a.e("v_lshl_add_u32 v110, v111, 4, v110")
    a.e("s_waitcnt vmcnt(0) lgkmcnt(0)"); a.reset_counters()
    a.e("s_barrier")
    st("staged")
    a.e("s_cmp_lg_u32 s18, 0")
    a.e("s_cbranch_scc1 L_nf3")
    flag_write(a, 2, 112); a.vm.pop()
    a.label("L_nf3")

    def rdK(t):
        buf = KB_[t % 2]
        return [lambda: a.lds(f"ds_read_b64 {v(buf,2)}, v4 offset:{256*t}", f"K{t}"),
                lambda: a.lds(f"ds_read_b64 {v(buf+2,2)}, v4 offset:{256*t+PL}", f"K{t}"),
                lambda: a.lds(f"ds_read_b64 {v(buf+4,2)}, v3 offset:{256*t}", f"K{t}")]
    def rdV(t):
        buf = VB_[t % 2]
        return [lambda i=i: a.lds(f"ds_read_b64_tr_b16 {v(buf+2*i,2)}, v5 offset:{256*t+64*i}", f"V{t}") for i in range(4)]
    def qk1(t):
        S = SS[t % 2]; buf = KB_[t % 2]
        a.e(f"v_mfma_f32_32x32x16_bf16 {v(S,16)}, {v(buf,4)}, {v(Q1,4)}, {v(S,16) if t in (0, 8) else 0}")
    def qk2(t):
        S = SS[t % 2]; buf = KB_[t % 2]
        a.e(f"v_mfma_f32_32x32x8_bf16 {v(S,16)}, {v(buf+4,2)}, {v(Q2,2)}, {v(S,16)}")
    def pv(t, h):
        a.e(f"v_mfma_f32_32x32x16_bf16 {v(OA,16)}, {v(VB_[t%2]+4*h,4)}, {v(PP[t%2]+4*h,4)}, {0 if (t == 8 and h == 0) else v(OA,16)}")
    def kill(t, pfx):
        l = f"{pfx}_k{t}"
        a.e(f"s_cmp_lg_u32 s27, {t+1}")
        a.e(f"s_cbranch_scc1 {l}")
        a.e("v_mov_b32 v6, 0xff7f")
        a.e(f"v_cndmask_b32 v{Q2}, v{Q2}, v6, s[42:43]")
        a.label(l)
    a.lds(f"ds_read_b64 {v(Q1,2)}, v108", "Q")
    a.lds(f"ds_read_b64 {v(Q1+2,2)}, v108 offset:1024", "Q")
    a.lds(f"ds_read_b64 {v(Q2,2)}, v109", "Q")
    for f in rdK(8) + rdK(7): f()
    a.e("s_add_u32 s28, s6, s57")
    a.e("s_addc_u32 s29, s7, 0")
    a.e(f"s_sub_u32 s30, {576*1152}, s57")
    a.e("s_mov_b32 s31, 0x00020000")
    a.e(f"s_mul_i32 s58, s18, {8*1152}")
    a.e("s_lshl_b32 s59, s18, 10")
    def wo_dma(j):
        a.e(f"s_add_u32 m0, s59, {L_WO + j*8192}")
        a.e("s_nop 0")
        a.vmem("buffer_load_dwordx4 v110, s[28:31], s58 offen lds", "WO")
        a.e(f"s_add_u32 s58, s58, {64*1152}")
    a.wait_lds("K8")
    a.e("s_barrier")
    a.e(f"v_cndmask_b32 v{Q2}, 0, v{Q2}, s[48:49]")
    a.e(f"v_cndmask_b32 v{Q2+1}, 0, v{Q2+1}, s[50:51]")
    KA = KB_[0]
    a.e(f"v_dot2_f32_bf16 v6, v{Q1}, v{KA}, 0")
    for i in range(1, 6): a.e(f"v_dot2_f32_bf16 v6, v{Q1+i}, v{KA+i}, v6")
    qk1(8)
    a.e("s_nop 2")
    a.e("v_mov_b32 v7, v6")
    a.e("s_nop 1")
    a.e("v_permlane32_swap_b32 v6, v7")
    a.e("s_nop 1")
    a.e("v_add_f32 v6, v6, v7")
    a.e("v_sub_f32 v6, 0, v6")
    a.e("v_cvt_pk_bf16_f32 v6, v6, 0")
    a.e(f"v_cndmask_b32 v{Q2}, v{Q2}, v6, s[42:43]")
    a.e("s_nop 1")

    def softmax_pass(sub, pfx):
        qk2(8)
        for f in rdV(8): f()
        kill(7, pfx)
        a.e("s_nop 3")
        for t in range(8, -1, -1):
            S = SS[t % 2]; P = PP[t % 2]
            valu = []
            for i in range(16):
                if sub: valu.append(lambda i=i: a.e(f"v_add_f32 v{S+i}, v{S+i}, v{NM}"))
                valu.append(lambda i=i: a.e(f"v_exp_f32 v{S+i}, v{S+i}"))
                if i % 2 == 1 and i >= 3:
                    valu.append(lambda i=i: a.e(f"v_cvt_pk_bf16_f32 v{P+(i-3)//2}, v{S+i-3}, v{S+i-2}"))
            valu.append(lambda: a.e("s_nop 0"))
            valu.append(lambda: a.e(f"v_cvt_pk_bf16_f32 v{P+7}, v{S+14}, v{S+15}"))
            q = len(valu) // 4
            def run(n):
                for _ in range(n):
                    if valu: valu.pop(0)()
            if t == 1:
                for f in mask_ops(SS[0], False): f()
                a.e("s_nop 1")
            if t > 0:
                a.wait_lds(f"K{t-1}")
                qk1(t - 1)
            else:
                a.e("s_nop 3")
            run(q)
            if t > 0: qk2(t - 1)
            if t > 1:
                for f in rdK(t - 2): f()
                kill(t - 2, pfx)
            run(q)
            if t < 8:
                a.wait_lds(f"V{t+1}")
                pv(t + 1, 0)
            run(q)
            if t < 8: pv(t + 1, 1)
            if t > 0:
                for f in rdV(t - 1): f()
            if not sub:
                for j_ in {8: (0, 1), 7: (2, 3), 6: (4, 5), 5: (6, 7), 4: (8,)}.get(t, ()): wo_dma(j_)
            run(100)
        a.wait_lds(None)
        a.e("s_nop 0")
        pv(0, 0); pv(0, 1)
        a.e("s_nop 7")
        a.e("s_nop 3")

    softmax_pass(False, "sa")
    st("soft")
    a.e(f"v_mov_b32 v6, v{OA+12}")
    for i in range(12): a.e(f"v_fma_f32 v6, v{OA+i}, 0, v6")
    a.e(f"s_mov_b32 s20, {f32(2.0**-30)}")
    a.e(f"s_mov_b32 s21, {f32(2.0**100)}")
    a.e("v_cmp_nlt_f32 vcc, s20, v6")
    a.e("v_cmp_ngt_f32 s[44:45], s21, v6")
    a.e("s_or_b64 vcc, vcc, s[44:45]")
    a.e("s_cbranch_vccnz L_fallback")
    a.label("L_fin")
    P0 = PP[0]
    a.e(f"v_rcp_f32 v6, v{OA+12}")
    a.e("s_nop 0")
    for i in range(12): a.e(f"v_mul_f32 v{OA+i}, v{OA+i}, v6")
    for i in range(6): a.e(f"v_cvt_pk_bf16_f32 v{P0+i}, v{OA+2*i}, v{OA+2*i+1}")
    a.e("v_lshrrev_b32 v6, 4, v1")
    a.e("v_mul_u32_u24 v6, 18432, v6")
    a.e("v_and_b32 v7, 15, v1")
    a.e("v_lshl_add_u32 v6, v7, 4, v6")
    a.e("v_lshl_add_u32 v7, v15, 8, v6")
    a.e("s_mul_i32 s26, s46, 36864")
    a.e(f"s_add_u32 s26, s26, {WS_O}")
    a.e("s_lshl_b32 s19, s40, 1")
    a.e("s_add_u32 s19, s19, s23")
    a.e("s_lshl_b32 s20, s19, 9")
    a.e("s_add_u32 s20, s20, s26")
    a.vmem(f"buffer_store_dwordx4 {v(P0,4)}, v7, s[36:39], s20 offen {SC}")
    a.e("s_lshr_b32 s20, s19, 2")
    a.e("s_lshl_b32 s20, s20, 8")
    a.e("s_and_b32 s21, s19, 3")
    a.e("s_lshl_b32 s21, s21, 2")
    a.e("s_add_u32 s20, s20, s21")
    a.e("s_add_u32 s20, s20, s26")
    a.e("s_add_u32 s20, s20, 16384")
    a.e("s_cmp_eq_u32 s23, 0")
    a.e("s_cbranch_scc1 L_ev")
    a.e(f"v_mov_b32 v{P0+4}, v{P0+5}")
    a.label("L_ev")
    setexec(a, 0xffffffff)
    a.vmem(f"buffer_store_dword v{P0+4}, v6, s[36:39], s20 offen {SC}")
    a.e("s_mov_b64 exec, -1")
    a.e("s_load_dwordx2 s[4:5], s[0:1], 0")
    a.e("s_load_dwordx2 s[8:9], s[0:1], 80")
    a.e("s_mul_i32 s19, s56, 28")
    a.e("s_sub_u32 s19, s2, s19")
    a.e("s_mul_i32 s21, s19, 5")
    a.e("s_lshl_b32 s22, s19, 2")
    a.e("s_add_u32 s22, s22, 16")
    a.e("s_cmp_lt_u32 s19, 16")
    a.e("s_cselect_b32 s19, s21, s22")
    a.e("s_cselect_b32 s43, 5, 4")
    a.e("s_cmp_ge_u32 s2, 252")
    a.e("s_cselect_b32 s43, 0, s43")
    a.e("s_add_u32 s21, s19, s18")
    OF, ACC, WF = 16, 88, 104
    XE, GE = 136, 144
    a.e("s_min_u32 s21, s21, 127")
    a.e("v_and_b32 v2, 15, v0")
    a.e("v_lshrrev_b32 v3, 4, v0")
    a.e("s_lshl_b32 s40, s21, 4")
    a.e("v_add_u32 v4, s40, v2")
    a.e("v_mul_u32_u24 v5, 1152, v4")
    a.e("v_lshl_add_u32 v5, v3, 3, v5")
    a.e("s_waitcnt lgkmcnt(0)")
    srd(a, 24, 4, SZ)
    srd(a, 32, 8, SZ)
    a.e("s_lshl_b32 s19, s56, 6")
    a.e("v_add_u32 v6, s19, v0")
    a.e("v_lshrrev_b32 v7, 2, v6")
    a.e("v_add_u32 v7, 224, v7")
    a.e("v_subrev_u32 v8, 128, v6")
    a.e("v_lshrrev_b32 v8, 1, v8")
    a.e("v_cmp_gt_u32 vcc, 128, v6")
    a.e("s_lshr_b32 s19, s40, 9")
    a.e("s_bfe_u32 s20, s40, 0x20007")
    a.e("s_lshl_b32 s20, s20, 3")
    a.e("s_add_u32 s19, s19, s20")
    a.e("s_add_u32 s19, s19, 196")
    a.e("v_cndmask_b32 v6, v8, v7, vcc")
    a.e("v_mov_b32 v7, s19")
    a.e("s_mov_b32 s44, 0xaaaaaaaa")
    a.e("s_mov_b32 s45, 0xaaaaaaaa")
    a.e("v_cndmask_b32 v6, v6, v7, s[44:45]")
    a.e("v_lshlrev_b32 v7, 7, v6")
    a.e(f"s_mov_b32 s22, {WS_F + 16}")
    a.e("buffer_load_dwordx2 v[8:9], v7, s[36:39], s22 offen sc0 sc1")
    a.e(f"v_mov_b32 v10, {L_CNT+32}")
    a.e("v_mov_b32 v11, 1")
    a.e("s_waitcnt vmcnt(0)"); a.reset_counters()
    a.e("s_mov_b64 exec, 1")
    a.e("ds_add_rtn_u32 v11, v10, v11")
    a.e("s_mov_b64 exec, -1")
    a.e("s_waitcnt lgkmcnt(0)")
    a.e("v_readfirstlane_b32 s22, v11")
    a.e("s_cmp_lg_u32 s22, 7")
    a.e("s_cbranch_scc1 L_nf4")
    flag_write(a, 3, 12); a.vm.pop()
    a.label("L_nf4")
    st("ost")
    a.e("s_cmp_ge_u32 s18, s43")
    a.e("s_cbranch_scc1 L_end")
    for mt in range(4):
        a.vmem(f"buffer_load_dwordx2 {v(XE+2*mt,2)}, v5, s[24:27], s57 offen offset:{32*mt}", "X")
    a.e(f"v_cmp_ne_u64 vcc, s[{TAG}:{TAG+1}], v[8:9]")
    a.e("s_cbranch_vccz L_f3ok")
    flag_wait(a, 2, 6, 8)
    a.label("L_f3ok")
    a.e("v_lshrrev_b32 v6, 1, v0")
    a.e("v_lshlrev_b32 v6, 12, v6")
    a.e("v_and_b32 v8, 1, v0")
    a.e("v_lshl_add_u32 v6, v8, 4, v6")
    a.e("s_lshl_b32 s45, s56, 18")
    a.e("s_lshl_b32 s46, s21, 5")
    a.e("s_add_u32 s45, s45, s46")
    a.e(f"s_add_u32 s45, s45, {WS_Z}")
    a.e("s_lshl_b32 s44, s18, 11")
    for q in range(2):
        a.e(f"s_add_u32 m0, s44, {q*1024}")
        a.e("s_nop 0")
        a.vmem(f"buffer_load_dwordx4 v6, s[36:39], s45 offen {SC} lds", "X")
        a.e(f"s_add_u32 s45, s45, {32*4096}")
    a.e("v_lshlrev_b32 v6, 2, v4")
    a.e(f"s_mov_b32 s45, {WS_G}")
    a.vmem(f"buffer_load_dword v{GE}, v6, s[36:39], s45 offen {SC}", "X")
    a.e("v_bfe_u32 v6, v0, 2, 2")
    a.e("v_and_b32 v11, 3, v0")
    a.e("v_lshrrev_b32 v8, 1, v3")
    a.e("v_mul_u32_u24 v8, 20, v8")
    a.e("v_and_b32 v9, 1, v3")
    a.e("v_lshl_add_u32 v8, v9, 2, v8")
    a.e("v_add_u32 v8, v8, v6")
    a.e("v_bfe_u32 v9, v8, 1, 2")
    a.e("v_lshlrev_b32 v8, 7, v8")
    a.e("v_lshl_add_u32 v8, v11, 3, v8")
    a.e(f"v_add_u32 v8, {L_WO}, v8")
    MA = 148
    for mt in range(4):
        a.e(f"v_xor_b32 v10, {mt}, v9")
        a.e(f"v_lshl_add_u32 v{MA+mt}, v10, 5, v8")
    a.e("v_mul_u32_u24 v8, 72, v3")
    a.e("v_add3_u32 v8, v8, v6, 16")
    a.e("v_bfe_u32 v9, v8, 1, 2")
    a.e("v_lshlrev_b32 v8, 7, v8")
    a.e("v_lshl_add_u32 v8, v11, 3, v8")
    a.e(f"v_add_u32 v8, {L_WO}, v8")
    TA_ = 152
    for mt in range(4):
        a.e(f"v_xor_b32 v10, {mt}, v9")
        a.e(f"v_lshl_add_u32 v{TA_+mt}, v10, 5, v8")
    a.e("v_lshl_add_u32 v8, v3, 2, v6")
    a.e("v_lshlrev_b32 v8, 5, v8")
    a.e("v_lshl_add_u32 v8, v11, 3, v8")
    a.e("v_add_u32 v8, s44, v8")
    BP, ZE, T = 156, 172, 180
    a.wait_vm(None)
    for mt in range(4):
        a.lds(f"ds_read_b64_tr_b16 {v(ZE+2*mt,2)}, v8 offset:{512*mt}", "Z")
    a.e(f"v_sub_f32 v9, 1.0, v{GE}")
    rnd(a, 9, 9)
    a.e("s_mov_b32 s42, 0xffff0000")
    a.wait_lds("Z")
    for mt in range(4):
        B = BP + 4*mt
        for i in range(4):
            op = "v_lshlrev_b32 v%d, 16, v%d" if i % 2 == 0 else "v_and_b32 v%d, s42, v%d"
            a.e(op % (B+i, XE+2*mt+i//2))
            a.e(op % (T+i, ZE+2*mt+i//2))
        for i in range(4): a.e(f"v_mul_f32 v{B+i}, v{B+i}, v{T+i}")
        for i in range(4): rnd(a, B+i, B+i)
        for i in range(4): a.e(f"v_mul_f32 v{B+i}, v{B+i}, v9")
        for i in range(4): rnd(a, B+i, B+i)
    def rd(ks):
        b = WF + 16 * (ks % 2)
        for mt in range(4):
            for hf in range(2):
                if ks < 16:
                    kk = ks if ks < 12 else ks - 12
                    ar = MA + (mt ^ (2 * (ks & 1))); off = (36*kk + 8*hf) * 128
                else:
                    ar = TA_ + (mt ^ (2 * hf)); off = (288*(ks-16) + 36*hf) * 128
                a.lds(f"ds_read_b64_tr_b16 {v(b+4*mt+2*hf,2)}, v{ar} offset:{off}", f"F{ks}")
    a.e(f"v_mov_b32 v10, {L_CNT+32}")
    lds_spin(a, 10, 8)
    rd(0)
    a.e("s_lshr_b32 s19, s21, 3")
    a.e("s_lshl_b32 s19, s19, 4")
    a.e("v_add_u32 v6, s19, v2")
    a.e("s_add_u32 s19, s21, s43")
    a.e("s_sub_u32 s19, s19, 1")
    a.e("s_lshr_b32 s19, s19, 3")
    a.e("s_lshl_b32 s19, s19, 4")
    a.e("v_add_u32 v7, s19, v2")
    a.e("v_cndmask_b32 v6, v6, v7, s[44:45]") if False else None
    a.e("s_mov_b32 s46, 0")
    a.e("s_mov_b32 s47, -1")
    a.e("v_cndmask_b32 v6, v6, v7, s[46:47]")
    a.e("s_cmp_lg_u32 s18, 0")
    a.e("s_cbranch_scc1 L_w4_o")
    flag_wait(a, 3, 6, 10, 2)
    a.e(f"v_mov_b32 v10, {L_CNT+40}")
    a.e("v_mov_b32 v11, 1")
    a.e("ds_write_b32 v10, v11")
    a.e("s_branch L_w4_j")
    a.label("L_w4_o")
    a.e(f"v_mov_b32 v10, {L_CNT+40}")
    lds_spin(a, 10, 1)
    a.label("L_w4_j")
    a.lgkm.append(None)
    st("f4")
    a.e("v_lshlrev_b32 v7, 4, v0")
    a.e("s_mul_i32 s22, s21, 18432")
    a.e(f"s_add_u32 s22, s22, {WS_O}")
    for ks in range(18):
        a.vmem(f"buffer_load_dwordx4 {v(OF+4*ks,4)}, v7, s[36:39], s22 offen offset:{1024*(ks%4)} {SC}", f"O{ks}")
        if ks % 4 == 3: a.e("s_add_u32 s22, s22, 4096")
    for ks in range(18):
        if ks + 1 == 12:
            for mt in range(4): a.e(f"v_add_u32 v{MA+mt}, {12*36*128}, v{MA+mt}")
        if ks + 1 < 18: rd(ks + 1)
        a.wait_vm(f"O{ks}")
        a.wait_lds(f"F{ks}")
        b = WF + 16 * (ks % 2)
        for mt in range(4):
            acc = v(ACC + 4*mt, 4)
            a.e(f"v_mfma_f32_16x16x32_bf16 {acc}, {v(b+4*mt,4)}, {v(OF+4*ks,4)}, {acc if ks else 0}")
    a.e("s_nop 4")
    for mt in range(4):
        ac = ACC + 4*mt
        for i in range(4): rnd(a, ac+i, ac+i)
        for i in range(4): a.e(f"v_mul_f32 v{ac+i}, v{ac+i}, v{GE}")
        for i in range(4): rnd(a, ac+i, ac+i)
        for i in range(4): a.e(f"v_add_f32 v{ac+i}, v{ac+i}, v{BP+4*mt+i}")
        a.e(f"v_cvt_pk_bf16_f32 v{ac}, v{ac}, v{ac+1}")
        a.e(f"v_cvt_pk_bf16_f32 v{ac+1}, v{ac+2}, v{ac+3}")
        a.vmem(f"buffer_store_dwordx2 {v(ac,2)}, v5, s[32:35], s57 offen offset:{32*mt}")
    st("end"); st.real("rt1"); st.flush(16, 18, 0)
    a.label("L_end")
    a.e("s_endpgm")
    a.label("L_fallback")
    a.reset_counters()
    a.e(f"v_cndmask_b32 v{Q2}, v{Q2}, 0, s[42:43]")
    a.e(f"v_mov_b32 v{NM}, {NEGINF}")
    for t in range(8, -1, -1):
        for f in rdK(t): f()
        if t in (0, 8):
            for f in mask_ops(SS[0], t == 8): f()
        if t < 8: kill(t, "sm")
        a.wait_lds(None)
        a.e("s_nop 1")
        qk1(t); qk2(t)
        a.e("s_nop 7"); a.e("s_nop 3")
        S = SS[t % 2]
        for i in range(8): a.e(f"v_max3_f32 v{NM}, v{S+2*i}, v{S+2*i+1}, v{NM}")
    for f in rdK(8) + rdK(7): f()
    a.e(f"v_cndmask_b32 v{Q2}, v{Q2}, 0, s[42:43]")
    a.e(f"v_mov_b32 v7, v{NM}")
    a.e("s_nop 1")
    a.e(f"v_permlane32_swap_b32 v{NM}, v7")
    a.e("s_nop 1")
    a.e(f"v_max_f32 v{NM}, v{NM}, v7")
    a.e(f"v_sub_f32 v{NM}, 0, v{NM}")
    for f in mask_ops(SS[0], True): f()
    a.wait_lds("K8")
    a.e("s_nop 1")
    qk1(8)
    softmax_pass(True, "sb")
    a.e("s_branch L_fin")

def main(path):
    a = Asm()
    hdr = open(f"cdna_kernels/{NAME}.s.ref").read().split("\n")
    head = [l for l in hdr if l.startswith(";") and "@launch" not in l and "Override" not in l and "grid=ceil" not in l]
    for l in head: a.raw(l)
    a.raw(f"; @launch grid=(256,1,1) block=(512,1,1) lds={LDS_TOTAL}")
    a.raw('.amdgcn_target "amdgcn-amd-amdhsa--gfx950"')
    a.raw(".text")
    gen(a)
    a.raw('.section .rodata,"a"')
    a.raw(kernel_desc(NAME + "_kernel", 216))
    open(path, "w").write(a.text())

if __name__ == "__main__":
    if len(sys.argv) > 2 and sys.argv[2] == "stamps":
        asmlib.STAMP_ON = True
        asmlib.STAMP_FILTER = list((sys.argv[3] if len(sys.argv) > 3 else "b8,cvk,f1,cv1,cv3,conv,f2,staged,soft,ost,f4,end").split(","))
    main(sys.argv[1] if len(sys.argv) > 1 else f"fused.s")
```

```python
import sys, struct
from asmlib import *
import asmlib

NAME = "gated_mix__sliding_block__ssm_conv_h3__prompt"
SZ = 2048 * 576 * 2
WS_QKV = 0
QKV_BYTES = 432 * 16384
WS_U = QKV_BYTES
WS_O = WS_U + SZ
WS_Z = WS_O + SZ
WS_G = WS_Z + SZ
WS_F = WS_G + 8192
WS_E = WS_F + 32768
WS_TOTAL = WS_E + 128
def f32(x): return "0x%08x" % struct.unpack("<I", struct.pack("<f", x))[0]
QSCALE = 18 ** -0.5 * 1.4426950408889634
NEGINF = "0xff800000"
SC = "sc1"
SPIN_MAX = 200000

def rnd(a, dst, src):
    a.e(f"v_cvt_pk_bf16_f32 v{dst}, 0, v{src}")
def lane_mask(fn):
    m = 0
    for l in range(64):
        if fn(l): m |= 1 << l
    return m

L_U = 0
UP = 288
L_PK = 9728
L_CNT = 22016
L_RING = 24576
L_CVK = L_RING + 32768
PL = 3072
L_KP = L_RING
L_ONE = L_KP + 9 * PL
L_WO = L_ONE + PL
L_VP = 163840 - 9 * PL
LDS_TOTAL = 163840
assert L_WO + 73728 <= L_VP
CV_USZ = 1216

TAG = 88
ROLE, CVK, CVU, GCNT, ROUNDS, RHO, GTGT, PBASE = 90, 91, 92, 93, 94, 95, 96, 98

def prep_task(a, T_s):
    a.e(f"s_mul_i32 s40, s{T_s}, 3641")
    a.e("s_lshr_b32 s40, s40, 16")
    a.e("s_mul_i32 s41, s40, 18")
    a.e(f"s_sub_u32 s41, s{T_s}, s41")

PB = 200
def prep_setup(a):
    a.e(f"v_lshrrev_b32 v{PB+8}, 2, v0")
    a.e(f"v_and_b32 v{PB+9}, 3, v0")
    a.e(f"v_mul_u32_u24 v{PB}, 1152, v{PB+8}")
    a.e(f"v_lshlrev_b32 v{PB+1}, 1, v{PB}")
    a.e(f"v_lshl_add_u32 v{PB}, v{PB+9}, 4, v{PB}")
    a.e(f"v_lshl_add_u32 v{PB+1}, v{PB+9}, 4, v{PB+1}")
    a.e(f"v_lshlrev_b32 v{PB+2}, 4, v0")

def prep_issue(a, R):
    a.e(f"s_mul_i32 s22, s40, {32*1152}")
    a.e("s_lshl_b32 s23, s41, 6")
    a.e("s_add_u32 s22, s22, s23")
    a.e(f"v_add_u32 v{PB+3}, s22, v{PB}")
    a.e(f"v_subrev_u32 v{PB+3}, {3*1152}, v{PB+3}")
    for i in range(2):
        a.e(f"s_add_u32 m0, s{PBASE}, {256+1024*i}")
        a.e(f"s_add_u32 s23, s22, {16*1152*i}")
        a.e(f"buffer_load_dwordx4 v{PB}, s[24:27], s23 offen lds")
    a.e(f"buffer_load_dwordx4 {v(R,4)}, v{PB+1}, s[28:31], s22 offen")
    a.e(f"buffer_load_dwordx4 {v(R+4,4)}, v{PB+1}, s[28:31], s22 offen offset:1152")
    a.e(f"s_add_u32 m0, s{PBASE}, 64")
    setexec(a, 0xfff)
    a.e(f"buffer_load_dwordx4 v{PB+3}, s[24:27], 0 offen lds")
    a.e(f"s_add_u32 m0, s{PBASE}, 2304")
    a.e("s_mov_b32 exec_lo, 0xffff")
    a.e("s_lshl_b32 s23, s41, 8")
    a.e(f"buffer_load_dwordx4 v{PB+2}, s[32:35], s23 offen lds")
    a.e("s_mov_b64 exec, -1")

def prep_compute(a, VR, T):
    KR, SW = T + 52, T + 72
    UK, UW, UV, TA, OUT = T, T+20, T+36, T+44, T+88
    A0, A1, A2, A3, A4 = PB, PB+1, PB+2, PB+3, PB+4
    a.e(f"v_lshlrev_b32 v{A0}, 7, v{PB+8}")
    a.e(f"v_lshl_add_u32 v{A0}, v{PB+9}, 4, v{A0}")
    a.e(f"v_add_u32 v{A0}, s{PBASE}, v{A0}")
    a.e(f"v_lshl_add_u32 v{A1}, v{PB+9}, 6, s{PBASE}")
    for j in range(5): a.lds(f"ds_read_b128 {v(KR+4*j,4)}, v{A0} offset:{64+64*j}", "PK")
    for i in range(4): a.lds(f"ds_read_b128 {v(SW+4*i,4)}, v{A1} offset:{2304+16*i}", "PW")
    a.e("s_mov_b32 s42, 0xffff0000")
    a.e(f"v_lshrrev_b32 v{A2}, 3, v0")
    a.e(f"v_mul_u32_u24 v{A2}, {UP}, v{A2}")
    a.e(f"v_and_b32 v{A3}, 1, v{PB+8}")
    a.e(f"v_lshl_add_u32 v{A2}, v{A3}, 2, v{A2}")
    a.e(f"v_add_u32 v{A2}, v{A2}, v{A1}")
    a.e(f"v_add_u32 v{A2}, 2560, v{A2}")
    a.e(f"v_bfe_u32 v{A3}, v0, 2, 2")
    a.e(f"v_sub_u32 v{A3}, 3, v{A3}")
    a.e(f"v_mul_u32_u24 v{A3}, {UP}, v{A3}")
    a.e(f"v_lshrrev_b32 v{A4}, 4, v0")
    a.e(f"v_lshl_add_u32 v{A3}, v{A4}, 5, v{A3}")
    a.e(f"v_lshl_add_u32 v{A3}, v{PB+9}, 3, v{A3}")
    a.e(f"v_add_u32 v{A3}, s{PBASE}, v{A3}")
    a.e(f"v_lshlrev_b32 v{A4}, 12, v{PB+8}")
    a.e(f"v_lshl_add_u32 v{A4}, v{PB+9}, 4, v{A4}")
    a.e("s_lshl_b32 s22, s41, 17")
    a.e("s_lshl_b32 s23, s40, 6")
    a.e("s_add_u32 s22, s22, s23")
    a.e(f"s_add_u32 s22, s22, {WS_U}")
    a.e(f"s_add_u32 s23, s22, {16*4096}")
    for half in range(2):
        for r in range(2):
            for qq in range(2):
                a.e(f"v_lshlrev_b32 v{UV+4*r+2*qq}, 16, v{VR+4*r+2*half+qq}")
                a.e(f"v_and_b32 v{UV+4*r+2*qq+1}, s42, v{VR+4*r+2*half+qq}")
        a.wait_lds("PK")
        for r in range(5):
            for qq in range(2):
                a.e(f"v_lshlrev_b32 v{UK+4*r+2*qq}, 16, v{KR+4*r+2*half+qq}")
                a.e(f"v_and_b32 v{UK+4*r+2*qq+1}, s42, v{KR+4*r+2*half+qq}")
        a.wait_lds("PW")
        for c in range(4):
            for t in range(2):
                src = SW + (4*half+c)*2 + t
                a.e(f"v_lshlrev_b32 v{UW+4*c+2*t}, 16, v{src}")
                a.e(f"v_and_b32 v{UW+4*c+2*t+1}, s42, v{src}")
        RC = [(r, c) for r in range(2) for c in range(4)]
        for r, c in RC: a.e(f"v_mul_f32 v{TA+4*r+c}, v{UK+4*r+c}, v{UW+4*c+3}")
        for t in (1, 2, 3):
            for r, c in RC: a.e(f"v_fmac_f32 v{TA+4*r+c}, v{UK+4*(r+t)+c}, v{UW+4*c+3-t}")
        for r, c in RC: rnd(a, TA+4*r+c, TA+4*r+c)
        for r, c in RC: a.e(f"v_mul_f32 v{TA+4*r+c}, v{TA+4*r+c}, v{UV+4*r+c}")
        for c in range(4):
            a.e(f"v_cvt_pk_bf16_f32 v{OUT+4*half+c}, v{TA+c}, v{TA+4+c}")
        for c in range(4*half, 4*half+4, 2):
            a.lds(f"ds_write2_b32 v{A2}, v{OUT+c}, v{OUT+c+1} offset0:{2*c} offset1:{2*c+2}")
    for d in range(2):
        a.lds(f"ds_read_b64_tr_b16 {v(T+4*d,2)}, v{A3} offset:{2560+4*UP+128*d}", f"PT{d}")
        a.lds(f"ds_read_b64_tr_b16 {v(T+4*d+2,2)}, v{A3} offset:{2560+128*d}", f"PT{d}")
    for d in range(2):
        a.wait_lds(f"PT{d}")
        a.e(f"buffer_store_dwordx4 {v(T+4*d,4)}, v{A4}, s[36:39], s{22+d} offen {SC}")

def tag_fetch_to_lds(a, T):
    a.e("s_load_dwordx2 s[20:21], s[0:1], 88")
    a.e(f"v_mov_b32 v{T}, 0")
    a.e("s_waitcnt lgkmcnt(0)"); a.lgkm = []
    srd(a, 24, 20, 256)
    l = a.newlabel("tagspin"); d = a.newlabel("tagdone")
    a.e(f"s_mov_b32 s97, {SPIN_MAX}")
    a.label(l)
    a.e(f"buffer_load_dwordx2 {v(T+2,2)}, v{T}, s[24:27], 0 offen sc0 sc1")
    a.e("s_sub_u32 s97, s97, 1")
    a.e(f"s_cbranch_scc1 {d}")
    a.e("s_waitcnt vmcnt(0)"); a.vm = []
    a.e(f"v_cmp_gt_i32 vcc, 0, v{T+3}")
    a.e(f"s_cbranch_vccnz {d}")
    a.e("s_sleep 8")
    a.e(f"s_branch {l}")
    a.label(d)
    a.e("s_waitcnt vmcnt(0)")
    a.e(f"v_mov_b32 v{T}, {L_CNT+192}")
    a.lds(f"ds_write_b64 v{T}, {v(T+2,2)}")

def tag_from_lds(a, T):
    a.e(f"v_mov_b32 v{T}, {L_CNT+192}")
    a.lds(f"ds_read_b64 {v(T+2,2)}, v{T}", "TG")
    a.wait_lds("TG")
    a.e(f"v_readfirstlane_b32 s{TAG}, v{T+2}")
    a.e(f"v_readfirstlane_b32 s{TAG+1}, v{T+3}")

def flag_write(a, stage, T):
    a.e("s_lshl_b32 s22, s2, 7")
    a.e(f"s_add_u32 s22, s22, {WS_F + 8*stage}")
    a.e(f"v_mov_b32 v{T}, s22")
    a.e(f"v_mov_b32 v{T+2}, s{TAG}")
    a.e(f"v_mov_b32 v{T+3}, s{TAG+1}")
    a.e("s_mov_b64 exec, 1")
    a.vmem(f"buffer_store_dwordx2 {v(T+2,2)}, v{T}, s[36:39], 0 offen sc0 sc1", "FL")
    a.e("s_mov_b64 exec, -1")

def flag_wait(a, stage, W, T, sleep=2):
    a.e(f"v_lshlrev_b32 v{W}, 7, v{W}")
    a.e(f"s_mov_b32 s22, {WS_F + 8*stage}")
    l = a.newlabel("fspin"); d = a.newlabel("fdone")
    a.e(f"s_mov_b32 s97, {SPIN_MAX}")
    a.label(l)
    a.e(f"buffer_load_dwordx2 {v(T,2)}, v{W}, s[36:39], s22 offen sc0 sc1")
    a.e("s_waitcnt vmcnt(0)"); a.vm = []
    a.e(f"v_cmp_ne_u64 vcc, s[{TAG}:{TAG+1}], {v(T,2)}")
    a.e(f"s_cbranch_vccz {d}")
    a.e(f"s_sleep {sleep}")
    a.e("s_sub_u32 s97, s97, 1")
    a.e(f"s_cbranch_scc0 {l}")
    a.label(d)

def group_barrier(a, T):
    a.e(f"v_mov_b32 v{T}, s{GCNT}")
    a.e(f"v_mov_b32 v{T+1}, 1")
    a.e(f"s_add_u32 s{GTGT}, s{GTGT}, 4")
    a.wait_lds(None)
    a.e("s_mov_b64 exec, 1")
    a.e(f"ds_add_u32 v{T}, v{T+1}")
    a.e("s_mov_b64 exec, -1")
    lds_spin(a, T, f"s{GTGT}")

def lds_spin(a, T, target):
    l = a.newlabel("gb"); d = a.newlabel("gbd")
    a.e(f"s_mov_b32 s97, {SPIN_MAX*8}")
    a.label(l)
    a.e(f"ds_read_b32 v{T+1}, v{T}")
    a.e("s_sub_u32 s97, s97, 1")
    a.e(f"s_cbranch_scc1 {d}")
    a.e("s_waitcnt lgkmcnt(0)")
    a.e(f"v_readfirstlane_b32 s22, v{T+1}")
    a.e(f"s_cmp_ge_u32 s22, {target}")
    a.e(f"s_cbranch_scc1 {d}")
    a.e("s_sleep 1")
    a.e(f"s_branch {l}")
    a.label(d)
    a.e("s_waitcnt lgkmcnt(0)")

L_Q = L_RING + 3 * 32768

def convk_issue(a, CH_s, RH, R, tag):
    a.e(f"s_lshl_b32 s20, s{CH_s}, 12")
    a.e("s_add_u32 s24, s14, s20")
    a.e("s_addc_u32 s25, s15, 0")
    a.e("s_mov_b32 s26, 4096")
    a.e("s_mov_b32 s27, 0x00020000")
    a.e(f"s_add_u32 s21, s{RH}, 1")
    a.e("s_lshr_b32 s21, s21, 1")
    a.e("s_lshl_b32 s21, s21, 2")
    a.e("v_lshlrev_b32 v4, 4, v0")
    a.e("v_subrev_u32 v4, s21, v4")
    a.e("v_add_u32 v5, 1024, v4")
    a.e("v_add_u32 v6, 16, v4")
    a.vmem(f"buffer_load_dwordx4 {v(R,4)}, v4, s[24:27], 0 offen", tag)
    for i in range(3): a.vmem(f"buffer_load_dwordx4 {v(R+6+6*i,4)}, v5, s[24:27], 0 offen offset:{1024*i}", tag)
    for i in range(4): a.vmem(f"buffer_load_dword v{R+6*i+4}, v6, s[24:27], 0 offen offset:{1024*i}", tag)
    a.e("v_lshlrev_b32 v4, 1, v0")
    a.e(f"s_lshl_b32 s21, s{RH}, 1")
    a.e("v_subrev_u32 v4, s21, v4")
    a.e("v_subrev_u32 v4, 32, v4")
    a.vmem(f"buffer_load_ushort v{R+24}, v4, s[24:27], 0 offen", tag)

def convk_write(a, RH, KD, koff, R, tag):
    a.e(f"s_and_b32 s21, s{RH}, 1")
    a.e("s_lshl_b32 s21, s21, 4")
    a.e(f"v_lshl_add_u32 v4, v0, 4, s{KD}")
    a.e(f"v_lshl_add_u32 v5, v0, 1, s{KD}")
    a.wait_vm(tag)
    for i in range(4):
        for j in range(4):
            a.e(f"v_alignbit_b32 v{R+6*i+j}, v{R+6*i+j+1}, v{R+6*i+j}, s21")
        a.lds(f"ds_write_b128 v4, {v(R+6*i,4)} offset:{koff+32+1024*i}")
    setexec(a, 0xffffff)
    a.lds(f"ds_write_b16 v5, v{R+24} offset:{koff}")
    a.e("s_mov_b64 exec, -1")

def convu_wait(a):
    a.e("s_lshr_b32 s21, s3, 5")
    a.e("v_mul_u32_u24 v8, 18, v0")
    a.e("v_add_u32 v8, s21, v8")
    a.e("v_and_b32 v9, 31, v8")
    a.e("v_add_u32 v9, 224, v9")
    a.e("v_cmp_gt_u32 vcc, 256, v8")
    a.e("v_subrev_u32 v8, 256, v8")
    a.e("v_lshrrev_b32 v8, 2, v8")
    a.e("v_cndmask_b32 v8, v8, v9, vcc")
    flag_wait(a, 0, 8, 10, 6)

def convu_issue(a, CH_s, UD, rhos, tag):
    a.e("v_sub_u32 v4, 63, v0")
    a.e("v_lshlrev_b32 v4, 6, v4")
    a.e(f"s_lshl_b32 s21, s{CH_s}, 12")
    a.e(f"s_add_u32 s21, s21, {WS_U}")
    a.e(f"s_mov_b32 s23, s{UD}")
    if rhos[0] == 's':
        a.e(f"s_lshl_b32 s20, s{rhos[1]}, 4")
        a.e("s_add_u32 s21, s21, s20")
        a.e(f"s_mul_i32 s20, s{rhos[1]}, {CV_USZ}")
        a.e("s_add_u32 s23, s23, s20")
        rhos = [0]
    a.e("v_lshl_add_u32 v5, v0, 1, s23")
    a.e("v_mov_b32 v6, 0")
    for r in rhos:
        a.e(f"s_add_u32 m0, s23, {CV_USZ*r}")
        a.lds(f"ds_write_b16 v5, v6 offset:{1024+CV_USZ*r}")
        a.vmem(f"buffer_load_dwordx4 v4, s[36:39], s21 offen {SC} lds", tag)
        a.e("s_add_u32 s21, s21, 16")

def lds_add(a, T, off):
    a.e("s_mov_b64 exec, 1")
    a.lds(f"ds_add_u32 v{T}, v{T+1} offset:{off}")
    a.e("s_mov_b64 exec, -1")
PW2 = 4864
VD = 180
FULL, FREE = 64, 100
F1_AT = 2

def gen(a):
    K = NAME + "_kernel"
    kernel_head(a, K)
    a.e("s_cmp_ge_u32 s2, 256")
    a.e("s_cbranch_scc1 L_end")
    st = NStamps(a); st.real("rt0"); st("t0")
    a.e("s_load_dwordx4 s[4:7], s[0:1], 0")
    a.e("s_load_dwordx4 s[8:11], s[0:1], 32")
    a.e("s_load_dwordx4 s[12:15], s[0:1], 48")
    a.e("s_load_dwordx2 s[16:17], s[0:1], 96")
    a.e("v_lshrrev_b32 v1, 6, v0")
    a.e("v_and_b32 v0, 63, v0")
    a.e("v_readfirstlane_b32 s18, v1")
    a.e("v_lshlrev_b32 v12, 2, v0")
    a.e("v_mov_b32 v13, 0")
    a.e(f"ds_write_b32 v12, v13 offset:{L_CNT}")
    a.e("s_and_b32 s43, s2, 3")
    a.e("s_lshl_b32 s43, s43, 2")
    a.e("s_bfe_u32 s19, s2, 0x20003")
    a.e("s_add_u32 s43, s43, s19")
    a.e("s_bfe_u32 s44, s2, 0x10002")
    a.e("s_mul_i32 s44, s44, 7")
    a.e("s_lshr_b32 s45, s2, 5")
    a.e("s_add_u32 s44, s44, s45")
    RB, CT = 43, 44
    a.e(f"s_and_b32 s{RHO}, s18, 3")
    a.e("s_lshr_b32 s19, s18, 2")
    a.e(f"s_lshl_b32 s{CVK}, s18, 13")
    a.e(f"s_add_u32 s{CVK}, s{CVK}, {L_CVK}")
    a.e(f"s_mul_i32 s{CVU}, s19, {4*CV_USZ}")
    a.e(f"s_lshl_b32 s{GCNT}, s19, 2")
    a.e(f"s_add_u32 s{GCNT}, s{GCNT}, {L_CNT}")
    a.e(f"s_mov_b32 s{GTGT}, 0")
    a.e(f"s_mov_b32 s{ROLE}, s19")
    a.e(f"s_mov_b32 s{ROUNDS}, 1")
    a.e("s_lshl_b32 s3, s2, 1")
    a.e("s_add_u32 s3, s3, s19")
    a.e("s_add_u32 s3, s3, 128")
    a.e("s_lshl_b32 s19, s18, 5")
    a.e("s_and_b32 s20, s2, 31")
    a.e("s_add_u32 s19, s19, s20")
    a.e("s_lshl_b32 s20, s2, 2")
    a.e("s_add_u32 s20, s20, s18")
    a.e("s_add_u32 s20, s20, 252")
    a.e("s_cmp_ge_u32 s18, 4")
    a.e("s_cselect_b32 s20, s20, -1")
    a.e(f"s_mul_i32 s21, s{RHO}, {PW2}")
    a.e(f"s_mul_i32 s{PBASE}, s18, {PW2}")
    a.e(f"s_add_u32 s{PBASE}, s{PBASE}, {L_RING}")
    a.e("s_cmp_eq_u32 s45, 7")
    a.e("s_cselect_b32 s99, s19, s20")
    a.e(f"s_cselect_b32 s{PBASE}, s{PBASE}, s21")
    prep_setup(a)
    prep_task(a, 99)
    a.e("s_waitcnt lgkmcnt(0)")
    a.e("s_cmp_eq_u32 s99, -1")
    a.e("s_cbranch_scc1 L_nopi")
    srd(a, 24, 8, SZ); srd(a, 28, 10, SZ); srd(a, 32, 12, 576*8)
    prep_issue(a, VD)
    a.label("L_nopi")
    a.e("s_barrier")
    a.e("s_cmp_eq_u32 s45, 7")
    a.e("s_cbranch_scc1 L_spare")
    a.e("s_cmp_ge_u32 s18, 4")
    a.e("s_cbranch_scc1 L_mma")
    n0 = st.n
    a.label("L_ld")
    a.e("s_cmp_lg_u32 s2, 223")
    a.e("s_cbranch_scc1 L_nomk")
    a.e("s_cmp_lg_u32 s18, 3")
    a.e("s_cbranch_scc1 L_nomk")
    a.e("s_load_dwordx2 s[20:21], s[0:1], 88")
    a.e("s_waitcnt lgkmcnt(0)")
    srd(a, 24, 20, 256)
    srd(a, 36, 16, WS_TOTAL)
    a.e(f"v_mov_b32 v2, {WS_E}")
    a.e("v_mov_b32 v3, 0")
    a.e("buffer_load_dwordx2 v[4:5], v2, s[36:39], 0 offen sc0 sc1")
    a.e("s_waitcnt vmcnt(0)")
    a.e("v_add_co_u32 v4, vcc, 1, v4")
    a.e("s_nop 1")
    a.e("v_addc_co_u32 v5, vcc, 0, v5, vcc")
    a.e("v_or_b32 v5, 0x80000000, v5")
    a.e("s_mov_b64 exec, 1")
    a.e("buffer_store_dwordx2 v[4:5], v3, s[24:27], 0 offen sc0 sc1")
    a.e("buffer_store_dwordx2 v[4:5], v2, s[36:39], 0 offen sc0 sc1")
    a.e("s_mov_b64 exec, -1")
    a.label("L_nomk")
    a.e("s_setprio 3")
    a.e("v_lshrrev_b32 v4, 4, v0")
    a.e("v_lshlrev_b32 v6, 1, v4")
    a.e("v_and_b32 v7, 15, v0")
    a.e("v_xor_b32 v6, v6, v7")
    a.e("v_mul_u32_u24 v5, 3456, v4")
    a.e("v_lshl_add_u32 v2, v6, 4, v5")
    a.e("v_xor_b32 v6, 8, v6")
    a.e("v_lshl_add_u32 v3, v6, 4, v5")
    a.e("v_lshrrev_b32 v5, 3, v0")
    a.e("v_mul_u32_u24 v6, 2304, v5")
    a.e("v_lshrrev_b32 v5, 1, v5")
    a.e("v_and_b32 v7, 7, v0")
    a.e("v_xor_b32 v5, v5, v7")
    a.e("v_lshl_add_u32 v8, v5, 4, v6")
    a.e("v_xor_b32 v5, 4, v5")
    a.e("v_lshl_add_u32 v9, v5, 4, v6")
    a.e(f"v_add_u32 v9, {8*2304}, v9")
    a.e("s_lshr_b32 s46, s2, 3")
    a.e("s_mul_i32 s19, s46, 57")
    a.e("s_lshr_b32 s19, s19, 9")
    a.e("s_mul_i32 s19, s19, 9")
    a.e("s_sub_u32 s46, s46, s19")
    a.e(f"s_mul_i32 s19, s{RB}, {128*1152}")
    a.e(f"s_lshl_b32 s20, s{CT}, 8")
    a.e("s_add_u32 s48, s4, s19")
    a.e("s_addc_u32 s49, s5, 0")
    a.e(f"s_mov_b32 s50, {128*1152}")
    a.e("s_mov_b32 s51, 0x00020000")
    a.e("s_add_u32 s52, s6, s20")
    a.e("s_addc_u32 s53, s7, 0")
    a.e(f"s_sub_u32 s54, {576*3456}, s20")
    a.e("s_mov_b32 s55, 0x00020000")
    a.e("s_load_dwordx2 s[28:29], s[0:1], 72")
    a.e("v_and_b32 v13, 3, v0")
    a.e("v_bfe_u32 v14, v0, 3, 1")
    a.e("v_lshl_or_b32 v13, v14, 2, v13")
    a.e("v_xor_b32 v13, 4, v13")
    a.e("v_lshlrev_b32 v13, 5, v13")
    a.e("v_lshl_add_u32 v14, v0, 8, v13")
    a.e("v_lshlrev_b32 v15, 1, v0")
    a.e(f"v_mov_b32 v10, {L_CNT}")
    a.e("v_mov_b32 v11, 1")
    srd(a, 36, 16, WS_TOTAL)
    a.e("s_mov_b32 s58, s18")
    a.e("s_branch L_ld_go")
    a.label("L_ld_issue")
    a.e("s_mov_b64 exec, 1")
    a.e("ds_add_rtn_u32 v12, v10, v11 offset:28")
    a.e("s_mov_b64 exec, -1")
    a.e("s_waitcnt lgkmcnt(0)")
    a.e("v_readfirstlane_b32 s58, v12")
    a.e("s_add_u32 s58, s58, 4")
    a.e("s_cmp_gt_u32 s58, 8")
    a.e("s_cbranch_scc1 L_ld_done")
    a.e("s_lshl_b32 s19, s58, 2")
    a.e(f"s_add_u32 s19, s19, {L_CNT+FREE-16}")
    a.e("v_mov_b32 v12, s19")
    lds_spin(a, 12, 4)
    a.label("L_ld_go")
    a.e("s_add_u32 s59, s46, s58")
    a.e("s_sub_u32 s19, s59, 9")
    a.e("s_cmp_ge_u32 s59, 9")
    a.e("s_cselect_b32 s59, s19, s59")
    a.e("s_and_b32 s47, s58, 3")
    a.e("s_lshl_b32 s47, s47, 15")
    a.e(f"s_add_u32 s47, s47, {L_RING}")
    a.e(f"s_mul_i32 s19, s59, {64*3456}")
    a.e("s_lshl_b32 s20, s59, 7")
    a.e(f"v_mov_b32 v12, {L_CNT+24}")
    lds_spin(a, 12, "s58")
    for i in range(16):
        a.e(f"s_add_u32 m0, s47, {1024*i}")
        if i and i % 2 == 0: a.e(f"s_add_u32 s20, s20, {1152 if (i//2) % 2 else 31*1152}")
        else: a.e("s_nop 0")
        a.e(f"buffer_load_dwordx4 v{3 if (i//2) % 2 else 2}, s[52:55], s19 offen lds")
        a.e(f"s_add_u32 m0, s47, {16384+1024*i}")
        a.e(f"s_add_u32 s19, s19, {4*3456}")
        a.e(f"buffer_load_dwordx4 v{8 + i % 2}, s[48:51], s20 offen lds")
    lds_add(a, 10, 24)
    a.e(f"s_cmp_lg_u32 s{CT}, 13")
    a.e("s_cbranch_scc1 L_ld_ng")
    a.e("s_mov_b32 s30, 1152")
    a.e("s_mov_b32 s31, 0x00020000")
    a.e("s_lshl_b32 s20, s59, 7")
    a.e("buffer_load_ushort v16, v15, s[28:31], s20 offen")
    a.e("v_add_u32 v17, s47, v14")
    a.e("s_waitcnt vmcnt(0)")
    a.e("ds_write_b16 v17, v16")
    a.label("L_ld_ng")
    a.e("s_lshl_b32 s19, s58, 2")
    a.e("v_add_u32 v12, s19, v10")
    a.e("s_waitcnt vmcnt(0)")
    a.e("s_mov_b64 exec, 1")
    a.e(f"ds_add_u32 v12, v11 offset:{FULL}")
    a.e("s_mov_b64 exec, -1")
    a.e("s_branch L_ld_issue")
    a.label("L_ld_done")
    a.e("s_setprio 0")
    st("b8")
    a.e("s_cmp_ge_u32 s18, 2")
    a.e("s_cbranch_scc1 L_aux2")
    a.e("s_branch L_cvwait")
    a.label("L_aux2")
    a.reset_counters()
    a.e(f"v_mov_b32 v20, {L_CNT+196}")
    lds_spin(a, 20, "0x80000000")
    tag_from_lds(a, 20)
    a.e("s_and_b32 s46, s18, 1")
    a.e(f"v_mov_b32 v4, {L_CNT+12}")
    lds_spin(a, 4, 4)
    a.e("s_add_u32 s56, s3, s46")
    a.e("s_lshl_b32 s20, s56, 12")
    srd(a, 48, 14, SZ)
    a.e("v_lshlrev_b32 v4, 4, v0")
    KX = 128
    for i in range(4): a.vmem(f"buffer_load_dwordx4 {v(KX+4*i,4)}, v4, s[48:51], s20 offen offset:{1024*i}", "K")
    a.e("v_mov_b32 v3, 1")
    st("m0")
    convu_wait(a)
    st("m2")
    a.e(f"s_mul_i32 s41, s46, {4*CV_USZ}")
    convu_issue(a, 56, 41, [0, 1, 2, 3], "U")
    for i in range(4):
        X = KX + 4*i; R1, R2, R3 = 64+12*i, 68+12*i, 72+12*i
        a.e("v_mov_b32 v6, 0"); a.e("v_mov_b32 v7, 0")
        if i:
            a.e(f"v_readlane_b32 s20, v{X-2}, 63")
            a.e(f"v_readlane_b32 s21, v{X-1}, 63")
            a.e("s_nop 1")
            a.e("v_mov_b32 v6, s20"); a.e("v_mov_b32 v7, s21")
        a.e("s_nop 1")
        a.e(f"v_mov_b32_dpp v6, v{X+2} wave_shr:1 row_mask:0xf bank_mask:0xf")
        a.e(f"v_mov_b32_dpp v7, v{X+3} wave_shr:1 row_mask:0xf bank_mask:0xf")
        a.e(f"v_alignbit_b32 v{R1}, v{X}, v7, 16")
        for j in range(1, 4): a.e(f"v_alignbit_b32 v{R1+j}, v{X+j}, v{X+j-1}, 16")
        a.e(f"v_mov_b32 v{R2}, v7")
        for j in range(1, 4): a.e(f"v_mov_b32 v{R2+j}, v{X+j-1}")
        a.e(f"v_alignbit_b32 v{R3}, v7, v6, 16")
        for j in range(1, 4): a.e(f"v_mov_b32 v{R3+j}, v{R1+j-1}")
    a.e("s_lshl_b32 s21, s46, 2")
    a.e(f"s_add_u32 s21, s21, {L_CNT+FREE+20}")
    a.e("v_mov_b32 v4, s21")
    lds_spin(a, 4, 4)
    st("m5")
    a.e("s_lshl_b32 s41, s46, 15")
    a.e(f"s_add_u32 s41, s41, {L_CVK}")
    a.e("v_lshl_add_u32 v4, v0, 4, s41")
    for i in range(4):
        for (r, R_) in ((0, KX+4*i), (1, 64+12*i), (2, 68+12*i), (3, 72+12*i)):
            a.lds(f"ds_write_b128 v4, {v(R_,4)} offset:{8192*r+32+1024*i}")
    a.e("v_mov_b32 v6, 0"); a.e("v_mov_b32 v7, 0")
    a.e("v_lshl_add_u32 v4, v0, 3, s41")
    setexec(a, 0xf)
    for r in range(4): a.lds(f"ds_write_b64 v4, v[6:7] offset:{8192*r}")
    a.e("s_mov_b64 exec, -1")
    st("m6")
    a.wait_vm(None)
    st("m7"); st("m8")
    a.e("s_lshl_b32 s21, s46, 2")
    a.e(f"s_add_u32 s21, s21, {L_CNT+16}")
    a.e("v_mov_b32 v4, s21")
    a.lds("ds_write_b32 v4, v3")
    a.e("s_setprio 0")
    a.label("L_cvwait")
    st("cvk")
    a.e(f"s_lshl_b32 s21, s{ROLE}, 2")
    a.e(f"s_add_u32 s21, s21, {L_CNT+16}")
    a.e("v_mov_b32 v1, s21")
    lds_spin(a, 1, 1)
    tag_from_lds(a, 8)
    st("f1")
    a.e("s_branch L_conv")
    a.label("L_mma")
    a.reset_counters()
    st.n = n0; st.names = st.names[:n0]
    a.e("s_setprio 1")
    srd(a, 36, 16, WS_TOTAL)
    a.e("s_cmp_eq_u32 s99, -1")
    a.e("s_cbranch_scc1 L_mnp")
    a.e("s_waitcnt vmcnt(0)")
    st("p0")
    prep_compute(a, VD, 64)
    st("p1")
    a.label("L_mnp")
    a.reset_counters()
    WA, XA, ACC, FR = 2, 10, 16, 80
    a.e("v_lshrrev_b32 v12, 4, v0")
    a.e("v_bfe_u32 v13, v0, 2, 2")
    a.e("v_and_b32 v14, 1, v12")
    a.e("v_lshl_or_b32 v14, v14, 2, v13")
    a.e("s_and_b32 s22, s18, 1")
    a.e("s_lshl_b32 s22, s22, 2")
    a.e("v_xor_b32 v14, s22, v14")
    a.e("v_lshl_add_u32 v15, v12, 3, v13")
    a.e("v_lshlrev_b32 v15, 8, v15")
    a.e("v_lshl_add_u32 v15, v14, 5, v15")
    a.e("v_and_b32 v14, 3, v0")
    a.e("v_lshl_add_u32 v15, v14, 3, v15")
    a.e(f"v_add_u32 v{WA}, {L_RING}, v15")
    for mt in range(1, 4): a.e(f"v_xor_b32 v{WA+mt}, {32*mt}, v{WA}")
    for mt in range(4): a.e(f"v_add_u32 v{WA+4+mt}, 0x10000, v{WA+mt}")
    SO = 1
    a.e("v_and_b32 v13, 15, v0")
    a.e(f"s_lshl_b32 s21, s{CT}, 5")
    a.e("s_lshl_b32 s22, s22, 2")
    a.e("s_add_u32 s56, s21, s22")
    a.e("v_add_u32 v14, s56, v12")
    a.e("v_lshlrev_b32 v14, 14, v14")
    a.e("s_bfe_u32 s23, s18, 0x10001")
    a.e(f"s_lshl_b32 s21, s{RB}, 10")
    a.e("s_lshl_b32 s22, s23, 9")
    a.e("s_add_u32 s21, s21, s22")
    a.e("v_lshl_add_u32 v14, v13, 4, v14")
    a.e(f"v_add_u32 v{SO}, s21, v14")
    a.e("v_lshrrev_b32 v14, 1, v13")
    a.e("v_xor_b32 v14, v14, v12")
    a.e("s_lshl_b32 s21, s23, 13")
    a.e(f"s_add_u32 s21, s21, {L_RING+16384}")
    a.e("v_lshlrev_b32 v15, 7, v13")
    a.e("v_lshl_add_u32 v15, v14, 4, v15")
    a.e(f"v_add_u32 v{XA}, s21, v15")
    a.e(f"v_xor_b32 v{XA+1}, 64, v{XA}")
    a.e(f"v_add_u32 v{XA+2}, 0x10000, v{XA}")
    a.e(f"v_add_u32 v{XA+3}, 0x10000, v{XA+1}")
    a.e("s_waitcnt lgkmcnt(0)"); a.lgkm = []
    srd(a, 48, 16, QKV_BYTES)
    srd(a, 36, 16, WS_TOTAL)
    def reads(c):
        f = FR + 64 * (c % 2); slot = c % 4; hb = slot // 2; ob = 32768 * (slot % 2)
        out = []
        for kh in range(2):
            for i in range(4):
                for hf in range(2):
                    out.append(lambda kh=kh, mt=i, hf=hf: a.lds(f"ds_read_b64_tr_b16 {v(f+16*kh+4*mt+2*hf,2)}, v{WA+4*hb+mt} offset:{ob+(32*kh+4*hf)*256}", f"F{c}_{kh}"))
                out.append(lambda kh=kh, nt=i: a.lds(f"ds_read_b128 {v(f+32+16*kh+4*nt,4)}, v{XA+2*hb+kh} offset:{ob+2048*nt}", f"F{c}_{kh}"))
        return out
    a.e(f"v_mov_b32 v208, {L_CNT}")
    a.e("v_mov_b32 v209, 1")
    def poll_issue(c): a.lds(f"ds_read_b32 v210, v208 offset:{FULL+4*c}", f"poll{c}")
    def poll_check(c):
        a.wait_lds(f"poll{c}")
        d = a.newlabel("full")
        a.e("v_readfirstlane_b32 s22, v210")
        a.e("s_cmp_ge_u32 s22, 1")
        a.e(f"s_cbranch_scc1 {d}")
        a.e(f"v_add_u32 v210, {FULL+4*c}, v208")
        lds_spin(a, 210, 1)
        a.label(d)
        st(f"m{c}")
    a.e("s_load_dwordx2 s[20:21], s[0:1], 88")
    a.e("v_mov_b32 v212, 0")
    a.e("s_waitcnt lgkmcnt(0)")
    srd(a, 24, 20, 256)
    a.e("s_cmp_eq_u32 s99, -1")
    a.e("s_cbranch_scc1 L_ntag")
    a.e("buffer_load_dwordx2 v[214:215], v212, s[24:27], 0 offen sc0 sc1")
    a.label("L_ntag")
    poll_issue(0); poll_check(0)
    for r_ in reads(0): r_()
    a.wait_lds(None)
    lds_add(a, 208, FREE)
    poll_issue(1)
    for c in range(9):
        f = FR + 64 * (c % 2)
        fill = []
        if c + 1 < 9:
            poll_check(c + 1)
            rr = reads(c + 1)
            fill = [(lambda x=rr[2*i], y=rr[2*i+1]: (x(), y())) for i in range(12)] + [None] * 5
            def free_(c=c):
                a.wait_lds(None)
                if c + 1 < 7: lds_add(a, 208, FREE + 4*(c+1))
            fill += [free_] + [None] * 8
            if c + 2 < 9: fill += [lambda c=c: poll_issue(c + 2)]
        else:
            a.wait_lds(None)
        if c == 7: st("b8")
        if c == F1_AT:
            a.e("s_cmp_eq_u32 s99, -1")
            a.e("s_cbranch_scc1 L_nf1")
            a.e("s_waitcnt vmcnt(0)")
            a.e("v_cmp_gt_i32 vcc, 0, v215")
            a.e("s_cbranch_vccnz L_tagok")
            sv = list(a.lgkm)
            tag_fetch_to_lds(a, 212)
            a.lgkm = sv
            a.label("L_tagok")
            a.e(f"v_mov_b32 v212, {L_CNT+192}")
            a.e("ds_write_b64 v212, v[214:215]")
            a.e(f"v_readfirstlane_b32 s{TAG}, v214")
            a.e(f"v_readfirstlane_b32 s{TAG+1}, v215")
            a.e("s_mov_b64 exec, 1")
            a.e("ds_add_rtn_u32 v212, v208, v209 offset:12")
            a.e("s_mov_b64 exec, -1")
            a.e("s_waitcnt lgkmcnt(0)")
            a.e("v_readfirstlane_b32 s22, v212")
            a.e("s_cmp_lg_u32 s22, 3")
            a.e("s_cbranch_scc1 L_nf1")
            flag_write(a, 0, 212); a.vm.pop()
            a.label("L_nf1")
        for kh in range(2):
            for nt in range(4):
                for mt in range(4):
                    acc = v(ACC + (mt*4+nt)*4, 4)
                    first = (c == 0 and kh == 0)
                    a.e(f"v_mfma_f32_16x16x32_bf16 {acc}, {v(f+16*kh+4*mt,4)}, {v(f+32+16*kh+4*nt,4)}, {0 if first else acc}")
                    if fill:
                        x_ = fill.pop(0)
                        if x_: x_()
    a.e("s_cmp_lt_u32 s56, 432")
    a.e("s_cbranch_scc1 L_qkv")
    a.e("s_nop 7")
    G0 = 208
    for nt in range(4): rnd(a, G0+nt, ACC+4*nt)
    for nt in range(4): a.e(f"v_mul_f32 v{G0+nt}, {f32(-1.4426950408889634)}, v{G0+nt}")
    for nt in range(4): a.e(f"v_exp_f32 v{G0+nt}, v{G0+nt}")
    for nt in range(4): a.e(f"v_add_f32 v{G0+nt}, 1.0, v{G0+nt}")
    for nt in range(4): a.e(f"v_rcp_f32 v{G0+nt}, v{G0+nt}")
    for nt in range(4): rnd(a, G0+nt, G0+nt)
    a.e(f"v_and_b32 v2, 0x3fff, v{SO}")
    a.e("v_lshrrev_b32 v2, 1, v2")
    a.e(f"s_mov_b32 s19, {WS_G}")
    setexec(a, 0xffff)
    a.e(f"buffer_store_dwordx2 {v(G0,2)}, v2, s[36:39], s19 offen {SC}")
    a.e(f"buffer_store_dwordx2 {v(G0+2,2)}, v2, s[36:39], s19 offen offset:128 {SC}")
    a.e("s_mov_b64 exec, -1")
    a.e("s_branch L_mdone")
    a.label("L_qkv")
    a.e(f"s_mov_b32 s20, {f32(QSCALE)}")
    a.e("s_cmp_lt_u32 s56, 144")
    a.e("s_cselect_b32 s21, s20, 1.0")
    a.e("s_nop 3")
    for mt in range(4):
        for nt in range(4):
            ac = ACC + (mt*4+nt)*4
            for i in range(4): a.e(f"v_mul_f32 v{ac+i}, s21, v{ac+i}")
            t = FR + 64 + (mt*4+nt)*2
            a.e(f"v_cvt_pk_bf16_f32 v{t}, v{ac}, v{ac+1}")
            a.e(f"v_cvt_pk_bf16_f32 v{t+1}, v{ac+2}, v{ac+3}")
        a.e(f"s_mov_b32 s19, {mt*65536}")
        a.vmem(f"buffer_store_dwordx4 {v(FR+64+mt*8,4)}, v{SO}, s[48:51], s19 offen {SC}")
        a.vmem(f"buffer_store_dwordx4 {v(FR+64+mt*8+4,4)}, v{SO}, s[48:51], s19 offen offset:256 {SC}")
    a.label("L_mdone")
    a.e("s_setprio 0")
    a.e(f"v_mov_b32 v1, {L_CNT+196}")
    lds_spin(a, 1, "0x80000000")
    tag_from_lds(a, 8)
    a.e("s_waitcnt vmcnt(0)")
    a.e(f"v_mov_b32 v1, {L_CNT+8}")
    a.e("v_mov_b32 v2, 1")
    a.e("s_mov_b64 exec, 1")
    a.e("ds_add_rtn_u32 v2, v1, v2")
    a.e("s_mov_b64 exec, -1")
    a.e("s_waitcnt lgkmcnt(0)")
    a.e("v_readfirstlane_b32 s22, v2")
    a.e("s_cmp_lg_u32 s22, 3")
    a.e("s_cbranch_scc1 L_cvwait")
    flag_write(a, 1, 120); a.vm.pop()
    a.e("s_branch L_cvwait")
    a.label("L_spare")
    a.reset_counters()
    st.n = n0; st.names = st.names[:n0]
    a.e("s_and_b32 s46, s2, 31")
    a.e("s_and_b32 s58, s18, 3")
    a.e("s_lshr_b32 s59, s18, 2")
    a.e("s_lshl_b32 s3, s46, 2")
    a.e("s_add_u32 s3, s3, s59")
    a.e(f"s_mov_b32 s{ROUNDS}, 2")
    a.e(f"s_add_u32 s{ROLE}, s{ROLE}, 2")
    a.e("s_waitcnt lgkmcnt(0)"); a.lgkm = []
    srd(a, 36, 16, WS_TOTAL)
    a.e("s_getpc_b64 s[20:21]")
    a.label("L_pc")
    a.e(f"s_sub_u32 s20, s20, L_pc-{K}")
    a.e("s_subb_u32 s21, s21, 0")
    a.e(f"s_mov_b32 s22, L_codeend-{K}")
    a.e("s_mov_b32 s23, 0x00020000")
    a.e("v_lshlrev_b32 v2, 7, v0")
    a.e(f"s_lshl_b32 s19, s{RHO}, 13")
    a.e("buffer_load_dword v212, v2, s[20:23], s19 offen")
    srd(a, 48, 14, SZ)
    a.e("s_lshl_b32 s19, s46, 3")
    a.e("s_add_u32 s19, s19, s18")
    a.e("s_mul_i32 s19, s19, 9216")
    a.e("buffer_load_dword v210, v2, s[48:51], s19 offen")
    a.e("s_add_u32 s19, s19, 8192")
    setexec(a, 0xff)
    a.e("buffer_load_dword v211, v2, s[48:51], s19 offen")
    a.e("s_mov_b64 exec, -1")
    a.e("s_waitcnt vmcnt(3)")
    st("m1")
    prep_compute(a, VD, 64)
    st("m6")

    a.reset_counters()
    a.e("s_cmp_lg_u32 s18, 4")
    a.e("s_cbranch_scc1 L_sp1")
    tag_fetch_to_lds(a, 8)
    a.label("L_sp1")
    convk_issue(a, 3, RHO, 120, "KA")
    a.e("s_add_u32 s56, s3, 2")
    convk_issue(a, 56, RHO, 146, "KB")
    a.e("s_waitcnt vmcnt(18) lgkmcnt(0)"); a.reset_counters()
    st("m7")
    a.e("s_barrier")
    st("b8")
    tag_from_lds(a, 8)
    a.e("s_cmp_lg_u32 s18, 0")
    a.e("s_cbranch_scc1 L_spc")
    flag_write(a, 0, 8)
    a.label("L_spc")
    a.reset_counters()
    a.e("s_waitcnt vmcnt(0)")
    a.e(f"s_mov_b32 s100, s{CVK}")
    a.e(f"s_mov_b32 s101, s{CVU}")
    convk_write(a, RHO, CVK, 0, 146, "KB")
    a.e("s_lshl_b32 s19, s59, 16")
    a.e(f"s_add_u32 s{CVK}, s{CVK}, s19")
    a.e(f"s_sub_u32 s{CVK}, s{CVK}, 32768")
    a.e(f"s_add_u32 s{CVU}, s{CVU}, {8*CV_USZ}")
    convk_write(a, RHO, CVK, 0, 120, "KA")
    st("cvk")
    convu_wait(a)
    st("f1")
    convu_issue(a, 3, CVU, ['s', RHO], "U")
    convu_issue(a, 56, 101, ['s', RHO], "U2")
    a.wait_vm(None)
    a.label("L_conv")
    a.reset_counters()
    st("cv0")
    AF, ACC, BF = 16, 80, 112
    a.e("s_load_dwordx2 s[6:7], s[0:1], 64")
    a.e("s_lshl_b32 s20, s3, 12")
    a.e(f"s_mul_i32 s23, s{RHO}, {CV_USZ}")
    a.e(f"s_add_u32 s23, s23, s{CVU}")
    a.e("v_lshlrev_b32 v13, 4, v0")
    a.e(f"v_add_u32 v14, s{CVK}, v13")
    a.e("v_lshrrev_b32 v7, 4, v0")
    a.e("v_bfe_u32 v8, v0, 2, 2")
    a.e("v_and_b32 v9, 3, v0")
    a.e("v_lshlrev_b32 v10, 3, v7")
    a.e("v_add3_u32 v10, v10, v8, v9")
    a.e(f"v_lshl_add_u32 v10, v10, 3, s{CVK}")
    a.e("v_and_b32 v11, 15, v0")
    a.e("v_lshlrev_b32 v12, 4, v7")
    a.e("v_lshlrev_b32 v8, 3, v11")
    a.e("v_sub_u32 v12, v12, v8")
    a.e(f"v_add_u32 v12, {2*508-64*14}, v12")
    a.e("v_add_u32 v12, s23, v12")
    a.e("s_lshr_b32 s21, s3, 1")
    a.e("s_lshl_b32 s21, s21, 2")
    a.e("s_waitcnt lgkmcnt(0)")
    a.e("s_load_dword s24, s[6:7], s21")
    def rdA(kap):
        for hf in range(2):
            a.lds(f"ds_read_b64_tr_b16 {v(AF+4*kap+2*hf,2)}, v10 offset:{8+256*kap+32*hf}", f"A{kap}")
    lams = []
    lo, hi = -1, 14
    while lo <= hi:
        lams.append(hi); hi -= 1
        if lo <= hi: lams.append(lo); lo += 1
    def rdB(i):
        lam = lams[i]; b = BF + 4 * (i % 4)
        for hf in range(2):
            a.lds(f"ds_read_b64 {v(b+2*hf,2)}, v12 offset:{64*(14-lam)+8*hf}", f"B{i}")
    rdA(0); rdB(0); rdB(1)
    for kap in (1, 3, 5, 7): rdA(kap)
    restA = [9, 11, 13, 15, 2, 4, 6, 8, 10, 12, 14]
    seen = set()
    for i, lam in enumerate(lams):
        if i + 2 < len(lams): rdB(i + 2)
        a.wait_lds(f"B{i}")
        b = BF + 4 * (i % 4)
        for tau in range(8):
            kap = 2 * tau - lam
            if kap < 0 or kap > 15: continue
            assert kap not in restA
            a.wait_lds(f"A{kap}")
            w = v(ACC + 4*tau, 4)
            a.e(f"v_mfma_f32_16x16x32_bf16 {w}, {v(AF+4*kap,4)}, {v(b,4)}, {w if tau in seen else 0}")
            seen.add(tau)
            for _ in range(2 if i == 0 else 1):
                if restA: rdA(restA.pop(0))
    st("cv1")
    a.e(f"s_lshl_b32 s21, s{RHO}, 13")
    a.e(f"s_sub_u32 s22, s{CVK}, s21")
    a.e(f"s_lshl_b32 s21, s{RHO}, 11")
    a.e("s_add_u32 s22, s22, s21")
    a.e("v_add_u32 v15, s22, v13")
    for i in range(8): a.e(f"v_mov_b32 v{AF+32+i}, 0")
    for tau in range(8):
        a.lds(f"ds_write_b128 v14, {v(ACC+4*tau,4)} offset:{1024*tau}")
    a.e("v_lshl_add_u32 v13, v11, 2, v7")
    a.e("v_lshlrev_b32 v13, 1, v13")
    a.e(f"v_sub_u32 v13, {2*511-128}, v13")
    a.e(f"s_lshl_b32 s21, s{RHO}, 8")
    a.e(f"s_sub_u32 s21, s{CVU}, s21")
    a.e("v_add_u32 v13, s21, v13")
    a.e("v_lshlrev_b32 v14, 5, v11")
    a.e("v_lshl_add_u32 v14, v7, 3, v14")
    a.e(f"s_lshl_b32 s21, s{RHO}, 10")
    a.e("s_add_u32 s21, s21, s20")
    a.e(f"s_add_u32 s21, s21, {WS_Z}")
    st("cv2")
    group_barrier(a, 1)
    st("cv3")
    a.e("s_lshl_b32 s25, s24, 16")
    a.e("s_and_b32 s24, s24, 0xffff0000")
    a.e("s_bitcmp1_b32 s3, 0")
    a.e("s_cselect_b32 s24, s24, s25")
    for j in range(2):
        for sw in range(4):
            a.lds(f"ds_read_b128 {v(AF+16*j+4*sw,4)}, v15 offset:{8192*sw+1024*j}", f"R{j}")
        for i in range(4):
            a.lds(f"ds_read_u16_d16_hi v{AF+32+4*j+i}, v13 offset:{CV_USZ*i+128*(1-j)}", f"R{j}")
    for j in range(2):
        a.wait_lds(f"R{j}")
        y = AF + 16*j; u = AF + 32 + 4*j
        for i in range(4): a.e(f"v_add_f32 v{y+i}, v{y+i}, v{y+4+i}")
        for i in range(4): a.e(f"v_add_f32 v{y+8+i}, v{y+8+i}, v{y+12+i}")
        for i in range(4): a.e(f"v_mul_f32 v{u+i}, s24, v{u+i}")
        for i in range(4): a.e(f"v_add_f32 v{y+i}, v{y+i}, v{y+8+i}")
        for i in range(4): rnd(a, u+i, u+i)
        for i in range(4): rnd(a, y+i, y+i)
        for i in range(4): a.e(f"v_add_f32 v{y+i}, v{y+i}, v{u+i}")
        a.e(f"v_cvt_pk_bf16_f32 v{y}, v{y}, v{y+1}")
        a.e(f"v_cvt_pk_bf16_f32 v{y+1}, v{y+2}, v{y+3}")
        a.vmem(f"buffer_store_dwordx2 {v(y,2)}, v14, s[36:39], s21 offen offset:{512*j} {SC}")
    a.e(f"s_sub_u32 s{ROUNDS}, s{ROUNDS}, 1")
    a.e(f"s_cmp_eq_u32 s{ROUNDS}, 0")
    a.e("s_cbranch_scc1 L_attn")
    group_barrier(a, 1)
    a.e("s_add_u32 s3, s3, 2")
    a.e(f"s_mov_b32 s{CVK}, s100")
    a.e(f"s_mov_b32 s{CVU}, s101")
    a.e("s_branch L_conv")
    a.label("L_attn")
    a.reset_counters()
    st("conv")
    a.e("s_and_b32 s22, s2, 7")
    a.e("s_lshl_b32 s22, s22, 1")
    a.e("s_bfe_u32 s19, s2, 0x10003")
    a.e("s_add_u32 s40, s22, s19")
    a.e("s_lshr_b32 s41, s2, 4")
    a.e("s_lshr_b32 s23, s18, 2")
    a.e("s_mul_i32 s24, s40, 9")
    for i in range(3):
        a.e(f"s_sub_i32 s{32+i}, s41, {2-i}")
        a.e(f"s_max_i32 s{32+i}, s{32+i}, 0")
    Q1, Q2 = 8, 12
    KB_ = [16, 22]; VB_ = [28, 36]; SS = [44, 60]; PP = [76, 84]; OA = 92; NM = 14
    a.e("s_cmp_ge_u32 s18, 4")
    a.e("s_cbranch_scc1 L_nostage")
    a.e("v_lshrrev_b32 v1, 3, v0")
    a.e("v_min_u32 v1, 2, v1")
    a.e("v_mul_u32_u24 v1, 144, v1")
    a.e("v_bfe_u32 v2, v0, 2, 1")
    a.e("v_lshl_add_u32 v1, v2, 3, v1")
    a.e("v_add_u32 v1, s24, v1")
    a.e("v_lshrrev_b32 v1, 5, v1")
    a.e("v_and_b32 v2, 3, v0")
    a.e("v_min_u32 v2, 2, v2")
    a.e("v_sub_u32 v2, s41, v2")
    a.e("v_max_i32 v2, 0, v2")
    a.e("v_cmp_lt_u32 vcc, 6, v1")
    a.e("v_subrev_u32 v3, 7, v1")
    a.e("v_lshrrev_b32 v4, 2, v2")
    a.e("v_cndmask_b32 v1, v1, v3, vcc")
    a.e("v_add_u32 v3, 4, v4")
    a.e("v_cndmask_b32 v4, v4, v3, vcc")
    a.e("v_and_b32 v2, 3, v2")
    a.e("v_lshl_add_u32 v1, v1, 2, v2")
    a.e("v_lshl_add_u32 v1, v1, 3, v4")
    for i in range(3): a.e(f"s_lshl_b32 s{32+i}, s{32+i}, 10")
    a.e("s_add_u32 s26, s24, s18")
    a.e("s_lshl_b32 s26, s26, 14")
    a.e(f"s_mul_i32 s27, s18, {PL}")
    a.e("s_lshl_b32 s28, s18, 10")
    a.e("s_add_u32 s29, s24, 8")
    a.e("s_lshl_b32 s29, s29, 14")
    combos = [(0, 2, L_Q, 1024), (1, 2, L_KP+2048, PL), (2, 2, L_VP+2048, PL), (1, 1, L_KP+1024, PL), (2, 1, L_VP+1024, PL), (1, 0, L_KP, PL), (2, 0, L_VP, PL)]
    for n in range(2):
        so, do = 48 + 2*n, 49 + 2*n
        for jj in range(4):
            ty, i, dst, stride = combos[min(4*n + jj, 6)]
            if jj == 0:
                a.e(f"s_add_u32 s{so}, s{32+i}, {ty*144*16384}")
                a.e(f"s_mov_b32 s{do}, {dst+8*stride}")
            else:
                a.e(f"s_add_u32 s19, s{32+i}, {ty*144*16384}")
                a.e(f"s_cmp_eq_u32 s18, {jj}")
                a.e(f"s_cselect_b32 s{so}, s19, s{so}")
                a.e(f"s_cselect_b32 s{do}, {dst+8*stride}, s{do}")
        a.e(f"s_add_u32 s{so}, s{so}, s29")
    a.e("s_cmp_lg_u32 s18, 0")
    a.e("s_cbranch_scc1 L_w2_o")
    flag_wait(a, 1, 1, 2, 2)
    a.e(f"v_mov_b32 v2, {L_CNT+36}")
    a.e("v_mov_b32 v3, 1")
    a.e("ds_write_b32 v2, v3")
    a.e("s_branch L_w2_j")
    a.label("L_w2_o")
    a.e(f"v_mov_b32 v2, {L_CNT+36}")
    lds_spin(a, 2, 1)
    a.label("L_w2_j")
    a.e(f"s_cmp_eq_u32 s{ROLE}, 0")
    a.e("s_cselect_b32 s19, 8, 4")
    a.e("s_cselect_b32 s20, 4, 8")
    a.e(f"s_add_u32 s19, s19, {L_CNT}")
    a.e("v_mov_b32 v1, s19")
    lds_spin(a, 1, "s20")
    a.e("v_lshlrev_b32 v2, 4, v0")
    for n, (ty, i, dst, stride) in enumerate(combos):
        for q in range(2):
            a.e(f"s_add_u32 m0, s{28 if stride == 1024 else 27}, {dst + 4*q*stride}")
            a.e(f"s_add_u32 s35, s26, s{32+i}")
            a.e(f"s_add_u32 s35, s35, {(ty*144+4*q)*16384}")
            a.vmem(f"buffer_load_dwordx4 v2, s[36:39], s35 offen {SC} lds", "S")
        if n in (2, 5):
            k_ = 0 if n == 2 else 1
            a.e(f"s_mov_b32 m0, s{49+2*k_}")
            a.e("s_nop 0")
            a.vmem(f"buffer_load_dwordx4 v2, s[36:39], s{48+2*k_} offen {SC} lds", "S")
    a.e("v_mov_b32 v5, 0x3f803f80")
    a.e("v_lshlrev_b32 v6, 2, v0")
    a.e("s_lshl_b32 s35, s18, 8")
    a.e("v_add_u32 v6, s35, v6")
    for i in range(3): a.lds(f"ds_write_b32 v6, v5 offset:{L_ONE+1024*i}")
    a.label("L_nostage")
    st("f2")
    a.e("v_and_b32 v1, 31, v0")
    a.e("v_lshrrev_b32 v15, 5, v0")
    a.e("s_lshl_b32 s46, s41, 2")
    a.e(f"s_add_u32 s46, s46, s{RHO}")
    a.e("v_lshlrev_b32 v3, 3, v1")
    a.e("s_mul_i32 s25, s23, 5")
    a.e(f"s_lshl_b32 s35, s{RHO}, 8")
    a.e("s_lshl_b32 s26, s25, 10")
    a.e("s_add_u32 s26, s26, s35")
    a.e(f"s_add_u32 s26, s26, {L_Q}")
    a.e("v_lshl_add_u32 v108, v15, 11, v3")
    a.e("v_add_u32 v108, s26, v108")
    a.e(f"s_add_u32 s26, s35, {L_Q+4096}")
    a.e("v_add_u32 v109, s26, v3")
    a.e(f"s_lshl_b32 s35, s{RHO}, 8")
    a.e(f"s_mul_i32 s25, s25, {PL}")
    a.e("s_add_u32 s26, s25, s35")
    a.e(f"s_add_u32 s26, s26, {L_KP}")
    a.e(f"v_mul_u32_u24 v4, {2*PL}, v15")
    a.e("v_add3_u32 v4, v4, v3, s26")
    a.e(f"v_mul_u32_u24 v5, {5*PL}, v15")
    a.e(f"s_add_u32 s26, s35, {L_KP+4*PL}")
    a.e("v_add3_u32 v3, v5, v3, s26")
    a.e("v_bfe_u32 v5, v0, 2, 2")
    a.e("v_lshl_add_u32 v5, v15, 2, v5")
    a.e("v_lshlrev_b32 v5, 3, v5")
    a.e("v_and_b32 v6, 3, v0")
    a.e(f"v_mul_u32_u24 v7, {PL}, v6")
    a.e(f"s_add_u32 s26, s25, {L_VP}")
    a.e("v_add_u32 v7, s26, v7")
    a.e(f"v_mov_b32 v2, {L_VP+4*PL}")
    m1 = lane_mask(lambda l: (l >> 4) & 1 and (l & 3) == 0); m2 = lane_mask(lambda l: (l >> 4) & 1 and (l & 3) != 0)
    a.e(f"s_mov_b32 s20, 0x{m1 & 0xffffffff:x}"); a.e("s_mov_b32 s21, s20")
    a.e("v_cndmask_b32 v7, v7, v2, s[20:21]")
    a.e(f"v_mov_b32 v2, {L_ONE}")
    a.e(f"s_mov_b32 s20, 0x{m2 & 0xffffffff:x}"); a.e("s_mov_b32 s21, s20")
    a.e("v_cndmask_b32 v7, v7, v2, s[20:21]")
    a.e("v_add3_u32 v5, v5, v7, s35")
    a.e("s_sub_i32 s27, 8, s46")
    a.e("s_max_i32 s27, s27, 0")
    a.e(f"v_mov_b32 v2, {NEGINF}")
    def mask_ops(S, diag):
        ops = []
        for ri in range(16):
            j, i = ri // 4, ri % 4
            md = lane_mask(lambda l: 8*j + 4*(l >> 5) + i <= (l & 31))
            def f(ri=ri, md=md):
                a.e(f"s_mov_b32 s20, 0x{md & 0xffffffff:x}")
                a.e(f"s_mov_b32 s21, 0x{md >> 32:x}")
                if diag: a.e(f"v_cndmask_b32 v{S+ri}, v2, 0, s[20:21]")
                else: a.e(f"v_cndmask_b32 v{S+ri}, 0, v2, s[20:21]")
            ops.append(f)
        return ops
    for f in mask_ops(SS[0], True): f()
    a.e("s_cmp_eq_u32 s23, 0")
    a.e("s_cselect_b32 s48, -1, 0")
    a.e("s_mov_b32 s49, 0")
    a.e("s_cselect_b32 s50, 0, -1")
    a.e("s_mov_b32 s51, 0")
    a.e("s_mov_b32 s42, 0")
    a.e("s_mov_b32 s43, -1")
    a.e("s_load_dwordx2 s[6:7], s[0:1], 16")
    a.e("s_min_u32 s19, s2, 251")
    a.e("s_mul_i32 s56, s19, 2341")
    a.e("s_lshr_b32 s56, s56, 16")
    a.e("s_lshl_b32 s57, s56, 7")
    a.e("v_lshrrev_b32 v110, 3, v0")
    a.e("v_and_b32 v111, 7, v0")
    a.e("v_lshrrev_b32 v112, 1, v110")
    a.e("v_lshlrev_b32 v112, 1, v112")
    a.e("v_xor_b32 v111, v111, v112")
    a.e("v_mul_u32_u24 v110, 1152, v110")
    a.e("v_lshl_add_u32 v110, v111, 4, v110")
    a.e("s_waitcnt vmcnt(0) lgkmcnt(0)"); a.reset_counters()
    a.e("s_barrier")
    st("staged")
    a.e("s_cmp_lg_u32 s18, 0")
    a.e("s_cbranch_scc1 L_nf3")
    flag_write(a, 2, 112); a.vm.pop()
    a.label("L_nf3")

    def rdK(t):
        buf = KB_[t % 2]
        return [lambda: a.lds(f"ds_read_b64 {v(buf,2)}, v4 offset:{256*t}", f"K{t}"),
                lambda: a.lds(f"ds_read_b64 {v(buf+2,2)}, v4 offset:{256*t+PL}", f"K{t}"),
                lambda: a.lds(f"ds_read_b64 {v(buf+4,2)}, v3 offset:{256*t}", f"K{t}")]
    def rdV(t):
        buf = VB_[t % 2]
        return [lambda i=i: a.lds(f"ds_read_b64_tr_b16 {v(buf+2*i,2)}, v5 offset:{256*t+64*i}", f"V{t}") for i in range(4)]
    def qk1(t):
        S = SS[t % 2]; buf = KB_[t % 2]
        a.e(f"v_mfma_f32_32x32x16_bf16 {v(S,16)}, {v(buf,4)}, {v(Q1,4)}, {v(S,16) if t in (0, 8) else 0}")
    def qk2(t):
        S = SS[t % 2]; buf = KB_[t % 2]
        a.e(f"v_mfma_f32_32x32x8_bf16 {v(S,16)}, {v(buf+4,2)}, {v(Q2,2)}, {v(S,16)}")
    def pv(t, h):
        a.e(f"v_mfma_f32_32x32x16_bf16 {v(OA,16)}, {v(VB_[t%2]+4*h,4)}, {v(PP[t%2]+4*h,4)}, {0 if (t == 8 and h == 0) else v(OA,16)}")
    def kill(t, pfx):
        l = f"{pfx}_k{t}"
        a.e(f"s_cmp_lg_u32 s27, {t+1}")
        a.e(f"s_cbranch_scc1 {l}")
        a.e("v_mov_b32 v6, 0xff7f")
        a.e(f"v_cndmask_b32 v{Q2}, v{Q2}, v6, s[42:43]")
        a.label(l)
    a.lds(f"ds_read_b64 {v(Q1,2)}, v108", "Q")
    a.lds(f"ds_read_b64 {v(Q1+2,2)}, v108 offset:1024", "Q")
    a.lds(f"ds_read_b64 {v(Q2,2)}, v109", "Q")
    for f in rdK(8) + rdK(7): f()
    a.e("s_add_u32 s28, s6, s57")
    a.e("s_addc_u32 s29, s7, 0")
    a.e(f"s_sub_u32 s30, {576*1152}, s57")
    a.e("s_mov_b32 s31, 0x00020000")
    a.e(f"s_mul_i32 s58, s18, {8*1152}")
    a.e("s_lshl_b32 s59, s18, 10")
    def wo_dma(j):
        a.e(f"s_add_u32 m0, s59, {L_WO + j*8192}")
        a.e("s_nop 0")
        a.vmem("buffer_load_dwordx4 v110, s[28:31], s58 offen lds", "WO")
        a.e(f"s_add_u32 s58, s58, {64*1152}")
    a.wait_lds("K8")
    a.e("s_barrier")
    a.e(f"v_cndmask_b32 v{Q2}, 0, v{Q2}, s[48:49]")
    a.e(f"v_cndmask_b32 v{Q2+1}, 0, v{Q2+1}, s[50:51]")
    KA = KB_[0]
    a.e(f"v_dot2_f32_bf16 v6, v{Q1}, v{KA}, 0")
    for i in range(1, 6): a.e(f"v_dot2_f32_bf16 v6, v{Q1+i}, v{KA+i}, v6")
    qk1(8)
    a.e("s_nop 2")
    a.e("v_mov_b32 v7, v6")
    a.e("s_nop 1")
    a.e("v_permlane32_swap_b32 v6, v7")
    a.e("s_nop 1")
    a.e("v_add_f32 v6, v6, v7")
    a.e("v_sub_f32 v6, 0, v6")
    a.e("v_cvt_pk_bf16_f32 v6, v6, 0")
    a.e(f"v_cndmask_b32 v{Q2}, v{Q2}, v6, s[42:43]")
    a.e("s_nop 1")

    def softmax_pass(sub, pfx):
        qk2(8)
        for f in rdV(8): f()
        kill(7, pfx)
        a.e("s_nop 3")
        for t in range(8, -1, -1):
            S = SS[t % 2]; P = PP[t % 2]
            valu = []
            for i in range(16):
                if sub: valu.append(lambda i=i: a.e(f"v_add_f32 v{S+i}, v{S+i}, v{NM}"))
                valu.append(lambda i=i: a.e(f"v_exp_f32 v{S+i}, v{S+i}"))
                if i % 2 == 1 and i >= 3:
                    valu.append(lambda i=i: a.e(f"v_cvt_pk_bf16_f32 v{P+(i-3)//2}, v{S+i-3}, v{S+i-2}"))
            valu.append(lambda: a.e("s_nop 0"))
            valu.append(lambda: a.e(f"v_cvt_pk_bf16_f32 v{P+7}, v{S+14}, v{S+15}"))
            q = len(valu) // 4
            def run(n):
                for _ in range(n):
                    if valu: valu.pop(0)()
            if t == 1:
                for f in mask_ops(SS[0], False): f()
                a.e("s_nop 1")
            if t > 0:
                a.wait_lds(f"K{t-1}")
                qk1(t - 1)
            else:
                a.e("s_nop 3")
            run(q)
            if t > 0: qk2(t - 1)
            if t > 1:
                for f in rdK(t - 2): f()
                kill(t - 2, pfx)
            run(q)
            if t < 8:
                a.wait_lds(f"V{t+1}")
                pv(t + 1, 0)
            run(q)
            if t < 8: pv(t + 1, 1)
            if t > 0:
                for f in rdV(t - 1): f()
            if not sub:
                for j_ in {8: (0, 1), 7: (2, 3), 6: (4, 5), 5: (6, 7), 4: (8,)}.get(t, ()): wo_dma(j_)
            run(100)
        a.wait_lds(None)
        a.e("s_nop 0")
        pv(0, 0); pv(0, 1)
        a.e("s_nop 7")
        a.e("s_nop 3")

    softmax_pass(False, "sa")
    st("soft")
    a.e(f"v_mov_b32 v6, v{OA+12}")
    for i in range(12): a.e(f"v_fma_f32 v6, v{OA+i}, 0, v6")
    a.e(f"s_mov_b32 s20, {f32(2.0**-30)}")
    a.e(f"s_mov_b32 s21, {f32(2.0**100)}")
    a.e("v_cmp_nlt_f32 vcc, s20, v6")
    a.e("v_cmp_ngt_f32 s[44:45], s21, v6")
    a.e("s_or_b64 vcc, vcc, s[44:45]")
    a.e("s_cbranch_vccnz L_fallback")
    a.label("L_fin")
    P0 = PP[0]
    a.e(f"v_rcp_f32 v6, v{OA+12}")
    a.e("s_nop 0")
    for i in range(12): a.e(f"v_mul_f32 v{OA+i}, v{OA+i}, v6")
    for i in range(6): a.e(f"v_cvt_pk_bf16_f32 v{P0+i}, v{OA+2*i}, v{OA+2*i+1}")
    a.e("v_lshrrev_b32 v6, 4, v1")
    a.e("v_mul_u32_u24 v6, 18432, v6")
    a.e("v_and_b32 v7, 15, v1")
    a.e("v_lshl_add_u32 v6, v7, 4, v6")
    a.e("v_lshl_add_u32 v7, v15, 8, v6")
    a.e("s_mul_i32 s26, s46, 36864")
    a.e(f"s_add_u32 s26, s26, {WS_O}")
    a.e("s_lshl_b32 s19, s40, 1")
    a.e("s_add_u32 s19, s19, s23")
    a.e("s_lshl_b32 s20, s19, 9")
    a.e("s_add_u32 s20, s20, s26")
    a.vmem(f"buffer_store_dwordx4 {v(P0,4)}, v7, s[36:39], s20 offen {SC}")
    a.e("s_lshr_b32 s20, s19, 2")
    a.e("s_lshl_b32 s20, s20, 8")
    a.e("s_and_b32 s21, s19, 3")
    a.e("s_lshl_b32 s21, s21, 2")
    a.e("s_add_u32 s20, s20, s21")
    a.e("s_add_u32 s20, s20, s26")
    a.e("s_add_u32 s20, s20, 16384")
    a.e("s_cmp_eq_u32 s23, 0")
    a.e("s_cbranch_scc1 L_ev")
    a.e(f"v_mov_b32 v{P0+4}, v{P0+5}")
    a.label("L_ev")
    setexec(a, 0xffffffff)
    a.vmem(f"buffer_store_dword v{P0+4}, v6, s[36:39], s20 offen {SC}")
    a.e("s_mov_b64 exec, -1")
    a.e("s_load_dwordx2 s[4:5], s[0:1], 0")
    a.e("s_load_dwordx2 s[8:9], s[0:1], 80")
    a.e("s_mul_i32 s19, s56, 28")
    a.e("s_sub_u32 s19, s2, s19")
    a.e("s_mul_i32 s21, s19, 5")
    a.e("s_lshl_b32 s22, s19, 2")
    a.e("s_add_u32 s22, s22, 16")
    a.e("s_cmp_lt_u32 s19, 16")
    a.e("s_cselect_b32 s19, s21, s22")
    a.e("s_cselect_b32 s43, 5, 4")
    a.e("s_cmp_ge_u32 s2, 252")
    a.e("s_cselect_b32 s43, 0, s43")
    a.e("s_add_u32 s21, s19, s18")
    OF, ACC, WF = 16, 88, 104
    XE, GE = 136, 144
    a.e("s_min_u32 s21, s21, 127")
    a.e("v_and_b32 v2, 15, v0")
    a.e("v_lshrrev_b32 v3, 4, v0")
    a.e("s_lshl_b32 s40, s21, 4")
    a.e("v_add_u32 v4, s40, v2")
    a.e("v_mul_u32_u24 v5, 1152, v4")
    a.e("v_lshl_add_u32 v5, v3, 3, v5")
    a.e("s_waitcnt lgkmcnt(0)")
    srd(a, 24, 4, SZ)
    srd(a, 32, 8, SZ)
    a.e("s_lshl_b32 s19, s56, 6")
    a.e("v_add_u32 v6, s19, v0")
    a.e("v_lshrrev_b32 v7, 2, v6")
    a.e("v_add_u32 v7, 224, v7")
    a.e("v_subrev_u32 v8, 128, v6")
    a.e("v_lshrrev_b32 v8, 1, v8")
    a.e("v_cmp_gt_u32 vcc, 128, v6")
    a.e("s_lshr_b32 s19, s40, 9")
    a.e("s_bfe_u32 s20, s40, 0x20007")
    a.e("s_lshl_b32 s20, s20, 3")
    a.e("s_add_u32 s19, s19, s20")
    a.e("s_add_u32 s19, s19, 196")
    a.e("v_cndmask_b32 v6, v8, v7, vcc")
    a.e("v_mov_b32 v7, s19")
    a.e("s_mov_b32 s44, 0xaaaaaaaa")
    a.e("s_mov_b32 s45, 0xaaaaaaaa")
    a.e("v_cndmask_b32 v6, v6, v7, s[44:45]")
    a.e("v_lshlrev_b32 v7, 7, v6")
    a.e(f"s_mov_b32 s22, {WS_F + 16}")
    a.e("buffer_load_dwordx2 v[8:9], v7, s[36:39], s22 offen sc0 sc1")
    a.e(f"v_mov_b32 v10, {L_CNT+32}")
    a.e("v_mov_b32 v11, 1")
    a.e("s_waitcnt vmcnt(0)"); a.reset_counters()
    a.e("s_mov_b64 exec, 1")
    a.e("ds_add_rtn_u32 v11, v10, v11")
    a.e("s_mov_b64 exec, -1")
    a.e("s_waitcnt lgkmcnt(0)")
    a.e("v_readfirstlane_b32 s22, v11")
    a.e("s_cmp_lg_u32 s22, 7")
    a.e("s_cbranch_scc1 L_nf4")
    flag_write(a, 3, 12); a.vm.pop()
    a.label("L_nf4")
    st("ost")
    a.e("s_cmp_ge_u32 s18, s43")
    a.e("s_cbranch_scc1 L_end")
    for mt in range(4):
        a.vmem(f"buffer_load_dwordx2 {v(XE+2*mt,2)}, v5, s[24:27], s57 offen offset:{32*mt}", "X")
    a.e(f"v_cmp_ne_u64 vcc, s[{TAG}:{TAG+1}], v[8:9]")
    a.e("s_cbranch_vccz L_f3ok")
    flag_wait(a, 2, 6, 8)
    a.label("L_f3ok")
    a.e("v_lshrrev_b32 v6, 1, v0")
    a.e("v_lshlrev_b32 v6, 12, v6")
    a.e("v_and_b32 v8, 1, v0")
    a.e("v_lshl_add_u32 v6, v8, 4, v6")
    a.e("s_lshl_b32 s45, s56, 18")
    a.e("s_lshl_b32 s46, s21, 5")
    a.e("s_add_u32 s45, s45, s46")
    a.e(f"s_add_u32 s45, s45, {WS_Z}")
    a.e("s_lshl_b32 s44, s18, 11")
    for q in range(2):
        a.e(f"s_add_u32 m0, s44, {q*1024}")
        a.e("s_nop 0")
        a.vmem(f"buffer_load_dwordx4 v6, s[36:39], s45 offen {SC} lds", "X")
        a.e(f"s_add_u32 s45, s45, {32*4096}")
    a.e("v_lshlrev_b32 v6, 2, v4")
    a.e(f"s_mov_b32 s45, {WS_G}")
    a.vmem(f"buffer_load_dword v{GE}, v6, s[36:39], s45 offen {SC}", "X")
    a.e("v_bfe_u32 v6, v0, 2, 2")
    a.e("v_and_b32 v11, 3, v0")
    a.e("v_lshrrev_b32 v8, 1, v3")
    a.e("v_mul_u32_u24 v8, 20, v8")
    a.e("v_and_b32 v9, 1, v3")
    a.e("v_lshl_add_u32 v8, v9, 2, v8")
    a.e("v_add_u32 v8, v8, v6")
    a.e("v_bfe_u32 v9, v8, 1, 2")
    a.e("v_lshlrev_b32 v8, 7, v8")
    a.e("v_lshl_add_u32 v8, v11, 3, v8")
    a.e(f"v_add_u32 v8, {L_WO}, v8")
    MA = 148
    for mt in range(4):
        a.e(f"v_xor_b32 v10, {mt}, v9")
        a.e(f"v_lshl_add_u32 v{MA+mt}, v10, 5, v8")
    a.e("v_mul_u32_u24 v8, 72, v3")
    a.e("v_add3_u32 v8, v8, v6, 16")
    a.e("v_bfe_u32 v9, v8, 1, 2")
    a.e("v_lshlrev_b32 v8, 7, v8")
    a.e("v_lshl_add_u32 v8, v11, 3, v8")
    a.e(f"v_add_u32 v8, {L_WO}, v8")
    TA_ = 152
    for mt in range(4):
        a.e(f"v_xor_b32 v10, {mt}, v9")
        a.e(f"v_lshl_add_u32 v{TA_+mt}, v10, 5, v8")
    a.e("v_lshl_add_u32 v8, v3, 2, v6")
    a.e("v_lshlrev_b32 v8, 5, v8")
    a.e("v_lshl_add_u32 v8, v11, 3, v8")
    a.e("v_add_u32 v8, s44, v8")
    BP, ZE, T = 156, 172, 180
    a.wait_vm(None)
    for mt in range(4):
        a.lds(f"ds_read_b64_tr_b16 {v(ZE+2*mt,2)}, v8 offset:{512*mt}", "Z")
    a.e(f"v_sub_f32 v9, 1.0, v{GE}")
    rnd(a, 9, 9)
    a.e("s_mov_b32 s42, 0xffff0000")
    a.wait_lds("Z")
    for mt in range(4):
        B = BP + 4*mt
        for i in range(4):
            op = "v_lshlrev_b32 v%d, 16, v%d" if i % 2 == 0 else "v_and_b32 v%d, s42, v%d"
            a.e(op % (B+i, XE+2*mt+i//2))
            a.e(op % (T+i, ZE+2*mt+i//2))
        for i in range(4): a.e(f"v_mul_f32 v{B+i}, v{B+i}, v{T+i}")
        for i in range(4): rnd(a, B+i, B+i)
        for i in range(4): a.e(f"v_mul_f32 v{B+i}, v{B+i}, v9")
        for i in range(4): rnd(a, B+i, B+i)
    def rd(ks):
        b = WF + 16 * (ks % 2)
        for mt in range(4):
            for hf in range(2):
                if ks < 16:
                    kk = ks if ks < 12 else ks - 12
                    ar = MA + (mt ^ (2 * (ks & 1))); off = (36*kk + 8*hf) * 128
                else:
                    ar = TA_ + (mt ^ (2 * hf)); off = (288*(ks-16) + 36*hf) * 128
                a.lds(f"ds_read_b64_tr_b16 {v(b+4*mt+2*hf,2)}, v{ar} offset:{off}", f"F{ks}")
    a.e(f"v_mov_b32 v10, {L_CNT+32}")
    lds_spin(a, 10, 8)
    rd(0)
    a.e("s_lshr_b32 s19, s21, 3")
    a.e("s_lshl_b32 s19, s19, 4")
    a.e("v_add_u32 v6, s19, v2")
    a.e("s_add_u32 s19, s21, s43")
    a.e("s_sub_u32 s19, s19, 1")
    a.e("s_lshr_b32 s19, s19, 3")
    a.e("s_lshl_b32 s19, s19, 4")
    a.e("v_add_u32 v7, s19, v2")
    a.e("v_cndmask_b32 v6, v6, v7, s[44:45]") if False else None
    a.e("s_mov_b32 s46, 0")
    a.e("s_mov_b32 s47, -1")
    a.e("v_cndmask_b32 v6, v6, v7, s[46:47]")
    a.e("s_cmp_lg_u32 s18, 0")
    a.e("s_cbranch_scc1 L_w4_o")
    flag_wait(a, 3, 6, 10, 2)
    a.e(f"v_mov_b32 v10, {L_CNT+40}")
    a.e("v_mov_b32 v11, 1")
    a.e("ds_write_b32 v10, v11")
    a.e("s_branch L_w4_j")
    a.label("L_w4_o")
    a.e(f"v_mov_b32 v10, {L_CNT+40}")
    lds_spin(a, 10, 1)
    a.label("L_w4_j")
    a.lgkm.append(None)
    st("f4")
    a.e("v_lshlrev_b32 v7, 4, v0")
    a.e("s_mul_i32 s22, s21, 18432")
    a.e(f"s_add_u32 s22, s22, {WS_O}")
    for ks in range(18):
        a.vmem(f"buffer_load_dwordx4 {v(OF+4*ks,4)}, v7, s[36:39], s22 offen offset:{1024*(ks%4)} {SC}", f"O{ks}")
        if ks % 4 == 3: a.e("s_add_u32 s22, s22, 4096")
    for ks in range(18):
        if ks + 1 == 12:
            for mt in range(4): a.e(f"v_add_u32 v{MA+mt}, {12*36*128}, v{MA+mt}")
        if ks + 1 < 18: rd(ks + 1)
        a.wait_vm(f"O{ks}")
        a.wait_lds(f"F{ks}")
        b = WF + 16 * (ks % 2)
        for mt in range(4):
            acc = v(ACC + 4*mt, 4)
            a.e(f"v_mfma_f32_16x16x32_bf16 {acc}, {v(b+4*mt,4)}, {v(OF+4*ks,4)}, {acc if ks else 0}")
    a.e("s_nop 4")
    for mt in range(4):
        ac = ACC + 4*mt
        for i in range(4): rnd(a, ac+i, ac+i)
        for i in range(4): a.e(f"v_mul_f32 v{ac+i}, v{ac+i}, v{GE}")
        for i in range(4): rnd(a, ac+i, ac+i)
        for i in range(4): a.e(f"v_add_f32 v{ac+i}, v{ac+i}, v{BP+4*mt+i}")
        a.e(f"v_cvt_pk_bf16_f32 v{ac}, v{ac}, v{ac+1}")
        a.e(f"v_cvt_pk_bf16_f32 v{ac+1}, v{ac+2}, v{ac+3}")
        a.vmem(f"buffer_store_dwordx2 {v(ac,2)}, v5, s[32:35], s57 offen offset:{32*mt}")
    st("end"); st.real("rt1"); st.flush(16, 18, 0)
    a.label("L_end")
    a.e("s_endpgm")
    a.label("L_fallback")
    a.reset_counters()
    a.e(f"v_cndmask_b32 v{Q2}, v{Q2}, 0, s[42:43]")
    a.e(f"v_mov_b32 v{NM}, {NEGINF}")
    for t in range(8, -1, -1):
        for f in rdK(t): f()
        if t in (0, 8):
            for f in mask_ops(SS[0], t == 8): f()
        if t < 8: kill(t, "sm")
        a.wait_lds(None)
        a.e("s_nop 1")
        qk1(t); qk2(t)
        a.e("s_nop 7"); a.e("s_nop 3")
        S = SS[t % 2]
        for i in range(8): a.e(f"v_max3_f32 v{NM}, v{S+2*i}, v{S+2*i+1}, v{NM}")
    for f in rdK(8) + rdK(7): f()
    a.e(f"v_cndmask_b32 v{Q2}, v{Q2}, 0, s[42:43]")
    a.e(f"v_mov_b32 v7, v{NM}")
    a.e("s_nop 1")
    a.e(f"v_permlane32_swap_b32 v{NM}, v7")
    a.e("s_nop 1")
    a.e(f"v_max_f32 v{NM}, v{NM}, v7")
    a.e(f"v_sub_f32 v{NM}, 0, v{NM}")
    for f in mask_ops(SS[0], True): f()
    a.wait_lds("K8")
    a.e("s_nop 1")
    qk1(8)
    softmax_pass(True, "sb")
    a.e("s_branch L_fin")
    a.label("L_codeend")

def main(path):
    a = Asm()
    hdr = open(f"cdna_kernels/{NAME}.s.ref").read().split("\n")
    head = [l for l in hdr if l.startswith(";") and "@launch" not in l and "Override" not in l and "grid=ceil" not in l]
    for l in head: a.raw(l)
    a.raw(f"; @launch grid=(256,1,1) block=(512,1,1) lds={LDS_TOTAL}")
    a.raw('.amdgcn_target "amdgcn-amd-amdhsa--gfx950"')
    a.raw(".text")
    gen(a)
    a.raw('.section .rodata,"a"')
    a.raw(kernel_desc(NAME + "_kernel", 216))
    open(path, "w").write(a.text())

if __name__ == "__main__":
    if len(sys.argv) > 2 and sys.argv[2] == "stamps":
        asmlib.STAMP_ON = True
        asmlib.STAMP_FILTER = list((sys.argv[3] if len(sys.argv) > 3 else "b8,cvk,f1,cv1,cv3,conv,f2,staged,soft,ost,f4,end").split(","))
    main(sys.argv[1] if len(sys.argv) > 1 else f"fused.s")
```

```python
import sys, struct
from asmlib import *
import asmlib

NAME = "gated_mix__sliding_block__ssm_conv_h3__prompt"
SZ = 2048 * 576 * 2
WS_QKV = 0
QKV_BYTES = 432 * 16384
WS_U = QKV_BYTES
WS_O = WS_U + SZ
WS_Z = WS_O + SZ
WS_G = WS_Z + SZ
WS_F = WS_G + 8192
WS_E = WS_F + 32768
WS_TOTAL = WS_E + 128
def f32(x): return "0x%08x" % struct.unpack("<I", struct.pack("<f", x))[0]
QSCALE = 18 ** -0.5 * 1.4426950408889634
NEGINF = "0xff800000"
SC = "sc1"
SPIN_MAX = 40000

def rnd(a, dst, src):
    a.e(f"v_cvt_pk_bf16_f32 v{dst}, 0, v{src}")
def lane_mask(fn):
    m = 0
    for l in range(64):
        if fn(l): m |= 1 << l
    return m

L_U = 0
UP = 288
L_PK = 9728
L_CNT = 22016
L_RING = 24576
L_CVK = L_RING + 32768
PL = 3072
L_KP = L_RING
L_ONE = L_KP + 9 * PL
L_WO = L_ONE + PL
L_VP = 163840 - 9 * PL
LDS_TOTAL = 163840
assert L_WO + 73728 <= L_VP
CV_USZ = 1216

TAG = 88
ROLE, CVK, CVU, GCNT, ROUNDS, RHO, GTGT, PBASE = 90, 91, 92, 93, 94, 95, 96, 98

def prep_task(a, T_s):
    a.e(f"s_mul_i32 s40, s{T_s}, 3641")
    a.e("s_lshr_b32 s40, s40, 16")
    a.e("s_mul_i32 s41, s40, 18")
    a.e(f"s_sub_u32 s41, s{T_s}, s41")

PB = 200
def prep_setup(a):
    a.e(f"v_lshrrev_b32 v{PB+8}, 2, v0")
    a.e(f"v_and_b32 v{PB+9}, 3, v0")
    a.e(f"v_mul_u32_u24 v{PB}, 1152, v{PB+8}")
    a.e(f"v_lshlrev_b32 v{PB+1}, 1, v{PB}")
    a.e(f"v_lshl_add_u32 v{PB}, v{PB+9}, 4, v{PB}")
    a.e(f"v_lshl_add_u32 v{PB+1}, v{PB+9}, 4, v{PB+1}")
    a.e(f"v_lshlrev_b32 v{PB+2}, 4, v0")

def prep_issue(a, R):
    a.e(f"s_mul_i32 s22, s40, {32*1152}")
    a.e("s_lshl_b32 s23, s41, 6")
    a.e("s_add_u32 s22, s22, s23")
    a.e(f"v_add_u32 v{PB+3}, s22, v{PB}")
    a.e(f"v_subrev_u32 v{PB+3}, {3*1152}, v{PB+3}")
    for i in range(2):
        a.e(f"s_add_u32 m0, s{PBASE}, {256+1024*i}")
        a.e(f"s_add_u32 s23, s22, {16*1152*i}")
        a.e(f"buffer_load_dwordx4 v{PB}, s[24:27], s23 offen lds")
    a.e(f"buffer_load_dwordx4 {v(R,4)}, v{PB+1}, s[28:31], s22 offen")
    a.e(f"buffer_load_dwordx4 {v(R+4,4)}, v{PB+1}, s[28:31], s22 offen offset:1152")
    a.e(f"s_add_u32 m0, s{PBASE}, 64")
    setexec(a, 0xfff)
    a.e(f"buffer_load_dwordx4 v{PB+3}, s[24:27], 0 offen lds")
    a.e(f"s_add_u32 m0, s{PBASE}, 2304")
    a.e("s_mov_b32 exec_lo, 0xffff")
    a.e("s_lshl_b32 s23, s41, 8")
    a.e(f"buffer_load_dwordx4 v{PB+2}, s[32:35], s23 offen lds")
    a.e("s_mov_b64 exec, -1")

def prep_compute(a, VR, T):
    KR, SW = T + 52, T + 72
    UK, UW, UV, TA, OUT = T, T+20, T+36, T+44, T+88
    A0, A1, A2, A3, A4 = PB, PB+1, PB+2, PB+3, PB+4
    a.e(f"v_lshlrev_b32 v{A0}, 7, v{PB+8}")
    a.e(f"v_lshl_add_u32 v{A0}, v{PB+9}, 4, v{A0}")
    a.e(f"v_add_u32 v{A0}, s{PBASE}, v{A0}")
    a.e(f"v_lshl_add_u32 v{A1}, v{PB+9}, 6, s{PBASE}")
    for j in range(5): a.lds(f"ds_read_b128 {v(KR+4*j,4)}, v{A0} offset:{64+64*j}", "PK")
    for i in range(4): a.lds(f"ds_read_b128 {v(SW+4*i,4)}, v{A1} offset:{2304+16*i}", "PW")
    a.e("s_mov_b32 s42, 0xffff0000")
    a.e(f"v_lshrrev_b32 v{A2}, 3, v0")
    a.e(f"v_mul_u32_u24 v{A2}, {UP}, v{A2}")
    a.e(f"v_and_b32 v{A3}, 1, v{PB+8}")
    a.e(f"v_lshl_add_u32 v{A2}, v{A3}, 2, v{A2}")
    a.e(f"v_add_u32 v{A2}, v{A2}, v{A1}")
    a.e(f"v_add_u32 v{A2}, 2560, v{A2}")
    a.e(f"v_bfe_u32 v{A3}, v0, 2, 2")
    a.e(f"v_sub_u32 v{A3}, 3, v{A3}")
    a.e(f"v_mul_u32_u24 v{A3}, {UP}, v{A3}")
    a.e(f"v_lshrrev_b32 v{A4}, 4, v0")
    a.e(f"v_lshl_add_u32 v{A3}, v{A4}, 5, v{A3}")
    a.e(f"v_lshl_add_u32 v{A3}, v{PB+9}, 3, v{A3}")
    a.e(f"v_add_u32 v{A3}, s{PBASE}, v{A3}")
    a.e(f"v_lshlrev_b32 v{A4}, 12, v{PB+8}")
    a.e(f"v_lshl_add_u32 v{A4}, v{PB+9}, 4, v{A4}")
    a.e("s_lshl_b32 s22, s41, 17")
    a.e("s_lshl_b32 s23, s40, 6")
    a.e("s_add_u32 s22, s22, s23")
    a.e(f"s_add_u32 s22, s22, {WS_U}")
    a.e(f"s_add_u32 s23, s22, {16*4096}")
    for half in range(2):
        for r in range(2):
            for qq in range(2):
                a.e(f"v_lshlrev_b32 v{UV+4*r+2*qq}, 16, v{VR+4*r+2*half+qq}")
                a.e(f"v_and_b32 v{UV+4*r+2*qq+1}, s42, v{VR+4*r+2*half+qq}")
        a.wait_lds("PK")
        for r in range(5):
            for qq in range(2):
                a.e(f"v_lshlrev_b32 v{UK+4*r+2*qq}, 16, v{KR+4*r+2*half+qq}")
                a.e(f"v_and_b32 v{UK+4*r+2*qq+1}, s42, v{KR+4*r+2*half+qq}")
        a.wait_lds("PW")
        for c in range(4):
            for t in range(2):
                src = SW + (4*half+c)*2 + t
                a.e(f"v_lshlrev_b32 v{UW+4*c+2*t}, 16, v{src}")
                a.e(f"v_and_b32 v{UW+4*c+2*t+1}, s42, v{src}")
        RC = [(r, c) for r in range(2) for c in range(4)]
        for r, c in RC: a.e(f"v_mul_f32 v{TA+4*r+c}, v{UK+4*r+c}, v{UW+4*c+3}")
        for t in (1, 2, 3):
            for r, c in RC: a.e(f"v_fmac_f32 v{TA+4*r+c}, v{UK+4*(r+t)+c}, v{UW+4*c+3-t}")
        for r, c in RC: rnd(a, TA+4*r+c, TA+4*r+c)
        for r, c in RC: a.e(f"v_mul_f32 v{TA+4*r+c}, v{TA+4*r+c}, v{UV+4*r+c}")
        for c in range(4):
            a.e(f"v_cvt_pk_bf16_f32 v{OUT+4*half+c}, v{TA+c}, v{TA+4+c}")
        for c in range(4*half, 4*half+4, 2):
            a.lds(f"ds_write2_b32 v{A2}, v{OUT+c}, v{OUT+c+1} offset0:{2*c} offset1:{2*c+2}")
    for d in range(2):
        a.lds(f"ds_read_b64_tr_b16 {v(T+4*d,2)}, v{A3} offset:{2560+4*UP+128*d}", f"PT{d}")
        a.lds(f"ds_read_b64_tr_b16 {v(T+4*d+2,2)}, v{A3} offset:{2560+128*d}", f"PT{d}")
    for d in range(2):
        a.wait_lds(f"PT{d}")
        a.e(f"buffer_store_dwordx4 {v(T+4*d,4)}, v{A4}, s[36:39], s{22+d} offen {SC}")

def tag_make(a):
    a.e(f"v_readfirstlane_b32 s{TAG}, v214")
    a.e(f"v_readfirstlane_b32 s{TAG+1}, v215")
    a.e(f"v_mov_b32 v212, {L_CNT+192}")
    a.e(f"s_add_u32 s{TAG}, s{TAG}, 1")
    a.e(f"s_addc_u32 s{TAG+1}, s{TAG+1}, 0")
    a.e(f"s_or_b32 s{TAG+1}, s{TAG+1}, 0x80000000")
    a.e(f"v_mov_b32 v214, s{TAG}")
    a.e(f"v_mov_b32 v215, s{TAG+1}")
    a.lds("ds_write_b64 v212, v[214:215]")

def tag_from_lds(a, T):
    a.e(f"v_mov_b32 v{T}, {L_CNT+192}")
    a.lds(f"ds_read_b64 {v(T+2,2)}, v{T}", "TG")
    a.wait_lds("TG")
    a.e(f"v_readfirstlane_b32 s{TAG}, v{T+2}")
    a.e(f"v_readfirstlane_b32 s{TAG+1}, v{T+3}")

def flag_write(a, stage, T):
    a.e("s_lshl_b32 s22, s2, 7")
    a.e(f"s_add_u32 s22, s22, {WS_F + 8*stage}")
    a.e(f"v_mov_b32 v{T}, s22")
    a.e(f"v_mov_b32 v{T+2}, s{TAG}")
    a.e(f"v_mov_b32 v{T+3}, s{TAG+1}")
    a.e("s_mov_b64 exec, 1")
    a.vmem(f"buffer_store_dwordx2 {v(T+2,2)}, v{T}, s[36:39], 0 offen sc0 sc1", "FL")
    a.e("s_mov_b64 exec, -1")

def flag_wait(a, stage, W, T, sleep=2):
    a.e(f"v_lshlrev_b32 v{W}, 7, v{W}")
    a.e(f"s_mov_b32 s22, {WS_F + 8*stage}")
    l = a.newlabel("fspin"); d = a.newlabel("fdone")
    a.e(f"s_mov_b32 s97, {SPIN_MAX}")
    a.label(l)
    a.e(f"buffer_load_dwordx2 {v(T,2)}, v{W}, s[36:39], s22 offen sc0 sc1")
    a.e("s_waitcnt vmcnt(0)"); a.vm = []
    a.e(f"v_cmp_ne_u64 vcc, s[{TAG}:{TAG+1}], {v(T,2)}")
    a.e(f"s_cbranch_vccz {d}")
    a.e(f"s_sleep {sleep}")
    a.e("s_sub_u32 s97, s97, 1")
    a.e(f"s_cbranch_scc0 {l}")
    a.label(d)

def group_barrier(a, T):
    a.e(f"v_mov_b32 v{T}, s{GCNT}")
    a.e(f"v_mov_b32 v{T+1}, 1")
    a.e(f"s_add_u32 s{GTGT}, s{GTGT}, 4")
    a.wait_lds(None)
    a.e("s_mov_b64 exec, 1")
    a.e(f"ds_add_u32 v{T}, v{T+1}")
    a.e("s_mov_b64 exec, -1")
    lds_spin(a, T, f"s{GTGT}")

def lds_spin(a, T, target):
    l = a.newlabel("gb"); d = a.newlabel("gbd")
    a.e(f"s_mov_b32 s97, {SPIN_MAX*8}")
    a.label(l)
    a.e(f"ds_read_b32 v{T+1}, v{T}")
    a.e("s_sub_u32 s97, s97, 1")
    a.e(f"s_cbranch_scc1 {d}")
    a.e("s_waitcnt lgkmcnt(0)")
    a.e(f"v_readfirstlane_b32 s22, v{T+1}")
    a.e(f"s_cmp_ge_u32 s22, {target}")
    a.e(f"s_cbranch_scc1 {d}")
    a.e("s_sleep 1")
    a.e(f"s_branch {l}")
    a.label(d)
    a.e("s_waitcnt lgkmcnt(0)")

L_Q = L_RING + 3 * 32768

def convk_issue(a, CH_s, RH, R, tag):
    a.e(f"s_lshl_b32 s20, s{CH_s}, 12")
    a.e("s_add_u32 s24, s14, s20")
    a.e("s_addc_u32 s25, s15, 0")
    a.e("s_mov_b32 s26, 4096")
    a.e("s_mov_b32 s27, 0x00020000")
    a.e(f"s_add_u32 s21, s{RH}, 1")
    a.e("s_lshr_b32 s21, s21, 1")
    a.e("s_lshl_b32 s21, s21, 2")
    a.e("v_lshlrev_b32 v4, 4, v0")
    a.e("v_subrev_u32 v4, s21, v4")
    a.e("v_add_u32 v5, 1024, v4")
    a.e("v_add_u32 v6, 16, v4")
    a.vmem(f"buffer_load_dwordx4 {v(R,4)}, v4, s[24:27], 0 offen", tag)
    for i in range(3): a.vmem(f"buffer_load_dwordx4 {v(R+6+6*i,4)}, v5, s[24:27], 0 offen offset:{1024*i}", tag)
    for i in range(4): a.vmem(f"buffer_load_dword v{R+6*i+4}, v6, s[24:27], 0 offen offset:{1024*i}", tag)
    a.e("v_lshlrev_b32 v4, 1, v0")
    a.e(f"s_lshl_b32 s21, s{RH}, 1")
    a.e("v_subrev_u32 v4, s21, v4")
    a.e("v_subrev_u32 v4, 32, v4")
    a.vmem(f"buffer_load_ushort v{R+24}, v4, s[24:27], 0 offen", tag)

def convk_write(a, RH, KD, koff, R, tag):
    a.e(f"s_and_b32 s21, s{RH}, 1")
    a.e("s_lshl_b32 s21, s21, 4")
    a.e(f"v_lshl_add_u32 v4, v0, 4, s{KD}")
    a.e(f"v_lshl_add_u32 v5, v0, 1, s{KD}")
    a.wait_vm(tag)
    for i in range(4):
        for j in range(4):
            a.e(f"v_alignbit_b32 v{R+6*i+j}, v{R+6*i+j+1}, v{R+6*i+j}, s21")
        a.lds(f"ds_write_b128 v4, {v(R+6*i,4)} offset:{koff+32+1024*i}")
    setexec(a, 0xffffff)
    a.lds(f"ds_write_b16 v5, v{R+24} offset:{koff}")
    a.e("s_mov_b64 exec, -1")

def convu_wait(a):
    a.e("s_lshr_b32 s21, s3, 5")
    a.e("v_mul_u32_u24 v8, 18, v0")
    a.e("v_add_u32 v8, s21, v8")
    a.e("v_and_b32 v9, 31, v8")
    a.e("v_add_u32 v9, 224, v9")
    a.e("v_cmp_gt_u32 vcc, 256, v8")
    a.e("v_subrev_u32 v8, 256, v8")
    a.e("v_lshrrev_b32 v8, 2, v8")
    a.e("v_cndmask_b32 v8, v8, v9, vcc")
    flag_wait(a, 0, 8, 10, 6)

def convu_issue(a, CH_s, UD, rhos, tag):
    a.e("v_sub_u32 v4, 63, v0")
    a.e("v_lshlrev_b32 v4, 6, v4")
    a.e(f"s_lshl_b32 s21, s{CH_s}, 12")
    a.e(f"s_add_u32 s21, s21, {WS_U}")
    a.e(f"s_mov_b32 s23, s{UD}")
    if rhos[0] == 's':
        a.e(f"s_lshl_b32 s20, s{rhos[1]}, 4")
        a.e("s_add_u32 s21, s21, s20")
        a.e(f"s_mul_i32 s20, s{rhos[1]}, {CV_USZ}")
        a.e("s_add_u32 s23, s23, s20")
        rhos = [0]
    a.e("v_lshl_add_u32 v5, v0, 1, s23")
    a.e("v_mov_b32 v6, 0")
    for r in rhos:
        a.e(f"s_add_u32 m0, s23, {CV_USZ*r}")
        a.lds(f"ds_write_b16 v5, v6 offset:{1024+CV_USZ*r}")
        a.vmem(f"buffer_load_dwordx4 v4, s[36:39], s21 offen {SC} lds", tag)
        a.e("s_add_u32 s21, s21, 16")

def lds_add(a, T, off):
    a.e("s_mov_b64 exec, 1")
    a.lds(f"ds_add_u32 v{T}, v{T+1} offset:{off}")
    a.e("s_mov_b64 exec, -1")
PW2 = 4864
VD = 180
FULL, FREE = 64, 100
F1_AT = 2

def gen(a):
    K = NAME + "_kernel"
    kernel_head(a, K)
    a.e("s_cmp_ge_u32 s2, 256")
    a.e("s_cbranch_scc1 L_end")
    st = NStamps(a); st.real("rt0"); st("t0")
    a.e("s_load_dwordx4 s[4:7], s[0:1], 0")
    a.e("s_load_dwordx4 s[8:11], s[0:1], 32")
    a.e("s_load_dwordx4 s[12:15], s[0:1], 48")
    a.e("s_load_dwordx2 s[16:17], s[0:1], 96")
    a.e("v_lshrrev_b32 v1, 6, v0")
    a.e("v_and_b32 v0, 63, v0")
    a.e("v_readfirstlane_b32 s18, v1")
    a.e("v_lshlrev_b32 v12, 2, v0")
    a.e("v_mov_b32 v13, 0")
    a.e(f"ds_write_b32 v12, v13 offset:{L_CNT}")
    a.e("s_and_b32 s43, s2, 3")
    a.e("s_lshl_b32 s43, s43, 2")
    a.e("s_bfe_u32 s19, s2, 0x20003")
    a.e("s_add_u32 s43, s43, s19")
    a.e("s_bfe_u32 s44, s2, 0x10002")
    a.e("s_mul_i32 s44, s44, 7")
    a.e("s_lshr_b32 s45, s2, 5")
    a.e("s_add_u32 s44, s44, s45")
    RB, CT = 43, 44
    a.e(f"s_and_b32 s{RHO}, s18, 3")
    a.e("s_lshr_b32 s19, s18, 2")
    a.e(f"s_lshl_b32 s{CVK}, s18, 13")
    a.e(f"s_add_u32 s{CVK}, s{CVK}, {L_CVK}")
    a.e(f"s_mul_i32 s{CVU}, s19, {4*CV_USZ}")
    a.e(f"s_lshl_b32 s{GCNT}, s19, 2")
    a.e(f"s_add_u32 s{GCNT}, s{GCNT}, {L_CNT}")
    a.e(f"s_mov_b32 s{GTGT}, 0")
    a.e(f"s_mov_b32 s{ROLE}, s19")
    a.e(f"s_mov_b32 s{ROUNDS}, 1")
    a.e("s_lshl_b32 s3, s2, 1")
    a.e("s_add_u32 s3, s3, s19")
    a.e("s_add_u32 s3, s3, 128")
    a.e("s_lshl_b32 s19, s18, 5")
    a.e("s_and_b32 s20, s2, 31")
    a.e("s_add_u32 s19, s19, s20")
    a.e("s_lshl_b32 s20, s2, 2")
    a.e("s_add_u32 s20, s20, s18")
    a.e("s_add_u32 s20, s20, 252")
    a.e("s_cmp_ge_u32 s18, 4")
    a.e("s_cselect_b32 s20, s20, -1")
    a.e(f"s_mul_i32 s21, s{RHO}, {PW2}")
    a.e(f"s_mul_i32 s{PBASE}, s18, {PW2}")
    a.e(f"s_add_u32 s{PBASE}, s{PBASE}, {L_RING}")
    a.e("s_cmp_eq_u32 s45, 7")
    a.e("s_cselect_b32 s99, s19, s20")
    a.e(f"s_cselect_b32 s{PBASE}, s{PBASE}, s21")
    prep_setup(a)
    prep_task(a, 99)
    a.e("s_waitcnt lgkmcnt(0)")
    a.e("s_cmp_eq_u32 s99, -1")
    a.e("s_cbranch_scc1 L_nopi")
    srd(a, 24, 8, SZ); srd(a, 28, 10, SZ); srd(a, 32, 12, 576*8)
    srd(a, 36, 16, WS_TOTAL)
    a.e(f"v_mov_b32 v212, {WS_E}")
    a.e("buffer_load_dwordx2 v[214:215], v212, s[36:39], 0 offen sc0 sc1")
    prep_issue(a, VD)
    a.label("L_nopi")
    a.e("s_barrier")
    a.e("s_cmp_eq_u32 s45, 7")
    a.e("s_cbranch_scc1 L_spare")
    a.e("s_cmp_ge_u32 s18, 4")
    a.e("s_cbranch_scc1 L_mma")
    n0 = st.n
    a.label("L_ld")
    a.e("s_setprio 3")
    a.e("v_lshrrev_b32 v4, 4, v0")
    a.e("v_lshlrev_b32 v6, 1, v4")
    a.e("v_and_b32 v7, 15, v0")
    a.e("v_xor_b32 v6, v6, v7")
    a.e("v_mul_u32_u24 v5, 3456, v4")
    a.e("v_lshl_add_u32 v2, v6, 4, v5")
    a.e("v_xor_b32 v6, 8, v6")
    a.e("v_lshl_add_u32 v3, v6, 4, v5")
    a.e("v_lshrrev_b32 v5, 3, v0")
    a.e("v_mul_u32_u24 v6, 2304, v5")
    a.e("v_lshrrev_b32 v5, 1, v5")
    a.e("v_and_b32 v7, 7, v0")
    a.e("v_xor_b32 v5, v5, v7")
    a.e("v_lshl_add_u32 v8, v5, 4, v6")
    a.e("v_xor_b32 v5, 4, v5")
    a.e("v_lshl_add_u32 v9, v5, 4, v6")
    a.e(f"v_add_u32 v9, {8*2304}, v9")
    a.e("s_lshr_b32 s46, s2, 3")
    a.e("s_mul_i32 s19, s46, 57")
    a.e("s_lshr_b32 s19, s19, 9")
    a.e("s_mul_i32 s19, s19, 9")
    a.e("s_sub_u32 s46, s46, s19")
    a.e(f"s_mul_i32 s19, s{RB}, {128*1152}")
    a.e(f"s_lshl_b32 s20, s{CT}, 8")
    a.e("s_add_u32 s48, s4, s19")
    a.e("s_addc_u32 s49, s5, 0")
    a.e(f"s_mov_b32 s50, {128*1152}")
    a.e("s_mov_b32 s51, 0x00020000")
    a.e("s_add_u32 s52, s6, s20")
    a.e("s_addc_u32 s53, s7, 0")
    a.e(f"s_sub_u32 s54, {576*3456}, s20")
    a.e("s_mov_b32 s55, 0x00020000")
    a.e("s_load_dwordx2 s[28:29], s[0:1], 72")
    a.e("v_and_b32 v13, 3, v0")
    a.e("v_bfe_u32 v14, v0, 3, 1")
    a.e("v_lshl_or_b32 v13, v14, 2, v13")
    a.e("v_xor_b32 v13, 4, v13")
    a.e("v_lshlrev_b32 v13, 5, v13")
    a.e("v_lshl_add_u32 v14, v0, 8, v13")
    a.e("v_lshlrev_b32 v15, 1, v0")
    a.e(f"v_mov_b32 v10, {L_CNT}")
    a.e("v_mov_b32 v11, 1")
    srd(a, 36, 16, WS_TOTAL)
    a.e("s_mov_b32 s58, s18")
    a.e("s_branch L_ld_go")
    a.label("L_ld_issue")
    a.e("s_mov_b64 exec, 1")
    a.e("ds_add_rtn_u32 v12, v10, v11 offset:28")
    a.e("s_mov_b64 exec, -1")
    a.e("s_waitcnt lgkmcnt(0)")
    a.e("v_readfirstlane_b32 s58, v12")
    a.e("s_add_u32 s58, s58, 4")
    a.e("s_cmp_gt_u32 s58, 8")
    a.e("s_cbranch_scc1 L_ld_done")
    a.e("s_lshl_b32 s19, s58, 2")
    a.e(f"s_add_u32 s19, s19, {L_CNT+FREE-16}")
    a.e("v_mov_b32 v12, s19")
    lds_spin(a, 12, 4)
    a.label("L_ld_go")
    a.e("s_add_u32 s59, s46, s58")
    a.e("s_sub_u32 s19, s59, 9")
    a.e("s_cmp_ge_u32 s59, 9")
    a.e("s_cselect_b32 s59, s19, s59")
    a.e("s_and_b32 s47, s58, 3")
    a.e("s_lshl_b32 s47, s47, 15")
    a.e(f"s_add_u32 s47, s47, {L_RING}")
    a.e(f"s_mul_i32 s19, s59, {64*3456}")
    a.e("s_lshl_b32 s20, s59, 7")
    a.e(f"v_mov_b32 v12, {L_CNT+24}")
    lds_spin(a, 12, "s58")
    for i in range(16):
        a.e(f"s_add_u32 m0, s47, {1024*i}")
        if i and i % 2 == 0: a.e(f"s_add_u32 s20, s20, {1152 if (i//2) % 2 else 31*1152}")
        else: a.e("s_nop 0")
        a.e(f"buffer_load_dwordx4 v{3 if (i//2) % 2 else 2}, s[52:55], s19 offen lds")
        a.e(f"s_add_u32 m0, s47, {16384+1024*i}")
        a.e(f"s_add_u32 s19, s19, {4*3456}")
        a.e(f"buffer_load_dwordx4 v{8 + i % 2}, s[48:51], s20 offen lds")
    lds_add(a, 10, 24)
    a.e(f"s_cmp_lg_u32 s{CT}, 13")
    a.e("s_cbranch_scc1 L_ld_ng")
    a.e("s_mov_b32 s30, 1152")
    a.e("s_mov_b32 s31, 0x00020000")
    a.e("s_lshl_b32 s20, s59, 7")
    a.e("buffer_load_ushort v16, v15, s[28:31], s20 offen")
    a.e("v_add_u32 v17, s47, v14")
    a.e("s_waitcnt vmcnt(0)")
    a.e("ds_write_b16 v17, v16")
    a.label("L_ld_ng")
    a.e("s_lshl_b32 s19, s58, 2")
    a.e("v_add_u32 v12, s19, v10")
    a.e("s_waitcnt vmcnt(0)")
    a.e("s_mov_b64 exec, 1")
    a.e(f"ds_add_u32 v12, v11 offset:{FULL}")
    a.e("s_mov_b64 exec, -1")
    a.e("s_branch L_ld_issue")
    a.label("L_ld_done")
    a.e("s_setprio 0")
    st("b8")
    a.e("s_cmp_ge_u32 s18, 2")
    a.e("s_cbranch_scc1 L_aux2")
    a.e("s_branch L_cvwait")
    a.label("L_aux2")
    a.reset_counters()
    a.e(f"v_mov_b32 v20, {L_CNT+196}")
    lds_spin(a, 20, "0x80000000")
    tag_from_lds(a, 20)
    a.e("s_and_b32 s46, s18, 1")
    a.e(f"v_mov_b32 v4, {L_CNT+12}")
    lds_spin(a, 4, 4)
    a.e("s_add_u32 s56, s3, s46")
    a.e("s_lshl_b32 s20, s56, 12")
    srd(a, 48, 14, SZ)
    a.e("v_lshlrev_b32 v4, 4, v0")
    KX = 128
    for i in range(4): a.vmem(f"buffer_load_dwordx4 {v(KX+4*i,4)}, v4, s[48:51], s20 offen offset:{1024*i}", "K")
    a.e("v_mov_b32 v3, 1")
    st("m0")
    convu_wait(a)
    st("m2")
    a.e(f"s_mul_i32 s41, s46, {4*CV_USZ}")
    convu_issue(a, 56, 41, [0, 1, 2, 3], "U")
    for i in range(4):
        X = KX + 4*i; R1, R2, R3 = 64+12*i, 68+12*i, 72+12*i
        a.e("v_mov_b32 v6, 0"); a.e("v_mov_b32 v7, 0")
        if i:
            a.e(f"v_readlane_b32 s20, v{X-2}, 63")
            a.e(f"v_readlane_b32 s21, v{X-1}, 63")
            a.e("s_nop 1")
            a.e("v_mov_b32 v6, s20"); a.e("v_mov_b32 v7, s21")
        a.e("s_nop 1")
        a.e(f"v_mov_b32_dpp v6, v{X+2} wave_shr:1 row_mask:0xf bank_mask:0xf")
        a.e(f"v_mov_b32_dpp v7, v{X+3} wave_shr:1 row_mask:0xf bank_mask:0xf")
        a.e(f"v_alignbit_b32 v{R1}, v{X}, v7, 16")
        for j in range(1, 4): a.e(f"v_alignbit_b32 v{R1+j}, v{X+j}, v{X+j-1}, 16")
        a.e(f"v_mov_b32 v{R2}, v7")
        for j in range(1, 4): a.e(f"v_mov_b32 v{R2+j}, v{X+j-1}")
        a.e(f"v_alignbit_b32 v{R3}, v7, v6, 16")
        for j in range(1, 4): a.e(f"v_mov_b32 v{R3+j}, v{R1+j-1}")
    a.e("s_lshl_b32 s21, s46, 2")
    a.e(f"s_add_u32 s21, s21, {L_CNT+FREE+20}")
    a.e("v_mov_b32 v4, s21")
    lds_spin(a, 4, 4)
    st("m5")
    a.e("s_lshl_b32 s41, s46, 15")
    a.e(f"s_add_u32 s41, s41, {L_CVK}")
    a.e("v_lshl_add_u32 v4, v0, 4, s41")
    for i in range(4):
        for (r, R_) in ((0, KX+4*i), (1, 64+12*i), (2, 68+12*i), (3, 72+12*i)):
            a.lds(f"ds_write_b128 v4, {v(R_,4)} offset:{8192*r+32+1024*i}")
    a.e("v_mov_b32 v6, 0"); a.e("v_mov_b32 v7, 0")
    a.e("v_lshl_add_u32 v4, v0, 3, s41")
    setexec(a, 0xf)
    for r in range(4): a.lds(f"ds_write_b64 v4, v[6:7] offset:{8192*r}")
    a.e("s_mov_b64 exec, -1")
    st("m6")
    a.wait_vm(None)
    st("m7"); st("m8")
    a.e("s_lshl_b32 s21, s46, 2")
    a.e(f"s_add_u32 s21, s21, {L_CNT+16}")
    a.e("v_mov_b32 v4, s21")
    a.lds("ds_write_b32 v4, v3")
    a.e("s_setprio 0")
    a.label("L_cvwait")
    st("cvk")
    a.e(f"s_lshl_b32 s21, s{ROLE}, 2")
    a.e(f"s_add_u32 s21, s21, {L_CNT+16}")
    a.e("v_mov_b32 v1, s21")
    lds_spin(a, 1, 1)
    tag_from_lds(a, 8)
    st("f1")
    a.e("s_branch L_conv")
    a.label("L_mma")
    a.reset_counters()
    st.n = n0; st.names = st.names[:n0]
    a.e("s_setprio 1")
    srd(a, 36, 16, WS_TOTAL)
    a.e("s_cmp_eq_u32 s99, -1")
    a.e("s_cbranch_scc1 L_mnp")
    a.e("s_waitcnt vmcnt(0)")
    st("p0")
    tag_make(a)
    prep_compute(a, VD, 64)
    st("p1")
    a.label("L_mnp")
    a.reset_counters()
    WA, XA, ACC, FR = 2, 10, 16, 80
    a.e("v_lshrrev_b32 v12, 4, v0")
    a.e("v_bfe_u32 v13, v0, 2, 2")
    a.e("v_and_b32 v14, 1, v12")
    a.e("v_lshl_or_b32 v14, v14, 2, v13")
    a.e("s_and_b32 s22, s18, 1")
    a.e("s_lshl_b32 s22, s22, 2")
    a.e("v_xor_b32 v14, s22, v14")
    a.e("v_lshl_add_u32 v15, v12, 3, v13")
    a.e("v_lshlrev_b32 v15, 8, v15")
    a.e("v_lshl_add_u32 v15, v14, 5, v15")
    a.e("v_and_b32 v14, 3, v0")
    a.e("v_lshl_add_u32 v15, v14, 3, v15")
    a.e(f"v_add_u32 v{WA}, {L_RING}, v15")
    for mt in range(1, 4): a.e(f"v_xor_b32 v{WA+mt}, {32*mt}, v{WA}")
    for mt in range(4): a.e(f"v_add_u32 v{WA+4+mt}, 0x10000, v{WA+mt}")
    SO = 1
    a.e("v_and_b32 v13, 15, v0")
    a.e(f"s_lshl_b32 s21, s{CT}, 5")
    a.e("s_lshl_b32 s22, s22, 2")
    a.e("s_add_u32 s56, s21, s22")
    a.e("v_add_u32 v14, s56, v12")
    a.e("v_lshlrev_b32 v14, 14, v14")
    a.e("s_bfe_u32 s23, s18, 0x10001")
    a.e(f"s_lshl_b32 s21, s{RB}, 10")
    a.e("s_lshl_b32 s22, s23, 9")
    a.e("s_add_u32 s21, s21, s22")
    a.e("v_lshl_add_u32 v14, v13, 4, v14")
    a.e(f"v_add_u32 v{SO}, s21, v14")
    a.e("v_lshrrev_b32 v14, 1, v13")
    a.e("v_xor_b32 v14, v14, v12")
    a.e("s_lshl_b32 s21, s23, 13")
    a.e(f"s_add_u32 s21, s21, {L_RING+16384}")
    a.e("v_lshlrev_b32 v15, 7, v13")
    a.e("v_lshl_add_u32 v15, v14, 4, v15")
    a.e(f"v_add_u32 v{XA}, s21, v15")
    a.e(f"v_xor_b32 v{XA+1}, 64, v{XA}")
    a.e(f"v_add_u32 v{XA+2}, 0x10000, v{XA}")
    a.e(f"v_add_u32 v{XA+3}, 0x10000, v{XA+1}")
    a.e("s_waitcnt lgkmcnt(0)"); a.lgkm = []
    srd(a, 48, 16, QKV_BYTES)
    srd(a, 36, 16, WS_TOTAL)
    def reads(c):
        f = FR + 64 * (c % 2); slot = c % 4; hb = slot // 2; ob = 32768 * (slot % 2)
        out = []
        for kh in range(2):
            for i in range(4):
                for hf in range(2):
                    out.append(lambda kh=kh, mt=i, hf=hf: a.lds(f"ds_read_b64_tr_b16 {v(f+16*kh+4*mt+2*hf,2)}, v{WA+4*hb+mt} offset:{ob+(32*kh+4*hf)*256}", f"F{c}_{kh}"))
                out.append(lambda kh=kh, nt=i: a.lds(f"ds_read_b128 {v(f+32+16*kh+4*nt,4)}, v{XA+2*hb+kh} offset:{ob+2048*nt}", f"F{c}_{kh}"))
        return out
    a.e(f"v_mov_b32 v208, {L_CNT}")
    a.e("v_mov_b32 v209, 1")
    def poll_issue(c): a.lds(f"ds_read_b32 v210, v208 offset:{FULL+4*c}", f"poll{c}")
    def poll_check(c):
        a.wait_lds(f"poll{c}")
        d = a.newlabel("full")
        a.e("v_readfirstlane_b32 s22, v210")
        a.e("s_cmp_ge_u32 s22, 1")
        a.e(f"s_cbranch_scc1 {d}")
        a.e(f"v_add_u32 v210, {FULL+4*c}, v208")
        lds_spin(a, 210, 1)
        a.label(d)
        st(f"m{c}")
    poll_issue(0); poll_check(0)
    for r_ in reads(0): r_()
    a.wait_lds(None)
    lds_add(a, 208, FREE)
    poll_issue(1)
    for c in range(9):
        f = FR + 64 * (c % 2)
        fill = []
        if c + 1 < 9:
            poll_check(c + 1)
            rr = reads(c + 1)
            fill = [(lambda x=rr[2*i], y=rr[2*i+1]: (x(), y())) for i in range(12)] + [None] * 5
            def free_(c=c):
                a.wait_lds(None)
                if c + 1 < 7: lds_add(a, 208, FREE + 4*(c+1))
            fill += [free_] + [None] * 8
            if c + 2 < 9: fill += [lambda c=c: poll_issue(c + 2)]
        else:
            a.wait_lds(None)
        if c == 7: st("b8")
        if c == F1_AT:
            a.e("s_cmp_eq_u32 s99, -1")
            a.e("s_cbranch_scc1 L_nf1")
            a.e("s_waitcnt vmcnt(0)")
            a.e("s_mov_b64 exec, 1")
            a.e("ds_add_rtn_u32 v212, v208, v209 offset:12")
            a.e("s_mov_b64 exec, -1")
            a.e("s_waitcnt lgkmcnt(0)")
            a.e("v_readfirstlane_b32 s22, v212")
            a.e("s_cmp_lg_u32 s22, 3")
            a.e("s_cbranch_scc1 L_nf1")
            flag_write(a, 0, 212); a.vm.pop()
            a.label("L_nf1")
        for kh in range(2):
            for nt in range(4):
                for mt in range(4):
                    acc = v(ACC + (mt*4+nt)*4, 4)
                    first = (c == 0 and kh == 0)
                    a.e(f"v_mfma_f32_16x16x32_bf16 {acc}, {v(f+16*kh+4*mt,4)}, {v(f+32+16*kh+4*nt,4)}, {0 if first else acc}")
                    if fill:
                        x_ = fill.pop(0)
                        if x_: x_()
    a.e("s_cmp_lt_u32 s56, 432")
    a.e("s_cbranch_scc1 L_qkv")
    a.e("s_nop 7")
    G0 = 208
    for nt in range(4): rnd(a, G0+nt, ACC+4*nt)
    for nt in range(4): a.e(f"v_mul_f32 v{G0+nt}, {f32(-1.4426950408889634)}, v{G0+nt}")
    for nt in range(4): a.e(f"v_exp_f32 v{G0+nt}, v{G0+nt}")
    for nt in range(4): a.e(f"v_add_f32 v{G0+nt}, 1.0, v{G0+nt}")
    for nt in range(4): a.e(f"v_rcp_f32 v{G0+nt}, v{G0+nt}")
    for nt in range(4): rnd(a, G0+nt, G0+nt)
    a.e(f"v_and_b32 v2, 0x3fff, v{SO}")
    a.e("v_lshrrev_b32 v2, 1, v2")
    a.e(f"s_mov_b32 s19, {WS_G}")
    setexec(a, 0xffff)
    a.e(f"buffer_store_dwordx2 {v(G0,2)}, v2, s[36:39], s19 offen {SC}")
    a.e(f"buffer_store_dwordx2 {v(G0+2,2)}, v2, s[36:39], s19 offen offset:128 {SC}")
    a.e("s_mov_b64 exec, -1")
    a.e("s_branch L_mdone")
    a.label("L_qkv")
    a.e(f"s_mov_b32 s20, {f32(QSCALE)}")
    a.e("s_cmp_lt_u32 s56, 144")
    a.e("s_cselect_b32 s21, s20, 1.0")
    a.e("s_nop 3")
    for mt in range(4):
        for nt in range(4):
            ac = ACC + (mt*4+nt)*4
            for i in range(4): a.e(f"v_mul_f32 v{ac+i}, s21, v{ac+i}")
            t = FR + 64 + (mt*4+nt)*2
            a.e(f"v_cvt_pk_bf16_f32 v{t}, v{ac}, v{ac+1}")
            a.e(f"v_cvt_pk_bf16_f32 v{t+1}, v{ac+2}, v{ac+3}")
        a.e(f"s_mov_b32 s19, {mt*65536}")
        a.vmem(f"buffer_store_dwordx4 {v(FR+64+mt*8,4)}, v{SO}, s[48:51], s19 offen {SC}")
        a.vmem(f"buffer_store_dwordx4 {v(FR+64+mt*8+4,4)}, v{SO}, s[48:51], s19 offen offset:256 {SC}")
    a.label("L_mdone")
    a.e("s_setprio 0")
    a.e("s_waitcnt vmcnt(0)")
    a.e(f"v_mov_b32 v1, {L_CNT+8}")
    a.e("v_mov_b32 v2, 1")
    a.e("s_mov_b64 exec, 1")
    a.e("ds_add_rtn_u32 v2, v1, v2")
    a.e("s_mov_b64 exec, -1")
    a.e("s_waitcnt lgkmcnt(0)")
    a.e("v_readfirstlane_b32 s22, v2")
    a.e("s_cmp_lg_u32 s22, 3")
    a.e("s_cbranch_scc1 L_cvwait")
    flag_write(a, 1, 120); a.vm.pop()
    a.e("s_branch L_cvwait")
    a.label("L_spare")
    a.reset_counters()
    st.n = n0; st.names = st.names[:n0]
    a.e("s_and_b32 s46, s2, 31")
    a.e("s_and_b32 s58, s18, 3")
    a.e("s_lshr_b32 s59, s18, 2")
    a.e("s_lshl_b32 s3, s46, 2")
    a.e("s_add_u32 s3, s3, s59")
    a.e(f"s_mov_b32 s{ROUNDS}, 2")
    a.e(f"s_add_u32 s{ROLE}, s{ROLE}, 2")
    a.e("s_waitcnt lgkmcnt(0)"); a.lgkm = []
    srd(a, 36, 16, WS_TOTAL)
    a.e("v_lshlrev_b32 v2, 7, v0")
    srd(a, 48, 14, SZ)
    a.e("s_lshl_b32 s19, s46, 3")
    a.e("s_add_u32 s19, s19, s18")
    a.e("s_mul_i32 s19, s19, 9216")
    a.e("buffer_load_dword v210, v2, s[48:51], s19 offen")
    a.e("s_add_u32 s19, s19, 8192")
    setexec(a, 0xff)
    a.e("buffer_load_dword v211, v2, s[48:51], s19 offen")
    a.e("s_mov_b64 exec, -1")
    a.e("s_waitcnt vmcnt(2)")
    st("m1")
    tag_make(a)
    prep_compute(a, VD, 64)
    st("m6")

    a.reset_counters()
    convk_issue(a, 3, RHO, 120, "KA")
    a.e("s_add_u32 s56, s3, 2")
    convk_issue(a, 56, RHO, 146, "KB")
    a.e("s_waitcnt vmcnt(18) lgkmcnt(0)"); a.reset_counters()
    st("m7")
    a.e("s_barrier")
    st("b8")
    a.e("s_cmp_lg_u32 s18, 0")
    a.e("s_cbranch_scc1 L_spc")
    flag_write(a, 0, 8)
    a.label("L_spc")
    a.reset_counters()
    a.e("s_waitcnt vmcnt(0)")
    a.e(f"s_mov_b32 s100, s{CVK}")
    a.e(f"s_mov_b32 s101, s{CVU}")
    convk_write(a, RHO, CVK, 0, 146, "KB")
    a.e("s_lshl_b32 s19, s59, 16")
    a.e(f"s_add_u32 s{CVK}, s{CVK}, s19")
    a.e(f"s_sub_u32 s{CVK}, s{CVK}, 32768")
    a.e(f"s_add_u32 s{CVU}, s{CVU}, {8*CV_USZ}")
    convk_write(a, RHO, CVK, 0, 120, "KA")
    st("cvk")
    convu_wait(a)
    st("f1")
    convu_issue(a, 3, CVU, ['s', RHO], "U")
    convu_issue(a, 56, 101, ['s', RHO], "U2")
    a.wait_vm(None)
    a.label("L_conv")
    a.reset_counters()
    st("cv0")
    AF, ACC, BF = 16, 80, 112
    a.e("s_load_dwordx2 s[6:7], s[0:1], 64")
    a.e("s_lshl_b32 s20, s3, 12")
    a.e(f"s_mul_i32 s23, s{RHO}, {CV_USZ}")
    a.e(f"s_add_u32 s23, s23, s{CVU}")
    a.e("v_lshlrev_b32 v13, 4, v0")
    a.e(f"v_add_u32 v14, s{CVK}, v13")
    a.e("v_lshrrev_b32 v7, 4, v0")
    a.e("v_bfe_u32 v8, v0, 2, 2")
    a.e("v_and_b32 v9, 3, v0")
    a.e("v_lshlrev_b32 v10, 3, v7")
    a.e("v_add3_u32 v10, v10, v8, v9")
    a.e(f"v_lshl_add_u32 v10, v10, 3, s{CVK}")
    a.e("v_and_b32 v11, 15, v0")
    a.e("v_lshlrev_b32 v12, 4, v7")
    a.e("v_lshlrev_b32 v8, 3, v11")
    a.e("v_sub_u32 v12, v12, v8")
    a.e(f"v_add_u32 v12, {2*508-64*14}, v12")
    a.e("v_add_u32 v12, s23, v12")
    a.e("s_lshr_b32 s21, s3, 1")
    a.e("s_lshl_b32 s21, s21, 2")
    a.e("s_waitcnt lgkmcnt(0)")
    a.e("s_load_dword s24, s[6:7], s21")
    def rdA(kap):
        for hf in range(2):
            a.lds(f"ds_read_b64_tr_b16 {v(AF+4*kap+2*hf,2)}, v10 offset:{8+256*kap+32*hf}", f"A{kap}")
    lams = []
    lo, hi = -1, 14
    while lo <= hi:
        lams.append(hi); hi -= 1
        if lo <= hi: lams.append(lo); lo += 1
    def rdB(i):
        lam = lams[i]; b = BF + 4 * (i % 4)
        for hf in range(2):
            a.lds(f"ds_read_b64 {v(b+2*hf,2)}, v12 offset:{64*(14-lam)+8*hf}", f"B{i}")
    rdA(0); rdB(0); rdB(1)
    for kap in (1, 3, 5, 7): rdA(kap)
    restA = [9, 11, 13, 15, 2, 4, 6, 8, 10, 12, 14]
    seen = set()
    for i, lam in enumerate(lams):
        if i + 2 < len(lams): rdB(i + 2)
        a.wait_lds(f"B{i}")
        b = BF + 4 * (i % 4)
        for tau in range(8):
            kap = 2 * tau - lam
            if kap < 0 or kap > 15: continue
            assert kap not in restA
            a.wait_lds(f"A{kap}")
            w = v(ACC + 4*tau, 4)
            a.e(f"v_mfma_f32_16x16x32_bf16 {w}, {v(AF+4*kap,4)}, {v(b,4)}, {w if tau in seen else 0}")
            seen.add(tau)
            for _ in range(2 if i == 0 else 1):
                if restA: rdA(restA.pop(0))
    st("cv1")
    a.e(f"s_lshl_b32 s21, s{RHO}, 13")
    a.e(f"s_sub_u32 s22, s{CVK}, s21")
    a.e(f"s_lshl_b32 s21, s{RHO}, 11")
    a.e("s_add_u32 s22, s22, s21")
    a.e("v_add_u32 v15, s22, v13")
    for i in range(8): a.e(f"v_mov_b32 v{AF+32+i}, 0")
    for tau in range(8):
        a.lds(f"ds_write_b128 v14, {v(ACC+4*tau,4)} offset:{1024*tau}")
    a.e("v_lshl_add_u32 v13, v11, 2, v7")
    a.e("v_lshlrev_b32 v13, 1, v13")
    a.e(f"v_sub_u32 v13, {2*511-128}, v13")
    a.e(f"s_lshl_b32 s21, s{RHO}, 8")
    a.e(f"s_sub_u32 s21, s{CVU}, s21")
    a.e("v_add_u32 v13, s21, v13")
    a.e("v_lshlrev_b32 v14, 5, v11")
    a.e("v_lshl_add_u32 v14, v7, 3, v14")
    a.e(f"s_lshl_b32 s21, s{RHO}, 10")
    a.e("s_add_u32 s21, s21, s20")
    a.e(f"s_add_u32 s21, s21, {WS_Z}")
    st("cv2")
    group_barrier(a, 1)
    st("cv3")
    a.e("s_lshl_b32 s25, s24, 16")
    a.e("s_and_b32 s24, s24, 0xffff0000")
    a.e("s_bitcmp1_b32 s3, 0")
    a.e("s_cselect_b32 s24, s24, s25")
    for j in range(2):
        for sw in range(4):
            a.lds(f"ds_read_b128 {v(AF+16*j+4*sw,4)}, v15 offset:{8192*sw+1024*j}", f"R{j}")
        for i in range(4):
            a.lds(f"ds_read_u16_d16_hi v{AF+32+4*j+i}, v13 offset:{CV_USZ*i+128*(1-j)}", f"R{j}")
    for j in range(2):
        a.wait_lds(f"R{j}")
        y = AF + 16*j; u = AF + 32 + 4*j
        for i in range(4): a.e(f"v_add_f32 v{y+i}, v{y+i}, v{y+4+i}")
        for i in range(4): a.e(f"v_add_f32 v{y+8+i}, v{y+8+i}, v{y+12+i}")
        for i in range(4): a.e(f"v_mul_f32 v{u+i}, s24, v{u+i}")
        for i in range(4): a.e(f"v_add_f32 v{y+i}, v{y+i}, v{y+8+i}")
        for i in range(4): rnd(a, u+i, u+i)
        for i in range(4): rnd(a, y+i, y+i)
        for i in range(4): a.e(f"v_add_f32 v{y+i}, v{y+i}, v{u+i}")
        a.e(f"v_cvt_pk_bf16_f32 v{y}, v{y}, v{y+1}")
        a.e(f"v_cvt_pk_bf16_f32 v{y+1}, v{y+2}, v{y+3}")
        a.vmem(f"buffer_store_dwordx2 {v(y,2)}, v14, s[36:39], s21 offen offset:{512*j} {SC}")
    a.e(f"s_sub_u32 s{ROUNDS}, s{ROUNDS}, 1")
    a.e(f"s_cmp_eq_u32 s{ROUNDS}, 0")
    a.e("s_cbranch_scc1 L_attn")
    group_barrier(a, 1)
    a.e("s_add_u32 s3, s3, 2")
    a.e(f"s_mov_b32 s{CVK}, s100")
    a.e(f"s_mov_b32 s{CVU}, s101")
    a.e("s_branch L_conv")
    a.label("L_attn")
    a.reset_counters()
    st("conv")
    a.e("s_and_b32 s22, s2, 7")
    a.e("s_lshl_b32 s22, s22, 1")
    a.e("s_bfe_u32 s19, s2, 0x10003")
    a.e("s_add_u32 s40, s22, s19")
    a.e("s_lshr_b32 s41, s2, 4")
    a.e("s_lshr_b32 s23, s18, 2")
    a.e("s_mul_i32 s24, s40, 9")
    for i in range(3):
        a.e(f"s_sub_i32 s{32+i}, s41, {2-i}")
        a.e(f"s_max_i32 s{32+i}, s{32+i}, 0")
    Q1, Q2 = 8, 12
    KB_ = [16, 22]; VB_ = [28, 36]; SS = [44, 60]; PP = [76, 84]; OA = 92; NM = 14
    a.e("s_cmp_ge_u32 s18, 4")
    a.e("s_cbranch_scc1 L_nostage")
    a.e("v_lshrrev_b32 v1, 3, v0")
    a.e("v_min_u32 v1, 2, v1")
    a.e("v_mul_u32_u24 v1, 144, v1")
    a.e("v_bfe_u32 v2, v0, 2, 1")
    a.e("v_lshl_add_u32 v1, v2, 3, v1")
    a.e("v_add_u32 v1, s24, v1")
    a.e("v_lshrrev_b32 v1, 5, v1")
    a.e("v_and_b32 v2, 3, v0")
    a.e("v_min_u32 v2, 2, v2")
    a.e("v_sub_u32 v2, s41, v2")
    a.e("v_max_i32 v2, 0, v2")
    a.e("v_cmp_lt_u32 vcc, 6, v1")
    a.e("v_subrev_u32 v3, 7, v1")
    a.e("v_lshrrev_b32 v4, 2, v2")
    a.e("v_cndmask_b32 v1, v1, v3, vcc")
    a.e("v_add_u32 v3, 4, v4")
    a.e("v_cndmask_b32 v4, v4, v3, vcc")
    a.e("v_and_b32 v2, 3, v2")
    a.e("v_lshl_add_u32 v1, v1, 2, v2")
    a.e("v_lshl_add_u32 v1, v1, 3, v4")
    for i in range(3): a.e(f"s_lshl_b32 s{32+i}, s{32+i}, 10")
    a.e("s_add_u32 s26, s24, s18")
    a.e("s_lshl_b32 s26, s26, 14")
    a.e(f"s_mul_i32 s27, s18, {PL}")
    a.e("s_lshl_b32 s28, s18, 10")
    a.e("s_add_u32 s29, s24, 8")
    a.e("s_lshl_b32 s29, s29, 14")
    combos = [(0, 2, L_Q, 1024), (1, 2, L_KP+2048, PL), (2, 2, L_VP+2048, PL), (1, 1, L_KP+1024, PL), (2, 1, L_VP+1024, PL), (1, 0, L_KP, PL), (2, 0, L_VP, PL)]
    for n in range(2):
        so, do = 48 + 2*n, 49 + 2*n
        for jj in range(4):
            ty, i, dst, stride = combos[min(4*n + jj, 6)]
            if jj == 0:
                a.e(f"s_add_u32 s{so}, s{32+i}, {ty*144*16384}")
                a.e(f"s_mov_b32 s{do}, {dst+8*stride}")
            else:
                a.e(f"s_add_u32 s19, s{32+i}, {ty*144*16384}")
                a.e(f"s_cmp_eq_u32 s18, {jj}")
                a.e(f"s_cselect_b32 s{so}, s19, s{so}")
                a.e(f"s_cselect_b32 s{do}, {dst+8*stride}, s{do}")
        a.e(f"s_add_u32 s{so}, s{so}, s29")
    a.e("s_cmp_lg_u32 s18, 0")
    a.e("s_cbranch_scc1 L_w2_o")
    flag_wait(a, 1, 1, 2, 2)
    a.e(f"v_mov_b32 v2, {L_CNT+36}")
    a.e("v_mov_b32 v3, 1")
    a.e("ds_write_b32 v2, v3")
    a.e("s_branch L_w2_j")
    a.label("L_w2_o")
    a.e(f"v_mov_b32 v2, {L_CNT+36}")
    lds_spin(a, 2, 1)
    a.label("L_w2_j")
    a.e(f"s_cmp_eq_u32 s{ROLE}, 0")
    a.e("s_cselect_b32 s19, 8, 4")
    a.e("s_cselect_b32 s20, 4, 8")
    a.e(f"s_add_u32 s19, s19, {L_CNT}")
    a.e("v_mov_b32 v1, s19")
    lds_spin(a, 1, "s20")
    a.e("v_lshlrev_b32 v2, 4, v0")
    for n, (ty, i, dst, stride) in enumerate(combos):
        for q in range(2):
            a.e(f"s_add_u32 m0, s{28 if stride == 1024 else 27}, {dst + 4*q*stride}")
            a.e(f"s_add_u32 s35, s26, s{32+i}")
            a.e(f"s_add_u32 s35, s35, {(ty*144+4*q)*16384}")
            a.vmem(f"buffer_load_dwordx4 v2, s[36:39], s35 offen {SC} lds", "S")
        if n in (2, 5):
            k_ = 0 if n == 2 else 1
            a.e(f"s_mov_b32 m0, s{49+2*k_}")
            a.e("s_nop 0")
            a.vmem(f"buffer_load_dwordx4 v2, s[36:39], s{48+2*k_} offen {SC} lds", "S")
    a.e("v_mov_b32 v5, 0x3f803f80")
    a.e("v_lshlrev_b32 v6, 2, v0")
    a.e("s_lshl_b32 s35, s18, 8")
    a.e("v_add_u32 v6, s35, v6")
    for i in range(3): a.lds(f"ds_write_b32 v6, v5 offset:{L_ONE+1024*i}")
    a.label("L_nostage")
    st("f2")
    a.e("v_and_b32 v1, 31, v0")
    a.e("v_lshrrev_b32 v15, 5, v0")
    a.e("s_lshl_b32 s46, s41, 2")
    a.e(f"s_add_u32 s46, s46, s{RHO}")
    a.e("v_lshlrev_b32 v3, 3, v1")
    a.e("s_mul_i32 s25, s23, 5")
    a.e(f"s_lshl_b32 s35, s{RHO}, 8")
    a.e("s_lshl_b32 s26, s25, 10")
    a.e("s_add_u32 s26, s26, s35")
    a.e(f"s_add_u32 s26, s26, {L_Q}")
    a.e("v_lshl_add_u32 v108, v15, 11, v3")
    a.e("v_add_u32 v108, s26, v108")
    a.e(f"s_add_u32 s26, s35, {L_Q+4096}")
    a.e("v_add_u32 v109, s26, v3")
    a.e(f"s_lshl_b32 s35, s{RHO}, 8")
    a.e(f"s_mul_i32 s25, s25, {PL}")
    a.e("s_add_u32 s26, s25, s35")
    a.e(f"s_add_u32 s26, s26, {L_KP}")
    a.e(f"v_mul_u32_u24 v4, {2*PL}, v15")
    a.e("v_add3_u32 v4, v4, v3, s26")
    a.e(f"v_mul_u32_u24 v5, {5*PL}, v15")
    a.e(f"s_add_u32 s26, s35, {L_KP+4*PL}")
    a.e("v_add3_u32 v3, v5, v3, s26")
    a.e("v_bfe_u32 v5, v0, 2, 2")
    a.e("v_lshl_add_u32 v5, v15, 2, v5")
    a.e("v_lshlrev_b32 v5, 3, v5")
    a.e("v_and_b32 v6, 3, v0")
    a.e(f"v_mul_u32_u24 v7, {PL}, v6")
    a.e(f"s_add_u32 s26, s25, {L_VP}")
    a.e("v_add_u32 v7, s26, v7")
    a.e(f"v_mov_b32 v2, {L_VP+4*PL}")
    m1 = lane_mask(lambda l: (l >> 4) & 1 and (l & 3) == 0); m2 = lane_mask(lambda l: (l >> 4) & 1 and (l & 3) != 0)
    a.e(f"s_mov_b32 s20, 0x{m1 & 0xffffffff:x}"); a.e("s_mov_b32 s21, s20")
    a.e("v_cndmask_b32 v7, v7, v2, s[20:21]")
    a.e(f"v_mov_b32 v2, {L_ONE}")
    a.e(f"s_mov_b32 s20, 0x{m2 & 0xffffffff:x}"); a.e("s_mov_b32 s21, s20")
    a.e("v_cndmask_b32 v7, v7, v2, s[20:21]")
    a.e("v_add3_u32 v5, v5, v7, s35")
    a.e("s_sub_i32 s27, 8, s46")
    a.e("s_max_i32 s27, s27, 0")
    a.e(f"v_mov_b32 v2, {NEGINF}")
    def mask_ops(S, diag):
        ops = []
        for ri in range(16):
            j, i = ri // 4, ri % 4
            md = lane_mask(lambda l: 8*j + 4*(l >> 5) + i <= (l & 31))
            def f(ri=ri, md=md):
                a.e(f"s_mov_b32 s20, 0x{md & 0xffffffff:x}")
                a.e(f"s_mov_b32 s21, 0x{md >> 32:x}")
                if diag: a.e(f"v_cndmask_b32 v{S+ri}, v2, 0, s[20:21]")
                else: a.e(f"v_cndmask_b32 v{S+ri}, 0, v2, s[20:21]")
            ops.append(f)
        return ops
    for f in mask_ops(SS[0], True): f()
    a.e("s_cmp_eq_u32 s23, 0")
    a.e("s_cselect_b32 s48, -1, 0")
    a.e("s_mov_b32 s49, 0")
    a.e("s_cselect_b32 s50, 0, -1")
    a.e("s_mov_b32 s51, 0")
    a.e("s_mov_b32 s42, 0")
    a.e("s_mov_b32 s43, -1")
    a.e("s_load_dwordx2 s[6:7], s[0:1], 16")
    a.e("s_min_u32 s19, s2, 251")
    a.e("s_mul_i32 s56, s19, 2341")
    a.e("s_lshr_b32 s56, s56, 16")
    a.e("s_lshl_b32 s57, s56, 7")
    a.e("v_lshrrev_b32 v110, 3, v0")
    a.e("v_and_b32 v111, 7, v0")
    a.e("v_lshrrev_b32 v112, 1, v110")
    a.e("v_lshlrev_b32 v112, 1, v112")
    a.e("v_xor_b32 v111, v111, v112")
    a.e("v_mul_u32_u24 v110, 1152, v110")
    a.e("v_lshl_add_u32 v110, v111, 4, v110")
    a.e("s_waitcnt vmcnt(0) lgkmcnt(0)"); a.reset_counters()
    a.e("s_barrier")
    st("staged")
    a.e("s_cmp_lg_u32 s18, 0")
    a.e("s_cbranch_scc1 L_nf3")
    flag_write(a, 2, 112); a.vm.pop()
    a.label("L_nf3")

    def rdK(t):
        buf = KB_[t % 2]
        return [lambda: a.lds(f"ds_read_b64 {v(buf,2)}, v4 offset:{256*t}", f"K{t}"),
                lambda: a.lds(f"ds_read_b64 {v(buf+2,2)}, v4 offset:{256*t+PL}", f"K{t}"),
                lambda: a.lds(f"ds_read_b64 {v(buf+4,2)}, v3 offset:{256*t}", f"K{t}")]
    def rdV(t):
        buf = VB_[t % 2]
        return [lambda i=i: a.lds(f"ds_read_b64_tr_b16 {v(buf+2*i,2)}, v5 offset:{256*t+64*i}", f"V{t}") for i in range(4)]
    def qk1(t):
        S = SS[t % 2]; buf = KB_[t % 2]
        a.e(f"v_mfma_f32_32x32x16_bf16 {v(S,16)}, {v(buf,4)}, {v(Q1,4)}, {v(S,16) if t in (0, 8) else 0}")
    def qk2(t):
        S = SS[t % 2]; buf = KB_[t % 2]
        a.e(f"v_mfma_f32_32x32x8_bf16 {v(S,16)}, {v(buf+4,2)}, {v(Q2,2)}, {v(S,16)}")
    def pv(t, h):
        a.e(f"v_mfma_f32_32x32x16_bf16 {v(OA,16)}, {v(VB_[t%2]+4*h,4)}, {v(PP[t%2]+4*h,4)}, {0 if (t == 8 and h == 0) else v(OA,16)}")
    def kill(t, pfx):
        l = f"{pfx}_k{t}"
        a.e(f"s_cmp_lg_u32 s27, {t+1}")
        a.e(f"s_cbranch_scc1 {l}")
        a.e("v_mov_b32 v6, 0xff7f")
        a.e(f"v_cndmask_b32 v{Q2}, v{Q2}, v6, s[42:43]")
        a.label(l)
    a.lds(f"ds_read_b64 {v(Q1,2)}, v108", "Q")
    a.lds(f"ds_read_b64 {v(Q1+2,2)}, v108 offset:1024", "Q")
    a.lds(f"ds_read_b64 {v(Q2,2)}, v109", "Q")
    for f in rdK(8) + rdK(7): f()
    a.e("s_add_u32 s28, s6, s57")
    a.e("s_addc_u32 s29, s7, 0")
    a.e(f"s_sub_u32 s30, {576*1152}, s57")
    a.e("s_mov_b32 s31, 0x00020000")
    a.e(f"s_mul_i32 s58, s18, {8*1152}")
    a.e("s_lshl_b32 s59, s18, 10")
    def wo_dma(j):
        a.e(f"s_add_u32 m0, s59, {L_WO + j*8192}")
        a.e("s_nop 0")
        a.vmem("buffer_load_dwordx4 v110, s[28:31], s58 offen lds", "WO")
        a.e(f"s_add_u32 s58, s58, {64*1152}")
    a.wait_lds("K8")
    a.e("s_barrier")
    a.e(f"v_cndmask_b32 v{Q2}, 0, v{Q2}, s[48:49]")
    a.e(f"v_cndmask_b32 v{Q2+1}, 0, v{Q2+1}, s[50:51]")
    KA = KB_[0]
    a.e(f"v_dot2_f32_bf16 v6, v{Q1}, v{KA}, 0")
    for i in range(1, 6): a.e(f"v_dot2_f32_bf16 v6, v{Q1+i}, v{KA+i}, v6")
    qk1(8)
    a.e("s_nop 2")
    a.e("v_mov_b32 v7, v6")
    a.e("s_nop 1")
    a.e("v_permlane32_swap_b32 v6, v7")
    a.e("s_nop 1")
    a.e("v_add_f32 v6, v6, v7")
    a.e("v_sub_f32 v6, 0, v6")
    a.e("v_cvt_pk_bf16_f32 v6, v6, 0")
    a.e(f"v_cndmask_b32 v{Q2}, v{Q2}, v6, s[42:43]")
    a.e("s_nop 1")

    def softmax_pass(sub, pfx):
        qk2(8)
        for f in rdV(8): f()
        kill(7, pfx)
        a.e("s_nop 3")
        for t in range(8, -1, -1):
            S = SS[t % 2]; P = PP[t % 2]
            valu = []
            for i in range(16):
                if sub: valu.append(lambda i=i: a.e(f"v_add_f32 v{S+i}, v{S+i}, v{NM}"))
                valu.append(lambda i=i: a.e(f"v_exp_f32 v{S+i}, v{S+i}"))
                if i % 2 == 1 and i >= 3:
                    valu.append(lambda i=i: a.e(f"v_cvt_pk_bf16_f32 v{P+(i-3)//2}, v{S+i-3}, v{S+i-2}"))
            valu.append(lambda: a.e("s_nop 0"))
            valu.append(lambda: a.e(f"v_cvt_pk_bf16_f32 v{P+7}, v{S+14}, v{S+15}"))
            q = len(valu) // 4
            def run(n):
                for _ in range(n):
                    if valu: valu.pop(0)()
            if t == 1:
                for f in mask_ops(SS[0], False): f()
                a.e("s_nop 1")
            if t > 0:
                a.wait_lds(f"K{t-1}")
                qk1(t - 1)
            else:
                a.e("s_nop 3")
            run(q)
            if t > 0: qk2(t - 1)
            if t > 1:
                for f in rdK(t - 2): f()
                kill(t - 2, pfx)
            run(q)
            if t < 8:
                a.wait_lds(f"V{t+1}")
                pv(t + 1, 0)
            run(q)
            if t < 8: pv(t + 1, 1)
            if t > 0:
                for f in rdV(t - 1): f()
            if not sub:
                for j_ in {8: (0, 1), 7: (2, 3), 6: (4, 5), 5: (6, 7), 4: (8,)}.get(t, ()): wo_dma(j_)
            run(100)
        a.wait_lds(None)
        a.e("s_nop 0")
        pv(0, 0); pv(0, 1)
        a.e("s_nop 7")
        a.e("s_nop 3")

    softmax_pass(False, "sa")
    st("soft")
    a.e(f"v_mov_b32 v6, v{OA+12}")
    for i in range(12): a.e(f"v_fma_f32 v6, v{OA+i}, 0, v6")
    a.e(f"s_mov_b32 s20, {f32(2.0**-30)}")
    a.e(f"s_mov_b32 s21, {f32(2.0**100)}")
    a.e("v_cmp_nlt_f32 vcc, s20, v6")
    a.e("v_cmp_ngt_f32 s[44:45], s21, v6")
    a.e("s_or_b64 vcc, vcc, s[44:45]")
    a.e("s_cbranch_vccnz L_fallback")
    a.label("L_fin")
    P0 = PP[0]
    a.e(f"v_rcp_f32 v6, v{OA+12}")
    a.e("s_nop 0")
    for i in range(12): a.e(f"v_mul_f32 v{OA+i}, v{OA+i}, v6")
    for i in range(6): a.e(f"v_cvt_pk_bf16_f32 v{P0+i}, v{OA+2*i}, v{OA+2*i+1}")
    a.e("v_lshrrev_b32 v6, 4, v1")
    a.e("v_mul_u32_u24 v6, 18432, v6")
    a.e("v_and_b32 v7, 15, v1")
    a.e("v_lshl_add_u32 v6, v7, 4, v6")
    a.e("v_lshl_add_u32 v7, v15, 8, v6")
    a.e("s_mul_i32 s26, s46, 36864")
    a.e(f"s_add_u32 s26, s26, {WS_O}")
    a.e("s_lshl_b32 s19, s40, 1")
    a.e("s_add_u32 s19, s19, s23")
    a.e("s_lshl_b32 s20, s19, 9")
    a.e("s_add_u32 s20, s20, s26")
    a.vmem(f"buffer_store_dwordx4 {v(P0,4)}, v7, s[36:39], s20 offen {SC}")
    a.e("s_lshr_b32 s20, s19, 2")
    a.e("s_lshl_b32 s20, s20, 8")
    a.e("s_and_b32 s21, s19, 3")
    a.e("s_lshl_b32 s21, s21, 2")
    a.e("s_add_u32 s20, s20, s21")
    a.e("s_add_u32 s20, s20, s26")
    a.e("s_add_u32 s20, s20, 16384")
    a.e("s_cmp_eq_u32 s23, 0")
    a.e("s_cbranch_scc1 L_ev")
    a.e(f"v_mov_b32 v{P0+4}, v{P0+5}")
    a.label("L_ev")
    setexec(a, 0xffffffff)
    a.vmem(f"buffer_store_dword v{P0+4}, v6, s[36:39], s20 offen {SC}")
    a.e("s_mov_b64 exec, -1")
    a.e("s_load_dwordx2 s[4:5], s[0:1], 0")
    a.e("s_load_dwordx2 s[8:9], s[0:1], 80")
    a.e("s_mul_i32 s19, s56, 28")
    a.e("s_sub_u32 s19, s2, s19")
    a.e("s_mul_i32 s21, s19, 5")
    a.e("s_lshl_b32 s22, s19, 2")
    a.e("s_add_u32 s22, s22, 16")
    a.e("s_cmp_lt_u32 s19, 16")
    a.e("s_cselect_b32 s19, s21, s22")
    a.e("s_cselect_b32 s43, 5, 4")
    a.e("s_cmp_ge_u32 s2, 252")
    a.e("s_cselect_b32 s43, 0, s43")
    a.e("s_add_u32 s21, s19, s18")
    OF, ACC, WF = 16, 88, 104
    XE, GE = 136, 144
    a.e("s_min_u32 s21, s21, 127")
    a.e("v_and_b32 v2, 15, v0")
    a.e("v_lshrrev_b32 v3, 4, v0")
    a.e("s_lshl_b32 s40, s21, 4")
    a.e("v_add_u32 v4, s40, v2")
    a.e("v_mul_u32_u24 v5, 1152, v4")
    a.e("v_lshl_add_u32 v5, v3, 3, v5")
    a.e("s_waitcnt lgkmcnt(0)")
    srd(a, 24, 4, SZ)
    srd(a, 32, 8, SZ)
    a.e("s_lshl_b32 s19, s56, 6")
    a.e("v_add_u32 v6, s19, v0")
    a.e("v_lshrrev_b32 v7, 2, v6")
    a.e("v_add_u32 v7, 224, v7")
    a.e("v_subrev_u32 v8, 128, v6")
    a.e("v_lshrrev_b32 v8, 1, v8")
    a.e("v_cmp_gt_u32 vcc, 128, v6")
    a.e("s_lshr_b32 s19, s40, 9")
    a.e("s_bfe_u32 s20, s40, 0x20007")
    a.e("s_lshl_b32 s20, s20, 3")
    a.e("s_add_u32 s19, s19, s20")
    a.e("s_add_u32 s19, s19, 196")
    a.e("v_cndmask_b32 v6, v8, v7, vcc")
    a.e("v_mov_b32 v7, s19")
    a.e("s_mov_b32 s44, 0xaaaaaaaa")
    a.e("s_mov_b32 s45, 0xaaaaaaaa")
    a.e("v_cndmask_b32 v6, v6, v7, s[44:45]")
    a.e("v_lshlrev_b32 v7, 7, v6")
    a.e(f"s_mov_b32 s22, {WS_F + 16}")
    a.e("buffer_load_dwordx2 v[8:9], v7, s[36:39], s22 offen sc0 sc1")
    a.e(f"v_mov_b32 v10, {L_CNT+32}")
    a.e("v_mov_b32 v11, 1")
    a.e("s_waitcnt vmcnt(0)"); a.reset_counters()
    a.e("s_mov_b64 exec, 1")
    a.e("ds_add_rtn_u32 v11, v10, v11")
    a.e("s_mov_b64 exec, -1")
    a.e("s_waitcnt lgkmcnt(0)")
    a.e("v_readfirstlane_b32 s22, v11")
    a.e("s_cmp_lg_u32 s22, 7")
    a.e("s_cbranch_scc1 L_nf4")
    flag_write(a, 3, 12); a.vm.pop()
    a.label("L_nf4")
    st("ost")
    a.e("s_cmp_lt_u32 s18, s43")
    a.e("s_cbranch_scc1 L_g2")
    a.e("s_cmp_lg_u32 s2, 255")
    a.e("s_cbranch_scc1 L_end")
    a.e("s_cmp_lg_u32 s18, 0")
    a.e("s_cbranch_scc1 L_end")
    for q in range(4):
        a.e(f"v_add_u32 v6, {64*q}, v0")
        flag_wait(a, 3, 6, 8, 8)
    a.e(f"v_mov_b32 v6, {WS_E}")
    a.e(f"v_mov_b32 v8, s{TAG}")
    a.e(f"v_mov_b32 v9, s{TAG+1}")
    a.e("s_mov_b64 exec, 1")
    a.e("buffer_store_dwordx2 v[8:9], v6, s[36:39], 0 offen sc0 sc1")
    a.e("s_endpgm")
    a.label("L_g2")
    for mt in range(4):
        a.vmem(f"buffer_load_dwordx2 {v(XE+2*mt,2)}, v5, s[24:27], s57 offen offset:{32*mt}", "X")
    a.e(f"v_cmp_ne_u64 vcc, s[{TAG}:{TAG+1}], v[8:9]")
    a.e("s_cbranch_vccz L_f3ok")
    flag_wait(a, 2, 6, 8)
    a.label("L_f3ok")
    a.e("v_lshrrev_b32 v6, 1, v0")
    a.e("v_lshlrev_b32 v6, 12, v6")
    a.e("v_and_b32 v8, 1, v0")
    a.e("v_lshl_add_u32 v6, v8, 4, v6")
    a.e("s_lshl_b32 s45, s56, 18")
    a.e("s_lshl_b32 s46, s21, 5")
    a.e("s_add_u32 s45, s45, s46")
    a.e(f"s_add_u32 s45, s45, {WS_Z}")
    a.e("s_lshl_b32 s44, s18, 11")
    for q in range(2):
        a.e(f"s_add_u32 m0, s44, {q*1024}")
        a.e("s_nop 0")
        a.vmem(f"buffer_load_dwordx4 v6, s[36:39], s45 offen {SC} lds", "X")
        a.e(f"s_add_u32 s45, s45, {32*4096}")
    a.e("v_lshlrev_b32 v6, 2, v4")
    a.e(f"s_mov_b32 s45, {WS_G}")
    a.vmem(f"buffer_load_dword v{GE}, v6, s[36:39], s45 offen {SC}", "X")
    a.e("v_bfe_u32 v6, v0, 2, 2")
    a.e("v_and_b32 v11, 3, v0")
    a.e("v_lshrrev_b32 v8, 1, v3")
    a.e("v_mul_u32_u24 v8, 20, v8")
    a.e("v_and_b32 v9, 1, v3")
    a.e("v_lshl_add_u32 v8, v9, 2, v8")
    a.e("v_add_u32 v8, v8, v6")
    a.e("v_bfe_u32 v9, v8, 1, 2")
    a.e("v_lshlrev_b32 v8, 7, v8")
    a.e("v_lshl_add_u32 v8, v11, 3, v8")
    a.e(f"v_add_u32 v8, {L_WO}, v8")
    MA = 148
    for mt in range(4):
        a.e(f"v_xor_b32 v10, {mt}, v9")
        a.e(f"v_lshl_add_u32 v{MA+mt}, v10, 5, v8")
    a.e("v_mul_u32_u24 v8, 72, v3")
    a.e("v_add3_u32 v8, v8, v6, 16")
    a.e("v_bfe_u32 v9, v8, 1, 2")
    a.e("v_lshlrev_b32 v8, 7, v8")
    a.e("v_lshl_add_u32 v8, v11, 3, v8")
    a.e(f"v_add_u32 v8, {L_WO}, v8")
    TA_ = 152
    for mt in range(4):
        a.e(f"v_xor_b32 v10, {mt}, v9")
        a.e(f"v_lshl_add_u32 v{TA_+mt}, v10, 5, v8")
    a.e("v_lshl_add_u32 v8, v3, 2, v6")
    a.e("v_lshlrev_b32 v8, 5, v8")
    a.e("v_lshl_add_u32 v8, v11, 3, v8")
    a.e("v_add_u32 v8, s44, v8")
    BP, ZE, T = 156, 172, 180
    a.wait_vm(None)
    for mt in range(4):
        a.lds(f"ds_read_b64_tr_b16 {v(ZE+2*mt,2)}, v8 offset:{512*mt}", "Z")
    a.e(f"v_sub_f32 v9, 1.0, v{GE}")
    rnd(a, 9, 9)
    a.e("s_mov_b32 s42, 0xffff0000")
    a.wait_lds("Z")
    for mt in range(4):
        B = BP + 4*mt
        for i in range(4):
            op = "v_lshlrev_b32 v%d, 16, v%d" if i % 2 == 0 else "v_and_b32 v%d, s42, v%d"
            a.e(op % (B+i, XE+2*mt+i//2))
            a.e(op % (T+i, ZE+2*mt+i//2))
        for i in range(4): a.e(f"v_mul_f32 v{B+i}, v{B+i}, v{T+i}")
        for i in range(4): rnd(a, B+i, B+i)
        for i in range(4): a.e(f"v_mul_f32 v{B+i}, v{B+i}, v9")
        for i in range(4): rnd(a, B+i, B+i)
    def rd(ks):
        b = WF + 16 * (ks % 2)
        for mt in range(4):
            for hf in range(2):
                if ks < 16:
                    kk = ks if ks < 12 else ks - 12
                    ar = MA + (mt ^ (2 * (ks & 1))); off = (36*kk + 8*hf) * 128
                else:
                    ar = TA_ + (mt ^ (2 * hf)); off = (288*(ks-16) + 36*hf) * 128
                a.lds(f"ds_read_b64_tr_b16 {v(b+4*mt+2*hf,2)}, v{ar} offset:{off}", f"F{ks}")
    a.e(f"v_mov_b32 v10, {L_CNT+32}")
    lds_spin(a, 10, 8)
    rd(0)
    a.e("s_lshr_b32 s19, s21, 3")
    a.e("s_lshl_b32 s19, s19, 4")
    a.e("v_add_u32 v6, s19, v2")
    a.e("s_add_u32 s19, s21, s43")
    a.e("s_sub_u32 s19, s19, 1")
    a.e("s_lshr_b32 s19, s19, 3")
    a.e("s_lshl_b32 s19, s19, 4")
    a.e("v_add_u32 v7, s19, v2")
    a.e("v_cndmask_b32 v6, v6, v7, s[44:45]") if False else None
    a.e("s_mov_b32 s46, 0")
    a.e("s_mov_b32 s47, -1")
    a.e("v_cndmask_b32 v6, v6, v7, s[46:47]")
    a.e("s_cmp_lg_u32 s18, 0")
    a.e("s_cbranch_scc1 L_w4_o")
    flag_wait(a, 3, 6, 10, 2)
    a.e(f"v_mov_b32 v10, {L_CNT+40}")
    a.e("v_mov_b32 v11, 1")
    a.e("ds_write_b32 v10, v11")
    a.e("s_branch L_w4_j")
    a.label("L_w4_o")
    a.e(f"v_mov_b32 v10, {L_CNT+40}")
    lds_spin(a, 10, 1)
    a.label("L_w4_j")
    a.lgkm.append(None)
    st("f4")
    a.e("v_lshlrev_b32 v7, 4, v0")
    a.e("s_mul_i32 s22, s21, 18432")
    a.e(f"s_add_u32 s22, s22, {WS_O}")
    for ks in range(18):
        a.vmem(f"buffer_load_dwordx4 {v(OF+4*ks,4)}, v7, s[36:39], s22 offen offset:{1024*(ks%4)} {SC}", f"O{ks}")
        if ks % 4 == 3: a.e("s_add_u32 s22, s22, 4096")
    for ks in range(18):
        if ks + 1 == 12:
            for mt in range(4): a.e(f"v_add_u32 v{MA+mt}, {12*36*128}, v{MA+mt}")
        if ks + 1 < 18: rd(ks + 1)
        a.wait_vm(f"O{ks}")
        a.wait_lds(f"F{ks}")
        b = WF + 16 * (ks % 2)
        for mt in range(4):
            acc = v(ACC + 4*mt, 4)
            a.e(f"v_mfma_f32_16x16x32_bf16 {acc}, {v(b+4*mt,4)}, {v(OF+4*ks,4)}, {acc if ks else 0}")
    a.e("s_nop 4")
    for mt in range(4):
        ac = ACC + 4*mt
        for i in range(4): rnd(a, ac+i, ac+i)
        for i in range(4): a.e(f"v_mul_f32 v{ac+i}, v{ac+i}, v{GE}")
        for i in range(4): rnd(a, ac+i, ac+i)
        for i in range(4): a.e(f"v_add_f32 v{ac+i}, v{ac+i}, v{BP+4*mt+i}")
        a.e(f"v_cvt_pk_bf16_f32 v{ac}, v{ac}, v{ac+1}")
        a.e(f"v_cvt_pk_bf16_f32 v{ac+1}, v{ac+2}, v{ac+3}")
        a.vmem(f"buffer_store_dwordx2 {v(ac,2)}, v5, s[32:35], s57 offen offset:{32*mt}")
    st("end"); st.real("rt1"); st.flush(16, 18, 0)
    a.label("L_end")
    a.e("s_endpgm")
    a.label("L_fallback")
    a.reset_counters()
    a.e(f"v_cndmask_b32 v{Q2}, v{Q2}, 0, s[42:43]")
    a.e(f"v_mov_b32 v{NM}, {NEGINF}")
    for t in range(8, -1, -1):
        for f in rdK(t): f()
        if t in (0, 8):
            for f in mask_ops(SS[0], t == 8): f()
        if t < 8: kill(t, "sm")
        a.wait_lds(None)
        a.e("s_nop 1")
        qk1(t); qk2(t)
        a.e("s_nop 7"); a.e("s_nop 3")
        S = SS[t % 2]
        for i in range(8): a.e(f"v_max3_f32 v{NM}, v{S+2*i}, v{S+2*i+1}, v{NM}")
    for f in rdK(8) + rdK(7): f()
    a.e(f"v_cndmask_b32 v{Q2}, v{Q2}, 0, s[42:43]")
    a.e(f"v_mov_b32 v7, v{NM}")
    a.e("s_nop 1")
    a.e(f"v_permlane32_swap_b32 v{NM}, v7")
    a.e("s_nop 1")
    a.e(f"v_max_f32 v{NM}, v{NM}, v7")
    a.e(f"v_sub_f32 v{NM}, 0, v{NM}")
    for f in mask_ops(SS[0], True): f()
    a.wait_lds("K8")
    a.e("s_nop 1")
    qk1(8)
    softmax_pass(True, "sb")
    a.e("s_branch L_fin")
    a.label("L_codeend")

def main(path):
    a = Asm()
    hdr = open(f"cdna_kernels/{NAME}.s.ref").read().split("\n")
    head = [l for l in hdr if l.startswith(";") and "@launch" not in l and "Override" not in l and "grid=ceil" not in l]
    for l in head: a.raw(l)
    a.raw(f"; @launch grid=(256,1,1) block=(512,1,1) lds={LDS_TOTAL}")
    a.raw('.amdgcn_target "amdgcn-amd-amdhsa--gfx950"')
    a.raw(".text")
    gen(a)
    a.raw('.section .rodata,"a"')
    a.raw(kernel_desc(NAME + "_kernel", 216))
    open(path, "w").write(a.text())

if __name__ == "__main__":
    if len(sys.argv) > 2 and sys.argv[2] == "stamps":
        asmlib.STAMP_ON = True
        asmlib.STAMP_FILTER = list((sys.argv[3] if len(sys.argv) > 3 else "b8,cvk,f1,cv1,cv3,conv,f2,staged,soft,ost,f4,end").split(","))
    main(sys.argv[1] if len(sys.argv) > 1 else f"fused.s")
```

```python
import sys, struct
from asmlib import *
import asmlib

NAME = "gated_mix__sliding_block__ssm_conv_h3__prompt"
SZ = 2048 * 576 * 2
WS_QKV = 0
QKV_BYTES = 432 * 16384
WS_U = QKV_BYTES
WS_O = WS_U + SZ
WS_Z = WS_O + SZ
WS_G = WS_Z + SZ
WS_F = WS_G + 8192
WS_E = WS_F + 32768
WS_C = WS_E + 128
WS_F4 = WS_C + 2048
WS_TOTAL = WS_F4 + 32768
FAKE_XCC = None
def f32(x): return "0x%08x" % struct.unpack("<I", struct.pack("<f", x))[0]
QSCALE = 18 ** -0.5 * 1.4426950408889634
NEGINF = "0xff800000"
SC = "sc1"
SPIN_MAX = 40000

def rnd(a, dst, src):
    a.e(f"v_cvt_pk_bf16_f32 v{dst}, 0, v{src}")
def lane_mask(fn):
    m = 0
    for l in range(64):
        if fn(l): m |= 1 << l
    return m

L_U = 0
UP = 288
L_PK = 9728
L_CNT = 22016
L_RING = 24576
L_CVK = L_RING + 32768
PL = 3072
L_KP = L_RING
L_ONE = L_KP + 9 * PL
L_WO = L_ONE + PL
L_VP = 163840 - 9 * PL
LDS_TOTAL = 163840
assert L_WO + 73728 <= L_VP
CV_USZ = 1216

TAG = 88
ROLE, CVK, CVU, GCNT, ROUNDS, RHO, GTGT, PBASE = 90, 91, 92, 93, 94, 95, 96, 98
TASK = 99

def prep_task(a, T_s):
    a.e(f"s_mul_i32 s40, s{T_s}, 3641")
    a.e("s_lshr_b32 s40, s40, 16")
    a.e("s_mul_i32 s41, s40, 18")
    a.e(f"s_sub_u32 s41, s{T_s}, s41")

PB = 200
def prep_setup(a):
    a.e(f"v_lshrrev_b32 v{PB+8}, 2, v0")
    a.e(f"v_and_b32 v{PB+9}, 3, v0")
    a.e(f"v_mul_u32_u24 v{PB}, 1152, v{PB+8}")
    a.e(f"v_lshlrev_b32 v{PB+1}, 1, v{PB}")
    a.e(f"v_lshl_add_u32 v{PB}, v{PB+9}, 4, v{PB}")
    a.e(f"v_lshl_add_u32 v{PB+1}, v{PB+9}, 4, v{PB+1}")
    a.e(f"v_lshlrev_b32 v{PB+2}, 4, v0")

def prep_issue(a, R):
    a.e(f"s_mul_i32 s22, s40, {32*1152}")
    a.e("s_lshl_b32 s23, s41, 6")
    a.e("s_add_u32 s22, s22, s23")
    a.e(f"v_add_u32 v{PB+3}, s22, v{PB}")
    a.e(f"v_subrev_u32 v{PB+3}, {3*1152}, v{PB+3}")
    for i in range(2):
        a.e(f"s_add_u32 m0, s{PBASE}, {256+1024*i}")
        a.e(f"s_add_u32 s23, s22, {16*1152*i}")
        a.e(f"buffer_load_dwordx4 v{PB}, s[24:27], s23 offen lds")
    a.e(f"buffer_load_dwordx4 {v(R,4)}, v{PB+1}, s[28:31], s22 offen")
    a.e(f"buffer_load_dwordx4 {v(R+4,4)}, v{PB+1}, s[28:31], s22 offen offset:1152")
    a.e(f"s_add_u32 m0, s{PBASE}, 64")
    setexec(a, 0xfff)
    a.e(f"buffer_load_dwordx4 v{PB+3}, s[24:27], 0 offen lds")
    a.e(f"s_add_u32 m0, s{PBASE}, 2304")
    a.e("s_mov_b32 exec_lo, 0xffff")
    a.e("s_lshl_b32 s23, s41, 8")
    a.e(f"buffer_load_dwordx4 v{PB+2}, s[32:35], s23 offen lds")
    a.e("s_mov_b64 exec, -1")

def prep_compute(a, VR, T):
    KR, SW = T + 52, T + 72
    UK, UW, UV, TA, OUT = T, T+20, T+36, T+44, T+88
    A0, A1, A2, A3, A4 = PB, PB+1, PB+2, PB+3, PB+4
    a.e(f"v_lshlrev_b32 v{A0}, 7, v{PB+8}")
    a.e(f"v_lshl_add_u32 v{A0}, v{PB+9}, 4, v{A0}")
    a.e(f"v_add_u32 v{A0}, s{PBASE}, v{A0}")
    a.e(f"v_lshl_add_u32 v{A1}, v{PB+9}, 6, s{PBASE}")
    for j in range(5): a.lds(f"ds_read_b128 {v(KR+4*j,4)}, v{A0} offset:{64+64*j}", "PK")
    for i in range(4): a.lds(f"ds_read_b128 {v(SW+4*i,4)}, v{A1} offset:{2304+16*i}", "PW")
    a.e("s_mov_b32 s42, 0xffff0000")
    a.e(f"v_lshrrev_b32 v{A2}, 3, v0")
    a.e(f"v_mul_u32_u24 v{A2}, {UP}, v{A2}")
    a.e(f"v_and_b32 v{A3}, 1, v{PB+8}")
    a.e(f"v_lshl_add_u32 v{A2}, v{A3}, 2, v{A2}")
    a.e(f"v_add_u32 v{A2}, v{A2}, v{A1}")
    a.e(f"v_add_u32 v{A2}, 2560, v{A2}")
    a.e(f"v_bfe_u32 v{A3}, v0, 2, 2")
    a.e(f"v_sub_u32 v{A3}, 3, v{A3}")
    a.e(f"v_mul_u32_u24 v{A3}, {UP}, v{A3}")
    a.e(f"v_lshrrev_b32 v{A4}, 4, v0")
    a.e(f"v_lshl_add_u32 v{A3}, v{A4}, 5, v{A3}")
    a.e(f"v_lshl_add_u32 v{A3}, v{PB+9}, 3, v{A3}")
    a.e(f"v_add_u32 v{A3}, s{PBASE}, v{A3}")
    a.e(f"v_lshlrev_b32 v{A4}, 12, v{PB+8}")
    a.e(f"v_lshl_add_u32 v{A4}, v{PB+9}, 4, v{A4}")
    a.e("s_lshl_b32 s22, s41, 17")
    a.e("s_lshl_b32 s23, s40, 6")
    a.e("s_add_u32 s22, s22, s23")
    a.e(f"s_add_u32 s22, s22, {WS_U}")
    a.e(f"s_add_u32 s23, s22, {16*4096}")
    for half in range(2):
        for r in range(2):
            for qq in range(2):
                a.e(f"v_lshlrev_b32 v{UV+4*r+2*qq}, 16, v{VR+4*r+2*half+qq}")
                a.e(f"v_and_b32 v{UV+4*r+2*qq+1}, s42, v{VR+4*r+2*half+qq}")
        a.wait_lds("PK")
        for r in range(5):
            for qq in range(2):
                a.e(f"v_lshlrev_b32 v{UK+4*r+2*qq}, 16, v{KR+4*r+2*half+qq}")
                a.e(f"v_and_b32 v{UK+4*r+2*qq+1}, s42, v{KR+4*r+2*half+qq}")
        a.wait_lds("PW")
        for c in range(4):
            for t in range(2):
                src = SW + (4*half+c)*2 + t
                a.e(f"v_lshlrev_b32 v{UW+4*c+2*t}, 16, v{src}")
                a.e(f"v_and_b32 v{UW+4*c+2*t+1}, s42, v{src}")
        RC = [(r, c) for r in range(2) for c in range(4)]
        for r, c in RC: a.e(f"v_mul_f32 v{TA+4*r+c}, v{UK+4*r+c}, v{UW+4*c+3}")
        for t in (1, 2, 3):
            for r, c in RC: a.e(f"v_fmac_f32 v{TA+4*r+c}, v{UK+4*(r+t)+c}, v{UW+4*c+3-t}")
        for r, c in RC: rnd(a, TA+4*r+c, TA+4*r+c)
        for r, c in RC: a.e(f"v_mul_f32 v{TA+4*r+c}, v{TA+4*r+c}, v{UV+4*r+c}")
        for c in range(4):
            a.e(f"v_cvt_pk_bf16_f32 v{OUT+4*half+c}, v{TA+c}, v{TA+4+c}")
        for c in range(4*half, 4*half+4, 2):
            a.lds(f"ds_write2_b32 v{A2}, v{OUT+c}, v{OUT+c+1} offset0:{2*c} offset1:{2*c+2}")
    for d in range(2):
        a.lds(f"ds_read_b64_tr_b16 {v(T+4*d,2)}, v{A3} offset:{2560+4*UP+128*d}", f"PT{d}")
        a.lds(f"ds_read_b64_tr_b16 {v(T+4*d+2,2)}, v{A3} offset:{2560+128*d}", f"PT{d}")
    for d in range(2):
        a.wait_lds(f"PT{d}")
        a.e(f"buffer_store_dwordx4 {v(T+4*d,4)}, v{A4}, s[36:39], s{22+d} offen {SC}")

def tag_make(a):
    a.e(f"v_readfirstlane_b32 s{TAG}, v214")
    a.e(f"v_readfirstlane_b32 s{TAG+1}, v215")
    a.e(f"v_mov_b32 v212, {L_CNT+192}")
    a.e(f"s_add_u32 s{TAG}, s{TAG}, 1")
    a.e(f"s_addc_u32 s{TAG+1}, s{TAG+1}, 0")
    a.e(f"s_or_b32 s{TAG+1}, s{TAG+1}, 0x80000000")
    a.e(f"v_mov_b32 v214, s{TAG}")
    a.e(f"v_mov_b32 v215, s{TAG+1}")
    a.lds("ds_write_b64 v212, v[214:215]")

def get_xcc(a, S):
    if FAKE_XCC is None:
        a.e(f"s_getreg_b32 s{S}, hwreg(HW_REG_XCC_ID)")
        a.e(f"s_and_b32 s{S}, s{S}, 15")
    else:
        a.e(FAKE_XCC.replace("DST", f"s{S}"))

def census_write(a):
    get_xcc(a, 22)
    a.e("s_lshl_b32 s22, s22, 28")
    a.e(f"s_and_b32 s23, s{TAG+1}, 0x0fffffff")
    a.e("s_or_b32 s23, s23, s22")
    a.e("s_lshl_b32 s22, s2, 3")
    a.e(f"s_add_u32 s22, s22, {WS_C}")
    a.e("v_mov_b32 v196, s22")
    a.e(f"v_mov_b32 v198, s{TAG}")
    a.e("v_mov_b32 v199, s23")
    a.e("s_mov_b64 exec, 1")
    a.e("buffer_store_dwordx2 v[198:199], v196, s[36:39], 0 offen sc0 sc1")
    a.e("s_mov_b64 exec, -1")

def census(a):
    T = 20
    l = a.newlabel("cen"); d = a.newlabel("cend")
    a.e(f"v_lshlrev_b32 v{T}, 3, v0")
    a.e(f"s_mov_b32 s22, {WS_C}")
    a.e(f"s_and_b32 s23, s{TAG+1}, 0x0fffffff")
    a.e(f"s_mov_b32 s97, {SPIN_MAX}")
    a.label(l)
    for q in range(4): a.e(f"buffer_load_dwordx2 {v(T+2+2*q,2)}, v{T}, s[36:39], s22 offen offset:{512*q} sc0 sc1")
    a.e("s_waitcnt vmcnt(0)")
    a.e(f"v_mov_b32 v{T+1}, 0")
    for q in range(4):
        a.e(f"v_xor_b32 v{T+2+2*q}, s{TAG}, v{T+2+2*q}")
        a.e(f"v_and_b32 v{T+10}, 0x0fffffff, v{T+3+2*q}")
        a.e(f"v_xor_b32 v{T+10}, s23, v{T+10}")
        a.e(f"v_or3_b32 v{T+1}, v{T+1}, v{T+10}, v{T+2+2*q}")
    a.e(f"v_cmp_ne_u32 vcc, 0, v{T+1}")
    a.e(f"s_cbranch_vccz {d}")
    a.e("s_sleep 8")
    a.e("s_sub_u32 s97, s97, 1")
    a.e(f"s_cbranch_scc0 {l}")
    a.label(d)
    for q in range(4): a.e(f"v_lshrrev_b32 v{T+3+2*q}, 28, v{T+3+2*q}")
    get_xcc(a, 19)
    a.e("s_mov_b32 s20, 0")
    for q in range(4):
        a.e(f"v_add_u32 v{T+10}, {64*q}, v0")
        a.e(f"v_cmp_eq_u32 vcc, s19, v{T+3+2*q}")
        a.e(f"v_cmp_gt_u32 s[24:25], s2, v{T+10}")
        a.e("s_and_b64 s[24:25], s[24:25], vcc")
        a.e("s_bcnt1_i32_b64 s21, s[24:25]")
        a.e("s_add_u32 s20, s20, s21")
    a.e("s_mov_b32 s26, 0")
    for x in range(8):
        a.e("s_mov_b32 s27, -32")
        for q in range(4):
            a.e(f"v_cmp_eq_u32 vcc, {x}, v{T+3+2*q}")
            a.e("s_bcnt1_i32_b64 s21, vcc")
            a.e("s_add_u32 s27, s27, s21")
        a.e("s_or_b32 s26, s26, s27")
    a.e("s_lshl_b32 s19, s19, 5")
    a.e("s_add_u32 s19, s19, s20")
    a.e("s_add_u32 s19, s19, 0x10100")
    a.e("s_add_u32 s20, s2, 0x10000")
    a.e("s_cmp_eq_u32 s26, 0")
    a.e("s_cselect_b32 s19, s19, s20")
    a.e(f"v_mov_b32 v{T}, {L_CNT+44}")
    a.e(f"v_mov_b32 v{T+1}, s19")
    a.e(f"ds_write_b32 v{T}, v{T+1}")

def tag_from_lds(a, T):
    a.e(f"v_mov_b32 v{T}, {L_CNT+192}")
    a.lds(f"ds_read_b64 {v(T+2,2)}, v{T}", "TG")
    a.wait_lds("TG")
    a.e(f"v_readfirstlane_b32 s{TAG}, v{T+2}")
    a.e(f"v_readfirstlane_b32 s{TAG+1}, v{T+3}")

def flag_write(a, stage, T):
    a.e("s_lshl_b32 s22, s2, 7")
    a.e(f"s_add_u32 s22, s22, {WS_F + 8*stage}")
    a.e(f"v_mov_b32 v{T}, s22")
    a.e(f"v_mov_b32 v{T+2}, s{TAG}")
    a.e(f"v_mov_b32 v{T+3}, s{TAG+1}")
    a.e("s_mov_b64 exec, 1")
    a.vmem(f"buffer_store_dwordx2 {v(T+2,2)}, v{T}, s[36:39], 0 offen sc0 sc1", "FL")
    a.e("s_mov_b64 exec, -1")

def flag_wait(a, stage, W, T, sleep=2):
    a.e(f"v_lshlrev_b32 v{W}, 7, v{W}")
    a.e(f"s_mov_b32 s22, {WS_F4 if stage == 3 else WS_F + 8*stage}")
    l = a.newlabel("fspin"); d = a.newlabel("fdone")
    a.e(f"s_mov_b32 s97, {SPIN_MAX}")
    a.label(l)
    a.e(f"buffer_load_dwordx2 {v(T,2)}, v{W}, s[36:39], s22 offen {'sc1' if stage == 3 else 'sc0 sc1'}")
    a.e("s_waitcnt vmcnt(0)"); a.vm = []
    a.e(f"v_cmp_ne_u64 vcc, s[{TAG}:{TAG+1}], {v(T,2)}")
    a.e(f"s_cbranch_vccz {d}")
    a.e(f"s_sleep {sleep}")
    a.e("s_sub_u32 s97, s97, 1")
    a.e(f"s_cbranch_scc0 {l}")
    a.label(d)

def group_barrier(a, T):
    a.e(f"v_mov_b32 v{T}, s{GCNT}")
    a.e(f"v_mov_b32 v{T+1}, 1")
    a.e(f"s_add_u32 s{GTGT}, s{GTGT}, 4")
    a.wait_lds(None)
    a.e("s_mov_b64 exec, 1")
    a.e(f"ds_add_u32 v{T}, v{T+1}")
    a.e("s_mov_b64 exec, -1")
    lds_spin(a, T, f"s{GTGT}")

def lds_spin(a, T, target):
    l = a.newlabel("gb"); d = a.newlabel("gbd")
    a.e(f"s_mov_b32 s97, {SPIN_MAX*8}")
    a.label(l)
    a.e(f"ds_read_b32 v{T+1}, v{T}")
    a.e("s_sub_u32 s97, s97, 1")
    a.e(f"s_cbranch_scc1 {d}")
    a.e("s_waitcnt lgkmcnt(0)")
    a.e(f"v_readfirstlane_b32 s22, v{T+1}")
    a.e(f"s_cmp_ge_u32 s22, {target}")
    a.e(f"s_cbranch_scc1 {d}")
    a.e("s_sleep 1")
    a.e(f"s_branch {l}")
    a.label(d)
    a.e("s_waitcnt lgkmcnt(0)")

L_Q = L_RING + 3 * 32768

def convk_issue(a, CH_s, RH, R, tag):
    a.e(f"s_lshl_b32 s20, s{CH_s}, 12")
    a.e("s_add_u32 s24, s14, s20")
    a.e("s_addc_u32 s25, s15, 0")
    a.e("s_mov_b32 s26, 4096")
    a.e("s_mov_b32 s27, 0x00020000")
    a.e(f"s_add_u32 s21, s{RH}, 1")
    a.e("s_lshr_b32 s21, s21, 1")
    a.e("s_lshl_b32 s21, s21, 2")
    a.e("v_lshlrev_b32 v4, 4, v0")
    a.e("v_subrev_u32 v4, s21, v4")
    a.e("v_add_u32 v5, 1024, v4")
    a.e("v_add_u32 v6, 16, v4")
    a.vmem(f"buffer_load_dwordx4 {v(R,4)}, v4, s[24:27], 0 offen", tag)
    for i in range(3): a.vmem(f"buffer_load_dwordx4 {v(R+6+6*i,4)}, v5, s[24:27], 0 offen offset:{1024*i}", tag)
    for i in range(4): a.vmem(f"buffer_load_dword v{R+6*i+4}, v6, s[24:27], 0 offen offset:{1024*i}", tag)
    a.e("v_lshlrev_b32 v4, 1, v0")
    a.e(f"s_lshl_b32 s21, s{RH}, 1")
    a.e("v_subrev_u32 v4, s21, v4")
    a.e("v_subrev_u32 v4, 32, v4")
    a.vmem(f"buffer_load_ushort v{R+24}, v4, s[24:27], 0 offen", tag)

def convk_write(a, RH, KD, koff, R, tag):
    a.e(f"s_and_b32 s21, s{RH}, 1")
    a.e("s_lshl_b32 s21, s21, 4")
    a.e(f"v_lshl_add_u32 v4, v0, 4, s{KD}")
    a.e(f"v_lshl_add_u32 v5, v0, 1, s{KD}")
    a.wait_vm(tag)
    for i in range(4):
        for j in range(4):
            a.e(f"v_alignbit_b32 v{R+6*i+j}, v{R+6*i+j+1}, v{R+6*i+j}, s21")
        a.lds(f"ds_write_b128 v4, {v(R+6*i,4)} offset:{koff+32+1024*i}")
    setexec(a, 0xffffff)
    a.lds(f"ds_write_b16 v5, v{R+24} offset:{koff}")
    a.e("s_mov_b64 exec, -1")

def convu_wait(a):
    a.e("s_lshr_b32 s21, s3, 5")
    a.e("v_mul_u32_u24 v8, 18, v0")
    a.e("v_add_u32 v8, s21, v8")
    a.e("v_and_b32 v9, 31, v8")
    a.e("v_add_u32 v9, 224, v9")
    a.e("v_cmp_gt_u32 vcc, 256, v8")
    a.e("v_subrev_u32 v8, 256, v8")
    a.e("v_lshrrev_b32 v8, 2, v8")
    a.e("v_cndmask_b32 v8, v8, v9, vcc")
    flag_wait(a, 0, 8, 10, 6)

def convu_issue(a, CH_s, UD, rhos, tag):
    a.e("v_sub_u32 v4, 63, v0")
    a.e("v_lshlrev_b32 v4, 6, v4")
    a.e(f"s_lshl_b32 s21, s{CH_s}, 12")
    a.e(f"s_add_u32 s21, s21, {WS_U}")
    a.e(f"s_mov_b32 s23, s{UD}")
    if rhos[0] == 's':
        a.e(f"s_lshl_b32 s20, s{rhos[1]}, 4")
        a.e("s_add_u32 s21, s21, s20")
        a.e(f"s_mul_i32 s20, s{rhos[1]}, {CV_USZ}")
        a.e("s_add_u32 s23, s23, s20")
        rhos = [0]
    a.e("v_lshl_add_u32 v5, v0, 1, s23")
    a.e("v_mov_b32 v6, 0")
    for r in rhos:
        a.e(f"s_add_u32 m0, s23, {CV_USZ*r}")
        a.lds(f"ds_write_b16 v5, v6 offset:{1024+CV_USZ*r}")
        a.vmem(f"buffer_load_dwordx4 v4, s[36:39], s21 offen {SC} lds", tag)
        a.e("s_add_u32 s21, s21, 16")

def lds_add(a, T, off):
    a.e("s_mov_b64 exec, 1")
    a.lds(f"ds_add_u32 v{T}, v{T+1} offset:{off}")
    a.e("s_mov_b64 exec, -1")
PW2 = 4864
VD = 180
FULL, FREE = 64, 100
F1_AT = 2

def gen(a):
    K = NAME + "_kernel"
    kernel_head(a, K)
    a.e("s_cmp_ge_u32 s2, 256")
    a.e("s_cbranch_scc1 L_end")
    st = NStamps(a); st.real("rt0"); st("t0")
    a.e("s_load_dwordx4 s[4:7], s[0:1], 0")
    a.e("s_load_dwordx4 s[8:11], s[0:1], 32")
    a.e("s_load_dwordx4 s[12:15], s[0:1], 48")
    a.e("s_load_dwordx2 s[16:17], s[0:1], 96")
    a.e("v_lshrrev_b32 v1, 6, v0")
    a.e("v_and_b32 v0, 63, v0")
    a.e("v_readfirstlane_b32 s18, v1")
    a.e("v_lshlrev_b32 v12, 2, v0")
    a.e("v_mov_b32 v13, 0")
    a.e(f"ds_write_b32 v12, v13 offset:{L_CNT}")
    a.e("s_and_b32 s43, s2, 3")
    a.e("s_lshl_b32 s43, s43, 2")
    a.e("s_bfe_u32 s19, s2, 0x20003")
    a.e("s_add_u32 s43, s43, s19")
    a.e("s_bfe_u32 s44, s2, 0x10002")
    a.e("s_mul_i32 s44, s44, 7")
    a.e("s_lshr_b32 s45, s2, 5")
    a.e("s_add_u32 s44, s44, s45")
    RB, CT = 43, 44
    a.e(f"s_and_b32 s{RHO}, s18, 3")
    a.e("s_lshr_b32 s19, s18, 2")
    a.e(f"s_lshl_b32 s{CVK}, s18, 13")
    a.e(f"s_add_u32 s{CVK}, s{CVK}, {L_CVK}")
    a.e(f"s_mul_i32 s{CVU}, s19, {4*CV_USZ}")
    a.e(f"s_lshl_b32 s{GCNT}, s19, 2")
    a.e(f"s_add_u32 s{GCNT}, s{GCNT}, {L_CNT}")
    a.e(f"s_mov_b32 s{GTGT}, 0")
    a.e(f"s_mov_b32 s{ROLE}, s19")
    a.e(f"s_mov_b32 s{ROUNDS}, 1")
    a.e("s_lshl_b32 s3, s2, 1")
    a.e("s_add_u32 s3, s3, s19")
    a.e("s_add_u32 s3, s3, 128")
    a.e("s_lshl_b32 s19, s18, 5")
    a.e("s_and_b32 s20, s2, 31")
    a.e("s_add_u32 s19, s19, s20")
    a.e("s_lshl_b32 s20, s2, 2")
    a.e("s_add_u32 s20, s20, s18")
    a.e("s_add_u32 s20, s20, 252")
    a.e("s_cmp_ge_u32 s18, 4")
    a.e("s_cselect_b32 s20, s20, -1")
    a.e(f"s_mul_i32 s21, s{RHO}, {PW2}")
    a.e(f"s_mul_i32 s{PBASE}, s18, {PW2}")
    a.e(f"s_add_u32 s{PBASE}, s{PBASE}, {L_RING}")
    a.e("s_cmp_eq_u32 s45, 7")
    a.e("s_cselect_b32 s99, s19, s20")
    a.e(f"s_cselect_b32 s{PBASE}, s{PBASE}, s21")
    prep_setup(a)
    prep_task(a, 99)
    a.e("s_waitcnt lgkmcnt(0)")
    a.e("s_cmp_eq_u32 s99, -1")
    a.e("s_cbranch_scc1 L_nopi")
    srd(a, 24, 8, SZ); srd(a, 28, 10, SZ); srd(a, 32, 12, 576*8)
    srd(a, 36, 16, WS_TOTAL)
    a.e(f"v_mov_b32 v212, {WS_E}")
    a.e("buffer_load_dwordx2 v[214:215], v212, s[36:39], 0 offen sc0 sc1")
    prep_issue(a, VD)
    a.label("L_nopi")
    a.e("s_barrier")
    a.e("s_cmp_eq_u32 s45, 7")
    a.e("s_cbranch_scc1 L_spare")
    a.e("s_cmp_ge_u32 s18, 4")
    a.e("s_cbranch_scc1 L_mma")
    n0 = st.n
    a.label("L_ld")
    a.e("s_setprio 3")
    a.e("v_lshrrev_b32 v4, 4, v0")
    a.e("v_lshlrev_b32 v6, 1, v4")
    a.e("v_and_b32 v7, 15, v0")
    a.e("v_xor_b32 v6, v6, v7")
    a.e("v_mul_u32_u24 v5, 3456, v4")
    a.e("v_lshl_add_u32 v2, v6, 4, v5")
    a.e("v_xor_b32 v6, 8, v6")
    a.e("v_lshl_add_u32 v3, v6, 4, v5")
    a.e("v_lshrrev_b32 v5, 3, v0")
    a.e("v_mul_u32_u24 v6, 2304, v5")
    a.e("v_lshrrev_b32 v5, 1, v5")
    a.e("v_and_b32 v7, 7, v0")
    a.e("v_xor_b32 v5, v5, v7")
    a.e("v_lshl_add_u32 v8, v5, 4, v6")
    a.e("v_xor_b32 v5, 4, v5")
    a.e("v_lshl_add_u32 v9, v5, 4, v6")
    a.e(f"v_add_u32 v9, {8*2304}, v9")
    a.e("s_lshr_b32 s46, s2, 3")
    a.e("s_mul_i32 s19, s46, 57")
    a.e("s_lshr_b32 s19, s19, 9")
    a.e("s_mul_i32 s19, s19, 9")
    a.e("s_sub_u32 s46, s46, s19")
    a.e(f"s_mul_i32 s19, s{RB}, {128*1152}")
    a.e(f"s_lshl_b32 s20, s{CT}, 8")
    a.e("s_add_u32 s48, s4, s19")
    a.e("s_addc_u32 s49, s5, 0")
    a.e(f"s_mov_b32 s50, {128*1152}")
    a.e("s_mov_b32 s51, 0x00020000")
    a.e("s_add_u32 s52, s6, s20")
    a.e("s_addc_u32 s53, s7, 0")
    a.e(f"s_sub_u32 s54, {576*3456}, s20")
    a.e("s_mov_b32 s55, 0x00020000")
    a.e("s_load_dwordx2 s[28:29], s[0:1], 72")
    a.e("v_and_b32 v13, 3, v0")
    a.e("v_bfe_u32 v14, v0, 3, 1")
    a.e("v_lshl_or_b32 v13, v14, 2, v13")
    a.e("v_xor_b32 v13, 4, v13")
    a.e("v_lshlrev_b32 v13, 5, v13")
    a.e("v_lshl_add_u32 v14, v0, 8, v13")
    a.e("v_lshlrev_b32 v15, 1, v0")
    a.e(f"v_mov_b32 v10, {L_CNT}")
    a.e("v_mov_b32 v11, 1")
    srd(a, 36, 16, WS_TOTAL)
    a.e("s_mov_b32 s58, s18")
    a.e("s_branch L_ld_go")
    a.label("L_ld_issue")
    a.e("s_mov_b64 exec, 1")
    a.e("ds_add_rtn_u32 v12, v10, v11 offset:28")
    a.e("s_mov_b64 exec, -1")
    a.e("s_waitcnt lgkmcnt(0)")
    a.e("v_readfirstlane_b32 s58, v12")
    a.e("s_add_u32 s58, s58, 4")
    a.e("s_cmp_gt_u32 s58, 8")
    a.e("s_cbranch_scc1 L_ld_done")
    a.e("s_lshl_b32 s19, s58, 2")
    a.e(f"s_add_u32 s19, s19, {L_CNT+FREE-16}")
    a.e("v_mov_b32 v12, s19")
    lds_spin(a, 12, 4)
    a.label("L_ld_go")
    a.e("s_add_u32 s59, s46, s58")
    a.e("s_sub_u32 s19, s59, 9")
    a.e("s_cmp_ge_u32 s59, 9")
    a.e("s_cselect_b32 s59, s19, s59")
    a.e("s_and_b32 s47, s58, 3")
    a.e("s_lshl_b32 s47, s47, 15")
    a.e(f"s_add_u32 s47, s47, {L_RING}")
    a.e(f"s_mul_i32 s19, s59, {64*3456}")
    a.e("s_lshl_b32 s20, s59, 7")
    a.e(f"v_mov_b32 v12, {L_CNT+24}")
    lds_spin(a, 12, "s58")
    for i in range(16):
        a.e(f"s_add_u32 m0, s47, {1024*i}")
        if i and i % 2 == 0: a.e(f"s_add_u32 s20, s20, {1152 if (i//2) % 2 else 31*1152}")
        else: a.e("s_nop 0")
        a.e(f"buffer_load_dwordx4 v{3 if (i//2) % 2 else 2}, s[52:55], s19 offen lds")
        a.e(f"s_add_u32 m0, s47, {16384+1024*i}")
        a.e(f"s_add_u32 s19, s19, {4*3456}")
        a.e(f"buffer_load_dwordx4 v{8 + i % 2}, s[48:51], s20 offen lds")
    lds_add(a, 10, 24)
    a.e(f"s_cmp_lg_u32 s{CT}, 13")
    a.e("s_cbranch_scc1 L_ld_ng")
    a.e("s_mov_b32 s30, 1152")
    a.e("s_mov_b32 s31, 0x00020000")
    a.e("s_lshl_b32 s20, s59, 7")
    a.e("buffer_load_ushort v16, v15, s[28:31], s20 offen")
    a.e("v_add_u32 v17, s47, v14")
    a.e("s_waitcnt vmcnt(0)")
    a.e("ds_write_b16 v17, v16")
    a.label("L_ld_ng")
    a.e("s_lshl_b32 s19, s58, 2")
    a.e("v_add_u32 v12, s19, v10")
    a.e("s_waitcnt vmcnt(0)")
    a.e("s_mov_b64 exec, 1")
    a.e(f"ds_add_u32 v12, v11 offset:{FULL}")
    a.e("s_mov_b64 exec, -1")
    a.e("s_branch L_ld_issue")
    a.label("L_ld_done")
    a.e("s_setprio 0")
    st("b8")
    a.e("s_cmp_ge_u32 s18, 2")
    a.e("s_cbranch_scc1 L_aux2")
    a.e("s_cmp_eq_u32 s18, 0")
    a.e("s_cbranch_scc1 L_cvwait")
    a.e(f"v_mov_b32 v20, {L_CNT+196}")
    lds_spin(a, 20, "0x80000000")
    tag_from_lds(a, 20)
    census(a)
    a.e("s_branch L_cvwait")
    a.label("L_aux2")
    a.reset_counters()
    a.e(f"v_mov_b32 v20, {L_CNT+196}")
    lds_spin(a, 20, "0x80000000")
    tag_from_lds(a, 20)
    a.e("s_and_b32 s46, s18, 1")
    a.e(f"v_mov_b32 v4, {L_CNT+12}")
    lds_spin(a, 4, 4)
    a.e("s_add_u32 s56, s3, s46")
    a.e("s_lshl_b32 s20, s56, 12")
    srd(a, 48, 14, SZ)
    a.e("v_lshlrev_b32 v4, 4, v0")
    KX = 128
    for i in range(4): a.vmem(f"buffer_load_dwordx4 {v(KX+4*i,4)}, v4, s[48:51], s20 offen offset:{1024*i}", "K")
    a.e("v_mov_b32 v3, 1")
    st("m0")
    convu_wait(a)
    st("m2")
    a.e(f"s_mul_i32 s41, s46, {4*CV_USZ}")
    convu_issue(a, 56, 41, [0, 1, 2, 3], "U")
    for i in range(4):
        X = KX + 4*i; R1, R2, R3 = 64+12*i, 68+12*i, 72+12*i
        a.e("v_mov_b32 v6, 0"); a.e("v_mov_b32 v7, 0")
        if i:
            a.e(f"v_readlane_b32 s20, v{X-2}, 63")
            a.e(f"v_readlane_b32 s21, v{X-1}, 63")
            a.e("s_nop 1")
            a.e("v_mov_b32 v6, s20"); a.e("v_mov_b32 v7, s21")
        a.e("s_nop 1")
        a.e(f"v_mov_b32_dpp v6, v{X+2} wave_shr:1 row_mask:0xf bank_mask:0xf")
        a.e(f"v_mov_b32_dpp v7, v{X+3} wave_shr:1 row_mask:0xf bank_mask:0xf")
        a.e(f"v_alignbit_b32 v{R1}, v{X}, v7, 16")
        for j in range(1, 4): a.e(f"v_alignbit_b32 v{R1+j}, v{X+j}, v{X+j-1}, 16")
        a.e(f"v_mov_b32 v{R2}, v7")
        for j in range(1, 4): a.e(f"v_mov_b32 v{R2+j}, v{X+j-1}")
        a.e(f"v_alignbit_b32 v{R3}, v7, v6, 16")
        for j in range(1, 4): a.e(f"v_mov_b32 v{R3+j}, v{R1+j-1}")
    a.e("s_lshl_b32 s21, s46, 2")
    a.e(f"s_add_u32 s21, s21, {L_CNT+FREE+20}")
    a.e("v_mov_b32 v4, s21")
    lds_spin(a, 4, 4)
    st("m5")
    a.e("s_lshl_b32 s41, s46, 15")
    a.e(f"s_add_u32 s41, s41, {L_CVK}")
    a.e("v_lshl_add_u32 v4, v0, 4, s41")
    for i in range(4):
        for (r, R_) in ((0, KX+4*i), (1, 64+12*i), (2, 68+12*i), (3, 72+12*i)):
            a.lds(f"ds_write_b128 v4, {v(R_,4)} offset:{8192*r+32+1024*i}")
    a.e("v_mov_b32 v6, 0"); a.e("v_mov_b32 v7, 0")
    a.e("v_lshl_add_u32 v4, v0, 3, s41")
    setexec(a, 0xf)
    for r in range(4): a.lds(f"ds_write_b64 v4, v[6:7] offset:{8192*r}")
    a.e("s_mov_b64 exec, -1")
    st("m6")
    a.wait_vm(None)
    st("m7"); st("m8")
    a.e("s_lshl_b32 s21, s46, 2")
    a.e(f"s_add_u32 s21, s21, {L_CNT+16}")
    a.e("v_mov_b32 v4, s21")
    a.lds("ds_write_b32 v4, v3")
    a.e("s_setprio 0")
    a.label("L_cvwait")
    st("cvk")
    a.e(f"s_lshl_b32 s21, s{ROLE}, 2")
    a.e(f"s_add_u32 s21, s21, {L_CNT+16}")
    a.e("v_mov_b32 v1, s21")
    lds_spin(a, 1, 1)
    tag_from_lds(a, 8)
    st("f1")
    a.e("s_branch L_conv")
    a.label("L_mma")
    a.reset_counters()
    st.n = n0; st.names = st.names[:n0]
    a.e("s_setprio 1")
    srd(a, 36, 16, WS_TOTAL)
    a.e("s_cmp_eq_u32 s99, -1")
    a.e("s_cbranch_scc1 L_mnp")
    a.e("s_waitcnt vmcnt(0)")
    st("p0")
    tag_make(a)
    a.e("s_cmp_lg_u32 s18, 4")
    a.e("s_cbranch_scc1 L_ncw1")
    census_write(a)
    a.label("L_ncw1")
    prep_compute(a, VD, 64)
    st("p1")
    a.label("L_mnp")
    a.reset_counters()
    WA, XA, ACC, FR = 2, 10, 16, 80
    a.e("v_lshrrev_b32 v12, 4, v0")
    a.e("v_bfe_u32 v13, v0, 2, 2")
    a.e("v_and_b32 v14, 1, v12")
    a.e("v_lshl_or_b32 v14, v14, 2, v13")
    a.e("s_and_b32 s22, s18, 1")
    a.e("s_lshl_b32 s22, s22, 2")
    a.e("v_xor_b32 v14, s22, v14")
    a.e("v_lshl_add_u32 v15, v12, 3, v13")
    a.e("v_lshlrev_b32 v15, 8, v15")
    a.e("v_lshl_add_u32 v15, v14, 5, v15")
    a.e("v_and_b32 v14, 3, v0")
    a.e("v_lshl_add_u32 v15, v14, 3, v15")
    a.e(f"v_add_u32 v{WA}, {L_RING}, v15")
    for mt in range(1, 4): a.e(f"v_xor_b32 v{WA+mt}, {32*mt}, v{WA}")
    for mt in range(4): a.e(f"v_add_u32 v{WA+4+mt}, 0x10000, v{WA+mt}")
    SO = 1
    a.e("v_and_b32 v13, 15, v0")
    a.e(f"s_lshl_b32 s21, s{CT}, 5")
    a.e("s_lshl_b32 s22, s22, 2")
    a.e("s_add_u32 s56, s21, s22")
    a.e("v_add_u32 v14, s56, v12")
    a.e("v_lshlrev_b32 v14, 14, v14")
    a.e("s_bfe_u32 s23, s18, 0x10001")
    a.e(f"s_lshl_b32 s21, s{RB}, 10")
    a.e("s_lshl_b32 s22, s23, 9")
    a.e("s_add_u32 s21, s21, s22")
    a.e("v_lshl_add_u32 v14, v13, 4, v14")
    a.e(f"v_add_u32 v{SO}, s21, v14")
    a.e("v_lshrrev_b32 v14, 1, v13")
    a.e("v_xor_b32 v14, v14, v12")
    a.e("s_lshl_b32 s21, s23, 13")
    a.e(f"s_add_u32 s21, s21, {L_RING+16384}")
    a.e("v_lshlrev_b32 v15, 7, v13")
    a.e("v_lshl_add_u32 v15, v14, 4, v15")
    a.e(f"v_add_u32 v{XA}, s21, v15")
    a.e(f"v_xor_b32 v{XA+1}, 64, v{XA}")
    a.e(f"v_add_u32 v{XA+2}, 0x10000, v{XA}")
    a.e(f"v_add_u32 v{XA+3}, 0x10000, v{XA+1}")
    a.e("s_waitcnt lgkmcnt(0)"); a.lgkm = []
    srd(a, 48, 16, QKV_BYTES)
    srd(a, 36, 16, WS_TOTAL)
    def reads(c):
        f = FR + 64 * (c % 2); slot = c % 4; hb = slot // 2; ob = 32768 * (slot % 2)
        out = []
        for kh in range(2):
            for i in range(4):
                for hf in range(2):
                    out.append(lambda kh=kh, mt=i, hf=hf: a.lds(f"ds_read_b64_tr_b16 {v(f+16*kh+4*mt+2*hf,2)}, v{WA+4*hb+mt} offset:{ob+(32*kh+4*hf)*256}", f"F{c}_{kh}"))
                out.append(lambda kh=kh, nt=i: a.lds(f"ds_read_b128 {v(f+32+16*kh+4*nt,4)}, v{XA+2*hb+kh} offset:{ob+2048*nt}", f"F{c}_{kh}"))
        return out
    a.e(f"v_mov_b32 v208, {L_CNT}")
    a.e("v_mov_b32 v209, 1")
    def poll_issue(c): a.lds(f"ds_read_b32 v210, v208 offset:{FULL+4*c}", f"poll{c}")
    def poll_check(c):
        a.wait_lds(f"poll{c}")
        d = a.newlabel("full")
        a.e("v_readfirstlane_b32 s22, v210")
        a.e("s_cmp_ge_u32 s22, 1")
        a.e(f"s_cbranch_scc1 {d}")
        a.e(f"v_add_u32 v210, {FULL+4*c}, v208")
        lds_spin(a, 210, 1)
        a.label(d)
        st(f"m{c}")
    poll_issue(0); poll_check(0)
    for r_ in reads(0): r_()
    a.wait_lds(None)
    lds_add(a, 208, FREE)
    poll_issue(1)
    for c in range(9):
        f = FR + 64 * (c % 2)
        fill = []
        if c + 1 < 9:
            poll_check(c + 1)
            rr = reads(c + 1)
            fill = [(lambda x=rr[2*i], y=rr[2*i+1]: (x(), y())) for i in range(12)] + [None] * 5
            def free_(c=c):
                a.wait_lds(None)
                if c + 1 < 7: lds_add(a, 208, FREE + 4*(c+1))
            fill += [free_] + [None] * 8
            if c + 2 < 9: fill += [lambda c=c: poll_issue(c + 2)]
        else:
            a.wait_lds(None)
        if c == 7: st("b8")
        if c == F1_AT:
            a.e("s_cmp_eq_u32 s99, -1")
            a.e("s_cbranch_scc1 L_nf1")
            a.e("s_waitcnt vmcnt(0)")
            a.e("s_mov_b64 exec, 1")
            a.e("ds_add_rtn_u32 v212, v208, v209 offset:12")
            a.e("s_mov_b64 exec, -1")
            a.e("s_waitcnt lgkmcnt(0)")
            a.e("v_readfirstlane_b32 s22, v212")
            a.e("s_cmp_lg_u32 s22, 3")
            a.e("s_cbranch_scc1 L_nf1")
            flag_write(a, 0, 212); a.vm.pop()
            a.label("L_nf1")
        for kh in range(2):
            for nt in range(4):
                for mt in range(4):
                    acc = v(ACC + (mt*4+nt)*4, 4)
                    first = (c == 0 and kh == 0)
                    a.e(f"v_mfma_f32_16x16x32_bf16 {acc}, {v(f+16*kh+4*mt,4)}, {v(f+32+16*kh+4*nt,4)}, {0 if first else acc}")
                    if fill:
                        x_ = fill.pop(0)
                        if x_: x_()
    a.e("s_cmp_lt_u32 s56, 432")
    a.e("s_cbranch_scc1 L_qkv")
    a.e("s_nop 7")
    G0 = 208
    for nt in range(4): rnd(a, G0+nt, ACC+4*nt)
    for nt in range(4): a.e(f"v_mul_f32 v{G0+nt}, {f32(-1.4426950408889634)}, v{G0+nt}")
    for nt in range(4): a.e(f"v_exp_f32 v{G0+nt}, v{G0+nt}")
    for nt in range(4): a.e(f"v_add_f32 v{G0+nt}, 1.0, v{G0+nt}")
    for nt in range(4): a.e(f"v_rcp_f32 v{G0+nt}, v{G0+nt}")
    for nt in range(4): rnd(a, G0+nt, G0+nt)
    a.e(f"v_and_b32 v2, 0x3fff, v{SO}")
    a.e("v_lshrrev_b32 v2, 1, v2")
    a.e(f"s_mov_b32 s19, {WS_G}")
    setexec(a, 0xffff)
    a.e(f"buffer_store_dwordx2 {v(G0,2)}, v2, s[36:39], s19 offen {SC}")
    a.e(f"buffer_store_dwordx2 {v(G0+2,2)}, v2, s[36:39], s19 offen offset:128 {SC}")
    a.e("s_mov_b64 exec, -1")
    a.e("s_branch L_mdone")
    a.label("L_qkv")
    a.e(f"s_mov_b32 s20, {f32(QSCALE)}")
    a.e("s_cmp_lt_u32 s56, 144")
    a.e("s_cselect_b32 s21, s20, 1.0")
    a.e("s_nop 3")
    for mt in range(4):
        for nt in range(4):
            ac = ACC + (mt*4+nt)*4
            for i in range(4): a.e(f"v_mul_f32 v{ac+i}, s21, v{ac+i}")
            t = FR + 64 + (mt*4+nt)*2
            a.e(f"v_cvt_pk_bf16_f32 v{t}, v{ac}, v{ac+1}")
            a.e(f"v_cvt_pk_bf16_f32 v{t+1}, v{ac+2}, v{ac+3}")
        a.e(f"s_mov_b32 s19, {mt*65536}")
        a.vmem(f"buffer_store_dwordx4 {v(FR+64+mt*8,4)}, v{SO}, s[48:51], s19 offen {SC}")
        a.vmem(f"buffer_store_dwordx4 {v(FR+64+mt*8+4,4)}, v{SO}, s[48:51], s19 offen offset:256 {SC}")
    a.label("L_mdone")
    a.e("s_setprio 0")
    a.e("s_waitcnt vmcnt(0)")
    a.e(f"v_mov_b32 v1, {L_CNT+8}")
    a.e("v_mov_b32 v2, 1")
    a.e("s_mov_b64 exec, 1")
    a.e("ds_add_rtn_u32 v2, v1, v2")
    a.e("s_mov_b64 exec, -1")
    a.e("s_waitcnt lgkmcnt(0)")
    a.e("v_readfirstlane_b32 s22, v2")
    a.e("s_cmp_lg_u32 s22, 3")
    a.e("s_cbranch_scc1 L_cvwait")
    flag_write(a, 1, 120); a.vm.pop()
    a.e("s_branch L_cvwait")
    a.label("L_spare")
    a.reset_counters()
    st.n = n0; st.names = st.names[:n0]
    a.e("s_and_b32 s46, s2, 31")
    a.e("s_and_b32 s58, s18, 3")
    a.e("s_lshr_b32 s59, s18, 2")
    a.e("s_lshl_b32 s3, s46, 2")
    a.e("s_add_u32 s3, s3, s59")
    a.e(f"s_mov_b32 s{ROUNDS}, 2")
    a.e(f"s_add_u32 s{ROLE}, s{ROLE}, 2")
    a.e("s_waitcnt lgkmcnt(0)"); a.lgkm = []
    srd(a, 36, 16, WS_TOTAL)
    a.e("v_lshlrev_b32 v2, 7, v0")
    srd(a, 48, 14, SZ)
    a.e("s_lshl_b32 s19, s46, 3")
    a.e("s_add_u32 s19, s19, s18")
    a.e("s_mul_i32 s19, s19, 9216")
    a.e("buffer_load_dword v210, v2, s[48:51], s19 offen")
    a.e("s_add_u32 s19, s19, 8192")
    setexec(a, 0xff)
    a.e("buffer_load_dword v211, v2, s[48:51], s19 offen")
    a.e("s_mov_b64 exec, -1")
    a.e("s_waitcnt vmcnt(2)")
    st("m1")
    tag_make(a)
    a.e("s_cmp_lg_u32 s18, 4")
    a.e("s_cbranch_scc1 L_ncw2")
    census_write(a)
    a.label("L_ncw2")
    prep_compute(a, VD, 64)
    st("m6")

    a.reset_counters()
    convk_issue(a, 3, RHO, 120, "KA")
    a.e("s_add_u32 s56, s3, 2")
    convk_issue(a, 56, RHO, 146, "KB")
    a.e("s_waitcnt vmcnt(18) lgkmcnt(0)"); a.reset_counters()
    st("m7")
    a.e("s_barrier")
    st("b8")
    a.e("s_cmp_lg_u32 s18, 0")
    a.e("s_cbranch_scc1 L_spc")
    flag_write(a, 0, 8)
    a.label("L_spc")
    a.e("s_cmp_lg_u32 s18, 1")
    a.e("s_cbranch_scc1 L_spc2")
    census(a)
    a.label("L_spc2")
    a.reset_counters()
    a.e("s_waitcnt vmcnt(0)")
    a.e(f"s_mov_b32 s100, s{CVK}")
    a.e(f"s_mov_b32 s101, s{CVU}")
    convk_write(a, RHO, CVK, 0, 146, "KB")
    a.e("s_lshl_b32 s19, s59, 16")
    a.e(f"s_add_u32 s{CVK}, s{CVK}, s19")
    a.e(f"s_sub_u32 s{CVK}, s{CVK}, 32768")
    a.e(f"s_add_u32 s{CVU}, s{CVU}, {8*CV_USZ}")
    convk_write(a, RHO, CVK, 0, 120, "KA")
    st("cvk")
    convu_wait(a)
    st("f1")
    convu_issue(a, 3, CVU, ['s', RHO], "U")
    convu_issue(a, 56, 101, ['s', RHO], "U2")
    a.wait_vm(None)
    a.label("L_conv")
    a.reset_counters()
    st("cv0")
    AF, ACC, BF = 16, 80, 112
    a.e("s_load_dwordx2 s[6:7], s[0:1], 64")
    a.e("s_lshl_b32 s20, s3, 12")
    a.e(f"s_mul_i32 s23, s{RHO}, {CV_USZ}")
    a.e(f"s_add_u32 s23, s23, s{CVU}")
    a.e("v_lshlrev_b32 v13, 4, v0")
    a.e(f"v_add_u32 v14, s{CVK}, v13")
    a.e("v_lshrrev_b32 v7, 4, v0")
    a.e("v_bfe_u32 v8, v0, 2, 2")
    a.e("v_and_b32 v9, 3, v0")
    a.e("v_lshlrev_b32 v10, 3, v7")
    a.e("v_add3_u32 v10, v10, v8, v9")
    a.e(f"v_lshl_add_u32 v10, v10, 3, s{CVK}")
    a.e("v_and_b32 v11, 15, v0")
    a.e("v_lshlrev_b32 v12, 4, v7")
    a.e("v_lshlrev_b32 v8, 3, v11")
    a.e("v_sub_u32 v12, v12, v8")
    a.e(f"v_add_u32 v12, {2*508-64*14}, v12")
    a.e("v_add_u32 v12, s23, v12")
    a.e("s_lshr_b32 s21, s3, 1")
    a.e("s_lshl_b32 s21, s21, 2")
    a.e("s_waitcnt lgkmcnt(0)")
    a.e("s_load_dword s24, s[6:7], s21")
    def rdA(kap):
        for hf in range(2):
            a.lds(f"ds_read_b64_tr_b16 {v(AF+4*kap+2*hf,2)}, v10 offset:{8+256*kap+32*hf}", f"A{kap}")
    lams = []
    lo, hi = -1, 14
    while lo <= hi:
        lams.append(hi); hi -= 1
        if lo <= hi: lams.append(lo); lo += 1
    def rdB(i):
        lam = lams[i]; b = BF + 4 * (i % 4)
        for hf in range(2):
            a.lds(f"ds_read_b64 {v(b+2*hf,2)}, v12 offset:{64*(14-lam)+8*hf}", f"B{i}")
    rdA(0); rdB(0); rdB(1)
    for kap in (1, 3, 5, 7): rdA(kap)
    restA = [9, 11, 13, 15, 2, 4, 6, 8, 10, 12, 14]
    seen = set()
    for i, lam in enumerate(lams):
        if i + 2 < len(lams): rdB(i + 2)
        a.wait_lds(f"B{i}")
        b = BF + 4 * (i % 4)
        for tau in range(8):
            kap = 2 * tau - lam
            if kap < 0 or kap > 15: continue
            assert kap not in restA
            a.wait_lds(f"A{kap}")
            w = v(ACC + 4*tau, 4)
            a.e(f"v_mfma_f32_16x16x32_bf16 {w}, {v(AF+4*kap,4)}, {v(b,4)}, {w if tau in seen else 0}")
            seen.add(tau)
            for _ in range(2 if i == 0 else 1):
                if restA: rdA(restA.pop(0))
    st("cv1")
    a.e(f"s_lshl_b32 s21, s{RHO}, 13")
    a.e(f"s_sub_u32 s22, s{CVK}, s21")
    a.e(f"s_lshl_b32 s21, s{RHO}, 11")
    a.e("s_add_u32 s22, s22, s21")
    a.e("v_add_u32 v15, s22, v13")
    for i in range(8): a.e(f"v_mov_b32 v{AF+32+i}, 0")
    for tau in range(8):
        a.lds(f"ds_write_b128 v14, {v(ACC+4*tau,4)} offset:{1024*tau}")
    a.e("v_lshl_add_u32 v13, v11, 2, v7")
    a.e("v_lshlrev_b32 v13, 1, v13")
    a.e(f"v_sub_u32 v13, {2*511-128}, v13")
    a.e(f"s_lshl_b32 s21, s{RHO}, 8")
    a.e(f"s_sub_u32 s21, s{CVU}, s21")
    a.e("v_add_u32 v13, s21, v13")
    a.e("v_lshlrev_b32 v14, 5, v11")
    a.e("v_lshl_add_u32 v14, v7, 3, v14")
    a.e(f"s_lshl_b32 s21, s{RHO}, 10")
    a.e("s_add_u32 s21, s21, s20")
    a.e(f"s_add_u32 s21, s21, {WS_Z}")
    st("cv2")
    group_barrier(a, 1)
    st("cv3")
    a.e("s_lshl_b32 s25, s24, 16")
    a.e("s_and_b32 s24, s24, 0xffff0000")
    a.e("s_bitcmp1_b32 s3, 0")
    a.e("s_cselect_b32 s24, s24, s25")
    for j in range(2):
        for sw in range(4):
            a.lds(f"ds_read_b128 {v(AF+16*j+4*sw,4)}, v15 offset:{8192*sw+1024*j}", f"R{j}")
        for i in range(4):
            a.lds(f"ds_read_u16_d16_hi v{AF+32+4*j+i}, v13 offset:{CV_USZ*i+128*(1-j)}", f"R{j}")
    for j in range(2):
        a.wait_lds(f"R{j}")
        y = AF + 16*j; u = AF + 32 + 4*j
        for i in range(4): a.e(f"v_add_f32 v{y+i}, v{y+i}, v{y+4+i}")
        for i in range(4): a.e(f"v_add_f32 v{y+8+i}, v{y+8+i}, v{y+12+i}")
        for i in range(4): a.e(f"v_mul_f32 v{u+i}, s24, v{u+i}")
        for i in range(4): a.e(f"v_add_f32 v{y+i}, v{y+i}, v{y+8+i}")
        for i in range(4): rnd(a, u+i, u+i)
        for i in range(4): rnd(a, y+i, y+i)
        for i in range(4): a.e(f"v_add_f32 v{y+i}, v{y+i}, v{u+i}")
        a.e(f"v_cvt_pk_bf16_f32 v{y}, v{y}, v{y+1}")
        a.e(f"v_cvt_pk_bf16_f32 v{y+1}, v{y+2}, v{y+3}")
        a.vmem(f"buffer_store_dwordx2 {v(y,2)}, v14, s[36:39], s21 offen offset:{512*j} {SC}")
    a.e(f"s_sub_u32 s{ROUNDS}, s{ROUNDS}, 1")
    a.e(f"s_cmp_eq_u32 s{ROUNDS}, 0")
    a.e("s_cbranch_scc1 L_attn")
    group_barrier(a, 1)
    a.e("s_add_u32 s3, s3, 2")
    a.e(f"s_mov_b32 s{CVK}, s100")
    a.e(f"s_mov_b32 s{CVU}, s101")
    a.e("s_branch L_conv")
    a.label("L_attn")
    a.reset_counters()
    st("conv")
    a.e(f"v_mov_b32 v1, {L_CNT+44}")
    lds_spin(a, 1, "0x10000")
    a.e(f"s_mov_b32 s{TASK}, s22")
    a.e("s_and_b32 s40, s22, 15")
    a.e("s_bfe_u32 s41, s22, 0x40004")
    a.e("s_lshr_b32 s23, s18, 2")
    a.e("s_mul_i32 s24, s40, 9")
    for i in range(3):
        a.e(f"s_sub_i32 s{32+i}, s41, {2-i}")
        a.e(f"s_max_i32 s{32+i}, s{32+i}, 0")
    Q1, Q2 = 8, 12
    KB_ = [16, 22]; VB_ = [28, 36]; SS = [44, 60]; PP = [76, 84]; OA = 92; NM = 14
    a.e("s_cmp_ge_u32 s18, 4")
    a.e("s_cbranch_scc1 L_nostage")
    a.e("v_lshrrev_b32 v1, 3, v0")
    a.e("v_min_u32 v1, 2, v1")
    a.e("v_mul_u32_u24 v1, 144, v1")
    a.e("v_bfe_u32 v2, v0, 2, 1")
    a.e("v_lshl_add_u32 v1, v2, 3, v1")
    a.e("v_add_u32 v1, s24, v1")
    a.e("v_lshrrev_b32 v1, 5, v1")
    a.e("v_and_b32 v2, 3, v0")
    a.e("v_min_u32 v2, 2, v2")
    a.e("v_sub_u32 v2, s41, v2")
    a.e("v_max_i32 v2, 0, v2")
    a.e("v_cmp_lt_u32 vcc, 6, v1")
    a.e("v_subrev_u32 v3, 7, v1")
    a.e("v_lshrrev_b32 v4, 2, v2")
    a.e("v_cndmask_b32 v1, v1, v3, vcc")
    a.e("v_add_u32 v3, 4, v4")
    a.e("v_cndmask_b32 v4, v4, v3, vcc")
    a.e("v_and_b32 v2, 3, v2")
    a.e("v_lshl_add_u32 v1, v1, 2, v2")
    a.e("v_lshl_add_u32 v1, v1, 3, v4")
    for i in range(3): a.e(f"s_lshl_b32 s{32+i}, s{32+i}, 10")
    a.e("s_add_u32 s26, s24, s18")
    a.e("s_lshl_b32 s26, s26, 14")
    a.e(f"s_mul_i32 s27, s18, {PL}")
    a.e("s_lshl_b32 s28, s18, 10")
    a.e("s_add_u32 s29, s24, 8")
    a.e("s_lshl_b32 s29, s29, 14")
    combos = [(0, 2, L_Q, 1024), (1, 2, L_KP+2048, PL), (2, 2, L_VP+2048, PL), (1, 1, L_KP+1024, PL), (2, 1, L_VP+1024, PL), (1, 0, L_KP, PL), (2, 0, L_VP, PL)]
    for n in range(2):
        so, do = 48 + 2*n, 49 + 2*n
        for jj in range(4):
            ty, i, dst, stride = combos[min(4*n + jj, 6)]
            if jj == 0:
                a.e(f"s_add_u32 s{so}, s{32+i}, {ty*144*16384}")
                a.e(f"s_mov_b32 s{do}, {dst+8*stride}")
            else:
                a.e(f"s_add_u32 s19, s{32+i}, {ty*144*16384}")
                a.e(f"s_cmp_eq_u32 s18, {jj}")
                a.e(f"s_cselect_b32 s{so}, s19, s{so}")
                a.e(f"s_cselect_b32 s{do}, {dst+8*stride}, s{do}")
        a.e(f"s_add_u32 s{so}, s{so}, s29")
    a.e("s_cmp_lg_u32 s18, 0")
    a.e("s_cbranch_scc1 L_w2_o")
    flag_wait(a, 1, 1, 2, 2)
    a.e(f"v_mov_b32 v2, {L_CNT+36}")
    a.e("v_mov_b32 v3, 1")
    a.e("ds_write_b32 v2, v3")
    a.e("s_branch L_w2_j")
    a.label("L_w2_o")
    a.e(f"v_mov_b32 v2, {L_CNT+36}")
    lds_spin(a, 2, 1)
    a.label("L_w2_j")
    a.e(f"s_cmp_eq_u32 s{ROLE}, 0")
    a.e("s_cselect_b32 s19, 8, 4")
    a.e("s_cselect_b32 s20, 4, 8")
    a.e(f"s_add_u32 s19, s19, {L_CNT}")
    a.e("v_mov_b32 v1, s19")
    lds_spin(a, 1, "s20")
    a.e("v_lshlrev_b32 v2, 4, v0")
    for n, (ty, i, dst, stride) in enumerate(combos):
        for q in range(2):
            a.e(f"s_add_u32 m0, s{28 if stride == 1024 else 27}, {dst + 4*q*stride}")
            a.e(f"s_add_u32 s35, s26, s{32+i}")
            a.e(f"s_add_u32 s35, s35, {(ty*144+4*q)*16384}")
            a.vmem(f"buffer_load_dwordx4 v2, s[36:39], s35 offen {SC} lds", "S")
        if n in (2, 5):
            k_ = 0 if n == 2 else 1
            a.e(f"s_mov_b32 m0, s{49+2*k_}")
            a.e("s_nop 0")
            a.vmem(f"buffer_load_dwordx4 v2, s[36:39], s{48+2*k_} offen {SC} lds", "S")
    a.e("v_mov_b32 v5, 0x3f803f80")
    a.e("v_lshlrev_b32 v6, 2, v0")
    a.e("s_lshl_b32 s35, s18, 8")
    a.e("v_add_u32 v6, s35, v6")
    for i in range(3): a.lds(f"ds_write_b32 v6, v5 offset:{L_ONE+1024*i}")
    a.label("L_nostage")
    st("f2")
    a.e("v_and_b32 v1, 31, v0")
    a.e("v_lshrrev_b32 v15, 5, v0")
    a.e("s_lshl_b32 s46, s41, 2")
    a.e(f"s_add_u32 s46, s46, s{RHO}")
    a.e("v_lshlrev_b32 v3, 3, v1")
    a.e("s_mul_i32 s25, s23, 5")
    a.e(f"s_lshl_b32 s35, s{RHO}, 8")
    a.e("s_lshl_b32 s26, s25, 10")
    a.e("s_add_u32 s26, s26, s35")
    a.e(f"s_add_u32 s26, s26, {L_Q}")
    a.e("v_lshl_add_u32 v108, v15, 11, v3")
    a.e("v_add_u32 v108, s26, v108")
    a.e(f"s_add_u32 s26, s35, {L_Q+4096}")
    a.e("v_add_u32 v109, s26, v3")
    a.e(f"s_lshl_b32 s35, s{RHO}, 8")
    a.e(f"s_mul_i32 s25, s25, {PL}")
    a.e("s_add_u32 s26, s25, s35")
    a.e(f"s_add_u32 s26, s26, {L_KP}")
    a.e(f"v_mul_u32_u24 v4, {2*PL}, v15")
    a.e("v_add3_u32 v4, v4, v3, s26")
    a.e(f"v_mul_u32_u24 v5, {5*PL}, v15")
    a.e(f"s_add_u32 s26, s35, {L_KP+4*PL}")
    a.e("v_add3_u32 v3, v5, v3, s26")
    a.e("v_bfe_u32 v5, v0, 2, 2")
    a.e("v_lshl_add_u32 v5, v15, 2, v5")
    a.e("v_lshlrev_b32 v5, 3, v5")
    a.e("v_and_b32 v6, 3, v0")
    a.e(f"v_mul_u32_u24 v7, {PL}, v6")
    a.e(f"s_add_u32 s26, s25, {L_VP}")
    a.e("v_add_u32 v7, s26, v7")
    a.e(f"v_mov_b32 v2, {L_VP+4*PL}")
    m1 = lane_mask(lambda l: (l >> 4) & 1 and (l & 3) == 0); m2 = lane_mask(lambda l: (l >> 4) & 1 and (l & 3) != 0)
    a.e(f"s_mov_b32 s20, 0x{m1 & 0xffffffff:x}"); a.e("s_mov_b32 s21, s20")
    a.e("v_cndmask_b32 v7, v7, v2, s[20:21]")
    a.e(f"v_mov_b32 v2, {L_ONE}")
    a.e(f"s_mov_b32 s20, 0x{m2 & 0xffffffff:x}"); a.e("s_mov_b32 s21, s20")
    a.e("v_cndmask_b32 v7, v7, v2, s[20:21]")
    a.e("v_add3_u32 v5, v5, v7, s35")
    a.e("s_sub_i32 s27, 8, s46")
    a.e("s_max_i32 s27, s27, 0")
    a.e(f"v_mov_b32 v2, {NEGINF}")
    def mask_ops(S, diag):
        ops = []
        for ri in range(16):
            j, i = ri // 4, ri % 4
            md = lane_mask(lambda l: 8*j + 4*(l >> 5) + i <= (l & 31))
            def f(ri=ri, md=md):
                a.e(f"s_mov_b32 s20, 0x{md & 0xffffffff:x}")
                a.e(f"s_mov_b32 s21, 0x{md >> 32:x}")
                if diag: a.e(f"v_cndmask_b32 v{S+ri}, v2, 0, s[20:21]")
                else: a.e(f"v_cndmask_b32 v{S+ri}, 0, v2, s[20:21]")
            ops.append(f)
        return ops
    for f in mask_ops(SS[0], True): f()
    a.e("s_cmp_eq_u32 s23, 0")
    a.e("s_cselect_b32 s48, -1, 0")
    a.e("s_mov_b32 s49, 0")
    a.e("s_cselect_b32 s50, 0, -1")
    a.e("s_mov_b32 s51, 0")
    a.e("s_mov_b32 s42, 0")
    a.e("s_mov_b32 s43, -1")
    a.e("s_load_dwordx2 s[6:7], s[0:1], 16")
    a.e(f"s_and_b32 s19, s{TASK}, 31")
    a.e("s_mul_i32 s100, s19, 57")
    a.e("s_lshr_b32 s100, s100, 9")
    a.e("s_mul_i32 s56, s100, 9")
    a.e("s_sub_u32 s56, s19, s56")
    a.e("s_lshl_b32 s57, s56, 7")
    a.e("v_lshrrev_b32 v110, 3, v0")
    a.e("v_and_b32 v111, 7, v0")
    a.e("v_lshrrev_b32 v112, 1, v110")
    a.e("v_lshlrev_b32 v112, 1, v112")
    a.e("v_xor_b32 v111, v111, v112")
    a.e("v_mul_u32_u24 v110, 1152, v110")
    a.e("v_lshl_add_u32 v110, v111, 4, v110")
    a.e("s_waitcnt vmcnt(0) lgkmcnt(0)"); a.reset_counters()
    a.e("s_barrier")
    st("staged")
    a.e("s_cmp_lg_u32 s18, 0")
    a.e("s_cbranch_scc1 L_nf3")
    flag_write(a, 2, 112); a.vm.pop()
    a.label("L_nf3")

    def rdK(t):
        buf = KB_[t % 2]
        return [lambda: a.lds(f"ds_read_b64 {v(buf,2)}, v4 offset:{256*t}", f"K{t}"),
                lambda: a.lds(f"ds_read_b64 {v(buf+2,2)}, v4 offset:{256*t+PL}", f"K{t}"),
                lambda: a.lds(f"ds_read_b64 {v(buf+4,2)}, v3 offset:{256*t}", f"K{t}")]
    def rdV(t):
        buf = VB_[t % 2]
        return [lambda i=i: a.lds(f"ds_read_b64_tr_b16 {v(buf+2*i,2)}, v5 offset:{256*t+64*i}", f"V{t}") for i in range(4)]
    def qk1(t):
        S = SS[t % 2]; buf = KB_[t % 2]
        a.e(f"v_mfma_f32_32x32x16_bf16 {v(S,16)}, {v(buf,4)}, {v(Q1,4)}, {v(S,16) if t in (0, 8) else 0}")
    def qk2(t):
        S = SS[t % 2]; buf = KB_[t % 2]
        a.e(f"v_mfma_f32_32x32x8_bf16 {v(S,16)}, {v(buf+4,2)}, {v(Q2,2)}, {v(S,16)}")
    def pv(t, h):
        a.e(f"v_mfma_f32_32x32x16_bf16 {v(OA,16)}, {v(VB_[t%2]+4*h,4)}, {v(PP[t%2]+4*h,4)}, {0 if (t == 8 and h == 0) else v(OA,16)}")
    def kill(t, pfx):
        l = f"{pfx}_k{t}"
        a.e(f"s_cmp_lg_u32 s27, {t+1}")
        a.e(f"s_cbranch_scc1 {l}")
        a.e("v_mov_b32 v6, 0xff7f")
        a.e(f"v_cndmask_b32 v{Q2}, v{Q2}, v6, s[42:43]")
        a.label(l)
    a.lds(f"ds_read_b64 {v(Q1,2)}, v108", "Q")
    a.lds(f"ds_read_b64 {v(Q1+2,2)}, v108 offset:1024", "Q")
    a.lds(f"ds_read_b64 {v(Q2,2)}, v109", "Q")
    for f in rdK(8) + rdK(7): f()
    a.e("s_add_u32 s28, s6, s57")
    a.e("s_addc_u32 s29, s7, 0")
    a.e(f"s_sub_u32 s30, {576*1152}, s57")
    a.e("s_mov_b32 s31, 0x00020000")
    a.e(f"s_mul_i32 s58, s18, {8*1152}")
    a.e("s_lshl_b32 s59, s18, 10")
    def wo_dma(j):
        a.e(f"s_add_u32 m0, s59, {L_WO + j*8192}")
        a.e("s_nop 0")
        a.vmem("buffer_load_dwordx4 v110, s[28:31], s58 offen lds", "WO")
        a.e(f"s_add_u32 s58, s58, {64*1152}")
    a.wait_lds("K8")
    a.e("s_barrier")
    a.e(f"v_cndmask_b32 v{Q2}, 0, v{Q2}, s[48:49]")
    a.e(f"v_cndmask_b32 v{Q2+1}, 0, v{Q2+1}, s[50:51]")
    KA = KB_[0]
    a.e(f"v_dot2_f32_bf16 v6, v{Q1}, v{KA}, 0")
    for i in range(1, 6): a.e(f"v_dot2_f32_bf16 v6, v{Q1+i}, v{KA+i}, v6")
    qk1(8)
    a.e("s_nop 2")
    a.e("v_mov_b32 v7, v6")
    a.e("s_nop 1")
    a.e("v_permlane32_swap_b32 v6, v7")
    a.e("s_nop 1")
    a.e("v_add_f32 v6, v6, v7")
    a.e("v_sub_f32 v6, 0, v6")
    a.e("v_cvt_pk_bf16_f32 v6, v6, 0")
    a.e(f"v_cndmask_b32 v{Q2}, v{Q2}, v6, s[42:43]")
    a.e("s_nop 1")

    def softmax_pass(sub, pfx):
        qk2(8)
        for f in rdV(8): f()
        kill(7, pfx)
        a.e("s_nop 3")
        for t in range(8, -1, -1):
            S = SS[t % 2]; P = PP[t % 2]
            valu = []
            for i in range(16):
                if sub: valu.append(lambda i=i: a.e(f"v_add_f32 v{S+i}, v{S+i}, v{NM}"))
                valu.append(lambda i=i: a.e(f"v_exp_f32 v{S+i}, v{S+i}"))
                if i % 2 == 1 and i >= 3:
                    valu.append(lambda i=i: a.e(f"v_cvt_pk_bf16_f32 v{P+(i-3)//2}, v{S+i-3}, v{S+i-2}"))
            valu.append(lambda: a.e("s_nop 0"))
            valu.append(lambda: a.e(f"v_cvt_pk_bf16_f32 v{P+7}, v{S+14}, v{S+15}"))
            q = len(valu) // 4
            def run(n):
                for _ in range(n):
                    if valu: valu.pop(0)()
            if t == 1:
                for f in mask_ops(SS[0], False): f()
                a.e("s_nop 1")
            if t > 0:
                a.wait_lds(f"K{t-1}")
                qk1(t - 1)
            else:
                a.e("s_nop 3")
            run(q)
            if t > 0: qk2(t - 1)
            if t > 1:
                for f in rdK(t - 2): f()
                kill(t - 2, pfx)
            run(q)
            if t < 8:
                a.wait_lds(f"V{t+1}")
                pv(t + 1, 0)
            run(q)
            if t < 8: pv(t + 1, 1)
            if t > 0:
                for f in rdV(t - 1): f()
            if not sub:
                for j_ in {8: (0, 1), 7: (2, 3), 6: (4, 5), 5: (6, 7), 4: (8,)}.get(t, ()): wo_dma(j_)
            run(100)
        a.wait_lds(None)
        a.e("s_nop 0")
        pv(0, 0); pv(0, 1)
        a.e("s_nop 7")
        a.e("s_nop 3")

    softmax_pass(False, "sa")
    st("soft")
    a.e(f"v_mov_b32 v6, v{OA+12}")
    for i in range(12): a.e(f"v_fma_f32 v6, v{OA+i}, 0, v6")
    a.e(f"s_mov_b32 s20, {f32(2.0**-30)}")
    a.e(f"s_mov_b32 s21, {f32(2.0**100)}")
    a.e("v_cmp_nlt_f32 vcc, s20, v6")
    a.e("v_cmp_ngt_f32 s[44:45], s21, v6")
    a.e("s_or_b64 vcc, vcc, s[44:45]")
    a.e("s_cbranch_vccnz L_fallback")
    a.label("L_fin")
    P0 = PP[0]
    a.e(f"v_rcp_f32 v6, v{OA+12}")
    a.e("s_nop 0")
    for i in range(12): a.e(f"v_mul_f32 v{OA+i}, v{OA+i}, v6")
    for i in range(6): a.e(f"v_cvt_pk_bf16_f32 v{P0+i}, v{OA+2*i}, v{OA+2*i+1}")
    a.e("v_lshrrev_b32 v6, 4, v1")
    a.e("v_mul_u32_u24 v6, 18432, v6")
    a.e("v_and_b32 v7, 15, v1")
    a.e("v_lshl_add_u32 v6, v7, 4, v6")
    a.e("v_lshl_add_u32 v7, v15, 8, v6")
    a.e("s_mul_i32 s26, s46, 36864")
    a.e(f"s_add_u32 s26, s26, {WS_O}")
    a.e("s_lshl_b32 s19, s40, 1")
    a.e("s_add_u32 s19, s19, s23")
    a.e("s_lshl_b32 s20, s19, 9")
    a.e("s_add_u32 s20, s20, s26")
    a.e("s_mov_b32 s101, s20")
    a.e("s_lshr_b32 s20, s19, 2")
    a.e("s_lshl_b32 s20, s20, 8")
    a.e("s_and_b32 s21, s19, 3")
    a.e("s_lshl_b32 s21, s21, 2")
    a.e("s_add_u32 s20, s20, s21")
    a.e("s_add_u32 s20, s20, s26")
    a.e("s_add_u32 s20, s20, 16384")
    a.e("s_cmp_eq_u32 s23, 0")
    a.e("s_cbranch_scc1 L_ev")
    a.e(f"v_mov_b32 v{P0+4}, v{P0+5}")
    a.label("L_ev")
    a.e(f"s_bitcmp1_b32 s{TASK}, 8")
    a.e("s_cbranch_scc1 L_ofast")
    a.e(f"buffer_store_dwordx4 {v(P0,4)}, v7, s[36:39], s101 offen {SC}")
    setexec(a, 0xffffffff)
    a.e(f"buffer_store_dword v{P0+4}, v6, s[36:39], s20 offen {SC}")
    a.e("s_branch L_odone")
    a.label("L_ofast")
    a.e(f"buffer_store_dwordx4 {v(P0,4)}, v7, s[36:39], s101 offen")
    setexec(a, 0xffffffff)
    a.e(f"buffer_store_dword v{P0+4}, v6, s[36:39], s20 offen")
    a.label("L_odone")
    a.e("s_mov_b64 exec, -1")
    a.e("s_load_dwordx2 s[4:5], s[0:1], 0")
    a.e("s_load_dwordx2 s[8:9], s[0:1], 80")
    a.e(f"s_bfe_u32 s19, s{TASK}, 0x30005")
    a.e("s_lshl_b32 s19, s19, 4")
    a.e("s_mul_i32 s21, s100, 5")
    a.e("s_add_u32 s19, s19, s21")
    a.e("s_min_u32 s21, s100, 1")
    a.e("s_add_u32 s19, s19, s21")
    a.e("s_sub_u32 s43, 6, s21")
    a.e("s_cmp_ge_u32 s100, 3")
    a.e("s_cselect_b32 s43, 0, s43")
    a.e("s_add_u32 s21, s19, s18")
    OF, ACC, WF = 16, 88, 104
    XE, GE = 136, 144
    a.e("s_min_u32 s21, s21, 127")
    a.e("v_and_b32 v2, 15, v0")
    a.e("v_lshrrev_b32 v3, 4, v0")
    a.e("s_lshl_b32 s40, s21, 4")
    a.e("v_add_u32 v4, s40, v2")
    a.e("v_mul_u32_u24 v5, 1152, v4")
    a.e("v_lshl_add_u32 v5, v3, 3, v5")
    a.e("s_waitcnt lgkmcnt(0)")
    srd(a, 24, 4, SZ)
    srd(a, 32, 8, SZ)
    a.e("s_lshl_b32 s19, s56, 6")
    a.e("v_add_u32 v6, s19, v0")
    a.e("v_lshrrev_b32 v7, 2, v6")
    a.e("v_add_u32 v7, 224, v7")
    a.e("v_subrev_u32 v8, 128, v6")
    a.e("v_lshrrev_b32 v8, 1, v8")
    a.e("v_cmp_gt_u32 vcc, 128, v6")
    a.e("s_lshr_b32 s19, s40, 9")
    a.e("s_bfe_u32 s20, s40, 0x20007")
    a.e("s_lshl_b32 s20, s20, 3")
    a.e("s_add_u32 s19, s19, s20")
    a.e("s_add_u32 s19, s19, 196")
    a.e("v_cndmask_b32 v6, v8, v7, vcc")
    a.e("v_mov_b32 v7, s19")
    a.e("s_mov_b32 s44, 0xaaaaaaaa")
    a.e("s_mov_b32 s45, 0xaaaaaaaa")
    a.e("v_cndmask_b32 v6, v6, v7, s[44:45]")
    a.e("v_lshlrev_b32 v7, 7, v6")
    a.e(f"s_mov_b32 s22, {WS_F + 16}")
    a.e("buffer_load_dwordx2 v[8:9], v7, s[36:39], s22 offen sc0 sc1")
    a.e(f"v_mov_b32 v10, {L_CNT+32}")
    a.e("v_mov_b32 v11, 1")
    a.e("s_waitcnt vmcnt(1)"); a.reset_counters()
    a.e("s_mov_b64 exec, 1")
    a.e("ds_add_rtn_u32 v11, v10, v11")
    a.e("s_mov_b64 exec, -1")
    a.e("s_waitcnt lgkmcnt(0)")
    a.e("v_readfirstlane_b32 s22, v11")
    a.e("s_cmp_lg_u32 s22, 7")
    a.e("s_cbranch_scc1 L_nf4")
    a.e(f"s_and_b32 s22, s{TASK}, 255")
    a.e("s_lshl_b32 s22, s22, 7")
    a.e(f"s_add_u32 s22, s22, {WS_F4}")
    a.e("v_mov_b32 v12, s22")
    a.e(f"v_mov_b32 v14, s{TAG}")
    a.e(f"v_mov_b32 v15, s{TAG+1}")
    a.e("s_mov_b64 exec, 1")
    a.e(f"s_bitcmp1_b32 s{TASK}, 8")
    a.e("s_cbranch_scc1 L_f4fast")
    a.e("buffer_store_dwordx2 v[14:15], v12, s[36:39], 0 offen sc0 sc1")
    a.e("s_branch L_f4d")
    a.label("L_f4fast")
    a.e("buffer_store_dwordx2 v[14:15], v12, s[36:39], 0 offen")
    a.label("L_f4d")
    a.e("s_mov_b64 exec, -1")
    a.label("L_nf4")
    st("ost")
    a.e("s_cmp_lt_u32 s18, s43")
    a.e("s_cbranch_scc1 L_g2")
    a.e(f"s_and_b32 s22, s{TASK}, 255")
    a.e("s_cmp_lg_u32 s22, 255")
    a.e("s_cbranch_scc1 L_end")
    a.e("s_cmp_lg_u32 s18, 0")
    a.e("s_cbranch_scc1 L_end")
    for q in range(4):
        a.e(f"v_add_u32 v6, {64*q}, v0")
        flag_wait(a, 2, 6, 8, 8)
    a.e(f"v_mov_b32 v6, {WS_E}")
    a.e(f"v_mov_b32 v8, s{TAG}")
    a.e(f"v_mov_b32 v9, s{TAG+1}")
    a.e("s_mov_b64 exec, 1")
    a.e("buffer_store_dwordx2 v[8:9], v6, s[36:39], 0 offen sc0 sc1")
    a.e("s_endpgm")
    a.label("L_g2")
    for mt in range(4):
        a.vmem(f"buffer_load_dwordx2 {v(XE+2*mt,2)}, v5, s[24:27], s57 offen offset:{32*mt}", "X")
    a.e("s_waitcnt vmcnt(4)")
    a.e(f"v_cmp_ne_u64 vcc, s[{TAG}:{TAG+1}], v[8:9]")
    a.e("s_cbranch_vccz L_f3ok")
    flag_wait(a, 2, 6, 8)
    a.label("L_f3ok")
    a.e("v_lshrrev_b32 v6, 1, v0")
    a.e("v_lshlrev_b32 v6, 12, v6")
    a.e("v_and_b32 v8, 1, v0")
    a.e("v_lshl_add_u32 v6, v8, 4, v6")
    a.e("s_lshl_b32 s45, s56, 18")
    a.e("s_lshl_b32 s46, s21, 5")
    a.e("s_add_u32 s45, s45, s46")
    a.e(f"s_add_u32 s45, s45, {WS_Z}")
    a.e("s_lshl_b32 s44, s18, 11")
    for q in range(2):
        a.e(f"s_add_u32 m0, s44, {q*1024}")
        a.e("s_nop 0")
        a.vmem(f"buffer_load_dwordx4 v6, s[36:39], s45 offen {SC} lds", "X")
        a.e(f"s_add_u32 s45, s45, {32*4096}")
    a.e("v_lshlrev_b32 v6, 2, v4")
    a.e(f"s_mov_b32 s45, {WS_G}")
    a.vmem(f"buffer_load_dword v{GE}, v6, s[36:39], s45 offen {SC}", "X")
    a.e("v_bfe_u32 v6, v0, 2, 2")
    a.e("v_and_b32 v11, 3, v0")
    a.e("v_lshrrev_b32 v8, 1, v3")
    a.e("v_mul_u32_u24 v8, 20, v8")
    a.e("v_and_b32 v9, 1, v3")
    a.e("v_lshl_add_u32 v8, v9, 2, v8")
    a.e("v_add_u32 v8, v8, v6")
    a.e("v_bfe_u32 v9, v8, 1, 2")
    a.e("v_lshlrev_b32 v8, 7, v8")
    a.e("v_lshl_add_u32 v8, v11, 3, v8")
    a.e(f"v_add_u32 v8, {L_WO}, v8")
    MA = 148
    for mt in range(4):
        a.e(f"v_xor_b32 v10, {mt}, v9")
        a.e(f"v_lshl_add_u32 v{MA+mt}, v10, 5, v8")
    a.e("v_mul_u32_u24 v8, 72, v3")
    a.e("v_add3_u32 v8, v8, v6, 16")
    a.e("v_bfe_u32 v9, v8, 1, 2")
    a.e("v_lshlrev_b32 v8, 7, v8")
    a.e("v_lshl_add_u32 v8, v11, 3, v8")
    a.e(f"v_add_u32 v8, {L_WO}, v8")
    TA_ = 152
    for mt in range(4):
        a.e(f"v_xor_b32 v10, {mt}, v9")
        a.e(f"v_lshl_add_u32 v{TA_+mt}, v10, 5, v8")
    a.e("v_lshl_add_u32 v8, v3, 2, v6")
    a.e("v_lshlrev_b32 v8, 5, v8")
    a.e("v_lshl_add_u32 v8, v11, 3, v8")
    a.e("v_add_u32 v8, s44, v8")
    BP, ZE, T = 156, 172, 180
    a.wait_vm(None)
    for mt in range(4):
        a.lds(f"ds_read_b64_tr_b16 {v(ZE+2*mt,2)}, v8 offset:{512*mt}", "Z")
    a.e(f"v_sub_f32 v9, 1.0, v{GE}")
    rnd(a, 9, 9)
    a.e("s_mov_b32 s42, 0xffff0000")
    a.wait_lds("Z")
    for mt in range(4):
        B = BP + 4*mt
        for i in range(4):
            op = "v_lshlrev_b32 v%d, 16, v%d" if i % 2 == 0 else "v_and_b32 v%d, s42, v%d"
            a.e(op % (B+i, XE+2*mt+i//2))
            a.e(op % (T+i, ZE+2*mt+i//2))
        for i in range(4): a.e(f"v_mul_f32 v{B+i}, v{B+i}, v{T+i}")
        for i in range(4): rnd(a, B+i, B+i)
        for i in range(4): a.e(f"v_mul_f32 v{B+i}, v{B+i}, v9")
        for i in range(4): rnd(a, B+i, B+i)
    def rd(ks):
        b = WF + 16 * (ks % 2)
        for mt in range(4):
            for hf in range(2):
                if ks < 16:
                    kk = ks if ks < 12 else ks - 12
                    ar = MA + (mt ^ (2 * (ks & 1))); off = (36*kk + 8*hf) * 128
                else:
                    ar = TA_ + (mt ^ (2 * hf)); off = (288*(ks-16) + 36*hf) * 128
                a.lds(f"ds_read_b64_tr_b16 {v(b+4*mt+2*hf,2)}, v{ar} offset:{off}", f"F{ks}")
    a.e(f"v_mov_b32 v10, {L_CNT+32}")
    lds_spin(a, 10, 8)
    rd(0)
    a.e("s_lshr_b32 s19, s21, 3")
    a.e("s_lshl_b32 s19, s19, 4")
    a.e("v_add_u32 v6, s19, v2")
    a.e("s_add_u32 s19, s21, s43")
    a.e("s_sub_u32 s19, s19, 1")
    a.e("s_lshr_b32 s19, s19, 3")
    a.e("s_lshl_b32 s19, s19, 4")
    a.e("v_add_u32 v7, s19, v2")
    a.e("v_cndmask_b32 v6, v6, v7, s[44:45]") if False else None
    a.e("s_mov_b32 s46, 0")
    a.e("s_mov_b32 s47, -1")
    a.e("v_cndmask_b32 v6, v6, v7, s[46:47]")
    a.e("s_cmp_lg_u32 s18, 0")
    a.e("s_cbranch_scc1 L_w4_o")
    flag_wait(a, 3, 6, 10, 2)
    a.e(f"v_mov_b32 v10, {L_CNT+40}")
    a.e("v_mov_b32 v11, 1")
    a.e("ds_write_b32 v10, v11")
    a.e("s_branch L_w4_j")
    a.label("L_w4_o")
    a.e(f"v_mov_b32 v10, {L_CNT+40}")
    lds_spin(a, 10, 1)
    a.label("L_w4_j")
    a.lgkm.append(None)
    st("f4")
    a.e("v_lshlrev_b32 v7, 4, v0")
    a.e("s_mul_i32 s22, s21, 18432")
    a.e(f"s_add_u32 s22, s22, {WS_O}")
    for ks in range(18):
        a.vmem(f"buffer_load_dwordx4 {v(OF+4*ks,4)}, v7, s[36:39], s22 offen offset:{1024*(ks%4)} {SC}", f"O{ks}")
        if ks % 4 == 3: a.e("s_add_u32 s22, s22, 4096")
    for ks in range(18):
        if ks + 1 == 12:
            for mt in range(4): a.e(f"v_add_u32 v{MA+mt}, {12*36*128}, v{MA+mt}")
        if ks + 1 < 18: rd(ks + 1)
        a.wait_vm(f"O{ks}")
        a.wait_lds(f"F{ks}")
        b = WF + 16 * (ks % 2)
        for mt in range(4):
            acc = v(ACC + 4*mt, 4)
            a.e(f"v_mfma_f32_16x16x32_bf16 {acc}, {v(b+4*mt,4)}, {v(OF+4*ks,4)}, {acc if ks else 0}")
    a.e("s_nop 4")
    for mt in range(4):
        ac = ACC + 4*mt
        for i in range(4): rnd(a, ac+i, ac+i)
        for i in range(4): a.e(f"v_mul_f32 v{ac+i}, v{ac+i}, v{GE}")
        for i in range(4): rnd(a, ac+i, ac+i)
        for i in range(4): a.e(f"v_add_f32 v{ac+i}, v{ac+i}, v{BP+4*mt+i}")
        a.e(f"v_cvt_pk_bf16_f32 v{ac}, v{ac}, v{ac+1}")
        a.e(f"v_cvt_pk_bf16_f32 v{ac+1}, v{ac+2}, v{ac+3}")
        a.vmem(f"buffer_store_dwordx2 {v(ac,2)}, v5, s[32:35], s57 offen offset:{32*mt}")
    st("end"); st.real("rt1"); st.flush(16, 18, 0)
    a.label("L_end")
    a.e("s_endpgm")
    a.label("L_fallback")
    a.reset_counters()
    a.e(f"v_cndmask_b32 v{Q2}, v{Q2}, 0, s[42:43]")
    a.e(f"v_mov_b32 v{NM}, {NEGINF}")
    for t in range(8, -1, -1):
        for f in rdK(t): f()
        if t in (0, 8):
            for f in mask_ops(SS[0], t == 8): f()
        if t < 8: kill(t, "sm")
        a.wait_lds(None)
        a.e("s_nop 1")
        qk1(t); qk2(t)
        a.e("s_nop 7"); a.e("s_nop 3")
        S = SS[t % 2]
        for i in range(8): a.e(f"v_max3_f32 v{NM}, v{S+2*i}, v{S+2*i+1}, v{NM}")
    for f in rdK(8) + rdK(7): f()
    a.e(f"v_cndmask_b32 v{Q2}, v{Q2}, 0, s[42:43]")
    a.e(f"v_mov_b32 v7, v{NM}")
    a.e("s_nop 1")
    a.e(f"v_permlane32_swap_b32 v{NM}, v7")
    a.e("s_nop 1")
    a.e(f"v_max_f32 v{NM}, v{NM}, v7")
    a.e(f"v_sub_f32 v{NM}, 0, v{NM}")
    for f in mask_ops(SS[0], True): f()
    a.wait_lds("K8")
    a.e("s_nop 1")
    qk1(8)
    softmax_pass(True, "sb")
    a.e("s_branch L_fin")
    a.label("L_codeend")

def main(path):
    a = Asm()
    hdr = open(f"cdna_kernels/{NAME}.s.ref").read().split("\n")
    head = [l for l in hdr if l.startswith(";") and "@launch" not in l and "Override" not in l and "grid=ceil" not in l]
    for l in head: a.raw(l)
    a.raw(f"; @launch grid=(256,1,1) block=(512,1,1) lds={LDS_TOTAL}")
    a.raw('.amdgcn_target "amdgcn-amd-amdhsa--gfx950"')
    a.raw(".text")
    gen(a)
    a.raw('.section .rodata,"a"')
    a.raw(kernel_desc(NAME + "_kernel", 216))
    open(path, "w").write(a.text())

if __name__ == "__main__":
    if len(sys.argv) > 2 and sys.argv[2] == "stamps":
        asmlib.STAMP_ON = True
        asmlib.STAMP_FILTER = list((sys.argv[3] if len(sys.argv) > 3 else "b8,cvk,f1,cv1,cv3,conv,f2,staged,soft,ost,f4,end").split(","))
    if len(sys.argv) > 2 and sys.argv[2] == "fake": FAKE_XCC = sys.argv[3]
    main(sys.argv[1] if len(sys.argv) > 1 else f"fused.s")
```

```python
import sys, struct
from asmlib import *
import asmlib

NAME = "gated_mix__sliding_block__ssm_conv_h3__prompt"
SZ = 2048 * 576 * 2
WS_QKV = 0
QKV_BYTES = 432 * 16384
WS_U = QKV_BYTES
WS_O = WS_U + SZ
WS_Z = WS_O + SZ
WS_G = WS_Z + SZ
WS_F = WS_G + 8192
WS_E = WS_F + 32768
WS_TOTAL = WS_E + 128
def f32(x): return "0x%08x" % struct.unpack("<I", struct.pack("<f", x))[0]
QSCALE = 18 ** -0.5 * 1.4426950408889634
NEGINF = "0xff800000"
SC = "sc1"
SPIN_MAX = 40000

def rnd(a, dst, src):
    a.e(f"v_cvt_pk_bf16_f32 v{dst}, 0, v{src}")
def lane_mask(fn):
    m = 0
    for l in range(64):
        if fn(l): m |= 1 << l
    return m

L_U = 0
UP = 288
L_PK = 9728
L_CNT = 22016
L_RING = 24576
L_CVK = L_RING + 32768
import os
PL = int(os.environ.get('PL', '3104'))
L_KP = L_RING
L_ONE = L_KP + 9 * PL
L_WO = (L_ONE + PL + 127) // 128 * 128
L_VP = 163840 - 9 * PL
LDS_TOTAL = 163840
assert L_WO + 73728 <= L_VP
CV_USZ = 1216

TAG = 88
ROLE, CVK, CVU, GCNT, ROUNDS, RHO, GTGT, PBASE = 90, 91, 92, 93, 94, 95, 96, 98

def prep_task(a, T_s):
    a.e(f"s_mul_i32 s40, s{T_s}, 3641")
    a.e("s_lshr_b32 s40, s40, 16")
    a.e("s_mul_i32 s41, s40, 18")
    a.e(f"s_sub_u32 s41, s{T_s}, s41")

PB = 200
def prep_setup(a):
    a.e(f"v_lshrrev_b32 v{PB+8}, 2, v0")
    a.e(f"v_and_b32 v{PB+9}, 3, v0")
    a.e(f"v_mul_u32_u24 v{PB}, 1152, v{PB+8}")
    a.e(f"v_lshlrev_b32 v{PB+1}, 1, v{PB}")
    a.e(f"v_lshl_add_u32 v{PB}, v{PB+9}, 4, v{PB}")
    a.e(f"v_lshl_add_u32 v{PB+1}, v{PB+9}, 4, v{PB+1}")
    a.e(f"v_lshlrev_b32 v{PB+2}, 4, v0")

def prep_issue(a, R):
    a.e(f"s_mul_i32 s22, s40, {32*1152}")
    a.e("s_lshl_b32 s23, s41, 6")
    a.e("s_add_u32 s22, s22, s23")
    a.e(f"v_add_u32 v{PB+3}, s22, v{PB}")
    a.e(f"v_subrev_u32 v{PB+3}, {3*1152}, v{PB+3}")
    for i in range(2):
        a.e(f"s_add_u32 m0, s{PBASE}, {256+1024*i}")
        a.e(f"s_add_u32 s23, s22, {16*1152*i}")
        a.e(f"buffer_load_dwordx4 v{PB}, s[24:27], s23 offen lds")
    a.e(f"buffer_load_dwordx4 {v(R,4)}, v{PB+1}, s[28:31], s22 offen")
    a.e(f"buffer_load_dwordx4 {v(R+4,4)}, v{PB+1}, s[28:31], s22 offen offset:1152")
    a.e(f"s_add_u32 m0, s{PBASE}, 64")
    setexec(a, 0xfff)
    a.e(f"buffer_load_dwordx4 v{PB+3}, s[24:27], 0 offen lds")
    a.e(f"s_add_u32 m0, s{PBASE}, 2304")
    a.e("s_mov_b32 exec_lo, 0xffff")
    a.e("s_lshl_b32 s23, s41, 8")
    a.e(f"buffer_load_dwordx4 v{PB+2}, s[32:35], s23 offen lds")
    a.e("s_mov_b64 exec, -1")

def prep_compute(a, VR, T):
    KR, SW = T + 52, T + 72
    UK, UW, UV, TA, OUT = T, T+20, T+36, T+44, T+88
    A0, A1, A2, A3, A4 = PB, PB+1, PB+2, PB+3, PB+4
    a.e(f"v_lshlrev_b32 v{A0}, 7, v{PB+8}")
    a.e(f"v_lshl_add_u32 v{A0}, v{PB+9}, 4, v{A0}")
    a.e(f"v_add_u32 v{A0}, s{PBASE}, v{A0}")
    a.e(f"v_lshl_add_u32 v{A1}, v{PB+9}, 6, s{PBASE}")
    for j in range(5): a.lds(f"ds_read_b128 {v(KR+4*j,4)}, v{A0} offset:{64+64*j}", "PK")
    for i in range(4): a.lds(f"ds_read_b128 {v(SW+4*i,4)}, v{A1} offset:{2304+16*i}", "PW")
    a.e("s_mov_b32 s42, 0xffff0000")
    a.e(f"v_lshrrev_b32 v{A2}, 3, v0")
    a.e(f"v_mul_u32_u24 v{A2}, {UP}, v{A2}")
    a.e(f"v_and_b32 v{A3}, 1, v{PB+8}")
    a.e(f"v_lshl_add_u32 v{A2}, v{A3}, 2, v{A2}")
    a.e(f"v_add_u32 v{A2}, v{A2}, v{A1}")
    a.e(f"v_add_u32 v{A2}, 2560, v{A2}")
    a.e(f"v_bfe_u32 v{A3}, v0, 2, 2")
    a.e(f"v_sub_u32 v{A3}, 3, v{A3}")
    a.e(f"v_mul_u32_u24 v{A3}, {UP}, v{A3}")
    a.e(f"v_lshrrev_b32 v{A4}, 4, v0")
    a.e(f"v_lshl_add_u32 v{A3}, v{A4}, 5, v{A3}")
    a.e(f"v_lshl_add_u32 v{A3}, v{PB+9}, 3, v{A3}")
    a.e(f"v_add_u32 v{A3}, s{PBASE}, v{A3}")
    a.e(f"v_lshlrev_b32 v{A4}, 12, v{PB+8}")
    a.e(f"v_lshl_add_u32 v{A4}, v{PB+9}, 4, v{A4}")
    a.e("s_lshl_b32 s22, s41, 17")
    a.e("s_lshl_b32 s23, s40, 6")
    a.e("s_add_u32 s22, s22, s23")
    a.e(f"s_add_u32 s22, s22, {WS_U}")
    a.e(f"s_add_u32 s23, s22, {16*4096}")
    for half in range(2):
        for r in range(2):
            for qq in range(2):
                a.e(f"v_lshlrev_b32 v{UV+4*r+2*qq}, 16, v{VR+4*r+2*half+qq}")
                a.e(f"v_and_b32 v{UV+4*r+2*qq+1}, s42, v{VR+4*r+2*half+qq}")
        a.wait_lds("PK")
        for r in range(5):
            for qq in range(2):
                a.e(f"v_lshlrev_b32 v{UK+4*r+2*qq}, 16, v{KR+4*r+2*half+qq}")
                a.e(f"v_and_b32 v{UK+4*r+2*qq+1}, s42, v{KR+4*r+2*half+qq}")
        a.wait_lds("PW")
        for c in range(4):
            for t in range(2):
                src = SW + (4*half+c)*2 + t
                a.e(f"v_lshlrev_b32 v{UW+4*c+2*t}, 16, v{src}")
                a.e(f"v_and_b32 v{UW+4*c+2*t+1}, s42, v{src}")
        RC = [(r, c) for r in range(2) for c in range(4)]
        for r, c in RC: a.e(f"v_mul_f32 v{TA+4*r+c}, v{UK+4*r+c}, v{UW+4*c+3}")
        for t in (1, 2, 3):
            for r, c in RC: a.e(f"v_fmac_f32 v{TA+4*r+c}, v{UK+4*(r+t)+c}, v{UW+4*c+3-t}")
        for r, c in RC: rnd(a, TA+4*r+c, TA+4*r+c)
        for r, c in RC: a.e(f"v_mul_f32 v{TA+4*r+c}, v{TA+4*r+c}, v{UV+4*r+c}")
        for c in range(4):
            a.e(f"v_cvt_pk_bf16_f32 v{OUT+4*half+c}, v{TA+c}, v{TA+4+c}")
        for c in range(4*half, 4*half+4, 2):
            a.lds(f"ds_write2_b32 v{A2}, v{OUT+c}, v{OUT+c+1} offset0:{2*c} offset1:{2*c+2}")
    for d in range(2):
        a.lds(f"ds_read_b64_tr_b16 {v(T+4*d,2)}, v{A3} offset:{2560+4*UP+128*d}", f"PT{d}")
        a.lds(f"ds_read_b64_tr_b16 {v(T+4*d+2,2)}, v{A3} offset:{2560+128*d}", f"PT{d}")
    for d in range(2):
        a.wait_lds(f"PT{d}")
        a.e(f"buffer_store_dwordx4 {v(T+4*d,4)}, v{A4}, s[36:39], s{22+d} offen {SC}")

def tag_make(a):
    a.e(f"v_readfirstlane_b32 s{TAG}, v214")
    a.e(f"v_readfirstlane_b32 s{TAG+1}, v215")
    a.e(f"v_mov_b32 v212, {L_CNT+192}")
    a.e(f"s_add_u32 s{TAG}, s{TAG}, 1")
    a.e(f"s_addc_u32 s{TAG+1}, s{TAG+1}, 0")
    a.e(f"s_or_b32 s{TAG+1}, s{TAG+1}, 0x80000000")
    a.e(f"v_mov_b32 v214, s{TAG}")
    a.e(f"v_mov_b32 v215, s{TAG+1}")
    a.lds("ds_write_b64 v212, v[214:215]")

def tag_from_lds(a, T):
    a.e(f"v_mov_b32 v{T}, {L_CNT+192}")
    a.lds(f"ds_read_b64 {v(T+2,2)}, v{T}", "TG")
    a.wait_lds("TG")
    a.e(f"v_readfirstlane_b32 s{TAG}, v{T+2}")
    a.e(f"v_readfirstlane_b32 s{TAG+1}, v{T+3}")

def flag_write(a, stage, T):
    a.e("s_lshl_b32 s22, s2, 7")
    a.e(f"s_add_u32 s22, s22, {WS_F + 8*stage}")
    a.e(f"v_mov_b32 v{T}, s22")
    a.e(f"v_mov_b32 v{T+2}, s{TAG}")
    a.e(f"v_mov_b32 v{T+3}, s{TAG+1}")
    a.e("s_mov_b64 exec, 1")
    a.vmem(f"buffer_store_dwordx2 {v(T+2,2)}, v{T}, s[36:39], 0 offen sc0 sc1", "FL")
    a.e("s_mov_b64 exec, -1")

def flag_wait(a, stage, W, T, sleep=2):
    a.e(f"v_lshlrev_b32 v{W}, 7, v{W}")
    a.e(f"s_mov_b32 s22, {WS_F + 8*stage}")
    l = a.newlabel("fspin"); d = a.newlabel("fdone")
    a.e(f"s_mov_b32 s97, {SPIN_MAX}")
    a.label(l)
    a.e(f"buffer_load_dwordx2 {v(T,2)}, v{W}, s[36:39], s22 offen sc0 sc1")
    a.e("s_waitcnt vmcnt(0)"); a.vm = []
    a.e(f"v_cmp_ne_u64 vcc, s[{TAG}:{TAG+1}], {v(T,2)}")
    a.e(f"s_cbranch_vccz {d}")
    a.e(f"s_sleep {sleep}")
    a.e("s_sub_u32 s97, s97, 1")
    a.e(f"s_cbranch_scc0 {l}")
    a.label(d)

def group_barrier(a, T):
    a.e(f"v_mov_b32 v{T}, s{GCNT}")
    a.e(f"v_mov_b32 v{T+1}, 1")
    a.e(f"s_add_u32 s{GTGT}, s{GTGT}, 4")
    a.wait_lds(None)
    a.e("s_mov_b64 exec, 1")
    a.e(f"ds_add_u32 v{T}, v{T+1}")
    a.e("s_mov_b64 exec, -1")
    lds_spin(a, T, f"s{GTGT}")

def lds_spin(a, T, target):
    l = a.newlabel("gb"); d = a.newlabel("gbd")
    a.e(f"s_mov_b32 s97, {SPIN_MAX*8}")
    a.label(l)
    a.e(f"ds_read_b32 v{T+1}, v{T}")
    a.e("s_sub_u32 s97, s97, 1")
    a.e(f"s_cbranch_scc1 {d}")
    a.e("s_waitcnt lgkmcnt(0)")
    a.e(f"v_readfirstlane_b32 s22, v{T+1}")
    a.e(f"s_cmp_ge_u32 s22, {target}")
    a.e(f"s_cbranch_scc1 {d}")
    a.e("s_sleep 1")
    a.e(f"s_branch {l}")
    a.label(d)
    a.e("s_waitcnt lgkmcnt(0)")

L_Q = L_RING + 3 * 32768

def convk_issue(a, CH_s, RH, R, tag):
    a.e(f"s_lshl_b32 s20, s{CH_s}, 12")
    a.e("s_add_u32 s24, s14, s20")
    a.e("s_addc_u32 s25, s15, 0")
    a.e("s_mov_b32 s26, 4096")
    a.e("s_mov_b32 s27, 0x00020000")
    a.e(f"s_add_u32 s21, s{RH}, 1")
    a.e("s_lshr_b32 s21, s21, 1")
    a.e("s_lshl_b32 s21, s21, 2")
    a.e("v_lshlrev_b32 v4, 4, v0")
    a.e("v_subrev_u32 v4, s21, v4")
    a.e("v_add_u32 v5, 1024, v4")
    a.e("v_add_u32 v6, 16, v4")
    a.vmem(f"buffer_load_dwordx4 {v(R,4)}, v4, s[24:27], 0 offen", tag)
    for i in range(3): a.vmem(f"buffer_load_dwordx4 {v(R+6+6*i,4)}, v5, s[24:27], 0 offen offset:{1024*i}", tag)
    for i in range(4): a.vmem(f"buffer_load_dword v{R+6*i+4}, v6, s[24:27], 0 offen offset:{1024*i}", tag)
    a.e("v_lshlrev_b32 v4, 1, v0")
    a.e(f"s_lshl_b32 s21, s{RH}, 1")
    a.e("v_subrev_u32 v4, s21, v4")
    a.e("v_subrev_u32 v4, 32, v4")
    a.vmem(f"buffer_load_ushort v{R+24}, v4, s[24:27], 0 offen", tag)

def convk_write(a, RH, KD, koff, R, tag):
    a.e(f"s_and_b32 s21, s{RH}, 1")
    a.e("s_lshl_b32 s21, s21, 4")
    a.e(f"v_lshl_add_u32 v4, v0, 4, s{KD}")
    a.e(f"v_lshl_add_u32 v5, v0, 1, s{KD}")
    a.wait_vm(tag)
    for i in range(4):
        for j in range(4):
            a.e(f"v_alignbit_b32 v{R+6*i+j}, v{R+6*i+j+1}, v{R+6*i+j}, s21")
        a.lds(f"ds_write_b128 v4, {v(R+6*i,4)} offset:{koff+32+1024*i}")
    setexec(a, 0xffffff)
    a.lds(f"ds_write_b16 v5, v{R+24} offset:{koff}")
    a.e("s_mov_b64 exec, -1")

def convu_wait(a):
    a.e("s_lshr_b32 s21, s3, 5")
    a.e("v_mul_u32_u24 v8, 18, v0")
    a.e("v_add_u32 v8, s21, v8")
    a.e("v_and_b32 v9, 31, v8")
    a.e("v_add_u32 v9, 224, v9")
    a.e("v_cmp_gt_u32 vcc, 256, v8")
    a.e("v_subrev_u32 v8, 256, v8")
    a.e("v_lshrrev_b32 v8, 2, v8")
    a.e("v_cndmask_b32 v8, v8, v9, vcc")
    flag_wait(a, 0, 8, 10, 6)

def convu_issue(a, CH_s, UD, rhos, tag):
    a.e("v_sub_u32 v4, 63, v0")
    a.e("v_lshlrev_b32 v4, 6, v4")
    a.e(f"s_lshl_b32 s21, s{CH_s}, 12")
    a.e(f"s_add_u32 s21, s21, {WS_U}")
    a.e(f"s_mov_b32 s23, s{UD}")
    if rhos[0] == 's':
        a.e(f"s_lshl_b32 s20, s{rhos[1]}, 4")
        a.e("s_add_u32 s21, s21, s20")
        a.e(f"s_mul_i32 s20, s{rhos[1]}, {CV_USZ}")
        a.e("s_add_u32 s23, s23, s20")
        rhos = [0]
    a.e("v_lshl_add_u32 v5, v0, 1, s23")
    a.e("v_mov_b32 v6, 0")
    for r in rhos:
        a.e(f"s_add_u32 m0, s23, {CV_USZ*r}")
        a.lds(f"ds_write_b16 v5, v6 offset:{1024+CV_USZ*r}")
        a.vmem(f"buffer_load_dwordx4 v4, s[36:39], s21 offen {SC} lds", tag)
        a.e("s_add_u32 s21, s21, 16")

def kshift(a, KX):
    for i in range(4):
        X = KX + 4*i; R1, R2, R3 = 64+12*i, 68+12*i, 72+12*i
        a.e("v_mov_b32 v6, 0"); a.e("v_mov_b32 v7, 0")
        if i:
            a.e(f"v_readlane_b32 s20, v{X-2}, 63")
            a.e(f"v_readlane_b32 s21, v{X-1}, 63")
            a.e("s_nop 1")
            a.e("v_mov_b32 v6, s20"); a.e("v_mov_b32 v7, s21")
        a.e("s_nop 1")
        a.e(f"v_mov_b32_dpp v6, v{X+2} wave_shr:1 row_mask:0xf bank_mask:0xf")
        a.e(f"v_mov_b32_dpp v7, v{X+3} wave_shr:1 row_mask:0xf bank_mask:0xf")
        a.e(f"v_alignbit_b32 v{R1}, v{X}, v7, 16")
        for j in range(1, 4): a.e(f"v_alignbit_b32 v{R1+j}, v{X+j}, v{X+j-1}, 16")
        a.e(f"v_mov_b32 v{R2}, v7")
        for j in range(1, 4): a.e(f"v_mov_b32 v{R2+j}, v{X+j-1}")
        a.e(f"v_alignbit_b32 v{R3}, v7, v6, 16")
        for j in range(1, 4): a.e(f"v_mov_b32 v{R3+j}, v{R1+j-1}")

def kwrite(a, KX):
    a.e("v_lshl_add_u32 v4, v0, 4, s41")
    for i in range(4):
        for (r, R_) in ((0, KX+4*i), (1, 64+12*i), (2, 68+12*i), (3, 72+12*i)):
            a.lds(f"ds_write_b128 v4, {v(R_,4)} offset:{8192*r+32+1024*i}")
    a.e("v_mov_b32 v6, 0"); a.e("v_mov_b32 v7, 0")
    a.e("v_lshl_add_u32 v4, v0, 3, s41")
    setexec(a, 0xf)
    for r in range(4): a.lds(f"ds_write_b64 v4, v[6:7] offset:{8192*r}")
    a.e("s_mov_b64 exec, -1")

def lds_add(a, T, off):
    a.e("s_mov_b64 exec, 1")
    a.lds(f"ds_add_u32 v{T}, v{T+1} offset:{off}")
    a.e("s_mov_b64 exec, -1")
PW2 = 4864
VD = 180
FULL, FREE = 64, 100
import os
OPT = os.environ.get('OPT', '')
F1_AT = int(os.environ.get('F1AT', '2'))

def gen(a):
    K = NAME + "_kernel"
    kernel_head(a, K)
    a.e("s_cmp_ge_u32 s2, 256")
    a.e("s_cbranch_scc1 L_end")
    st = NStamps(a); st.real("rt0"); st("t0")
    a.e("s_load_dwordx4 s[4:7], s[0:1], 0")
    a.e("s_load_dwordx4 s[8:11], s[0:1], 32")
    a.e("s_load_dwordx4 s[12:15], s[0:1], 48")
    a.e("s_load_dwordx2 s[16:17], s[0:1], 96")
    a.e("v_lshrrev_b32 v1, 6, v0")
    a.e("v_and_b32 v0, 63, v0")
    a.e("v_readfirstlane_b32 s18, v1")
    a.e("v_lshlrev_b32 v12, 2, v0")
    a.e("v_mov_b32 v13, 0")
    a.e(f"ds_write_b32 v12, v13 offset:{L_CNT}")
    a.e("s_and_b32 s43, s2, 3")
    a.e("s_lshl_b32 s43, s43, 2")
    a.e("s_bfe_u32 s19, s2, 0x20003")
    a.e("s_add_u32 s43, s43, s19")
    a.e("s_bfe_u32 s44, s2, 0x10002")
    a.e("s_mul_i32 s44, s44, 7")
    a.e("s_lshr_b32 s45, s2, 5")
    a.e("s_add_u32 s44, s44, s45")
    RB, CT = 43, 44
    a.e(f"s_and_b32 s{RHO}, s18, 3")
    a.e("s_lshr_b32 s19, s18, 2")
    a.e(f"s_lshl_b32 s{CVK}, s18, 13")
    a.e(f"s_add_u32 s{CVK}, s{CVK}, {L_CVK}")
    a.e(f"s_mul_i32 s{CVU}, s19, {4*CV_USZ}")
    a.e(f"s_lshl_b32 s{GCNT}, s19, 2")
    a.e(f"s_add_u32 s{GCNT}, s{GCNT}, {L_CNT}")
    a.e(f"s_mov_b32 s{GTGT}, 0")
    a.e(f"s_mov_b32 s{ROLE}, s19")
    a.e(f"s_mov_b32 s{ROUNDS}, 1")
    a.e("s_lshl_b32 s3, s2, 1")
    a.e("s_add_u32 s3, s3, s19")
    a.e("s_add_u32 s3, s3, 128")
    a.e("s_lshl_b32 s19, s18, 5")
    a.e("s_and_b32 s20, s2, 31")
    a.e("s_add_u32 s19, s19, s20")
    a.e("s_lshl_b32 s20, s2, 2")
    a.e("s_add_u32 s20, s20, s18")
    a.e("s_add_u32 s20, s20, 252")
    a.e("s_cmp_ge_u32 s18, 4")
    a.e("s_cselect_b32 s20, s20, -1")
    a.e(f"s_mul_i32 s21, s{RHO}, {PW2}")
    a.e(f"s_mul_i32 s{PBASE}, s18, {PW2}")
    a.e(f"s_add_u32 s{PBASE}, s{PBASE}, {L_RING}")
    a.e("s_cmp_eq_u32 s45, 7")
    a.e("s_cselect_b32 s99, s19, s20")
    a.e(f"s_cselect_b32 s{PBASE}, s{PBASE}, s21")
    prep_setup(a)
    prep_task(a, 99)
    a.e("s_waitcnt lgkmcnt(0)")
    a.e("s_cmp_eq_u32 s99, -1")
    a.e("s_cbranch_scc1 L_nopi")
    srd(a, 24, 8, SZ); srd(a, 28, 10, SZ); srd(a, 32, 12, 576*8)
    srd(a, 36, 16, WS_TOTAL)
    a.e(f"v_mov_b32 v212, {WS_E}")
    a.e("buffer_load_dwordx2 v[214:215], v212, s[36:39], 0 offen sc0 sc1")
    prep_issue(a, VD)
    a.label("L_nopi")
    a.e("s_barrier")
    a.e("s_cmp_eq_u32 s45, 7")
    a.e("s_cbranch_scc1 L_spare")
    a.e("s_cmp_ge_u32 s18, 4")
    a.e("s_cbranch_scc1 L_mma")
    n0 = st.n
    a.label("L_ld")
    a.e("s_setprio 3")
    a.e("v_lshrrev_b32 v4, 4, v0")
    a.e("v_lshlrev_b32 v6, 1, v4")
    a.e("v_and_b32 v7, 15, v0")
    a.e("v_xor_b32 v6, v6, v7")
    a.e("v_mul_u32_u24 v5, 3456, v4")
    a.e("v_lshl_add_u32 v2, v6, 4, v5")
    a.e("v_xor_b32 v6, 8, v6")
    a.e("v_lshl_add_u32 v3, v6, 4, v5")
    a.e("v_lshrrev_b32 v5, 3, v0")
    a.e("v_mul_u32_u24 v6, 2304, v5")
    a.e("v_lshrrev_b32 v5, 1, v5")
    a.e("v_and_b32 v7, 7, v0")
    a.e("v_xor_b32 v5, v5, v7")
    a.e("v_lshl_add_u32 v8, v5, 4, v6")
    a.e("v_xor_b32 v5, 4, v5")
    a.e("v_lshl_add_u32 v9, v5, 4, v6")
    a.e(f"v_add_u32 v9, {8*2304}, v9")
    a.e("s_lshr_b32 s46, s2, 3")
    a.e("s_mul_i32 s19, s46, 57")
    a.e("s_lshr_b32 s19, s19, 9")
    a.e("s_mul_i32 s19, s19, 9")
    a.e("s_sub_u32 s46, s46, s19")
    a.e(f"s_mul_i32 s19, s{RB}, {128*1152}")
    a.e(f"s_lshl_b32 s20, s{CT}, 8")
    a.e("s_add_u32 s48, s4, s19")
    a.e("s_addc_u32 s49, s5, 0")
    a.e(f"s_mov_b32 s50, {128*1152}")
    a.e("s_mov_b32 s51, 0x00020000")
    a.e("s_add_u32 s52, s6, s20")
    a.e("s_addc_u32 s53, s7, 0")
    a.e(f"s_sub_u32 s54, {576*3456}, s20")
    a.e("s_mov_b32 s55, 0x00020000")
    a.e("s_load_dwordx2 s[28:29], s[0:1], 72")
    a.e("v_and_b32 v13, 3, v0")
    a.e("v_bfe_u32 v14, v0, 3, 1")
    a.e("v_lshl_or_b32 v13, v14, 2, v13")
    a.e("v_xor_b32 v13, 4, v13")
    a.e("v_lshlrev_b32 v13, 5, v13")
    a.e("v_lshl_add_u32 v14, v0, 8, v13")
    a.e("v_lshlrev_b32 v15, 1, v0")
    a.e(f"v_mov_b32 v10, {L_CNT}")
    a.e("v_mov_b32 v11, 1")
    srd(a, 36, 16, WS_TOTAL)
    a.e("s_mov_b32 s58, s18")
    a.e("s_branch L_ld_go")
    a.label("L_ld_issue")
    a.e("s_mov_b64 exec, 1")
    a.e("ds_add_rtn_u32 v12, v10, v11 offset:28")
    a.e("s_mov_b64 exec, -1")
    a.e("s_waitcnt lgkmcnt(0)")
    a.e("v_readfirstlane_b32 s58, v12")
    a.e("s_add_u32 s58, s58, 4")
    a.e("s_cmp_gt_u32 s58, 8")
    a.e("s_cbranch_scc1 L_ld_done")
    a.e("s_lshl_b32 s19, s58, 2")
    a.e(f"s_add_u32 s19, s19, {L_CNT+FREE-16}")
    a.e("v_mov_b32 v12, s19")
    lds_spin(a, 12, 4)
    a.label("L_ld_go")
    a.e("s_add_u32 s59, s46, s58")
    a.e("s_sub_u32 s19, s59, 9")
    a.e("s_cmp_ge_u32 s59, 9")
    a.e("s_cselect_b32 s59, s19, s59")
    a.e("s_and_b32 s47, s58, 3")
    a.e("s_lshl_b32 s47, s47, 15")
    a.e(f"s_add_u32 s47, s47, {L_RING}")
    a.e(f"s_mul_i32 s19, s59, {64*3456}")
    a.e("s_lshl_b32 s20, s59, 7")
    a.e(f"v_mov_b32 v12, {L_CNT+24}")
    lds_spin(a, 12, "s58")
    for i in range(16):
        a.e(f"s_add_u32 m0, s47, {1024*i}")
        if i and i % 2 == 0: a.e(f"s_add_u32 s20, s20, {1152 if (i//2) % 2 else 31*1152}")
        else: a.e("s_nop 0")
        a.e(f"buffer_load_dwordx4 v{3 if (i//2) % 2 else 2}, s[52:55], s19 offen lds")
        a.e(f"s_add_u32 m0, s47, {16384+1024*i}")
        a.e(f"s_add_u32 s19, s19, {4*3456}")
        a.e(f"buffer_load_dwordx4 v{8 + i % 2}, s[48:51], s20 offen lds")
    lds_add(a, 10, 24)
    a.e(f"s_cmp_lg_u32 s{CT}, 13")
    a.e("s_cbranch_scc1 L_ld_ng")
    a.e("s_mov_b32 s30, 1152")
    a.e("s_mov_b32 s31, 0x00020000")
    a.e("s_lshl_b32 s20, s59, 7")
    a.e("buffer_load_ushort v16, v15, s[28:31], s20 offen")
    a.e("v_add_u32 v17, s47, v14")
    a.e("s_waitcnt vmcnt(0)")
    a.e("ds_write_b16 v17, v16")
    a.label("L_ld_ng")
    a.e("s_lshl_b32 s19, s58, 2")
    a.e("v_add_u32 v12, s19, v10")
    a.e("s_waitcnt vmcnt(0)")
    a.e("s_mov_b64 exec, 1")
    a.e(f"ds_add_u32 v12, v11 offset:{FULL}")
    a.e("s_mov_b64 exec, -1")
    a.e("s_branch L_ld_issue")
    a.label("L_ld_done")
    a.e("s_setprio 0")
    st("b8")
    a.e("s_cmp_ge_u32 s18, 2")
    a.e("s_cbranch_scc1 L_aux2")
    a.e("s_branch L_cvwait")
    a.label("L_aux2")
    a.reset_counters()
    a.e(f"v_mov_b32 v20, {L_CNT+196}")
    lds_spin(a, 20, "0x80000000")
    tag_from_lds(a, 20)
    a.e("s_and_b32 s46, s18, 1")
    a.e(f"v_mov_b32 v4, {L_CNT+12}")
    lds_spin(a, 4, 4)
    a.e("s_add_u32 s56, s3, s46")
    a.e("s_lshl_b32 s20, s56, 12")
    srd(a, 48, 14, SZ)
    a.e("v_lshlrev_b32 v4, 4, v0")
    KX = 128
    for i in range(4): a.vmem(f"buffer_load_dwordx4 {v(KX+4*i,4)}, v4, s[48:51], s20 offen offset:{1024*i}", "K")
    a.e("v_mov_b32 v3, 1")
    st("m0")
    convu_wait(a)
    st("m2")
    a.e(f"s_mul_i32 s41, s46, {4*CV_USZ}")
    convu_issue(a, 56, 41, [0, 1, 2, 3], "U")
    kshift(a, KX)
    a.e("s_lshl_b32 s21, s46, 2")
    a.e(f"s_add_u32 s21, s21, {L_CNT+FREE+20}")
    a.e("v_mov_b32 v4, s21")
    lds_spin(a, 4, 4)
    st("m5")
    a.e("s_lshl_b32 s41, s46, 15")
    a.e(f"s_add_u32 s41, s41, {L_CVK}")
    kwrite(a, KX)
    st("m6")
    a.wait_vm(None)
    st("m7"); st("m8")
    a.e("s_lshl_b32 s21, s46, 2")
    a.e(f"s_add_u32 s21, s21, {L_CNT+16}")
    a.e("v_mov_b32 v4, s21")
    a.lds("ds_write_b32 v4, v3")
    a.e("s_setprio 0")
    a.label("L_cvwait")
    st("cvk")
    a.e(f"s_lshl_b32 s21, s{ROLE}, 2")
    a.e(f"s_add_u32 s21, s21, {L_CNT+16}")
    a.e("v_mov_b32 v1, s21")
    lds_spin(a, 1, 1)
    tag_from_lds(a, 8)
    st("f1")
    a.e("s_branch L_conv")
    a.label("L_mma")
    a.reset_counters()
    st.n = n0; st.names = st.names[:n0]
    a.e("s_setprio 1")
    srd(a, 36, 16, WS_TOTAL)
    a.e("s_cmp_eq_u32 s99, -1")
    a.e("s_cbranch_scc1 L_mnp")
    a.e("s_waitcnt vmcnt(0)")
    st("p0")
    tag_make(a)
    prep_compute(a, VD, 64)
    st("p1")
    a.label("L_mnp")
    a.reset_counters()
    WA, XA, ACC, FR = 2, 10, 16, 80
    a.e("v_lshrrev_b32 v12, 4, v0")
    a.e("v_bfe_u32 v13, v0, 2, 2")
    a.e("v_and_b32 v14, 1, v12")
    a.e("v_lshl_or_b32 v14, v14, 2, v13")
    a.e("s_and_b32 s22, s18, 1")
    a.e("s_lshl_b32 s22, s22, 2")
    a.e("v_xor_b32 v14, s22, v14")
    a.e("v_lshl_add_u32 v15, v12, 3, v13")
    a.e("v_lshlrev_b32 v15, 8, v15")
    a.e("v_lshl_add_u32 v15, v14, 5, v15")
    a.e("v_and_b32 v14, 3, v0")
    a.e("v_lshl_add_u32 v15, v14, 3, v15")
    a.e(f"v_add_u32 v{WA}, {L_RING}, v15")
    for mt in range(1, 4): a.e(f"v_xor_b32 v{WA+mt}, {32*mt}, v{WA}")
    for mt in range(4): a.e(f"v_add_u32 v{WA+4+mt}, 0x10000, v{WA+mt}")
    SO = 1
    a.e("v_and_b32 v13, 15, v0")
    a.e(f"s_lshl_b32 s21, s{CT}, 5")
    a.e("s_lshl_b32 s22, s22, 2")
    a.e("s_add_u32 s56, s21, s22")
    a.e("v_add_u32 v14, s56, v12")
    a.e("v_lshlrev_b32 v14, 14, v14")
    a.e("s_bfe_u32 s23, s18, 0x10001")
    a.e(f"s_lshl_b32 s21, s{RB}, 10")
    a.e("s_lshl_b32 s22, s23, 9")
    a.e("s_add_u32 s21, s21, s22")
    a.e("v_lshl_add_u32 v14, v13, 4, v14")
    a.e(f"v_add_u32 v{SO}, s21, v14")
    a.e("v_lshrrev_b32 v14, 1, v13")
    a.e("v_xor_b32 v14, v14, v12")
    a.e("s_lshl_b32 s21, s23, 13")
    a.e(f"s_add_u32 s21, s21, {L_RING+16384}")
    a.e("v_lshlrev_b32 v15, 7, v13")
    a.e("v_lshl_add_u32 v15, v14, 4, v15")
    a.e(f"v_add_u32 v{XA}, s21, v15")
    a.e(f"v_xor_b32 v{XA+1}, 64, v{XA}")
    a.e(f"v_add_u32 v{XA+2}, 0x10000, v{XA}")
    a.e(f"v_add_u32 v{XA+3}, 0x10000, v{XA+1}")
    a.e("s_waitcnt lgkmcnt(0)"); a.lgkm = []
    srd(a, 48, 16, QKV_BYTES)
    srd(a, 36, 16, WS_TOTAL)
    def reads(c):
        f = FR + 64 * (c % 2); slot = c % 4; hb = slot // 2; ob = 32768 * (slot % 2)
        out = []
        for kh in range(2):
            for i in range(4):
                for hf in range(2):
                    out.append(lambda kh=kh, mt=i, hf=hf: a.lds(f"ds_read_b64_tr_b16 {v(f+16*kh+4*mt+2*hf,2)}, v{WA+4*hb+mt} offset:{ob+(32*kh+4*hf)*256}", f"F{c}_{kh}"))
                out.append(lambda kh=kh, nt=i: a.lds(f"ds_read_b128 {v(f+32+16*kh+4*nt,4)}, v{XA+2*hb+kh} offset:{ob+2048*nt}", f"F{c}_{kh}"))
        return out
    a.e(f"v_mov_b32 v208, {L_CNT}")
    a.e("v_mov_b32 v209, 1")
    def poll_issue(c): a.lds(f"ds_read_b32 v210, v208 offset:{FULL+4*c}", f"poll{c}")
    def poll_check(c):
        a.wait_lds(f"poll{c}")
        d = a.newlabel("full")
        a.e("v_readfirstlane_b32 s22, v210")
        a.e("s_cmp_ge_u32 s22, 1")
        a.e(f"s_cbranch_scc1 {d}")
        a.e(f"v_add_u32 v210, {FULL+4*c}, v208")
        lds_spin(a, 210, 1)
        a.label(d)
        st(f"m{c}")
    poll_issue(0); poll_check(0)
    for r_ in reads(0): r_()
    a.wait_lds(None)
    lds_add(a, 208, FREE)
    poll_issue(1)
    for c in range(9):
        f = FR + 64 * (c % 2)
        fill = []
        if c + 1 < 9:
            poll_check(c + 1)
            rr = reads(c + 1)
            fill = [(lambda x=rr[2*i], y=rr[2*i+1]: (x(), y())) for i in range(12)] + [None] * 5
            def free_(c=c):
                a.wait_lds(None)
                if c + 1 < 7: lds_add(a, 208, FREE + 4*(c+1))
            fill += [free_] + [None] * 8
            if c + 2 < 9: fill += [lambda c=c: poll_issue(c + 2)]
        else:
            a.wait_lds(None)
        if c == 7: st("b8")
        if c == F1_AT:
            a.e("s_cmp_eq_u32 s99, -1")
            a.e("s_cbranch_scc1 L_nf1")
            a.e("s_waitcnt vmcnt(0)")
            a.e("s_mov_b64 exec, 1")
            a.e("ds_add_rtn_u32 v212, v208, v209 offset:12")
            a.e("s_mov_b64 exec, -1")
            a.e("s_waitcnt lgkmcnt(0)")
            a.e("v_readfirstlane_b32 s22, v212")
            a.e("s_cmp_lg_u32 s22, 3")
            a.e("s_cbranch_scc1 L_nf1")
            flag_write(a, 0, 212); a.vm.pop()
            a.label("L_nf1")
        for kh in range(2):
            for nt in range(4):
                for mt in range(4):
                    acc = v(ACC + (mt*4+nt)*4, 4)
                    first = (c == 0 and kh == 0)
                    a.e(f"v_mfma_f32_16x16x32_bf16 {acc}, {v(f+16*kh+4*mt,4)}, {v(f+32+16*kh+4*nt,4)}, {0 if first else acc}")
                    if fill:
                        x_ = fill.pop(0)
                        if x_: x_()
    a.e("s_cmp_lt_u32 s56, 432")
    a.e("s_cbranch_scc1 L_qkv")
    a.e("s_nop 7")
    G0 = 208
    for nt in range(4): rnd(a, G0+nt, ACC+4*nt)
    for nt in range(4): a.e(f"v_mul_f32 v{G0+nt}, {f32(-1.4426950408889634)}, v{G0+nt}")
    for nt in range(4): a.e(f"v_exp_f32 v{G0+nt}, v{G0+nt}")
    for nt in range(4): a.e(f"v_add_f32 v{G0+nt}, 1.0, v{G0+nt}")
    for nt in range(4): a.e(f"v_rcp_f32 v{G0+nt}, v{G0+nt}")
    for nt in range(4): rnd(a, G0+nt, G0+nt)
    a.e(f"v_and_b32 v2, 0x3fff, v{SO}")
    a.e("v_lshrrev_b32 v2, 1, v2")
    a.e(f"s_mov_b32 s19, {WS_G}")
    setexec(a, 0xffff)
    a.e(f"buffer_store_dwordx2 {v(G0,2)}, v2, s[36:39], s19 offen {SC}")
    a.e(f"buffer_store_dwordx2 {v(G0+2,2)}, v2, s[36:39], s19 offen offset:128 {SC}")
    a.e("s_mov_b64 exec, -1")
    a.e("s_branch L_mdone")
    a.label("L_qkv")
    a.e(f"s_mov_b32 s20, {f32(QSCALE)}")
    a.e("s_cmp_lt_u32 s56, 144")
    a.e("s_cselect_b32 s21, s20, 1.0")
    a.e("s_nop 3")
    for mt in range(4):
        for nt in range(4):
            ac = ACC + (mt*4+nt)*4
            for i in range(4): a.e(f"v_mul_f32 v{ac+i}, s21, v{ac+i}")
            t = FR + 64 + (mt*4+nt)*2
            a.e(f"v_cvt_pk_bf16_f32 v{t}, v{ac}, v{ac+1}")
            a.e(f"v_cvt_pk_bf16_f32 v{t+1}, v{ac+2}, v{ac+3}")
        a.e(f"s_mov_b32 s19, {mt*65536}")
        a.vmem(f"buffer_store_dwordx4 {v(FR+64+mt*8,4)}, v{SO}, s[48:51], s19 offen {SC}")
        a.vmem(f"buffer_store_dwordx4 {v(FR+64+mt*8+4,4)}, v{SO}, s[48:51], s19 offen offset:256 {SC}")
    a.label("L_mdone")
    a.e("s_setprio 0")
    a.e("s_waitcnt vmcnt(0)")
    a.e(f"v_mov_b32 v1, {L_CNT+8}")
    a.e("v_mov_b32 v2, 1")
    a.e("s_mov_b64 exec, 1")
    a.e("ds_add_rtn_u32 v2, v1, v2")
    a.e("s_mov_b64 exec, -1")
    a.e("s_waitcnt lgkmcnt(0)")
    a.e("v_readfirstlane_b32 s22, v2")
    a.e("s_cmp_lg_u32 s22, 3")
    a.e("s_cbranch_scc1 L_cvwait")
    flag_write(a, 1, 120); a.vm.pop()
    a.e("s_branch L_cvwait")
    a.label("L_spare")
    a.reset_counters()
    st.n = n0; st.names = st.names[:n0]
    a.e("s_and_b32 s46, s2, 31")
    a.e("s_and_b32 s58, s18, 3")
    a.e("s_lshr_b32 s59, s18, 2")
    a.e("s_lshl_b32 s3, s46, 2")
    a.e("s_add_u32 s3, s3, s59")
    a.e(f"s_mov_b32 s{ROUNDS}, 2")
    a.e(f"s_add_u32 s{ROLE}, s{ROLE}, 2")
    a.e("s_waitcnt lgkmcnt(0)"); a.lgkm = []
    srd(a, 36, 16, WS_TOTAL)
    srd(a, 48, 14, SZ)
    KS = 164
    a.e("s_lshl_b32 s19, s46, 2")
    a.e(f"s_add_u32 s19, s19, s{RHO}")
    a.e("s_lshl_b32 s19, s19, 12")
    a.e("v_lshlrev_b32 v2, 4, v0")
    for i in range(4): a.e(f"buffer_load_dwordx4 {v(KS+4*i,4)}, v2, s[48:51], s19 offen offset:{1024*i}")
    a.e("s_waitcnt vmcnt(4)")
    st("m1")
    tag_make(a)
    prep_compute(a, VD, 64)
    st("m6")
    a.e("v_lshlrev_b32 v2, 7, v0")
    a.e("s_lshl_b32 s19, s46, 3")
    a.e("s_add_u32 s19, s19, s18")
    a.e("s_mul_i32 s19, s19, 7168")
    a.e(f"s_add_u32 s19, s19, {128*4096}")
    setexec(a, (1 << 56) - 1)
    a.e("buffer_load_dword v210, v2, s[48:51], s19 offen")
    a.e("s_mov_b64 exec, -1")
    a.e("s_waitcnt vmcnt(1) lgkmcnt(0)"); a.reset_counters()
    a.e("s_barrier")
    st("b8")
    a.e("s_cmp_lg_u32 s18, 4")
    a.e("s_cbranch_scc1 L_spc")
    flag_write(a, 0, 8)
    a.label("L_spc")
    a.reset_counters()
    a.e(f"s_mov_b32 s100, s{CVK}")
    a.e(f"s_mov_b32 s101, s{CVU}")
    a.e("s_lshl_b32 s19, s59, 16")
    a.e(f"s_add_u32 s{CVK}, s{CVK}, s19")
    a.e(f"s_sub_u32 s{CVK}, s{CVK}, 32768")
    a.e(f"s_add_u32 s{CVU}, s{CVU}, {8*CV_USZ}")
    a.e("s_add_u32 s56, s3, 2")
    a.e("s_cmp_ge_u32 s18, 4")
    a.e("s_cbranch_scc1 L_spk")
    a.e("s_mul_i32 s41, s18, 3")
    a.e("s_sub_u32 s19, s18, 1")
    a.e("s_cmp_ge_u32 s18, 2")
    a.e("s_cselect_b32 s41, s19, s41")
    a.e("s_lshl_b32 s41, s41, 15")
    a.e(f"s_add_u32 s41, s41, {L_RING}")
    kshift(a, KS)
    kwrite(a, KS)
    a.label("L_spk")
    st("cvk")
    convu_wait(a)
    st("f1")
    convu_issue(a, 3, CVU, ['s', RHO], "U")
    convu_issue(a, 56, 101, ['s', RHO], "U2")
    a.e("s_waitcnt vmcnt(0) lgkmcnt(0)")
    a.e("s_barrier")
    a.label("L_conv")
    a.reset_counters()
    st("cv0")
    AF, ACC, BF = 16, 80, 112
    a.e("s_load_dwordx2 s[6:7], s[0:1], 64")
    a.e("s_lshl_b32 s20, s3, 12")
    a.e(f"s_mul_i32 s23, s{RHO}, {CV_USZ}")
    a.e(f"s_add_u32 s23, s23, s{CVU}")
    a.e("v_lshlrev_b32 v13, 4, v0")
    a.e(f"v_add_u32 v14, s{CVK}, v13")
    a.e("v_lshrrev_b32 v7, 4, v0")
    a.e("v_bfe_u32 v8, v0, 2, 2")
    a.e("v_and_b32 v9, 3, v0")
    a.e("v_lshlrev_b32 v10, 3, v7")
    a.e("v_add3_u32 v10, v10, v8, v9")
    a.e(f"v_lshl_add_u32 v10, v10, 3, s{CVK}")
    a.e("v_and_b32 v11, 15, v0")
    a.e("v_lshlrev_b32 v12, 4, v7")
    a.e("v_lshlrev_b32 v8, 3, v11")
    a.e("v_sub_u32 v12, v12, v8")
    a.e(f"v_add_u32 v12, {2*508-64*14}, v12")
    a.e("v_add_u32 v12, s23, v12")
    a.e("s_lshr_b32 s21, s3, 1")
    a.e("s_lshl_b32 s21, s21, 2")
    a.e("s_waitcnt lgkmcnt(0)")
    a.e("s_load_dword s24, s[6:7], s21")
    def rdA(kap):
        for hf in range(2):
            a.lds(f"ds_read_b64_tr_b16 {v(AF+4*kap+2*hf,2)}, v10 offset:{8+256*kap+32*hf}", f"A{kap}")
    lams = []
    lo, hi = -1, 14
    while lo <= hi:
        lams.append(hi); hi -= 1
        if lo <= hi: lams.append(lo); lo += 1
    def rdB(i):
        lam = lams[i]; b = BF + 4 * (i % 4)
        for hf in range(2):
            a.lds(f"ds_read_b64 {v(b+2*hf,2)}, v12 offset:{64*(14-lam)+8*hf}", f"B{i}")
    rdA(0); rdB(0); rdB(1)
    for kap in (1, 3, 5, 7): rdA(kap)
    restA = [9, 11, 13, 15, 2, 4, 6, 8, 10, 12, 14]
    seen = set()
    for i, lam in enumerate(lams):
        if i + 2 < len(lams): rdB(i + 2)
        a.wait_lds(f"B{i}")
        b = BF + 4 * (i % 4)
        for tau in range(8):
            kap = 2 * tau - lam
            if kap < 0 or kap > 15: continue
            assert kap not in restA
            a.wait_lds(f"A{kap}")
            w = v(ACC + 4*tau, 4)
            a.e(f"v_mfma_f32_16x16x32_bf16 {w}, {v(AF+4*kap,4)}, {v(b,4)}, {w if tau in seen else 0}")
            seen.add(tau)
            for _ in range(2 if i == 0 else 1):
                if restA: rdA(restA.pop(0))
    st("cv1")
    a.e(f"s_lshl_b32 s21, s{RHO}, 13")
    a.e(f"s_sub_u32 s22, s{CVK}, s21")
    a.e(f"s_lshl_b32 s21, s{RHO}, 11")
    a.e("s_add_u32 s22, s22, s21")
    a.e("v_add_u32 v15, s22, v13")
    for i in range(8): a.e(f"v_mov_b32 v{AF+32+i}, 0")
    for tau in range(8):
        a.lds(f"ds_write_b128 v14, {v(ACC+4*tau,4)} offset:{1024*tau}")
    a.e("v_lshl_add_u32 v13, v11, 2, v7")
    a.e("v_lshlrev_b32 v13, 1, v13")
    a.e(f"v_sub_u32 v13, {2*511-128}, v13")
    a.e(f"s_lshl_b32 s21, s{RHO}, 8")
    a.e(f"s_sub_u32 s21, s{CVU}, s21")
    a.e("v_add_u32 v13, s21, v13")
    a.e("v_lshlrev_b32 v14, 5, v11")
    a.e("v_lshl_add_u32 v14, v7, 3, v14")
    a.e(f"s_lshl_b32 s21, s{RHO}, 10")
    a.e("s_add_u32 s21, s21, s20")
    a.e(f"s_add_u32 s21, s21, {WS_Z}")
    st("cv2")
    group_barrier(a, 1)
    st("cv3")
    a.e("s_lshl_b32 s25, s24, 16")
    a.e("s_and_b32 s24, s24, 0xffff0000")
    a.e("s_bitcmp1_b32 s3, 0")
    a.e("s_cselect_b32 s24, s24, s25")
    for j in range(2):
        for sw in range(4):
            a.lds(f"ds_read_b128 {v(AF+16*j+4*sw,4)}, v15 offset:{8192*sw+1024*j}", f"R{j}")
        for i in range(4):
            a.lds(f"ds_read_u16_d16_hi v{AF+32+4*j+i}, v13 offset:{CV_USZ*i+128*(1-j)}", f"R{j}")
    for j in range(2):
        a.wait_lds(f"R{j}")
        y = AF + 16*j; u = AF + 32 + 4*j
        for i in range(4): a.e(f"v_add_f32 v{y+i}, v{y+i}, v{y+4+i}")
        for i in range(4): a.e(f"v_add_f32 v{y+8+i}, v{y+8+i}, v{y+12+i}")
        for i in range(4): a.e(f"v_mul_f32 v{u+i}, s24, v{u+i}")
        for i in range(4): a.e(f"v_add_f32 v{y+i}, v{y+i}, v{y+8+i}")
        for i in range(4): rnd(a, u+i, u+i)
        for i in range(4): rnd(a, y+i, y+i)
        for i in range(4): a.e(f"v_add_f32 v{y+i}, v{y+i}, v{u+i}")
        a.e(f"v_cvt_pk_bf16_f32 v{y}, v{y}, v{y+1}")
        a.e(f"v_cvt_pk_bf16_f32 v{y+1}, v{y+2}, v{y+3}")
        a.vmem(f"buffer_store_dwordx2 {v(y,2)}, v14, s[36:39], s21 offen offset:{512*j} {SC}")
    a.e(f"s_sub_u32 s{ROUNDS}, s{ROUNDS}, 1")
    a.e(f"s_cmp_eq_u32 s{ROUNDS}, 0")
    a.e("s_cbranch_scc1 L_attn")
    if "E" not in OPT: group_barrier(a, 1)
    a.e("s_add_u32 s3, s3, 2")
    a.e(f"s_mov_b32 s{CVK}, s100")
    a.e(f"s_mov_b32 s{CVU}, s101")
    a.e("s_branch L_conv")
    a.label("L_attn")
    a.reset_counters()
    st("conv")
    a.e("s_and_b32 s22, s2, 7")
    a.e("s_lshl_b32 s22, s22, 1")
    a.e("s_bfe_u32 s19, s2, 0x10003")
    a.e("s_add_u32 s40, s22, s19")
    a.e("s_lshr_b32 s41, s2, 4")
    a.e("s_lshr_b32 s23, s18, 2")
    a.e("s_mul_i32 s24, s40, 9")
    for i in range(3):
        a.e(f"s_sub_i32 s{32+i}, s41, {2-i}")
        a.e(f"s_max_i32 s{32+i}, s{32+i}, 0")
    Q1, Q2 = 8, 12
    KB_ = [16, 22]; VB_ = [28, 36]; SS = [44, 60]; PP = [76, 84]; OA = 92; NM = 14
    a.e("s_cmp_ge_u32 s18, 4")
    a.e("s_cbranch_scc1 L_nostage")
    a.e("v_lshrrev_b32 v1, 3, v0")
    a.e("v_min_u32 v1, 2, v1")
    a.e("v_mul_u32_u24 v1, 144, v1")
    a.e("v_bfe_u32 v2, v0, 2, 1")
    a.e("v_lshl_add_u32 v1, v2, 3, v1")
    a.e("v_add_u32 v1, s24, v1")
    a.e("v_lshrrev_b32 v1, 5, v1")
    a.e("v_and_b32 v2, 3, v0")
    a.e("v_min_u32 v2, 2, v2")
    a.e("v_sub_u32 v2, s41, v2")
    a.e("v_max_i32 v2, 0, v2")
    a.e("v_cmp_lt_u32 vcc, 6, v1")
    a.e("v_subrev_u32 v3, 7, v1")
    a.e("v_lshrrev_b32 v4, 2, v2")
    a.e("v_cndmask_b32 v1, v1, v3, vcc")
    a.e("v_add_u32 v3, 4, v4")
    a.e("v_cndmask_b32 v4, v4, v3, vcc")
    a.e("v_and_b32 v2, 3, v2")
    a.e("v_lshl_add_u32 v1, v1, 2, v2")
    a.e("v_lshl_add_u32 v1, v1, 3, v4")
    for i in range(3): a.e(f"s_lshl_b32 s{32+i}, s{32+i}, 10")
    a.e("s_add_u32 s26, s24, s18")
    a.e("s_lshl_b32 s26, s26, 14")
    a.e(f"s_mul_i32 s27, s18, {PL}")
    a.e("s_lshl_b32 s28, s18, 10")
    a.e("s_add_u32 s29, s24, 8")
    a.e("s_lshl_b32 s29, s29, 14")
    combos = [(0, 2, L_Q, 1024), (1, 2, L_KP+2048, PL), (2, 2, L_VP+2048, PL), (1, 1, L_KP+1024, PL), (2, 1, L_VP+1024, PL), (1, 0, L_KP, PL), (2, 0, L_VP, PL)]
    for n in range(2):
        so, do = 48 + 2*n, 49 + 2*n
        for jj in range(4):
            ty, i, dst, stride = combos[min(4*n + jj, 6)]
            if jj == 0:
                a.e(f"s_add_u32 s{so}, s{32+i}, {ty*144*16384}")
                a.e(f"s_mov_b32 s{do}, {dst+8*stride}")
            else:
                a.e(f"s_add_u32 s19, s{32+i}, {ty*144*16384}")
                a.e(f"s_cmp_eq_u32 s18, {jj}")
                a.e(f"s_cselect_b32 s{so}, s19, s{so}")
                a.e(f"s_cselect_b32 s{do}, {dst+8*stride}, s{do}")
        a.e(f"s_add_u32 s{so}, s{so}, s29")
    a.e("s_cmp_lg_u32 s18, 0")
    a.e("s_cbranch_scc1 L_w2_o")
    flag_wait(a, 1, 1, 2, 2)
    a.e(f"v_mov_b32 v2, {L_CNT+36}")
    a.e("v_mov_b32 v3, 1")
    a.e("ds_write_b32 v2, v3")
    a.e("s_branch L_w2_j")
    a.label("L_w2_o")
    a.e(f"v_mov_b32 v2, {L_CNT+36}")
    lds_spin(a, 2, 1)
    a.label("L_w2_j")
    a.e(f"s_cmp_eq_u32 s{ROLE}, 0")
    a.e("s_cselect_b32 s19, 8, 4")
    a.e("s_cselect_b32 s20, 4, 8")
    a.e(f"s_add_u32 s19, s19, {L_CNT}")
    a.e("v_mov_b32 v1, s19")
    lds_spin(a, 1, "s20")
    a.e("v_lshlrev_b32 v2, 4, v0")
    for n, (ty, i, dst, stride) in enumerate(combos):
        for q in range(2):
            a.e(f"s_add_u32 m0, s{28 if stride == 1024 else 27}, {dst + 4*q*stride}")
            a.e(f"s_add_u32 s35, s26, s{32+i}")
            a.e(f"s_add_u32 s35, s35, {(ty*144+4*q)*16384}")
            a.vmem(f"buffer_load_dwordx4 v2, s[36:39], s35 offen {SC} lds", "S")
        if n in (2, 5):
            k_ = 0 if n == 2 else 1
            a.e(f"s_mov_b32 m0, s{49+2*k_}")
            a.e("s_nop 0")
            a.vmem(f"buffer_load_dwordx4 v2, s[36:39], s{48+2*k_} offen {SC} lds", "S")
    a.e("v_mov_b32 v5, 0x3f803f80")
    a.e("v_lshlrev_b32 v6, 2, v0")
    a.e("s_lshl_b32 s35, s18, 8")
    a.e("v_add_u32 v6, s35, v6")
    for i in range(3): a.lds(f"ds_write_b32 v6, v5 offset:{L_ONE+1024*i}")
    a.label("L_nostage")
    st("f2")
    a.e("v_and_b32 v1, 31, v0")
    a.e("v_lshrrev_b32 v15, 5, v0")
    a.e("s_lshl_b32 s46, s41, 2")
    a.e(f"s_add_u32 s46, s46, s{RHO}")
    a.e("v_lshlrev_b32 v3, 3, v1")
    a.e("s_mul_i32 s25, s23, 5")
    a.e(f"s_lshl_b32 s35, s{RHO}, 8")
    a.e("s_lshl_b32 s26, s25, 10")
    a.e("s_add_u32 s26, s26, s35")
    a.e(f"s_add_u32 s26, s26, {L_Q}")
    a.e("v_lshl_add_u32 v108, v15, 11, v3")
    a.e("v_add_u32 v108, s26, v108")
    a.e(f"s_add_u32 s26, s35, {L_Q+4096}")
    a.e("v_add_u32 v109, s26, v3")
    a.e(f"s_lshl_b32 s35, s{RHO}, 8")
    a.e(f"s_mul_i32 s25, s25, {PL}")
    a.e("s_add_u32 s26, s25, s35")
    a.e(f"s_add_u32 s26, s26, {L_KP}")
    a.e(f"v_mul_u32_u24 v4, {2*PL}, v15")
    a.e("v_add3_u32 v4, v4, v3, s26")
    a.e(f"v_mul_u32_u24 v5, {5*PL}, v15")
    a.e(f"s_add_u32 s26, s35, {L_KP+4*PL}")
    a.e("v_add3_u32 v3, v5, v3, s26")
    a.e("v_bfe_u32 v5, v0, 2, 2")
    a.e("v_lshl_add_u32 v5, v15, 2, v5")
    a.e("v_lshlrev_b32 v5, 3, v5")
    a.e("v_and_b32 v6, 3, v0")
    a.e(f"v_mul_u32_u24 v7, {PL}, v6")
    a.e(f"s_add_u32 s26, s25, {L_VP}")
    a.e("v_add_u32 v7, s26, v7")
    a.e(f"v_mov_b32 v2, {L_VP+4*PL}")
    m1 = lane_mask(lambda l: (l >> 4) & 1 and (l & 3) == 0); m2 = lane_mask(lambda l: (l >> 4) & 1 and (l & 3) != 0)
    a.e(f"s_mov_b32 s20, 0x{m1 & 0xffffffff:x}"); a.e("s_mov_b32 s21, s20")
    a.e("v_cndmask_b32 v7, v7, v2, s[20:21]")
    a.e(f"v_mov_b32 v2, {L_ONE}")
    a.e(f"s_mov_b32 s20, 0x{m2 & 0xffffffff:x}"); a.e("s_mov_b32 s21, s20")
    a.e("v_cndmask_b32 v7, v7, v2, s[20:21]")
    a.e("v_add3_u32 v5, v5, v7, s35")
    a.e("s_sub_i32 s27, 8, s46")
    a.e("s_max_i32 s27, s27, 0")
    a.e(f"v_mov_b32 v2, {NEGINF}")
    def mask_ops(S, diag):
        ops = []
        for ri in range(16):
            j, i = ri // 4, ri % 4
            md = lane_mask(lambda l: 8*j + 4*(l >> 5) + i <= (l & 31))
            def f(ri=ri, md=md):
                a.e(f"s_mov_b32 s20, 0x{md & 0xffffffff:x}")
                a.e(f"s_mov_b32 s21, 0x{md >> 32:x}")
                if diag: a.e(f"v_cndmask_b32 v{S+ri}, v2, 0, s[20:21]")
                else: a.e(f"v_cndmask_b32 v{S+ri}, 0, v2, s[20:21]")
            ops.append(f)
        return ops
    for f in mask_ops(SS[0], True): f()
    a.e("s_cmp_eq_u32 s23, 0")
    a.e("s_cselect_b32 s48, -1, 0")
    a.e("s_mov_b32 s49, 0")
    a.e("s_cselect_b32 s50, 0, -1")
    a.e("s_mov_b32 s51, 0")
    a.e("s_mov_b32 s42, 0")
    a.e("s_mov_b32 s43, -1")
    a.e("s_load_dwordx2 s[6:7], s[0:1], 16")
    a.e("s_min_u32 s19, s2, 251")
    a.e("s_mul_i32 s56, s19, 2341")
    a.e("s_lshr_b32 s56, s56, 16")
    a.e("s_lshl_b32 s57, s56, 7")
    a.e("v_lshrrev_b32 v110, 3, v0")
    a.e("v_and_b32 v111, 7, v0")
    a.e("v_lshrrev_b32 v112, 1, v110")
    a.e("v_lshlrev_b32 v112, 1, v112")
    a.e("v_xor_b32 v111, v111, v112")
    a.e("v_mul_u32_u24 v110, 1152, v110")
    a.e("v_lshl_add_u32 v110, v111, 4, v110")
    a.e("s_waitcnt vmcnt(0) lgkmcnt(0)"); a.reset_counters()
    a.e("s_barrier")
    st("staged")
    a.e("s_cmp_lg_u32 s18, 0")
    a.e("s_cbranch_scc1 L_nf3")
    flag_write(a, 2, 112); a.vm.pop()
    a.label("L_nf3")

    def rdK(t):
        buf = KB_[t % 2]
        return [lambda: a.lds(f"ds_read_b64 {v(buf,2)}, v4 offset:{256*t}", f"K{t}"),
                lambda: a.lds(f"ds_read_b64 {v(buf+2,2)}, v4 offset:{256*t+PL}", f"K{t}"),
                lambda: a.lds(f"ds_read_b64 {v(buf+4,2)}, v3 offset:{256*t}", f"K{t}")]
    def rdV(t):
        buf = VB_[t % 2]
        return [lambda i=i: a.lds(f"ds_read_b64_tr_b16 {v(buf+2*i,2)}, v5 offset:{256*t+64*i}", f"V{t}") for i in range(4)]
    def qk1(t):
        S = SS[t % 2]; buf = KB_[t % 2]
        a.e(f"v_mfma_f32_32x32x16_bf16 {v(S,16)}, {v(buf,4)}, {v(Q1,4)}, {v(S,16) if t in (0, 8) else 0}")
    def qk2(t):
        S = SS[t % 2]; buf = KB_[t % 2]
        a.e(f"v_mfma_f32_32x32x8_bf16 {v(S,16)}, {v(buf+4,2)}, {v(Q2,2)}, {v(S,16)}")
    def pv(t, h):
        a.e(f"v_mfma_f32_32x32x16_bf16 {v(OA,16)}, {v(VB_[t%2]+4*h,4)}, {v(PP[t%2]+4*h,4)}, {0 if (t == 8 and h == 0) else v(OA,16)}")
    def kill(t, pfx):
        l = f"{pfx}_k{t}"
        a.e(f"s_cmp_lg_u32 s27, {t+1}")
        a.e(f"s_cbranch_scc1 {l}")
        a.e("v_mov_b32 v6, 0xff7f")
        a.e(f"v_cndmask_b32 v{Q2}, v{Q2}, v6, s[42:43]")
        a.label(l)
    a.lds(f"ds_read_b64 {v(Q1,2)}, v108", "Q")
    a.lds(f"ds_read_b64 {v(Q1+2,2)}, v108 offset:1024", "Q")
    a.lds(f"ds_read_b64 {v(Q2,2)}, v109", "Q")
    for f in rdK(8) + rdK(7): f()
    a.e("s_add_u32 s28, s6, s57")
    a.e("s_addc_u32 s29, s7, 0")
    a.e(f"s_sub_u32 s30, {576*1152}, s57")
    a.e("s_mov_b32 s31, 0x00020000")
    a.e(f"s_mul_i32 s58, s18, {8*1152}")
    a.e("s_lshl_b32 s59, s18, 10")
    def wo_dma(j):
        a.e(f"s_add_u32 m0, s59, {L_WO + j*8192}")
        a.e("s_nop 0")
        a.vmem("buffer_load_dwordx4 v110, s[28:31], s58 offen lds", "WO")
        a.e(f"s_add_u32 s58, s58, {64*1152}")
    a.wait_lds("K8")
    a.e("s_barrier")
    a.e(f"v_cndmask_b32 v{Q2}, 0, v{Q2}, s[48:49]")
    a.e(f"v_cndmask_b32 v{Q2+1}, 0, v{Q2+1}, s[50:51]")
    KA = KB_[0]
    a.e(f"v_dot2_f32_bf16 v6, v{Q1}, v{KA}, 0")
    for i in range(1, 6): a.e(f"v_dot2_f32_bf16 v6, v{Q1+i}, v{KA+i}, v6")
    qk1(8)
    a.e("s_nop 2")
    a.e("v_mov_b32 v7, v6")
    a.e("s_nop 1")
    a.e("v_permlane32_swap_b32 v6, v7")
    a.e("s_nop 1")
    a.e("v_add_f32 v6, v6, v7")
    a.e("v_sub_f32 v6, 0, v6")
    a.e("v_cvt_pk_bf16_f32 v6, v6, 0")
    a.e(f"v_cndmask_b32 v{Q2}, v{Q2}, v6, s[42:43]")
    a.e("s_nop 1")

    def softmax_pass(sub, pfx):
        qk2(8)
        for f in rdV(8): f()
        kill(7, pfx)
        a.e("s_nop 3")
        for t in range(8, -1, -1):
            S = SS[t % 2]; P = PP[t % 2]
            valu = []
            for i in range(16):
                if sub: valu.append(lambda i=i: a.e(f"v_add_f32 v{S+i}, v{S+i}, v{NM}"))
                valu.append(lambda i=i: a.e(f"v_exp_f32 v{S+i}, v{S+i}"))
                if i % 2 == 1 and i >= 3:
                    valu.append(lambda i=i: a.e(f"v_cvt_pk_bf16_f32 v{P+(i-3)//2}, v{S+i-3}, v{S+i-2}"))
            valu.append(lambda: a.e("s_nop 0"))
            valu.append(lambda: a.e(f"v_cvt_pk_bf16_f32 v{P+7}, v{S+14}, v{S+15}"))
            q = len(valu) // 4
            def run(n):
                for _ in range(n):
                    if valu: valu.pop(0)()
            if t == 1:
                for f in mask_ops(SS[0], False): f()
                a.e("s_nop 1")
            if t > 0:
                a.wait_lds(f"K{t-1}")
                qk1(t - 1)
            else:
                a.e("s_nop 3")
            run(q)
            if t > 0: qk2(t - 1)
            if t > 1:
                for f in rdK(t - 2): f()
                kill(t - 2, pfx)
            run(q)
            if t < 8:
                a.wait_lds(f"V{t+1}")
                pv(t + 1, 0)
            run(q)
            if t < 8: pv(t + 1, 1)
            if t > 0:
                for f in rdV(t - 1): f()
            if not sub and t == 3 and "B" in OPT: a.e("s_setprio 0")
            if not sub:
                for j_ in {8: (0, 1), 7: (2, 3), 6: (4, 5), 5: (6, 7), 4: (8,)}.get(t, ()): wo_dma(j_)
            run(100)
        a.wait_lds(None)
        a.e("s_nop 0")
        pv(0, 0); pv(0, 1)
        a.e("s_nop 7")
        a.e("s_nop 3")

    if "B" in OPT:
        a.e("s_cmp_lt_u32 s18, 4")
        a.e("s_cbranch_scc1 L_np")
        a.e("s_setprio 1")
        a.label("L_np")
    softmax_pass(False, "sa")
    st("soft")
    a.e(f"v_mov_b32 v6, v{OA+12}")
    for i in range(12): a.e(f"v_fma_f32 v6, v{OA+i}, 0, v6")
    a.e(f"s_mov_b32 s20, {f32(2.0**-30)}")
    a.e(f"s_mov_b32 s21, {f32(2.0**100)}")
    a.e("v_cmp_nlt_f32 vcc, s20, v6")
    a.e("v_cmp_ngt_f32 s[44:45], s21, v6")
    a.e("s_or_b64 vcc, vcc, s[44:45]")
    a.e("s_cbranch_vccnz L_fallback")
    a.label("L_fin")
    P0 = PP[0]
    a.e(f"v_rcp_f32 v6, v{OA+12}")
    a.e("s_nop 0")
    for i in range(12): a.e(f"v_mul_f32 v{OA+i}, v{OA+i}, v6")
    for i in range(6): a.e(f"v_cvt_pk_bf16_f32 v{P0+i}, v{OA+2*i}, v{OA+2*i+1}")
    a.e("v_lshrrev_b32 v6, 4, v1")
    a.e("v_mul_u32_u24 v6, 18432, v6")
    a.e("v_and_b32 v7, 15, v1")
    a.e("v_lshl_add_u32 v6, v7, 4, v6")
    a.e("v_lshl_add_u32 v7, v15, 8, v6")
    a.e("s_mul_i32 s26, s46, 36864")
    a.e(f"s_add_u32 s26, s26, {WS_O}")
    a.e("s_lshl_b32 s19, s40, 1")
    a.e("s_add_u32 s19, s19, s23")
    a.e("s_lshl_b32 s20, s19, 9")
    a.e("s_add_u32 s20, s20, s26")
    a.vmem(f"buffer_store_dwordx4 {v(P0,4)}, v7, s[36:39], s20 offen {SC}")
    a.e("s_lshr_b32 s20, s19, 2")
    a.e("s_lshl_b32 s20, s20, 8")
    a.e("s_and_b32 s21, s19, 3")
    a.e("s_lshl_b32 s21, s21, 2")
    a.e("s_add_u32 s20, s20, s21")
    a.e("s_add_u32 s20, s20, s26")
    a.e("s_add_u32 s20, s20, 16384")
    a.e("s_cmp_eq_u32 s23, 0")
    a.e("s_cbranch_scc1 L_ev")
    a.e(f"v_mov_b32 v{P0+4}, v{P0+5}")
    a.label("L_ev")
    setexec(a, 0xffffffff)
    a.vmem(f"buffer_store_dword v{P0+4}, v6, s[36:39], s20 offen {SC}")
    a.e("s_mov_b64 exec, -1")
    a.e("s_load_dwordx2 s[4:5], s[0:1], 0")
    a.e("s_load_dwordx2 s[8:9], s[0:1], 80")
    a.e("s_mul_i32 s19, s56, 28")
    a.e("s_sub_u32 s19, s2, s19")
    a.e("s_mul_i32 s21, s19, 5")
    a.e("s_lshl_b32 s22, s19, 2")
    a.e("s_add_u32 s22, s22, 16")
    a.e("s_cmp_lt_u32 s19, 16")
    a.e("s_cselect_b32 s19, s21, s22")
    a.e("s_cselect_b32 s43, 5, 4")
    a.e("s_cmp_ge_u32 s2, 252")
    a.e("s_cselect_b32 s43, 0, s43")
    a.e("s_add_u32 s21, s19, s18")
    OF, ACC, WF = 16, 88, 104
    XE, GE = 136, 144
    a.e("s_min_u32 s21, s21, 127")
    a.e("v_and_b32 v2, 15, v0")
    a.e("v_lshrrev_b32 v3, 4, v0")
    a.e("s_lshl_b32 s40, s21, 4")
    a.e("v_add_u32 v4, s40, v2")
    a.e("v_mul_u32_u24 v5, 1152, v4")
    a.e("v_lshl_add_u32 v5, v3, 3, v5")
    a.e("s_waitcnt lgkmcnt(0)")
    srd(a, 24, 4, SZ)
    srd(a, 32, 8, SZ)
    a.e("s_lshl_b32 s19, s56, 6")
    a.e("v_add_u32 v6, s19, v0")
    a.e("v_lshrrev_b32 v7, 2, v6")
    a.e("v_add_u32 v7, 224, v7")
    a.e("v_subrev_u32 v8, 128, v6")
    a.e("v_lshrrev_b32 v8, 1, v8")
    a.e("v_cmp_gt_u32 vcc, 128, v6")
    a.e("s_lshr_b32 s19, s40, 9")
    a.e("s_bfe_u32 s20, s40, 0x20007")
    a.e("s_lshl_b32 s20, s20, 3")
    a.e("s_add_u32 s19, s19, s20")
    a.e("s_add_u32 s19, s19, 196")
    a.e("v_cndmask_b32 v6, v8, v7, vcc")
    a.e("v_mov_b32 v7, s19")
    a.e("s_mov_b32 s44, 0xaaaaaaaa")
    a.e("s_mov_b32 s45, 0xaaaaaaaa")
    a.e("v_cndmask_b32 v6, v6, v7, s[44:45]")
    a.e("v_lshlrev_b32 v7, 7, v6")
    a.e(f"s_mov_b32 s22, {WS_F + 16}")
    a.e("buffer_load_dwordx2 v[8:9], v7, s[36:39], s22 offen sc0 sc1")
    a.e(f"v_mov_b32 v10, {L_CNT+32}")
    a.e("v_mov_b32 v11, 1")
    a.e("s_waitcnt vmcnt(0)"); a.reset_counters()
    a.e("s_mov_b64 exec, 1")
    a.e("ds_add_rtn_u32 v11, v10, v11")
    a.e("s_mov_b64 exec, -1")
    a.e("s_waitcnt lgkmcnt(0)")
    a.e("v_readfirstlane_b32 s22, v11")
    a.e("s_cmp_lg_u32 s22, 7")
    a.e("s_cbranch_scc1 L_nf4")
    flag_write(a, 3, 12); a.vm.pop()
    a.label("L_nf4")
    st("ost")
    a.e("s_cmp_lt_u32 s18, s43")
    a.e("s_cbranch_scc1 L_g2")
    a.e("s_cmp_lg_u32 s2, 255")
    a.e("s_cbranch_scc1 L_end")
    a.e("s_cmp_lg_u32 s18, 0")
    a.e("s_cbranch_scc1 L_end")
    for q in range(4):
        a.e(f"v_add_u32 v6, {64*q}, v0")
        flag_wait(a, 3, 6, 8, 8)
    a.e(f"v_mov_b32 v6, {WS_E}")
    a.e(f"v_mov_b32 v8, s{TAG}")
    a.e(f"v_mov_b32 v9, s{TAG+1}")
    a.e("s_mov_b64 exec, 1")
    a.e("buffer_store_dwordx2 v[8:9], v6, s[36:39], 0 offen sc0 sc1")
    a.e("s_endpgm")
    a.label("L_g2")
    for mt in range(4):
        a.vmem(f"buffer_load_dwordx2 {v(XE+2*mt,2)}, v5, s[24:27], s57 offen offset:{32*mt}", "X")
    a.e(f"v_cmp_ne_u64 vcc, s[{TAG}:{TAG+1}], v[8:9]")
    a.e("s_cbranch_vccz L_f3ok")
    flag_wait(a, 2, 6, 8)
    a.label("L_f3ok")
    a.e("v_lshrrev_b32 v6, 1, v0")
    a.e("v_lshlrev_b32 v6, 12, v6")
    a.e("v_and_b32 v8, 1, v0")
    a.e("v_lshl_add_u32 v6, v8, 4, v6")
    a.e("s_lshl_b32 s45, s56, 18")
    a.e("s_lshl_b32 s46, s21, 5")
    a.e("s_add_u32 s45, s45, s46")
    a.e(f"s_add_u32 s45, s45, {WS_Z}")
    a.e("s_lshl_b32 s44, s18, 11")
    for q in range(2):
        a.e(f"s_add_u32 m0, s44, {q*1024}")
        a.e("s_nop 0")
        a.vmem(f"buffer_load_dwordx4 v6, s[36:39], s45 offen {SC} lds", "X")
        a.e(f"s_add_u32 s45, s45, {32*4096}")
    a.e("v_lshlrev_b32 v6, 2, v4")
    a.e(f"s_mov_b32 s45, {WS_G}")
    a.vmem(f"buffer_load_dword v{GE}, v6, s[36:39], s45 offen {SC}", "X")
    a.e("v_bfe_u32 v6, v0, 2, 2")
    a.e("v_and_b32 v11, 3, v0")
    a.e("v_lshrrev_b32 v8, 1, v3")
    a.e("v_mul_u32_u24 v8, 20, v8")
    a.e("v_and_b32 v9, 1, v3")
    a.e("v_lshl_add_u32 v8, v9, 2, v8")
    a.e("v_add_u32 v8, v8, v6")
    a.e("v_bfe_u32 v9, v8, 1, 2")
    a.e("v_lshlrev_b32 v8, 7, v8")
    a.e("v_lshl_add_u32 v8, v11, 3, v8")
    a.e(f"v_add_u32 v8, {L_WO}, v8")
    MA = 148
    for mt in range(4):
        a.e(f"v_xor_b32 v10, {mt}, v9")
        a.e(f"v_lshl_add_u32 v{MA+mt}, v10, 5, v8")
    a.e("v_mul_u32_u24 v8, 72, v3")
    a.e("v_add3_u32 v8, v8, v6, 16")
    a.e("v_bfe_u32 v9, v8, 1, 2")
    a.e("v_lshlrev_b32 v8, 7, v8")
    a.e("v_lshl_add_u32 v8, v11, 3, v8")
    a.e(f"v_add_u32 v8, {L_WO}, v8")
    TA_ = 152
    for mt in range(4):
        a.e(f"v_xor_b32 v10, {mt}, v9")
        a.e(f"v_lshl_add_u32 v{TA_+mt}, v10, 5, v8")
    a.e("v_lshl_add_u32 v8, v3, 2, v6")
    a.e("v_lshlrev_b32 v8, 5, v8")
    a.e("v_lshl_add_u32 v8, v11, 3, v8")
    a.e("v_add_u32 v8, s44, v8")
    BP, ZE, T = 156, 172, 180
    a.wait_vm(None)
    for mt in range(4):
        a.lds(f"ds_read_b64_tr_b16 {v(ZE+2*mt,2)}, v8 offset:{512*mt}", "Z")
    a.e(f"v_sub_f32 v9, 1.0, v{GE}")
    rnd(a, 9, 9)
    a.e("s_mov_b32 s42, 0xffff0000")
    a.wait_lds("Z")
    for mt in range(4):
        B = BP + 4*mt
        for i in range(4):
            op = "v_lshlrev_b32 v%d, 16, v%d" if i % 2 == 0 else "v_and_b32 v%d, s42, v%d"
            a.e(op % (B+i, XE+2*mt+i//2))
            a.e(op % (T+i, ZE+2*mt+i//2))
        for i in range(4): a.e(f"v_mul_f32 v{B+i}, v{B+i}, v{T+i}")
        for i in range(4): rnd(a, B+i, B+i)
        for i in range(4): a.e(f"v_mul_f32 v{B+i}, v{B+i}, v9")
        for i in range(4): rnd(a, B+i, B+i)
    def rd(ks):
        b = WF + 16 * (ks % 2)
        for mt in range(4):
            for hf in range(2):
                if ks < 16:
                    kk = ks if ks < 12 else ks - 12
                    ar = MA + (mt ^ (2 * (ks & 1))); off = (36*kk + 8*hf) * 128
                else:
                    ar = TA_ + (mt ^ (2 * hf)); off = (288*(ks-16) + 36*hf) * 128
                a.lds(f"ds_read_b64_tr_b16 {v(b+4*mt+2*hf,2)}, v{ar} offset:{off}", f"F{ks}")
    a.e(f"v_mov_b32 v10, {L_CNT+32}")
    lds_spin(a, 10, 8)
    rd(0)
    a.e("s_lshr_b32 s19, s21, 3")
    a.e("s_lshl_b32 s19, s19, 4")
    a.e("v_add_u32 v6, s19, v2")
    a.e("s_add_u32 s19, s21, s43")
    a.e("s_sub_u32 s19, s19, 1")
    a.e("s_lshr_b32 s19, s19, 3")
    a.e("s_lshl_b32 s19, s19, 4")
    a.e("v_add_u32 v7, s19, v2")
    a.e("v_cndmask_b32 v6, v6, v7, s[44:45]") if False else None
    a.e("s_mov_b32 s46, 0")
    a.e("s_mov_b32 s47, -1")
    a.e("v_cndmask_b32 v6, v6, v7, s[46:47]")
    a.e("s_cmp_lg_u32 s18, 0")
    a.e("s_cbranch_scc1 L_w4_o")
    flag_wait(a, 3, 6, 10, 2)
    a.e(f"v_mov_b32 v10, {L_CNT+40}")
    a.e("v_mov_b32 v11, 1")
    a.e("ds_write_b32 v10, v11")
    a.e("s_branch L_w4_j")
    a.label("L_w4_o")
    a.e(f"v_mov_b32 v10, {L_CNT+40}")
    lds_spin(a, 10, 1)
    a.label("L_w4_j")
    a.lgkm.append(None)
    st("f4")
    a.e("v_lshlrev_b32 v7, 4, v0")
    a.e("s_mul_i32 s22, s21, 18432")
    a.e(f"s_add_u32 s22, s22, {WS_O}")
    for ks in range(18):
        a.vmem(f"buffer_load_dwordx4 {v(OF+4*ks,4)}, v7, s[36:39], s22 offen offset:{1024*(ks%4)} {SC}", f"O{ks}")
        if ks % 4 == 3: a.e("s_add_u32 s22, s22, 4096")
    for ks in range(18):
        if ks + 1 == 12:
            for mt in range(4): a.e(f"v_add_u32 v{MA+mt}, {12*36*128}, v{MA+mt}")
        if ks + 1 < 18: rd(ks + 1)
        a.wait_vm(f"O{ks}")
        a.wait_lds(f"F{ks}")
        b = WF + 16 * (ks % 2)
        for mt in range(4):
            acc = v(ACC + 4*mt, 4)
            a.e(f"v_mfma_f32_16x16x32_bf16 {acc}, {v(b+4*mt,4)}, {v(OF+4*ks,4)}, {acc if ks else 0}")
    a.e("s_nop 4")
    for mt in range(4):
        ac = ACC + 4*mt
        for i in range(4): rnd(a, ac+i, ac+i)
        for i in range(4): a.e(f"v_mul_f32 v{ac+i}, v{ac+i}, v{GE}")
        for i in range(4): rnd(a, ac+i, ac+i)
        for i in range(4): a.e(f"v_add_f32 v{ac+i}, v{ac+i}, v{BP+4*mt+i}")
        a.e(f"v_cvt_pk_bf16_f32 v{ac}, v{ac}, v{ac+1}")
        a.e(f"v_cvt_pk_bf16_f32 v{ac+1}, v{ac+2}, v{ac+3}")
        a.vmem(f"buffer_store_dwordx2 {v(ac,2)}, v5, s[32:35], s57 offen offset:{32*mt}")
    st("end"); st.real("rt1"); st.flush(16, 18, 0)
    a.label("L_end")
    a.e("s_endpgm")
    a.label("L_fallback")
    a.reset_counters()
    a.e(f"v_cndmask_b32 v{Q2}, v{Q2}, 0, s[42:43]")
    a.e(f"v_mov_b32 v{NM}, {NEGINF}")
    for t in range(8, -1, -1):
        for f in rdK(t): f()
        if t in (0, 8):
            for f in mask_ops(SS[0], t == 8): f()
        if t < 8: kill(t, "sm")
        a.wait_lds(None)
        a.e("s_nop 1")
        qk1(t); qk2(t)
        a.e("s_nop 7"); a.e("s_nop 3")
        S = SS[t % 2]
        for i in range(8): a.e(f"v_max3_f32 v{NM}, v{S+2*i}, v{S+2*i+1}, v{NM}")
    for f in rdK(8) + rdK(7): f()
    a.e(f"v_cndmask_b32 v{Q2}, v{Q2}, 0, s[42:43]")
    a.e(f"v_mov_b32 v7, v{NM}")
    a.e("s_nop 1")
    a.e(f"v_permlane32_swap_b32 v{NM}, v7")
    a.e("s_nop 1")
    a.e(f"v_max_f32 v{NM}, v{NM}, v7")
    a.e(f"v_sub_f32 v{NM}, 0, v{NM}")
    for f in mask_ops(SS[0], True): f()
    a.wait_lds("K8")
    a.e("s_nop 1")
    qk1(8)
    softmax_pass(True, "sb")
    a.e("s_branch L_fin")
    a.label("L_codeend")

def main(path):
    a = Asm()
    hdr = open(f"cdna_kernels/{NAME}.s.ref").read().split("\n")
    head = [l for l in hdr if l.startswith(";") and "@launch" not in l and "Override" not in l and "grid=ceil" not in l]
    for l in head: a.raw(l)
    a.raw(f"; @launch grid=(256,1,1) block=(512,1,1) lds={LDS_TOTAL}")
    a.raw('.amdgcn_target "amdgcn-amd-amdhsa--gfx950"')
    a.raw(".text")
    gen(a)
    a.raw('.section .rodata,"a"')
    a.raw(kernel_desc(NAME + "_kernel", 216))
    open(path, "w").write(a.text())

if __name__ == "__main__":
    if len(sys.argv) > 2 and sys.argv[2] == "stamps":
        asmlib.STAMP_ON = True
        asmlib.STAMP_FILTER = list((sys.argv[3] if len(sys.argv) > 3 else "b8,cvk,f1,cv1,cv3,conv,f2,staged,soft,ost,f4,end").split(","))
    main(sys.argv[1] if len(sys.argv) > 1 else f"fused.s")
```

```python
import sys, struct
from asmlib import *
import asmlib

NAME = "gated_mix__sliding_block__ssm_conv_h3__prompt"
SZ = 2048 * 576 * 2
WS_QKV = 0
QKV_BYTES = 432 * 16384
WS_U = QKV_BYTES
WS_O = WS_U + SZ
WS_Z = WS_O + SZ
WS_G = WS_Z + SZ
WS_F = WS_G + 8192
WS_E = WS_F + 32768
WS_TOTAL = WS_E + 128
def f32(x): return "0x%08x" % struct.unpack("<I", struct.pack("<f", x))[0]
QSCALE = 18 ** -0.5 * 1.4426950408889634
NEGINF = "0xff800000"
SC = "sc1"
SPIN_MAX = 40000

def rnd(a, dst, src):
    a.e(f"v_cvt_pk_bf16_f32 v{dst}, 0, v{src}")
def lane_mask(fn):
    m = 0
    for l in range(64):
        if fn(l): m |= 1 << l
    return m

L_U = 0
UP = 288
L_PK = 9728
L_CNT = 22016
L_RING = 24576
L_CVK = L_RING + 32768
import os
PL = int(os.environ.get('PL', '3104'))
L_KP = L_RING
L_ONE = L_KP + 9 * PL
L_WO = (L_ONE + PL + 127) // 128 * 128
L_VP = 163840 - 9 * PL
LDS_TOTAL = 163840
assert L_WO + 73728 <= L_VP
CV_USZ = 1216

TAG = 88
ROLE, CVK, CVU, GCNT, ROUNDS, RHO, GTGT, PBASE = 90, 91, 92, 93, 94, 95, 96, 98

def prep_task(a, T_s):
    a.e(f"s_mul_i32 s40, s{T_s}, 3641")
    a.e("s_lshr_b32 s40, s40, 16")
    a.e("s_mul_i32 s41, s40, 18")
    a.e(f"s_sub_u32 s41, s{T_s}, s41")

PB = 200
def prep_setup(a):
    a.e(f"v_lshrrev_b32 v{PB+8}, 2, v0")
    a.e(f"v_and_b32 v{PB+9}, 3, v0")
    a.e(f"v_mul_u32_u24 v{PB}, 1152, v{PB+8}")
    a.e(f"v_lshlrev_b32 v{PB+1}, 1, v{PB}")
    a.e(f"v_lshl_add_u32 v{PB}, v{PB+9}, 4, v{PB}")
    a.e(f"v_lshl_add_u32 v{PB+1}, v{PB+9}, 4, v{PB+1}")
    a.e(f"v_lshlrev_b32 v{PB+2}, 4, v0")

def prep_issue(a, R):
    a.e(f"s_mul_i32 s22, s40, {32*1152}")
    a.e("s_lshl_b32 s23, s41, 6")
    a.e("s_add_u32 s22, s22, s23")
    a.e(f"v_add_u32 v{PB+3}, s22, v{PB}")
    a.e(f"v_subrev_u32 v{PB+3}, {3*1152}, v{PB+3}")
    for i in range(2):
        a.e(f"s_add_u32 m0, s{PBASE}, {256+1024*i}")
        a.e(f"s_add_u32 s23, s22, {16*1152*i}")
        a.e(f"buffer_load_dwordx4 v{PB}, s[24:27], s23 offen lds")
    a.e(f"buffer_load_dwordx4 {v(R,4)}, v{PB+1}, s[28:31], s22 offen")
    a.e(f"buffer_load_dwordx4 {v(R+4,4)}, v{PB+1}, s[28:31], s22 offen offset:1152")
    a.e(f"s_add_u32 m0, s{PBASE}, 64")
    setexec(a, 0xfff)
    a.e(f"buffer_load_dwordx4 v{PB+3}, s[24:27], 0 offen lds")
    a.e(f"s_add_u32 m0, s{PBASE}, 2304")
    a.e("s_mov_b32 exec_lo, 0xffff")
    a.e("s_lshl_b32 s23, s41, 8")
    a.e(f"buffer_load_dwordx4 v{PB+2}, s[32:35], s23 offen lds")
    a.e("s_mov_b64 exec, -1")

def prep_compute(a, VR, T):
    KR, SW = T + 52, T + 72
    UK, UW, UV, TA, OUT = T, T+20, T+36, T+44, T+88
    A0, A1, A2, A3, A4 = PB, PB+1, PB+2, PB+3, PB+4
    a.e(f"v_lshlrev_b32 v{A0}, 7, v{PB+8}")
    a.e(f"v_lshl_add_u32 v{A0}, v{PB+9}, 4, v{A0}")
    a.e(f"v_add_u32 v{A0}, s{PBASE}, v{A0}")
    a.e(f"v_lshl_add_u32 v{A1}, v{PB+9}, 6, s{PBASE}")
    for j in range(5): a.lds(f"ds_read_b128 {v(KR+4*j,4)}, v{A0} offset:{64+64*j}", "PK")
    for i in range(4): a.lds(f"ds_read_b128 {v(SW+4*i,4)}, v{A1} offset:{2304+16*i}", "PW")
    a.e("s_mov_b32 s42, 0xffff0000")
    a.e(f"v_lshrrev_b32 v{A2}, 3, v0")
    a.e(f"v_mul_u32_u24 v{A2}, {UP}, v{A2}")
    a.e(f"v_and_b32 v{A3}, 1, v{PB+8}")
    a.e(f"v_lshl_add_u32 v{A2}, v{A3}, 2, v{A2}")
    a.e(f"v_add_u32 v{A2}, v{A2}, v{A1}")
    a.e(f"v_add_u32 v{A2}, 2560, v{A2}")
    a.e(f"v_bfe_u32 v{A3}, v0, 2, 2")
    a.e(f"v_sub_u32 v{A3}, 3, v{A3}")
    a.e(f"v_mul_u32_u24 v{A3}, {UP}, v{A3}")
    a.e(f"v_lshrrev_b32 v{A4}, 4, v0")
    a.e(f"v_lshl_add_u32 v{A3}, v{A4}, 5, v{A3}")
    a.e(f"v_lshl_add_u32 v{A3}, v{PB+9}, 3, v{A3}")
    a.e(f"v_add_u32 v{A3}, s{PBASE}, v{A3}")
    a.e(f"v_lshlrev_b32 v{A4}, 12, v{PB+8}")
    a.e(f"v_lshl_add_u32 v{A4}, v{PB+9}, 4, v{A4}")
    a.e("s_lshl_b32 s22, s41, 17")
    a.e("s_lshl_b32 s23, s40, 6")
    a.e("s_add_u32 s22, s22, s23")
    a.e(f"s_add_u32 s22, s22, {WS_U}")
    a.e(f"s_add_u32 s23, s22, {16*4096}")
    for half in range(2):
        for r in range(2):
            for qq in range(2):
                a.e(f"v_lshlrev_b32 v{UV+4*r+2*qq}, 16, v{VR+4*r+2*half+qq}")
                a.e(f"v_and_b32 v{UV+4*r+2*qq+1}, s42, v{VR+4*r+2*half+qq}")
        a.wait_lds("PK")
        for r in range(5):
            for qq in range(2):
                a.e(f"v_lshlrev_b32 v{UK+4*r+2*qq}, 16, v{KR+4*r+2*half+qq}")
                a.e(f"v_and_b32 v{UK+4*r+2*qq+1}, s42, v{KR+4*r+2*half+qq}")
        a.wait_lds("PW")
        for c in range(4):
            for t in range(2):
                src = SW + (4*half+c)*2 + t
                a.e(f"v_lshlrev_b32 v{UW+4*c+2*t}, 16, v{src}")
                a.e(f"v_and_b32 v{UW+4*c+2*t+1}, s42, v{src}")
        RC = [(r, c) for r in range(2) for c in range(4)]
        for r, c in RC: a.e(f"v_mul_f32 v{TA+4*r+c}, v{UK+4*r+c}, v{UW+4*c+3}")
        for t in (1, 2, 3):
            for r, c in RC: a.e(f"v_fmac_f32 v{TA+4*r+c}, v{UK+4*(r+t)+c}, v{UW+4*c+3-t}")
        for r, c in RC: rnd(a, TA+4*r+c, TA+4*r+c)
        for r, c in RC: a.e(f"v_mul_f32 v{TA+4*r+c}, v{TA+4*r+c}, v{UV+4*r+c}")
        for c in range(4):
            a.e(f"v_cvt_pk_bf16_f32 v{OUT+4*half+c}, v{TA+c}, v{TA+4+c}")
        for c in range(4*half, 4*half+4, 2):
            a.lds(f"ds_write2_b32 v{A2}, v{OUT+c}, v{OUT+c+1} offset0:{2*c} offset1:{2*c+2}")
    for d in range(2):
        a.lds(f"ds_read_b64_tr_b16 {v(T+4*d,2)}, v{A3} offset:{2560+4*UP+128*d}", f"PT{d}")
        a.lds(f"ds_read_b64_tr_b16 {v(T+4*d+2,2)}, v{A3} offset:{2560+128*d}", f"PT{d}")
    for d in range(2):
        a.wait_lds(f"PT{d}")
        a.e(f"buffer_store_dwordx4 {v(T+4*d,4)}, v{A4}, s[36:39], s{22+d} offen {SC}")

def tag_make(a):
    a.e(f"v_readfirstlane_b32 s{TAG}, v214")
    a.e(f"v_readfirstlane_b32 s{TAG+1}, v215")
    a.e(f"v_mov_b32 v212, {L_CNT+192}")
    a.e(f"s_add_u32 s{TAG}, s{TAG}, 1")
    a.e(f"s_addc_u32 s{TAG+1}, s{TAG+1}, 0")
    a.e(f"s_or_b32 s{TAG+1}, s{TAG+1}, 0x80000000")
    a.e(f"v_mov_b32 v214, s{TAG}")
    a.e(f"v_mov_b32 v215, s{TAG+1}")
    a.lds("ds_write_b64 v212, v[214:215]")

def tag_from_lds(a, T):
    a.e(f"v_mov_b32 v{T}, {L_CNT+192}")
    a.lds(f"ds_read_b64 {v(T+2,2)}, v{T}", "TG")
    a.wait_lds("TG")
    a.e(f"v_readfirstlane_b32 s{TAG}, v{T+2}")
    a.e(f"v_readfirstlane_b32 s{TAG+1}, v{T+3}")

def flag_write(a, stage, T):
    a.e("s_lshl_b32 s22, s2, 7")
    a.e(f"s_add_u32 s22, s22, {WS_F + 8*stage}")
    a.e(f"v_mov_b32 v{T}, s22")
    a.e(f"v_mov_b32 v{T+2}, s{TAG}")
    a.e(f"v_mov_b32 v{T+3}, s{TAG+1}")
    a.e("s_mov_b64 exec, 1")
    a.vmem(f"buffer_store_dwordx2 {v(T+2,2)}, v{T}, s[36:39], 0 offen sc0 sc1", "FL")
    a.e("s_mov_b64 exec, -1")

def flag_wait(a, stage, W, T, sleep=2):
    a.e(f"v_lshlrev_b32 v{W}, 7, v{W}")
    a.e(f"s_mov_b32 s22, {WS_F + 8*stage}")
    l = a.newlabel("fspin"); d = a.newlabel("fdone")
    a.e(f"s_mov_b32 s97, {SPIN_MAX}")
    a.label(l)
    a.e(f"buffer_load_dwordx2 {v(T,2)}, v{W}, s[36:39], s22 offen sc0 sc1")
    a.e("s_waitcnt vmcnt(0)"); a.vm = []
    a.e(f"v_cmp_ne_u64 vcc, s[{TAG}:{TAG+1}], {v(T,2)}")
    a.e(f"s_cbranch_vccz {d}")
    a.e(f"s_sleep {sleep}")
    a.e("s_sub_u32 s97, s97, 1")
    a.e(f"s_cbranch_scc0 {l}")
    a.label(d)

def group_barrier(a, T):
    a.e(f"v_mov_b32 v{T}, s{GCNT}")
    a.e(f"v_mov_b32 v{T+1}, 1")
    a.e(f"s_add_u32 s{GTGT}, s{GTGT}, 4")
    a.wait_lds(None)
    a.e("s_mov_b64 exec, 1")
    a.e(f"ds_add_u32 v{T}, v{T+1}")
    a.e("s_mov_b64 exec, -1")
    lds_spin(a, T, f"s{GTGT}")

def lds_spin(a, T, target, fast=False):
    l = a.newlabel("gb"); d = a.newlabel("gbd")
    a.e(f"s_mov_b32 s97, {SPIN_MAX*8}")
    a.label(l)
    a.e(f"ds_read_b32 v{T+1}, v{T}")
    a.e("s_sub_u32 s97, s97, 1")
    a.e(f"s_cbranch_scc1 {d}")
    a.e("s_waitcnt lgkmcnt(0)")
    a.e(f"v_readfirstlane_b32 s22, v{T+1}")
    a.e(f"s_cmp_ge_u32 s22, {target}")
    a.e(f"s_cbranch_scc1 {d}")
    if not fast: a.e("s_sleep 1")
    a.e(f"s_branch {l}")
    a.label(d)
    a.e("s_waitcnt lgkmcnt(0)")

L_Q = 10240

def convk_issue(a, CH_s, RH, R, tag):
    a.e(f"s_lshl_b32 s20, s{CH_s}, 12")
    a.e("s_add_u32 s24, s14, s20")
    a.e("s_addc_u32 s25, s15, 0")
    a.e("s_mov_b32 s26, 4096")
    a.e("s_mov_b32 s27, 0x00020000")
    a.e(f"s_add_u32 s21, s{RH}, 1")
    a.e("s_lshr_b32 s21, s21, 1")
    a.e("s_lshl_b32 s21, s21, 2")
    a.e("v_lshlrev_b32 v4, 4, v0")
    a.e("v_subrev_u32 v4, s21, v4")
    a.e("v_add_u32 v5, 1024, v4")
    a.e("v_add_u32 v6, 16, v4")
    a.vmem(f"buffer_load_dwordx4 {v(R,4)}, v4, s[24:27], 0 offen", tag)
    for i in range(3): a.vmem(f"buffer_load_dwordx4 {v(R+6+6*i,4)}, v5, s[24:27], 0 offen offset:{1024*i}", tag)
    for i in range(4): a.vmem(f"buffer_load_dword v{R+6*i+4}, v6, s[24:27], 0 offen offset:{1024*i}", tag)
    a.e("v_lshlrev_b32 v4, 1, v0")
    a.e(f"s_lshl_b32 s21, s{RH}, 1")
    a.e("v_subrev_u32 v4, s21, v4")
    a.e("v_subrev_u32 v4, 32, v4")
    a.vmem(f"buffer_load_ushort v{R+24}, v4, s[24:27], 0 offen", tag)

def convk_write(a, RH, KD, koff, R, tag):
    a.e(f"s_and_b32 s21, s{RH}, 1")
    a.e("s_lshl_b32 s21, s21, 4")
    a.e(f"v_lshl_add_u32 v4, v0, 4, s{KD}")
    a.e(f"v_lshl_add_u32 v5, v0, 1, s{KD}")
    a.wait_vm(tag)
    for i in range(4):
        for j in range(4):
            a.e(f"v_alignbit_b32 v{R+6*i+j}, v{R+6*i+j+1}, v{R+6*i+j}, s21")
        a.lds(f"ds_write_b128 v4, {v(R+6*i,4)} offset:{koff+32+1024*i}")
    setexec(a, 0xffffff)
    a.lds(f"ds_write_b16 v5, v{R+24} offset:{koff}")
    a.e("s_mov_b64 exec, -1")

def convu_wait(a):
    a.e("s_lshr_b32 s21, s3, 5")
    a.e("v_mul_u32_u24 v8, 18, v0")
    a.e("v_add_u32 v8, s21, v8")
    a.e("v_and_b32 v9, 31, v8")
    a.e("v_add_u32 v9, 224, v9")
    a.e("v_cmp_gt_u32 vcc, 256, v8")
    a.e("v_subrev_u32 v8, 256, v8")
    a.e("v_lshrrev_b32 v8, 2, v8")
    a.e("v_cndmask_b32 v8, v8, v9, vcc")
    flag_wait(a, 0, 8, 10, 6)

def convu_issue(a, CH_s, UD, rhos, tag):
    a.e("v_sub_u32 v4, 63, v0")
    a.e("v_lshlrev_b32 v4, 6, v4")
    a.e(f"s_lshl_b32 s21, s{CH_s}, 12")
    a.e(f"s_add_u32 s21, s21, {WS_U}")
    a.e(f"s_mov_b32 s23, s{UD}")
    if rhos[0] == 's':
        a.e(f"s_lshl_b32 s20, s{rhos[1]}, 4")
        a.e("s_add_u32 s21, s21, s20")
        a.e(f"s_mul_i32 s20, s{rhos[1]}, {CV_USZ}")
        a.e("s_add_u32 s23, s23, s20")
        rhos = [0]
    a.e("v_lshl_add_u32 v5, v0, 1, s23")
    a.e("v_mov_b32 v6, 0")
    for r in rhos:
        a.e(f"s_add_u32 m0, s23, {CV_USZ*r}")
        a.lds(f"ds_write_b16 v5, v6 offset:{1024+CV_USZ*r}")
        a.vmem(f"buffer_load_dwordx4 v4, s[36:39], s21 offen {SC} lds", tag)
        a.e("s_add_u32 s21, s21, 16")

def kshift(a, KX):
    for i in range(4):
        X = KX + 4*i; R1, R2, R3 = 64+12*i, 68+12*i, 72+12*i
        a.e("v_mov_b32 v6, 0"); a.e("v_mov_b32 v7, 0")
        if i:
            a.e(f"v_readlane_b32 s20, v{X-2}, 63")
            a.e(f"v_readlane_b32 s21, v{X-1}, 63")
            a.e("s_nop 1")
            a.e("v_mov_b32 v6, s20"); a.e("v_mov_b32 v7, s21")
        a.e("s_nop 1")
        a.e(f"v_mov_b32_dpp v6, v{X+2} wave_shr:1 row_mask:0xf bank_mask:0xf")
        a.e(f"v_mov_b32_dpp v7, v{X+3} wave_shr:1 row_mask:0xf bank_mask:0xf")
        a.e(f"v_alignbit_b32 v{R1}, v{X}, v7, 16")
        for j in range(1, 4): a.e(f"v_alignbit_b32 v{R1+j}, v{X+j}, v{X+j-1}, 16")
        a.e(f"v_mov_b32 v{R2}, v7")
        for j in range(1, 4): a.e(f"v_mov_b32 v{R2+j}, v{X+j-1}")
        a.e(f"v_alignbit_b32 v{R3}, v7, v6, 16")
        for j in range(1, 4): a.e(f"v_mov_b32 v{R3+j}, v{R1+j-1}")

def kwrite(a, KX):
    a.e("v_lshl_add_u32 v4, v0, 4, s41")
    for i in range(4):
        for (r, R_) in ((0, KX+4*i), (1, 64+12*i), (2, 68+12*i), (3, 72+12*i)):
            a.lds(f"ds_write_b128 v4, {v(R_,4)} offset:{8192*r+32+1024*i}")
    a.e("v_mov_b32 v6, 0"); a.e("v_mov_b32 v7, 0")
    a.e("v_lshl_add_u32 v4, v0, 3, s41")
    setexec(a, 0xf)
    for r in range(4): a.lds(f"ds_write_b64 v4, v[6:7] offset:{8192*r}")
    a.e("s_mov_b64 exec, -1")

def lds_add(a, T, off):
    a.e("s_mov_b64 exec, 1")
    a.lds(f"ds_add_u32 v{T}, v{T+1} offset:{off}")
    a.e("s_mov_b64 exec, -1")
PW2 = 4864
VD = 180
FULL, FREE = 64, 100
import os
OPT = os.environ.get('OPT', 'E')
ROTX = tuple(int(x) for x in os.environ['ROTX'].split(',')) if 'ROTX' in os.environ else None
TOK_AT = int(os.environ.get('TOK', '15'))
SCHED = int(os.environ.get('SCHED', '0'))
F1_AT = int(os.environ.get('F1AT', '1'))

def code_touch(a, K, lbl):
    a.e("s_getpc_b64 s[20:21]")
    a.label(lbl)
    a.e(f"s_add_u32 s20, s20, L_conv-{lbl}")
    a.e("s_addc_u32 s21, s21, 0")
    a.e("s_mov_b32 s22, L_fallback-L_conv")
    a.e("s_mov_b32 s23, 0x00020000")
    a.e("v_lshlrev_b32 v2, 7, v0")
    a.e("s_movk_i32 s19, 0x2000")
    a.e("buffer_load_dword v197, v2, s[20:23], 0 offen")
    a.e("buffer_load_dword v198, v2, s[20:23], s19 offen")

def gen(a):
    K = NAME + "_kernel"
    kernel_head(a, K)
    a.e("s_cmp_ge_u32 s2, 256")
    a.e("s_cbranch_scc1 L_end")
    st = NStamps(a); st.real("rt0"); st("t0")
    a.e("s_load_dwordx4 s[4:7], s[0:1], 0")
    a.e("s_load_dwordx4 s[8:11], s[0:1], 32")
    a.e("s_load_dwordx4 s[12:15], s[0:1], 48")
    a.e("s_load_dwordx2 s[16:17], s[0:1], 96")
    a.e("v_lshrrev_b32 v1, 6, v0")
    a.e("v_and_b32 v0, 63, v0")
    a.e("v_readfirstlane_b32 s18, v1")
    if "R" in OPT:
        a.e("s_cmp_lg_u32 s18, 3")
        a.e("s_cbranch_scc1 L_nct0")
        a.e("s_getpc_b64 s[20:21]")
        a.label("L_pc0")
        a.e("s_mov_b32 s22, L_conv-L_pc0")
        a.e("s_mov_b32 s23, 0x00020000")
        a.e("v_lshlrev_b32 v2, 7, v0")
        a.e("s_movk_i32 s19, 0x2000")
        a.e("buffer_load_dword v197, v2, s[20:23], 0 offen")
        a.e("buffer_load_dword v198, v2, s[20:23], s19 offen")
        a.label("L_nct0")
    a.e("v_lshlrev_b32 v12, 2, v0")
    a.e("v_mov_b32 v13, 0")
    a.e(f"ds_write_b32 v12, v13 offset:{L_CNT}")
    a.e("s_and_b32 s43, s2, 3")
    a.e("s_lshl_b32 s43, s43, 2")
    a.e("s_bfe_u32 s19, s2, 0x20003")
    a.e("s_add_u32 s43, s43, s19")
    a.e("s_bfe_u32 s44, s2, 0x10002")
    a.e("s_mul_i32 s44, s44, 7")
    a.e("s_lshr_b32 s45, s2, 5")
    a.e("s_add_u32 s44, s44, s45")
    RB, CT = 43, 44
    a.e(f"s_and_b32 s{RHO}, s18, 3")
    a.e("s_lshr_b32 s19, s18, 2")
    a.e(f"s_lshl_b32 s{CVK}, s18, 13")
    a.e(f"s_add_u32 s{CVK}, s{CVK}, {L_CVK}")
    a.e(f"s_mul_i32 s{CVU}, s19, {4*CV_USZ}")
    a.e(f"s_lshl_b32 s{GCNT}, s19, 2")
    a.e(f"s_add_u32 s{GCNT}, s{GCNT}, {L_CNT}")
    a.e(f"s_mov_b32 s{GTGT}, 0")
    a.e(f"s_mov_b32 s{ROLE}, s19")
    a.e(f"s_mov_b32 s{ROUNDS}, 1")
    a.e("s_lshl_b32 s3, s2, 1")
    a.e("s_add_u32 s3, s3, s19")
    a.e("s_add_u32 s3, s3, 128")
    a.e("s_lshl_b32 s19, s18, 5")
    a.e("s_and_b32 s20, s2, 31")
    a.e("s_add_u32 s19, s19, s20")
    a.e("s_lshl_b32 s20, s2, 2")
    a.e("s_add_u32 s20, s20, s18")
    a.e("s_add_u32 s20, s20, 252")
    a.e("s_cmp_ge_u32 s18, 4")
    a.e("s_cselect_b32 s20, s20, -1")
    a.e(f"s_mul_i32 s21, s{RHO}, {PW2}")
    a.e(f"s_mul_i32 s{PBASE}, s18, {PW2}")
    a.e(f"s_add_u32 s{PBASE}, s{PBASE}, {L_RING}")
    a.e("s_cmp_eq_u32 s45, 7")
    a.e("s_cselect_b32 s99, s19, s20")
    a.e(f"s_cselect_b32 s{PBASE}, s{PBASE}, s21")
    prep_setup(a)
    prep_task(a, 99)
    a.e("s_waitcnt lgkmcnt(0)")
    a.e("s_cmp_eq_u32 s99, -1")
    a.e("s_cbranch_scc1 L_nopi")
    srd(a, 24, 8, SZ); srd(a, 28, 10, SZ); srd(a, 32, 12, 576*8)
    srd(a, 36, 16, WS_TOTAL)
    a.e(f"v_mov_b32 v212, {WS_E}")
    a.e("buffer_load_dwordx2 v[214:215], v212, s[36:39], 0 offen sc0 sc1")
    prep_issue(a, VD)
    a.label("L_nopi")
    a.e("s_barrier")
    a.e("s_cmp_eq_u32 s45, 7")
    a.e("s_cbranch_scc1 L_spare")
    a.e("s_cmp_ge_u32 s18, 4")
    a.e("s_cbranch_scc1 L_mma")
    n0 = st.n
    a.label("L_ld")
    a.e("s_setprio 3")
    a.e("v_lshrrev_b32 v4, 4, v0")
    a.e("v_lshlrev_b32 v6, 1, v4")
    a.e("v_and_b32 v7, 15, v0")
    a.e("v_xor_b32 v6, v6, v7")
    a.e("v_mul_u32_u24 v5, 3456, v4")
    a.e("v_lshl_add_u32 v2, v6, 4, v5")
    a.e("v_xor_b32 v6, 8, v6")
    a.e("v_lshl_add_u32 v3, v6, 4, v5")
    a.e("v_lshrrev_b32 v5, 3, v0")
    a.e("v_mul_u32_u24 v6, 2304, v5")
    a.e("v_lshrrev_b32 v5, 1, v5")
    a.e("v_and_b32 v7, 7, v0")
    a.e("v_xor_b32 v5, v5, v7")
    a.e("v_lshl_add_u32 v8, v5, 4, v6")
    a.e("v_xor_b32 v5, 4, v5")
    a.e("v_lshl_add_u32 v9, v5, 4, v6")
    a.e(f"v_add_u32 v9, {8*2304}, v9")
    a.e("s_lshr_b32 s46, s2, 3")
    if ROTX:
        ra, rb_, rc = ROTX
        a.e("s_and_b32 s19, s2, 3")
        a.e(f"s_mul_i32 s19, s19, {ra}")
        a.e("s_bfe_u32 s20, s2, 0x10002")
        a.e(f"s_mul_i32 s20, s20, {rb_}")
        a.e("s_add_u32 s19, s19, s20")
        a.e("s_bfe_u32 s20, s2, 0x20003")
        a.e(f"s_mul_i32 s20, s20, {rc}")
        a.e("s_add_u32 s19, s19, s20")
        a.e("s_add_u32 s46, s46, s19")
    a.e("s_mul_i32 s19, s46, 57")
    a.e("s_lshr_b32 s19, s19, 9")
    a.e("s_mul_i32 s19, s19, 9")
    a.e("s_sub_u32 s46, s46, s19")
    a.e(f"s_mul_i32 s19, s{RB}, {128*1152}")
    a.e(f"s_lshl_b32 s20, s{CT}, 8")
    a.e("s_add_u32 s48, s4, s19")
    a.e("s_addc_u32 s49, s5, 0")
    a.e(f"s_mov_b32 s50, {128*1152}")
    a.e("s_mov_b32 s51, 0x00020000")
    a.e("s_add_u32 s52, s6, s20")
    a.e("s_addc_u32 s53, s7, 0")
    a.e(f"s_sub_u32 s54, {576*3456}, s20")
    a.e("s_mov_b32 s55, 0x00020000")
    a.e("s_load_dwordx2 s[28:29], s[0:1], 72")
    a.e("v_and_b32 v13, 3, v0")
    a.e("v_bfe_u32 v14, v0, 3, 1")
    a.e("v_lshl_or_b32 v13, v14, 2, v13")
    a.e("v_xor_b32 v13, 4, v13")
    a.e("v_lshlrev_b32 v13, 5, v13")
    a.e("v_lshl_add_u32 v14, v0, 8, v13")
    a.e("v_lshlrev_b32 v15, 1, v0")
    a.e(f"v_mov_b32 v10, {L_CNT}")
    a.e("v_mov_b32 v11, 1")
    srd(a, 36, 16, WS_TOTAL)
    a.e("s_mov_b32 s58, s18")
    a.e("s_branch L_ld_go")
    a.label("L_ld_issue")
    a.e("s_mov_b64 exec, 1")
    a.e("ds_add_rtn_u32 v12, v10, v11 offset:28")
    a.e("s_mov_b64 exec, -1")
    a.e("s_waitcnt lgkmcnt(0)")
    a.e("v_readfirstlane_b32 s58, v12")
    a.e("s_add_u32 s58, s58, 4")
    a.e("s_cmp_gt_u32 s58, 8")
    a.e("s_cbranch_scc1 L_ld_done")
    a.e("s_lshl_b32 s19, s58, 2")
    a.e(f"s_add_u32 s19, s19, {L_CNT+FREE-16}")
    a.e("v_mov_b32 v12, s19")
    lds_spin(a, 12, 4, "S" in OPT)
    a.label("L_ld_go")
    a.e("s_add_u32 s59, s46, s58")
    a.e("s_sub_u32 s19, s59, 9")
    a.e("s_cmp_ge_u32 s59, 9")
    a.e("s_cselect_b32 s59, s19, s59")
    a.e("s_and_b32 s47, s58, 3")
    a.e("s_lshl_b32 s47, s47, 15")
    a.e(f"s_add_u32 s47, s47, {L_RING}")
    a.e(f"s_mul_i32 s19, s59, {64*3456}")
    a.e("s_lshl_b32 s20, s59, 7")
    a.e(f"v_mov_b32 v12, {L_CNT+24}")
    lds_spin(a, 12, "s58", "S" in OPT)
    for i in range(16):
        a.e(f"s_add_u32 m0, s47, {1024*i}")
        if i and i % 2 == 0: a.e(f"s_add_u32 s20, s20, {1152 if (i//2) % 2 else 31*1152}")
        else: a.e("s_nop 0")
        a.e(f"buffer_load_dwordx4 v{3 if (i//2) % 2 else 2}, s[52:55], s19 offen lds")
        a.e(f"s_add_u32 m0, s47, {16384+1024*i}")
        a.e(f"s_add_u32 s19, s19, {4*3456}")
        a.e(f"buffer_load_dwordx4 v{8 + i % 2}, s[48:51], s20 offen lds")
        if i == TOK_AT: lds_add(a, 10, 24)
    a.e(f"s_cmp_lg_u32 s{CT}, 13")
    a.e("s_cbranch_scc1 L_ld_ng")
    a.e("s_mov_b32 s30, 1152")
    a.e("s_mov_b32 s31, 0x00020000")
    a.e("s_lshl_b32 s20, s59, 7")
    a.e("buffer_load_ushort v16, v15, s[28:31], s20 offen")
    a.e("v_add_u32 v17, s47, v14")
    a.e("s_waitcnt vmcnt(0)")
    a.e("ds_write_b16 v17, v16")
    a.label("L_ld_ng")
    a.e("s_lshl_b32 s19, s58, 2")
    a.e("v_add_u32 v12, s19, v10")
    a.e("s_waitcnt vmcnt(0)")
    a.e("s_mov_b64 exec, 1")
    a.e(f"ds_add_u32 v12, v11 offset:{FULL}")
    a.e("s_mov_b64 exec, -1")
    a.e("s_branch L_ld_issue")
    a.label("L_ld_done")
    a.e("s_setprio 0")
    st("b8")
    a.e("s_cmp_ge_u32 s18, 2")
    a.e("s_cbranch_scc1 L_aux2")
    if "Q" in OPT:
        a.e("s_cmp_lg_u32 s18, 0")
        a.e("s_cbranch_scc1 L_cvwait")
        code_touch(a, K, "L_pc2")
    a.e("s_branch L_cvwait")
    a.label("L_aux2")
    a.reset_counters()
    a.e(f"v_mov_b32 v20, {L_CNT+196}")
    lds_spin(a, 20, "0x80000000")
    tag_from_lds(a, 20)
    a.e("s_and_b32 s46, s18, 1")
    a.e(f"v_mov_b32 v4, {L_CNT+12}")
    lds_spin(a, 4, 4)
    a.e("s_add_u32 s56, s3, s46")
    a.e("s_lshl_b32 s20, s56, 12")
    srd(a, 48, 14, SZ)
    a.e("v_lshlrev_b32 v4, 4, v0")
    KX = 128
    for i in range(4): a.vmem(f"buffer_load_dwordx4 {v(KX+4*i,4)}, v4, s[48:51], s20 offen offset:{1024*i}", "K")
    a.e("v_mov_b32 v3, 1")
    st("m0")
    convu_wait(a)
    st("m2")
    a.e(f"s_mul_i32 s41, s46, {4*CV_USZ}")
    convu_issue(a, 56, 41, [0, 1, 2, 3], "U")
    kshift(a, KX)
    a.e("s_lshl_b32 s21, s46, 2")
    a.e(f"s_add_u32 s21, s21, {L_CNT+FREE+20}")
    a.e("v_mov_b32 v4, s21")
    lds_spin(a, 4, 4)
    st("m5")
    a.e("s_lshl_b32 s41, s46, 15")
    a.e(f"s_add_u32 s41, s41, {L_CVK}")
    kwrite(a, KX)
    st("m6")
    a.wait_vm(None)
    st("m7"); st("m8")
    a.e("s_lshl_b32 s21, s46, 2")
    a.e(f"s_add_u32 s21, s21, {L_CNT+16}")
    a.e("v_mov_b32 v4, s21")
    a.lds("ds_write_b32 v4, v3")
    a.e("s_setprio 0")
    a.label("L_cvwait")
    st("cvk")
    a.e(f"s_lshl_b32 s21, s{ROLE}, 2")
    a.e(f"s_add_u32 s21, s21, {L_CNT+16}")
    a.e("v_mov_b32 v1, s21")
    lds_spin(a, 1, 1)
    tag_from_lds(a, 8)
    st("f1")
    a.e("s_branch L_conv")
    a.label("L_mma")
    a.reset_counters()
    st.n = n0; st.names = st.names[:n0]
    a.e("s_setprio 1")
    srd(a, 36, 16, WS_TOTAL)
    a.e("s_cmp_eq_u32 s99, -1")
    a.e("s_cbranch_scc1 L_mnp")
    a.e("s_waitcnt vmcnt(0)")
    st("p0")
    tag_make(a)
    prep_compute(a, VD, 64)
    st("p1")
    a.label("L_mnp")
    a.reset_counters()
    WA, XA, ACC, FR = 2, 10, 16, 80
    a.e("v_lshrrev_b32 v12, 4, v0")
    a.e("v_bfe_u32 v13, v0, 2, 2")
    a.e("v_and_b32 v14, 1, v12")
    a.e("v_lshl_or_b32 v14, v14, 2, v13")
    a.e("s_and_b32 s22, s18, 1")
    a.e("s_lshl_b32 s22, s22, 2")
    a.e("v_xor_b32 v14, s22, v14")
    a.e("v_lshl_add_u32 v15, v12, 3, v13")
    a.e("v_lshlrev_b32 v15, 8, v15")
    a.e("v_lshl_add_u32 v15, v14, 5, v15")
    a.e("v_and_b32 v14, 3, v0")
    a.e("v_lshl_add_u32 v15, v14, 3, v15")
    a.e(f"v_add_u32 v{WA}, {L_RING}, v15")
    for mt in range(1, 4): a.e(f"v_xor_b32 v{WA+mt}, {32*mt}, v{WA}")
    for mt in range(4): a.e(f"v_add_u32 v{WA+4+mt}, 0x10000, v{WA+mt}")
    SO = 1
    a.e("v_and_b32 v13, 15, v0")
    a.e(f"s_lshl_b32 s21, s{CT}, 5")
    a.e("s_lshl_b32 s22, s22, 2")
    a.e("s_add_u32 s56, s21, s22")
    a.e("v_add_u32 v14, s56, v12")
    a.e("v_lshlrev_b32 v14, 14, v14")
    a.e("s_bfe_u32 s23, s18, 0x10001")
    a.e(f"s_lshl_b32 s21, s{RB}, 10")
    a.e("s_lshl_b32 s22, s23, 9")
    a.e("s_add_u32 s21, s21, s22")
    a.e("v_lshl_add_u32 v14, v13, 4, v14")
    a.e(f"v_add_u32 v{SO}, s21, v14")
    a.e("v_lshrrev_b32 v14, 1, v13")
    a.e("v_xor_b32 v14, v14, v12")
    a.e("s_lshl_b32 s21, s23, 13")
    a.e(f"s_add_u32 s21, s21, {L_RING+16384}")
    a.e("v_lshlrev_b32 v15, 7, v13")
    a.e("v_lshl_add_u32 v15, v14, 4, v15")
    a.e(f"v_add_u32 v{XA}, s21, v15")
    a.e(f"v_xor_b32 v{XA+1}, 64, v{XA}")
    a.e(f"v_add_u32 v{XA+2}, 0x10000, v{XA}")
    a.e(f"v_add_u32 v{XA+3}, 0x10000, v{XA+1}")
    a.e("s_waitcnt lgkmcnt(0)"); a.lgkm = []
    srd(a, 48, 16, QKV_BYTES)
    srd(a, 36, 16, WS_TOTAL)
    def reads(c):
        f = FR + 64 * (c % 2); slot = c % 4; hb = slot // 2; ob = 32768 * (slot % 2)
        out = []
        for kh in range(2):
            for i in range(4):
                for hf in range(2):
                    out.append(lambda kh=kh, mt=i, hf=hf: a.lds(f"ds_read_b64_tr_b16 {v(f+16*kh+4*mt+2*hf,2)}, v{WA+4*hb+mt} offset:{ob+(32*kh+4*hf)*256}", f"F{c}_{kh}"))
                out.append(lambda kh=kh, nt=i: a.lds(f"ds_read_b128 {v(f+32+16*kh+4*nt,4)}, v{XA+2*hb+kh} offset:{ob+2048*nt}", f"F{c}_{kh}"))
        return out
    a.e(f"v_mov_b32 v208, {L_CNT}")
    a.e("v_mov_b32 v209, 1")
    def poll_issue(c): a.lds(f"ds_read_b32 v210, v208 offset:{FULL+4*c}", f"poll{c}")
    def poll_check(c):
        a.wait_lds(f"poll{c}")
        d = a.newlabel("full")
        a.e("v_readfirstlane_b32 s22, v210")
        a.e("s_cmp_ge_u32 s22, 1")
        a.e(f"s_cbranch_scc1 {d}")
        a.e(f"v_add_u32 v210, {FULL+4*c}, v208")
        lds_spin(a, 210, 1, "C" in OPT)
        a.label(d)
        st(f"m{c}")
    poll_issue(0); poll_check(0)
    for r_ in reads(0): r_()
    a.wait_lds(None)
    lds_add(a, 208, FREE)
    poll_issue(1)
    for c in range(9):
        f = FR + 64 * (c % 2)
        fill = []
        if c + 1 < 9:
            poll_check(c + 1)
            rr = reads(c + 1)
            fill = [(lambda x=rr[2*i], y=rr[2*i+1]: (x(), y())) for i in range(12)] + [None] * 5
            def free_(c=c):
                a.wait_lds(None)
                if c + 1 < 7: lds_add(a, 208, FREE + 4*(c+1))
            fill += [free_] + [None] * 8
            if c + 2 < 9: fill += [lambda c=c: poll_issue(c + 2)]
        else:
            a.wait_lds(None)
        if c == 7: st("b8")
        if c == F1_AT:
            a.e("s_cmp_eq_u32 s99, -1")
            a.e("s_cbranch_scc1 L_nf1")
            a.e("s_waitcnt vmcnt(0)")
            a.e("s_mov_b64 exec, 1")
            a.e("ds_add_rtn_u32 v212, v208, v209 offset:12")
            a.e("s_mov_b64 exec, -1")
            a.e("s_waitcnt lgkmcnt(0)")
            a.e("v_readfirstlane_b32 s22, v212")
            a.e("s_cmp_lg_u32 s22, 3")
            a.e("s_cbranch_scc1 L_nf1")
            flag_write(a, 0, 212); a.vm.pop()
            a.label("L_nf1")
        order = [(kh, nt, mt) for kh in range(2) for nt in range(4) for mt in range(4)]
        if c == 8 and "M" in OPT: order = [(kh, nt, mt) for mt in range(4) for kh in range(2) for nt in range(4)]
        for kh, nt, mt in order:
            acc = v(ACC + (mt*4+nt)*4, 4)
            first = (c == 0 and kh == 0)
            a.e(f"v_mfma_f32_16x16x32_bf16 {acc}, {v(f+16*kh+4*mt,4)}, {v(f+32+16*kh+4*nt,4)}, {0 if first else acc}")
            if fill:
                x_ = fill.pop(0)
                if x_: x_()
    a.e("s_cmp_lt_u32 s56, 432")
    a.e("s_cbranch_scc1 L_qkv")
    a.e("s_nop 7")
    G0 = 208
    for nt in range(4): rnd(a, G0+nt, ACC+4*nt)
    for nt in range(4): a.e(f"v_mul_f32 v{G0+nt}, {f32(-1.4426950408889634)}, v{G0+nt}")
    for nt in range(4): a.e(f"v_exp_f32 v{G0+nt}, v{G0+nt}")
    for nt in range(4): a.e(f"v_add_f32 v{G0+nt}, 1.0, v{G0+nt}")
    for nt in range(4): a.e(f"v_rcp_f32 v{G0+nt}, v{G0+nt}")
    for nt in range(4): rnd(a, G0+nt, G0+nt)
    a.e(f"v_and_b32 v2, 0x3fff, v{SO}")
    a.e("v_lshrrev_b32 v2, 1, v2")
    a.e(f"s_mov_b32 s19, {WS_G}")
    setexec(a, 0xffff)
    a.e(f"buffer_store_dwordx2 {v(G0,2)}, v2, s[36:39], s19 offen {SC}")
    a.e(f"buffer_store_dwordx2 {v(G0+2,2)}, v2, s[36:39], s19 offen offset:128 {SC}")
    a.e("s_mov_b64 exec, -1")
    a.e("s_branch L_mdone")
    a.label("L_qkv")
    a.e(f"s_mov_b32 s20, {f32(QSCALE)}")
    a.e("s_cmp_lt_u32 s56, 144")
    a.e("s_cselect_b32 s21, s20, 1.0")
    a.e("s_nop 3")
    for mt in range(4):
        for nt in range(4):
            ac = ACC + (mt*4+nt)*4
            for i in range(4): a.e(f"v_mul_f32 v{ac+i}, s21, v{ac+i}")
            t = FR + 64 + (mt*4+nt)*2
            a.e(f"v_cvt_pk_bf16_f32 v{t}, v{ac}, v{ac+1}")
            a.e(f"v_cvt_pk_bf16_f32 v{t+1}, v{ac+2}, v{ac+3}")
        a.e(f"s_mov_b32 s19, {mt*65536}")
        a.vmem(f"buffer_store_dwordx4 {v(FR+64+mt*8,4)}, v{SO}, s[48:51], s19 offen {SC}")
        a.vmem(f"buffer_store_dwordx4 {v(FR+64+mt*8+4,4)}, v{SO}, s[48:51], s19 offen offset:256 {SC}")
    a.label("L_mdone")
    a.e("s_setprio 0")
    a.e("s_waitcnt vmcnt(0)")
    a.e(f"v_mov_b32 v1, {L_CNT+8}")
    a.e("v_mov_b32 v2, 1")
    a.e("s_mov_b64 exec, 1")
    a.e("ds_add_rtn_u32 v2, v1, v2")
    a.e("s_mov_b64 exec, -1")
    a.e("s_waitcnt lgkmcnt(0)")
    a.e("v_readfirstlane_b32 s22, v2")
    a.e("s_cmp_lg_u32 s22, 3")
    a.e("s_cbranch_scc1 L_cvwait")
    flag_write(a, 1, 120); a.vm.pop()
    a.e("s_branch L_cvwait")
    a.label("L_spare")
    a.reset_counters()
    st.n = n0; st.names = st.names[:n0]
    a.e("s_and_b32 s46, s2, 31")
    a.e("s_and_b32 s58, s18, 3")
    a.e("s_lshr_b32 s59, s18, 2")
    a.e("s_lshl_b32 s3, s46, 2")
    a.e("s_add_u32 s3, s3, s59")
    a.e(f"s_mov_b32 s{ROUNDS}, 2")
    a.e(f"s_add_u32 s{ROLE}, s{ROLE}, 2")
    a.e("s_waitcnt lgkmcnt(0)"); a.lgkm = []
    srd(a, 36, 16, WS_TOTAL)
    srd(a, 48, 14, SZ)
    KS = 164
    a.e("s_lshl_b32 s19, s46, 2")
    a.e(f"s_add_u32 s19, s19, s{RHO}")
    a.e("s_lshl_b32 s19, s19, 12")
    a.e("v_lshlrev_b32 v2, 4, v0")
    for i in range(4): a.e(f"buffer_load_dwordx4 {v(KS+4*i,4)}, v2, s[48:51], s19 offen offset:{1024*i}")
    a.e("s_waitcnt vmcnt(4)")
    st("m1")
    tag_make(a)
    prep_compute(a, VD, 64)
    st("m6")
    a.e("v_lshlrev_b32 v2, 7, v0")
    a.e("s_lshl_b32 s19, s46, 3")
    a.e("s_add_u32 s19, s19, s18")
    a.e("s_mul_i32 s19, s19, 7168")
    a.e(f"s_add_u32 s19, s19, {128*4096}")
    setexec(a, (1 << 56) - 1)
    a.e("buffer_load_dword v210, v2, s[48:51], s19 offen")
    a.e("s_mov_b64 exec, -1")
    a.e("s_waitcnt vmcnt(1) lgkmcnt(0)"); a.reset_counters()
    a.e("s_barrier")
    st("b8")
    a.e("s_cmp_lg_u32 s18, 4")
    a.e("s_cbranch_scc1 L_spc")
    flag_write(a, 0, 8)
    a.label("L_spc")
    a.reset_counters()
    a.e(f"s_mov_b32 s100, s{CVK}")
    a.e(f"s_mov_b32 s101, s{CVU}")
    a.e("s_lshl_b32 s19, s59, 16")
    a.e(f"s_add_u32 s{CVK}, s{CVK}, s19")
    a.e(f"s_sub_u32 s{CVK}, s{CVK}, 32768")
    a.e(f"s_add_u32 s{CVU}, s{CVU}, {8*CV_USZ}")
    a.e("s_add_u32 s56, s3, 2")
    a.e("s_cmp_ge_u32 s18, 4")
    a.e("s_cbranch_scc1 L_spk")
    a.e("s_mul_i32 s41, s18, 3")
    a.e("s_sub_u32 s19, s18, 1")
    a.e("s_cmp_ge_u32 s18, 2")
    a.e("s_cselect_b32 s41, s19, s41")
    a.e("s_lshl_b32 s41, s41, 15")
    a.e(f"s_add_u32 s41, s41, {L_RING}")
    kshift(a, KS)
    kwrite(a, KS)
    a.label("L_spk")
    if "P" in OPT:
        a.e("s_cmp_lg_u32 s18, 5")
        a.e("s_cbranch_scc1 L_nct")
        code_touch(a, K, "L_pc1")
        a.label("L_nct")
    if "W" in OPT:
        a.e("s_load_dwordx2 s[20:21], s[0:1], 16")
        a.e("s_lshl_b32 s19, s46, 3")
        a.e("s_add_u32 s19, s19, s18")
        a.e("s_mul_i32 s19, s19, 2688")
        a.e("v_lshlrev_b32 v2, 7, v0")
        a.e("s_waitcnt lgkmcnt(0)")
        srd(a, 52, 20, 576*1152)
        setexec(a, 0x1fffff)
        a.e("buffer_load_dword v211, v2, s[52:55], s19 offen")
        a.e("s_mov_b64 exec, -1")
    st("cvk")
    convu_wait(a)
    st("f1")
    convu_issue(a, 3, CVU, ['s', RHO], "U")
    convu_issue(a, 56, 101, ['s', RHO], "U2")
    a.e("s_waitcnt vmcnt(0) lgkmcnt(0)")
    a.e("s_barrier")
    a.label("L_conv")
    a.reset_counters()
    st("cv0")
    AF, ACC, BF = 16, 80, 112
    a.e("s_load_dwordx2 s[6:7], s[0:1], 64")
    a.e("s_lshl_b32 s20, s3, 12")
    a.e(f"s_mul_i32 s23, s{RHO}, {CV_USZ}")
    a.e(f"s_add_u32 s23, s23, s{CVU}")
    a.e("v_lshlrev_b32 v13, 4, v0")
    a.e(f"v_add_u32 v14, s{CVK}, v13")
    a.e("v_lshrrev_b32 v7, 4, v0")
    a.e("v_bfe_u32 v8, v0, 2, 2")
    a.e("v_and_b32 v9, 3, v0")
    a.e("v_lshlrev_b32 v10, 3, v7")
    a.e("v_add3_u32 v10, v10, v8, v9")
    a.e(f"v_lshl_add_u32 v10, v10, 3, s{CVK}")
    a.e("v_and_b32 v11, 15, v0")
    a.e("v_lshlrev_b32 v12, 4, v7")
    a.e("v_lshlrev_b32 v8, 3, v11")
    a.e("v_sub_u32 v12, v12, v8")
    a.e(f"v_add_u32 v12, {2*508-64*14}, v12")
    a.e("v_add_u32 v12, s23, v12")
    a.e("s_lshr_b32 s21, s3, 1")
    a.e("s_lshl_b32 s21, s21, 2")
    a.e("s_waitcnt lgkmcnt(0)")
    a.e("s_load_dword s24, s[6:7], s21")
    def rdA(kap):
        for hf in range(2):
            a.lds(f"ds_read_b64_tr_b16 {v(AF+4*kap+2*hf,2)}, v10 offset:{8+256*kap+32*hf}", f"A{kap}")
    lams = []
    lo, hi = -1, 14
    while lo <= hi:
        lams.append(hi); hi -= 1
        if lo <= hi: lams.append(lo); lo += 1
    def rdB(i):
        lam = lams[i]; b = BF + 4 * (i % 4)
        for hf in range(2):
            a.lds(f"ds_read_b64 {v(b+2*hf,2)}, v12 offset:{64*(14-lam)+8*hf}", f"B{i}")
    rdA(0); rdB(0); rdB(1)
    for kap in (1, 3, 5, 7): rdA(kap)
    restA = [9, 11, 13, 15, 2, 4, 6, 8, 10, 12, 14]
    seen = set()
    for i, lam in enumerate(lams):
        if i + 2 < len(lams): rdB(i + 2)
        a.wait_lds(f"B{i}")
        b = BF + 4 * (i % 4)
        for tau in range(8):
            kap = 2 * tau - lam
            if kap < 0 or kap > 15: continue
            assert kap not in restA
            a.wait_lds(f"A{kap}")
            w = v(ACC + 4*tau, 4)
            a.e(f"v_mfma_f32_16x16x32_bf16 {w}, {v(AF+4*kap,4)}, {v(b,4)}, {w if tau in seen else 0}")
            seen.add(tau)
            for _ in range(2 if i == 0 else 1):
                if restA: rdA(restA.pop(0))
    st("cv1")
    a.e(f"s_lshl_b32 s21, s{RHO}, 13")
    a.e(f"s_sub_u32 s22, s{CVK}, s21")
    a.e(f"s_lshl_b32 s21, s{RHO}, 11")
    a.e("s_add_u32 s22, s22, s21")
    a.e("v_add_u32 v15, s22, v13")
    for i in range(8): a.e(f"v_mov_b32 v{AF+32+i}, 0")
    for tau in range(8):
        a.lds(f"ds_write_b128 v14, {v(ACC+4*tau,4)} offset:{1024*tau}")
    a.e("v_lshl_add_u32 v13, v11, 2, v7")
    a.e("v_lshlrev_b32 v13, 1, v13")
    a.e(f"v_sub_u32 v13, {2*511-128}, v13")
    a.e(f"s_lshl_b32 s21, s{RHO}, 8")
    a.e(f"s_sub_u32 s21, s{CVU}, s21")
    a.e("v_add_u32 v13, s21, v13")
    a.e("v_lshlrev_b32 v14, 5, v11")
    a.e("v_lshl_add_u32 v14, v7, 3, v14")
    a.e(f"s_lshl_b32 s21, s{RHO}, 10")
    a.e("s_add_u32 s21, s21, s20")
    a.e(f"s_add_u32 s21, s21, {WS_Z}")
    st("cv2")
    group_barrier(a, 1)
    st("cv3")
    a.e("s_lshl_b32 s25, s24, 16")
    a.e("s_and_b32 s24, s24, 0xffff0000")
    a.e("s_bitcmp1_b32 s3, 0")
    a.e("s_cselect_b32 s24, s24, s25")
    for j in range(2):
        for sw in range(4):
            a.lds(f"ds_read_b128 {v(AF+16*j+4*sw,4)}, v15 offset:{8192*sw+1024*j}", f"R{j}")
        for i in range(4):
            a.lds(f"ds_read_u16_d16_hi v{AF+32+4*j+i}, v13 offset:{CV_USZ*i+128*(1-j)}", f"R{j}")
    for j in range(2):
        a.wait_lds(f"R{j}")
        y = AF + 16*j; u = AF + 32 + 4*j
        for i in range(4): a.e(f"v_add_f32 v{y+i}, v{y+i}, v{y+4+i}")
        for i in range(4): a.e(f"v_add_f32 v{y+8+i}, v{y+8+i}, v{y+12+i}")
        for i in range(4): a.e(f"v_mul_f32 v{u+i}, s24, v{u+i}")
        for i in range(4): a.e(f"v_add_f32 v{y+i}, v{y+i}, v{y+8+i}")
        for i in range(4): rnd(a, u+i, u+i)
        for i in range(4): rnd(a, y+i, y+i)
        for i in range(4): a.e(f"v_add_f32 v{y+i}, v{y+i}, v{u+i}")
        a.e(f"v_cvt_pk_bf16_f32 v{y}, v{y}, v{y+1}")
        a.e(f"v_cvt_pk_bf16_f32 v{y+1}, v{y+2}, v{y+3}")
        a.vmem(f"buffer_store_dwordx2 {v(y,2)}, v14, s[36:39], s21 offen offset:{512*j} {SC}")
    a.e(f"s_sub_u32 s{ROUNDS}, s{ROUNDS}, 1")
    a.e(f"s_cmp_eq_u32 s{ROUNDS}, 0")
    a.e("s_cbranch_scc1 L_attn")
    if "E" not in OPT: group_barrier(a, 1)
    a.e("s_add_u32 s3, s3, 2")
    a.e(f"s_mov_b32 s{CVK}, s100")
    a.e(f"s_mov_b32 s{CVU}, s101")
    a.e("s_branch L_conv")
    a.label("L_attn")
    a.reset_counters()
    st("conv")
    a.e("s_and_b32 s22, s2, 7")
    a.e("s_lshl_b32 s22, s22, 1")
    a.e("s_bfe_u32 s19, s2, 0x10003")
    a.e("s_add_u32 s40, s22, s19")
    a.e("s_lshr_b32 s41, s2, 4")
    a.e("s_lshr_b32 s23, s18, 2")
    a.e("s_mul_i32 s24, s40, 9")
    for i in range(3):
        a.e(f"s_sub_i32 s{32+i}, s41, {2-i}")
        a.e(f"s_max_i32 s{32+i}, s{32+i}, 0")
    Q1, Q2 = 8, 12
    KB_ = [16, 22, 122] if 'K' in OPT else [16, 22]; NK = len(KB_); VB_ = [28, 36]; SS = [44, 60]; PP = [76, 84]; OA = 92; NM = 14
    a.e("s_cmp_ge_u32 s18, 4")
    a.e("s_cbranch_scc1 L_nostage")
    a.e("v_lshrrev_b32 v1, 3, v0")
    a.e("v_min_u32 v1, 2, v1")
    a.e("v_mul_u32_u24 v1, 144, v1")
    a.e("v_bfe_u32 v2, v0, 2, 1")
    a.e("v_lshl_add_u32 v1, v2, 3, v1")
    a.e("v_add_u32 v1, s24, v1")
    a.e("v_lshrrev_b32 v1, 5, v1")
    a.e("v_and_b32 v2, 3, v0")
    a.e("v_min_u32 v2, 2, v2")
    a.e("v_sub_u32 v2, s41, v2")
    a.e("v_max_i32 v2, 0, v2")
    a.e("v_cmp_lt_u32 vcc, 6, v1")
    a.e("v_subrev_u32 v3, 7, v1")
    a.e("v_lshrrev_b32 v4, 2, v2")
    a.e("v_cndmask_b32 v1, v1, v3, vcc")
    a.e("v_add_u32 v3, 4, v4")
    a.e("v_cndmask_b32 v4, v4, v3, vcc")
    a.e("v_and_b32 v2, 3, v2")
    a.e("v_lshl_add_u32 v1, v1, 2, v2")
    a.e("v_lshl_add_u32 v1, v1, 3, v4")
    for i in range(3): a.e(f"s_lshl_b32 s{32+i}, s{32+i}, 10")
    a.e("s_add_u32 s26, s24, s18")
    a.e("s_lshl_b32 s26, s26, 14")
    a.e(f"s_mul_i32 s27, s18, {PL}")
    a.e("s_lshl_b32 s28, s18, 10")
    a.e("s_add_u32 s29, s24, 8")
    a.e("s_lshl_b32 s29, s29, 14")
    combos = [(0, 2, L_Q, 1024), (1, 2, L_KP+2048, PL), (2, 2, L_VP+2048, PL), (1, 1, L_KP+1024, PL), (2, 1, L_VP+1024, PL), (1, 0, L_KP, PL), (2, 0, L_VP, PL)]
    for n in range(2):
        so, do = 48 + 2*n, 49 + 2*n
        for jj in range(4):
            ty, i, dst, stride = combos[min(4*n + jj, 6)]
            if jj == 0:
                a.e(f"s_add_u32 s{so}, s{32+i}, {ty*144*16384}")
                a.e(f"s_mov_b32 s{do}, {dst+8*stride}")
            else:
                a.e(f"s_add_u32 s19, s{32+i}, {ty*144*16384}")
                a.e(f"s_cmp_eq_u32 s18, {jj}")
                a.e(f"s_cselect_b32 s{so}, s19, s{so}")
                a.e(f"s_cselect_b32 s{do}, {dst+8*stride}, s{do}")
        a.e(f"s_add_u32 s{so}, s{so}, s29")
    a.e("s_cmp_lg_u32 s18, 0")
    a.e("s_cbranch_scc1 L_w2_o")
    flag_wait(a, 1, 1, 2, 2)
    a.e(f"v_mov_b32 v2, {L_CNT+36}")
    a.e("v_mov_b32 v3, 1")
    a.e("ds_write_b32 v2, v3")
    a.e("s_branch L_w2_j")
    a.label("L_w2_o")
    a.e(f"v_mov_b32 v2, {L_CNT+36}")
    lds_spin(a, 2, 1)
    a.label("L_w2_j")
    a.e(f"s_cmp_eq_u32 s{ROLE}, 0")
    a.e("s_cselect_b32 s19, 8, 4")
    a.e("s_cselect_b32 s20, 4, 8")
    a.e(f"s_add_u32 s19, s19, {L_CNT}")
    a.e("v_mov_b32 v1, s19")
    lds_spin(a, 1, "s20")
    a.e("v_lshlrev_b32 v2, 4, v0")
    for n, (ty, i, dst, stride) in enumerate(combos):
        for q in range(2):
            a.e(f"s_add_u32 m0, s{28 if stride == 1024 else 27}, {dst + 4*q*stride}")
            a.e(f"s_add_u32 s35, s26, s{32+i}")
            a.e(f"s_add_u32 s35, s35, {(ty*144+4*q)*16384}")
            a.vmem(f"buffer_load_dwordx4 v2, s[36:39], s35 offen {SC} lds", "S")
        if n in (2, 5):
            k_ = 0 if n == 2 else 1
            a.e(f"s_mov_b32 m0, s{49+2*k_}")
            a.e("s_nop 0")
            a.vmem(f"buffer_load_dwordx4 v2, s[36:39], s{48+2*k_} offen {SC} lds", "S")
    a.e("v_mov_b32 v5, 0x3f803f80")
    a.e("v_lshlrev_b32 v6, 2, v0")
    a.e("s_lshl_b32 s35, s18, 8")
    a.e("v_add_u32 v6, s35, v6")
    for i in range(3): a.lds(f"ds_write_b32 v6, v5 offset:{L_ONE+1024*i}")
    a.label("L_nostage")
    st("f2")
    a.e("v_and_b32 v1, 31, v0")
    a.e("v_lshrrev_b32 v15, 5, v0")
    a.e("s_lshl_b32 s46, s41, 2")
    a.e(f"s_add_u32 s46, s46, s{RHO}")
    a.e("v_lshlrev_b32 v3, 3, v1")
    a.e("s_mul_i32 s25, s23, 5")
    a.e(f"s_lshl_b32 s35, s{RHO}, 8")
    a.e("s_lshl_b32 s26, s25, 10")
    a.e("s_add_u32 s26, s26, s35")
    a.e(f"s_add_u32 s26, s26, {L_Q}")
    a.e("v_lshl_add_u32 v108, v15, 11, v3")
    a.e("v_add_u32 v108, s26, v108")
    a.e(f"s_add_u32 s26, s35, {L_Q+4096}")
    a.e("v_add_u32 v109, s26, v3")
    a.e(f"s_lshl_b32 s35, s{RHO}, 8")
    a.e(f"s_mul_i32 s25, s25, {PL}")
    a.e("s_add_u32 s26, s25, s35")
    a.e(f"s_add_u32 s26, s26, {L_KP}")
    a.e(f"v_mul_u32_u24 v4, {2*PL}, v15")
    a.e("v_add3_u32 v4, v4, v3, s26")
    a.e(f"v_mul_u32_u24 v5, {5*PL}, v15")
    a.e(f"s_add_u32 s26, s35, {L_KP+4*PL}")
    a.e("v_add3_u32 v3, v5, v3, s26")
    a.e("v_bfe_u32 v5, v0, 2, 2")
    a.e("v_lshl_add_u32 v5, v15, 2, v5")
    a.e("v_lshlrev_b32 v5, 3, v5")
    a.e("v_and_b32 v6, 3, v0")
    a.e(f"v_mul_u32_u24 v7, {PL}, v6")
    a.e(f"s_add_u32 s26, s25, {L_VP}")
    a.e("v_add_u32 v7, s26, v7")
    a.e(f"v_mov_b32 v2, {L_VP+4*PL}")
    m1 = lane_mask(lambda l: (l >> 4) & 1 and (l & 3) == 0); m2 = lane_mask(lambda l: (l >> 4) & 1 and (l & 3) != 0)
    a.e(f"s_mov_b32 s20, 0x{m1 & 0xffffffff:x}"); a.e("s_mov_b32 s21, s20")
    a.e("v_cndmask_b32 v7, v7, v2, s[20:21]")
    a.e(f"v_mov_b32 v2, {L_ONE}")
    a.e(f"s_mov_b32 s20, 0x{m2 & 0xffffffff:x}"); a.e("s_mov_b32 s21, s20")
    a.e("v_cndmask_b32 v7, v7, v2, s[20:21]")
    a.e("v_add3_u32 v5, v5, v7, s35")
    a.e("s_sub_i32 s27, 8, s46")
    a.e("s_max_i32 s27, s27, 0")
    a.e(f"v_mov_b32 v2, {NEGINF}")
    def mask_ops(S, diag):
        ops = []
        for ri in range(16):
            j, i = ri // 4, ri % 4
            md = lane_mask(lambda l: 8*j + 4*(l >> 5) + i <= (l & 31))
            def f(ri=ri, md=md):
                a.e(f"s_mov_b32 s20, 0x{md & 0xffffffff:x}")
                a.e(f"s_mov_b32 s21, 0x{md >> 32:x}")
                if diag: a.e(f"v_cndmask_b32 v{S+ri}, v2, 0, s[20:21]")
                else: a.e(f"v_cndmask_b32 v{S+ri}, 0, v2, s[20:21]")
            ops.append(f)
        return ops
    for f in mask_ops(SS[0], True): f()
    MFR = 144
    for i in range(16): a.e(f"v_xor_b32 v{MFR+i}, v2, v{SS[0]+i}")
    a.e("s_cmp_eq_u32 s23, 0")
    a.e("s_cselect_b32 s48, -1, 0")
    a.e("s_mov_b32 s49, 0")
    a.e("s_cselect_b32 s50, 0, -1")
    a.e("s_mov_b32 s51, 0")
    a.e("s_mov_b32 s42, 0")
    a.e("s_mov_b32 s43, -1")
    a.e("s_load_dwordx2 s[6:7], s[0:1], 16")
    a.e("s_min_u32 s19, s2, 251")
    a.e("s_mul_i32 s56, s19, 2341")
    a.e("s_lshr_b32 s56, s56, 16")
    a.e("s_lshl_b32 s57, s56, 7")
    a.e("v_lshrrev_b32 v110, 3, v0")
    a.e("v_and_b32 v111, 7, v0")
    a.e("v_lshrrev_b32 v112, 1, v110")
    a.e("v_lshlrev_b32 v112, 1, v112")
    a.e("v_xor_b32 v111, v111, v112")
    a.e("v_mul_u32_u24 v110, 1152, v110")
    a.e("v_lshl_add_u32 v110, v111, 4, v110")
    a.e("s_waitcnt vmcnt(0) lgkmcnt(0)"); a.reset_counters()
    a.e("s_barrier")
    st("staged")
    a.e("s_cmp_lg_u32 s18, 0")
    a.e("s_cbranch_scc1 L_nf3")
    flag_write(a, 2, 112); a.vm.pop()
    a.label("L_nf3")

    def rdK(t):
        buf = KB_[t % NK]
        return [lambda: a.lds(f"ds_read_b64 {v(buf,2)}, v4 offset:{256*t}", f"K{t}"),
                lambda: a.lds(f"ds_read_b64 {v(buf+2,2)}, v4 offset:{256*t+PL}", f"K{t}"),
                lambda: a.lds(f"ds_read_b64 {v(buf+4,2)}, v3 offset:{256*t}", f"K{t}")]
    def rdV(t):
        buf = VB_[t % 2]
        return [lambda i=i: a.lds(f"ds_read_b64_tr_b16 {v(buf+2*i,2)}, v5 offset:{256*t+64*i}", f"V{t}") for i in range(4)]
    def qk1(t):
        S = SS[t % 2]; buf = KB_[t % NK]
        a.e(f"v_mfma_f32_32x32x16_bf16 {v(S,16)}, {v(buf,4)}, {v(Q1,4)}, {v(S,16) if t == 8 else v(MFR,16) if t == 0 else 0}")
    def qk2(t):
        S = SS[t % 2]; buf = KB_[t % NK]
        a.e(f"v_mfma_f32_32x32x8_bf16 {v(S,16)}, {v(buf+4,2)}, {v(Q2,2)}, {v(S,16)}")
    def pv(t, h):
        a.e(f"v_mfma_f32_32x32x16_bf16 {v(OA,16)}, {v(VB_[t%2]+4*h,4)}, {v(PP[t%2]+4*h,4)}, {0 if (t == 8 and h == 0) else v(OA,16)}")
    def kill(t, pfx):
        l = f"{pfx}_k{t}"
        a.e(f"s_cmp_lg_u32 s27, {t+1}")
        a.e(f"s_cbranch_scc1 {l}")
        a.e("v_mov_b32 v6, 0xff7f")
        a.e(f"v_cndmask_b32 v{Q2}, v{Q2}, v6, s[42:43]")
        a.label(l)
    a.lds(f"ds_read_b64 {v(Q1,2)}, v108", "Q")
    a.lds(f"ds_read_b64 {v(Q1+2,2)}, v108 offset:1024", "Q")
    a.lds(f"ds_read_b64 {v(Q2,2)}, v109", "Q")
    for f in rdK(8) + rdK(7) + (rdK(6) if NK == 3 else []): f()
    a.e("s_add_u32 s28, s6, s57")
    a.e("s_addc_u32 s29, s7, 0")
    a.e(f"s_sub_u32 s30, {576*1152}, s57")
    a.e("s_mov_b32 s31, 0x00020000")
    a.e(f"s_mul_i32 s58, s18, {8*1152}")
    a.e("s_lshl_b32 s59, s18, 10")
    def wo_dma(j):
        a.e(f"s_add_u32 m0, s59, {L_WO + j*8192}")
        a.e("s_nop 0")
        a.vmem("buffer_load_dwordx4 v110, s[28:31], s58 offen lds", "WO")
        a.e(f"s_add_u32 s58, s58, {64*1152}")
    a.wait_lds("K8")
    a.e(f"v_cndmask_b32 v{Q2}, 0, v{Q2}, s[48:49]")
    a.e(f"v_cndmask_b32 v{Q2+1}, 0, v{Q2+1}, s[50:51]")
    KA = KB_[8 % NK]
    a.e(f"v_dot2_f32_bf16 v6, v{Q1}, v{KA}, 0")
    for i in range(1, 6): a.e(f"v_dot2_f32_bf16 v6, v{Q1+i}, v{KA+i}, v6")
    qk1(8)
    a.e("s_nop 2")
    a.e("v_mov_b32 v7, v6")
    a.e("s_nop 1")
    a.e("v_permlane32_swap_b32 v6, v7")
    a.e("s_nop 1")
    a.e("v_add_f32 v6, v6, v7")
    a.e("v_sub_f32 v6, 0, v6")
    a.e("v_cvt_pk_bf16_f32 v6, v6, 0")
    a.e(f"v_cndmask_b32 v{Q2}, v{Q2}, v6, s[42:43]")
    a.e("s_nop 1")

    def softmax_pass(sub, pfx):
        qk2(8)
        for f in rdV(8): f()
        kill(7, pfx)
        a.e("s_nop 3")
        for t in range(8, -1, -1):
            S = SS[t % 2]; P = PP[t % 2]
            valu = []
            for i in range(16):
                if sub: valu.append(lambda i=i: a.e(f"v_add_f32 v{S+i}, v{S+i}, v{NM}"))
                valu.append(lambda i=i: a.e(f"v_exp_f32 v{S+i}, v{S+i}"))
                if i % 2 == 1 and i >= 3:
                    valu.append(lambda i=i: a.e(f"v_cvt_pk_bf16_f32 v{P+(i-3)//2}, v{S+i-3}, v{S+i-2}"))
            valu.append(lambda: a.e("s_nop 0"))
            valu.append(lambda: a.e(f"v_cvt_pk_bf16_f32 v{P+7}, v{S+14}, v{S+15}"))
            q = len(valu) // 4
            def run(n):
                for _ in range(n):
                    if valu: valu.pop(0)()
            if t > 0:
                a.wait_lds(f"K{t-1}")
                qk1(t - 1)
            else:
                a.e("s_nop 3")
            q1, q2, q3 = {0: (q, q, q), 1: (0, 2*q, 0), 2: (0, 0, 0), 3: (2, 2*q-2, 2), 4: (0, q, 0)}[SCHED]
            if t == 8 and q1 < 6: a.e("s_nop 5")
            run(q1)
            if t > 0: qk2(t - 1)
            if t - NK >= 0:
                for f in rdK(t - NK): f()
            if t > 1:
                kill(t - 2, pfx)
            run(q2)
            if t < 8:
                a.wait_lds(f"V{t+1}")
                pv(t + 1, 0)
            run(q3)
            if t < 8: pv(t + 1, 1)
            if t > 0:
                for f in rdV(t - 1): f()
            if not sub and t == 3 and "B" in OPT: a.e("s_setprio 0")
            if not sub and "W" not in OPT:
                for j_ in {8: (0, 1), 7: (2, 3), 6: (4, 5), 5: (6, 7), 4: (8,)}.get(t, ()): wo_dma(j_)
            run(100)
        a.wait_lds(None)
        a.e("s_nop 0")
        pv(0, 0); pv(0, 1)
        a.e("s_nop 7")
        a.e("s_nop 3")

    if "B" in OPT:
        a.e("s_cmp_lt_u32 s18, 4")
        a.e("s_cbranch_scc1 L_np")
        a.e("s_setprio 1")
        a.label("L_np")
    softmax_pass(False, "sa")
    st("soft")
    a.e(f"v_mov_b32 v6, v{OA+12}")
    for i in range(12): a.e(f"v_fma_f32 v6, v{OA+i}, 0, v6")
    a.e(f"s_mov_b32 s20, {f32(2.0**-30)}")
    a.e(f"s_mov_b32 s21, {f32(2.0**100)}")
    a.e("v_cmp_nlt_f32 vcc, s20, v6")
    a.e("v_cmp_ngt_f32 s[44:45], s21, v6")
    a.e("s_or_b64 vcc, vcc, s[44:45]")
    a.e("s_cbranch_vccnz L_fallback")
    a.label("L_fin")
    P0 = PP[0]
    a.e(f"v_rcp_f32 v6, v{OA+12}")
    a.e("s_nop 0")
    for i in range(12): a.e(f"v_mul_f32 v{OA+i}, v{OA+i}, v6")
    for i in range(6): a.e(f"v_cvt_pk_bf16_f32 v{P0+i}, v{OA+2*i}, v{OA+2*i+1}")
    a.e("v_lshrrev_b32 v6, 4, v1")
    a.e("v_mul_u32_u24 v6, 18432, v6")
    a.e("v_and_b32 v7, 15, v1")
    a.e("v_lshl_add_u32 v6, v7, 4, v6")
    a.e("v_lshl_add_u32 v7, v15, 8, v6")
    a.e("s_mul_i32 s26, s46, 36864")
    a.e(f"s_add_u32 s26, s26, {WS_O}")
    a.e("s_lshl_b32 s19, s40, 1")
    a.e("s_add_u32 s19, s19, s23")
    a.e("s_lshl_b32 s20, s19, 9")
    a.e("s_add_u32 s20, s20, s26")
    a.vmem(f"buffer_store_dwordx4 {v(P0,4)}, v7, s[36:39], s20 offen {SC}")
    a.e("s_lshr_b32 s20, s19, 2")
    a.e("s_lshl_b32 s20, s20, 8")
    a.e("s_and_b32 s21, s19, 3")
    a.e("s_lshl_b32 s21, s21, 2")
    a.e("s_add_u32 s20, s20, s21")
    a.e("s_add_u32 s20, s20, s26")
    a.e("s_add_u32 s20, s20, 16384")
    a.e("s_cmp_eq_u32 s23, 0")
    a.e("s_cbranch_scc1 L_ev")
    a.e(f"v_mov_b32 v{P0+4}, v{P0+5}")
    a.label("L_ev")
    setexec(a, 0xffffffff)
    a.vmem(f"buffer_store_dword v{P0+4}, v6, s[36:39], s20 offen {SC}")
    a.e("s_mov_b64 exec, -1")
    a.e("s_load_dwordx2 s[4:5], s[0:1], 0")
    a.e("s_load_dwordx2 s[8:9], s[0:1], 80")
    a.e("s_mul_i32 s19, s56, 28")
    a.e("s_sub_u32 s19, s2, s19")
    a.e("s_mul_i32 s21, s19, 5")
    a.e("s_lshl_b32 s22, s19, 2")
    a.e("s_add_u32 s22, s22, 16")
    a.e("s_cmp_lt_u32 s19, 16")
    a.e("s_cselect_b32 s19, s21, s22")
    a.e("s_cselect_b32 s43, 5, 4")
    a.e("s_cmp_ge_u32 s2, 252")
    a.e("s_cselect_b32 s43, 0, s43")
    a.e("s_add_u32 s21, s19, s18")
    OF, ACC, WF = 16, 88, 104
    XE, GE = 136, 144
    a.e("s_min_u32 s21, s21, 127")
    a.e("v_and_b32 v2, 15, v0")
    a.e("v_lshrrev_b32 v3, 4, v0")
    a.e("s_lshl_b32 s40, s21, 4")
    a.e("v_add_u32 v4, s40, v2")
    a.e("v_mul_u32_u24 v5, 1152, v4")
    a.e("v_lshl_add_u32 v5, v3, 3, v5")
    a.e("s_waitcnt lgkmcnt(0)")
    srd(a, 24, 4, SZ)
    srd(a, 32, 8, SZ)
    a.e("s_lshl_b32 s19, s56, 6")
    a.e("v_add_u32 v6, s19, v0")
    a.e("v_lshrrev_b32 v7, 2, v6")
    a.e("v_add_u32 v7, 224, v7")
    a.e("v_subrev_u32 v8, 128, v6")
    a.e("v_lshrrev_b32 v8, 1, v8")
    a.e("v_cmp_gt_u32 vcc, 128, v6")
    a.e("s_lshr_b32 s19, s40, 9")
    a.e("s_bfe_u32 s20, s40, 0x20007")
    a.e("s_lshl_b32 s20, s20, 3")
    a.e("s_add_u32 s19, s19, s20")
    a.e("s_add_u32 s19, s19, 196")
    a.e("v_cndmask_b32 v6, v8, v7, vcc")
    a.e("v_mov_b32 v7, s19")
    a.e("s_mov_b32 s44, 0xaaaaaaaa")
    a.e("s_mov_b32 s45, 0xaaaaaaaa")
    a.e("v_cndmask_b32 v6, v6, v7, s[44:45]")
    a.e("v_lshlrev_b32 v7, 7, v6")
    a.e(f"s_mov_b32 s22, {WS_F + 16}")
    a.e("buffer_load_dwordx2 v[8:9], v7, s[36:39], s22 offen sc0 sc1")
    a.e(f"v_mov_b32 v10, {L_CNT+32}")
    a.e("v_mov_b32 v11, 1")
    if "W" in OPT:
        a.reset_counters()
        for j_ in range(9): wo_dma(j_)
        a.e("s_waitcnt vmcnt(9)"); a.reset_counters()
    else:
        a.e("s_waitcnt vmcnt(0)"); a.reset_counters()
    a.e("s_mov_b64 exec, 1")
    a.e("ds_add_rtn_u32 v11, v10, v11")
    a.e("s_mov_b64 exec, -1")
    a.e("s_waitcnt lgkmcnt(0)")
    a.e("v_readfirstlane_b32 s22, v11")
    a.e("s_cmp_lg_u32 s22, 7")
    a.e("s_cbranch_scc1 L_nf4")
    flag_write(a, 3, 12); a.vm.pop()
    a.label("L_nf4")
    st("ost")
    if "W" in OPT:
        a.e(f"v_mov_b32 v10, {L_CNT}")
        a.e("v_mov_b32 v11, 1")
        a.e("s_waitcnt vmcnt(0)")
        lds_add(a, 10, 144)
    a.e("s_cmp_lt_u32 s18, s43")
    a.e("s_cbranch_scc1 L_g2")
    a.e("s_cmp_lg_u32 s2, 255")
    a.e("s_cbranch_scc1 L_end")
    a.e("s_cmp_lg_u32 s18, 0")
    a.e("s_cbranch_scc1 L_end")
    for q in range(4):
        a.e(f"v_add_u32 v6, {64*q}, v0")
        flag_wait(a, 3, 6, 8, 8)
    a.e(f"v_mov_b32 v6, {WS_E}")
    a.e(f"v_mov_b32 v8, s{TAG}")
    a.e(f"v_mov_b32 v9, s{TAG+1}")
    a.e("s_mov_b64 exec, 1")
    a.e("buffer_store_dwordx2 v[8:9], v6, s[36:39], 0 offen sc0 sc1")
    a.e("s_endpgm")
    a.label("L_g2")
    for mt in range(4):
        a.vmem(f"buffer_load_dwordx2 {v(XE+2*mt,2)}, v5, s[24:27], s57 offen offset:{32*mt}", "X")
    a.e(f"v_cmp_ne_u64 vcc, s[{TAG}:{TAG+1}], v[8:9]")
    a.e("s_cbranch_vccz L_f3ok")
    flag_wait(a, 2, 6, 8)
    a.label("L_f3ok")
    a.e("v_lshrrev_b32 v6, 1, v0")
    a.e("v_lshlrev_b32 v6, 12, v6")
    a.e("v_and_b32 v8, 1, v0")
    a.e("v_lshl_add_u32 v6, v8, 4, v6")
    a.e("s_lshl_b32 s45, s56, 18")
    a.e("s_lshl_b32 s46, s21, 5")
    a.e("s_add_u32 s45, s45, s46")
    a.e(f"s_add_u32 s45, s45, {WS_Z}")
    a.e("s_lshl_b32 s44, s18, 11")
    for q in range(2):
        a.e(f"s_add_u32 m0, s44, {q*1024}")
        a.e("s_nop 0")
        a.vmem(f"buffer_load_dwordx4 v6, s[36:39], s45 offen {SC} lds", "X")
        a.e(f"s_add_u32 s45, s45, {32*4096}")
    a.e("v_lshlrev_b32 v6, 2, v4")
    a.e(f"s_mov_b32 s45, {WS_G}")
    a.vmem(f"buffer_load_dword v{GE}, v6, s[36:39], s45 offen {SC}", "X")
    a.e("v_bfe_u32 v6, v0, 2, 2")
    a.e("v_and_b32 v11, 3, v0")
    a.e("v_lshrrev_b32 v8, 1, v3")
    a.e("v_mul_u32_u24 v8, 20, v8")
    a.e("v_and_b32 v9, 1, v3")
    a.e("v_lshl_add_u32 v8, v9, 2, v8")
    a.e("v_add_u32 v8, v8, v6")
    a.e("v_bfe_u32 v9, v8, 1, 2")
    a.e("v_lshlrev_b32 v8, 7, v8")
    a.e("v_lshl_add_u32 v8, v11, 3, v8")
    a.e(f"v_add_u32 v8, {L_WO}, v8")
    MA = 148
    for mt in range(4):
        a.e(f"v_xor_b32 v10, {mt}, v9")
        a.e(f"v_lshl_add_u32 v{MA+mt}, v10, 5, v8")
    a.e("v_mul_u32_u24 v8, 72, v3")
    a.e("v_add3_u32 v8, v8, v6, 16")
    a.e("v_bfe_u32 v9, v8, 1, 2")
    a.e("v_lshlrev_b32 v8, 7, v8")
    a.e("v_lshl_add_u32 v8, v11, 3, v8")
    a.e(f"v_add_u32 v8, {L_WO}, v8")
    TA_ = 152
    for mt in range(4):
        a.e(f"v_xor_b32 v10, {mt}, v9")
        a.e(f"v_lshl_add_u32 v{TA_+mt}, v10, 5, v8")
    a.e("v_lshl_add_u32 v8, v3, 2, v6")
    a.e("v_lshlrev_b32 v8, 5, v8")
    a.e("v_lshl_add_u32 v8, v11, 3, v8")
    a.e("v_add_u32 v8, s44, v8")
    BP, ZE, T = 156, 172, 180
    a.wait_vm(None)
    for mt in range(4):
        a.lds(f"ds_read_b64_tr_b16 {v(ZE+2*mt,2)}, v8 offset:{512*mt}", "Z")
    a.e(f"v_sub_f32 v9, 1.0, v{GE}")
    rnd(a, 9, 9)
    a.e("s_mov_b32 s42, 0xffff0000")
    a.wait_lds("Z")
    for mt in range(4):
        B = BP + 4*mt
        for i in range(4):
            op = "v_lshlrev_b32 v%d, 16, v%d" if i % 2 == 0 else "v_and_b32 v%d, s42, v%d"
            a.e(op % (B+i, XE+2*mt+i//2))
            a.e(op % (T+i, ZE+2*mt+i//2))
        for i in range(4): a.e(f"v_mul_f32 v{B+i}, v{B+i}, v{T+i}")
        for i in range(4): rnd(a, B+i, B+i)
        for i in range(4): a.e(f"v_mul_f32 v{B+i}, v{B+i}, v9")
        for i in range(4): rnd(a, B+i, B+i)
    def rd(ks):
        b = WF + 16 * (ks % 2)
        for mt in range(4):
            for hf in range(2):
                if ks < 16:
                    kk = ks if ks < 12 else ks - 12
                    ar = MA + (mt ^ (2 * (ks & 1))); off = (36*kk + 8*hf) * 128
                else:
                    ar = TA_ + (mt ^ (2 * hf)); off = (288*(ks-16) + 36*hf) * 128
                a.lds(f"ds_read_b64_tr_b16 {v(b+4*mt+2*hf,2)}, v{ar} offset:{off}", f"F{ks}")
    a.e(f"v_mov_b32 v10, {L_CNT+(144 if 'W' in OPT else 32)}")
    lds_spin(a, 10, 8)
    rd(0)
    a.e("s_lshr_b32 s19, s21, 3")
    a.e("s_lshl_b32 s19, s19, 4")
    a.e("v_add_u32 v6, s19, v2")
    a.e("s_add_u32 s19, s21, s43")
    a.e("s_sub_u32 s19, s19, 1")
    a.e("s_lshr_b32 s19, s19, 3")
    a.e("s_lshl_b32 s19, s19, 4")
    a.e("v_add_u32 v7, s19, v2")
    a.e("v_cndmask_b32 v6, v6, v7, s[44:45]") if False else None
    a.e("s_mov_b32 s46, 0")
    a.e("s_mov_b32 s47, -1")
    a.e("v_cndmask_b32 v6, v6, v7, s[46:47]")
    a.e("s_cmp_lg_u32 s18, 0")
    a.e("s_cbranch_scc1 L_w4_o")
    flag_wait(a, 3, 6, 10, 2)
    a.e(f"v_mov_b32 v10, {L_CNT+40}")
    a.e("v_mov_b32 v11, 1")
    a.e("ds_write_b32 v10, v11")
    a.e("s_branch L_w4_j")
    a.label("L_w4_o")
    a.e(f"v_mov_b32 v10, {L_CNT+40}")
    lds_spin(a, 10, 1)
    a.label("L_w4_j")
    a.lgkm.append(None)
    st("f4")
    a.e("v_lshlrev_b32 v7, 4, v0")
    a.e("s_mul_i32 s22, s21, 18432")
    a.e(f"s_add_u32 s22, s22, {WS_O}")
    for ks in range(18):
        a.vmem(f"buffer_load_dwordx4 {v(OF+4*ks,4)}, v7, s[36:39], s22 offen offset:{1024*(ks%4)} {SC}", f"O{ks}")
        if ks % 4 == 3: a.e("s_add_u32 s22, s22, 4096")
    for ks in range(18):
        if ks + 1 == 12:
            for mt in range(4): a.e(f"v_add_u32 v{MA+mt}, {12*36*128}, v{MA+mt}")
        if ks + 1 < 18: rd(ks + 1)
        a.wait_vm(f"O{ks}")
        a.wait_lds(f"F{ks}")
        b = WF + 16 * (ks % 2)
        for mt in range(4):
            acc = v(ACC + 4*mt, 4)
            a.e(f"v_mfma_f32_16x16x32_bf16 {acc}, {v(b+4*mt,4)}, {v(OF+4*ks,4)}, {acc if ks else 0}")
    a.e("s_nop 4")
    for mt in range(4):
        ac = ACC + 4*mt
        for i in range(4): rnd(a, ac+i, ac+i)
        for i in range(4): a.e(f"v_mul_f32 v{ac+i}, v{ac+i}, v{GE}")
        for i in range(4): rnd(a, ac+i, ac+i)
        for i in range(4): a.e(f"v_add_f32 v{ac+i}, v{ac+i}, v{BP+4*mt+i}")
        a.e(f"v_cvt_pk_bf16_f32 v{ac}, v{ac}, v{ac+1}")
        a.e(f"v_cvt_pk_bf16_f32 v{ac+1}, v{ac+2}, v{ac+3}")
        a.vmem(f"buffer_store_dwordx2 {v(ac,2)}, v5, s[32:35], s57 offen offset:{32*mt}")
    st("end"); st.real("rt1"); st.flush(16, 18, 0)
    a.label("L_end")
    a.e("s_endpgm")
    a.label("L_fallback")
    a.reset_counters()
    a.e(f"v_cndmask_b32 v{Q2}, v{Q2}, 0, s[42:43]")
    a.e(f"v_mov_b32 v{NM}, {NEGINF}")
    for t in range(8, -1, -1):
        for f in rdK(t): f()
        if t == 8:
            for f in mask_ops(SS[0], True): f()
        if t < 8: kill(t, "sm")
        a.wait_lds(None)
        a.e("s_nop 1")
        qk1(t); qk2(t)
        a.e("s_nop 7"); a.e("s_nop 3")
        S = SS[t % 2]
        for i in range(8): a.e(f"v_max3_f32 v{NM}, v{S+2*i}, v{S+2*i+1}, v{NM}")
    for f in rdK(8) + rdK(7) + (rdK(6) if NK == 3 else []): f()
    a.e(f"v_cndmask_b32 v{Q2}, v{Q2}, 0, s[42:43]")
    a.e(f"v_mov_b32 v7, v{NM}")
    a.e("s_nop 1")
    a.e(f"v_permlane32_swap_b32 v{NM}, v7")
    a.e("s_nop 1")
    a.e(f"v_max_f32 v{NM}, v{NM}, v7")
    a.e(f"v_sub_f32 v{NM}, 0, v{NM}")
    for f in mask_ops(SS[0], True): f()
    a.wait_lds("K8")
    a.e("s_nop 1")
    qk1(8)
    softmax_pass(True, "sb")
    a.e("s_branch L_fin")
    a.label("L_codeend")

def main(path):
    a = Asm()
    hdr = open(f"cdna_kernels/{NAME}.s.ref").read().split("\n")
    head = [l for l in hdr if l.startswith(";") and "@launch" not in l and "Override" not in l and "grid=ceil" not in l]
    for l in head: a.raw(l)
    a.raw(f"; @launch grid=(256,1,1) block=(512,1,1) lds={LDS_TOTAL}")
    for l in """
; ---------------------------------------------------------------------------------------------------------
; One persistent launch, 256 workgroups x 8 waves (one per CU, all co-resident: 160 KiB LDS each).
;  phase A  QKV GEMM (224 WGs, 128x128 tiles, LDS-DMA ring, 4 loader + 4 MFMA waves); gate logit rides along as
;           an extra weight column; u = shiftconv(k)*v is prepared wave-wise and stored phase-split/reversed.
;  phase B  long causal conv as Toeplitz MFMA (one channel per 4 waves, transposing LDS reads build the
;           Toeplitz fragments from 4 shifted copies of the filter).
;  phase C  sliding-window attention, S^T = K Q^T so that P feeds the PV MFMA without shuffles; the row sum comes
;           from a ones column of V.  Softmax shift: the row's own diagonal score s_ii (always inside the window) is
;           subtracted through a spare K slot; a run-time check (sum and outputs finite, sum in [2^-30, 2^100])
;           sends the wave to L_fallback, which recomputes with the true row maximum.
;  phase D  out projection + gate mix.
; Hand-offs between workgroups: write-through (sc1) stores, drained, then a flag word carrying this launch's tag;
; readers poll with sc1 loads and read with sc1 loads.  The tag is (epoch word found in d_ws)+1; the epoch is
; advanced once every workgroup has raised its last flag.  Every spin is bounded.
; ---------------------------------------------------------------------------------------------------------""".strip().split("\n"): a.raw(l)
    a.raw('.amdgcn_target "amdgcn-amd-amdhsa--gfx950"')
    a.raw(".text")
    gen(a)
    a.raw('.section .rodata,"a"')
    a.raw(kernel_desc(NAME + "_kernel", 216))
    open(path, "w").write(a.text())

if __name__ == "__main__":
    if len(sys.argv) > 2 and sys.argv[2] == "stamps":
        asmlib.STAMP_ON = True
        asmlib.STAMP_FILTER = list((sys.argv[3] if len(sys.argv) > 3 else "b8,cvk,f1,cv1,cv3,conv,f2,staged,soft,ost,f4,end").split(","))
    main(sys.argv[1] if len(sys.argv) > 1 else f"fused.s")
```

```python
import sys, struct
from asmlib import *
import asmlib

NAME = "gated_mix__sliding_block__ssm_conv_h3__prompt"
SZ = 2048 * 576 * 2
WS_QKV = 0
QKV_BYTES = 432 * 16384
WS_U = QKV_BYTES
WS_O = WS_U + SZ
WS_Z = WS_O + SZ
WS_G = WS_Z + SZ
WS_F = WS_G + 8192
WS_E = WS_F + 32768
WS_TOTAL = WS_E + 128
def f32(x): return "0x%08x" % struct.unpack("<I", struct.pack("<f", x))[0]
QSCALE = 18 ** -0.5 * 1.4426950408889634
NEGINF = "0xff800000"
SC = "sc1"
SPIN_MAX = 40000

def rnd(a, dst, src):
    a.e(f"v_cvt_pk_bf16_f32 v{dst}, 0, v{src}")
def lane_mask(fn):
    m = 0
    for l in range(64):
        if fn(l): m |= 1 << l
    return m

L_U = 0
UP = 288
L_PK = 9728
L_CNT = 22016
L_RING = 24576
L_CVK = L_RING + 32768
import os
PL = int(os.environ.get('PL', '3104'))
L_KP = L_RING
L_ONE = L_KP + 9 * PL
L_WO = (L_ONE + PL + 127) // 128 * 128
L_VP = 163840 - 9 * PL
LDS_TOTAL = 163840
assert L_WO + 73728 <= L_VP
CV_USZ = 1216

TAG = 88
ROLE, CVK, CVU, GCNT, ROUNDS, RHO, GTGT, PBASE = 90, 91, 92, 93, 94, 95, 96, 98

def prep_task(a, T_s):
    a.e(f"s_mul_i32 s40, s{T_s}, 3641")
    a.e("s_lshr_b32 s40, s40, 16")
    a.e("s_mul_i32 s41, s40, 18")
    a.e(f"s_sub_u32 s41, s{T_s}, s41")

PB = 200
def prep_setup(a):
    a.e(f"v_lshrrev_b32 v{PB+8}, 2, v0")
    a.e(f"v_and_b32 v{PB+9}, 3, v0")
    a.e(f"v_mul_u32_u24 v{PB}, 1152, v{PB+8}")
    a.e(f"v_lshlrev_b32 v{PB+1}, 1, v{PB}")
    a.e(f"v_lshl_add_u32 v{PB}, v{PB+9}, 4, v{PB}")
    a.e(f"v_lshl_add_u32 v{PB+1}, v{PB+9}, 4, v{PB+1}")
    a.e(f"v_lshlrev_b32 v{PB+2}, 4, v0")

def prep_issue(a, R):
    a.e(f"s_mul_i32 s22, s40, {32*1152}")
    a.e("s_lshl_b32 s23, s41, 6")
    a.e("s_add_u32 s22, s22, s23")
    a.e(f"v_add_u32 v{PB+3}, s22, v{PB}")
    a.e(f"v_subrev_u32 v{PB+3}, {3*1152}, v{PB+3}")
    for i in range(2):
        a.e(f"s_add_u32 m0, s{PBASE}, {256+1024*i}")
        a.e(f"s_add_u32 s23, s22, {16*1152*i}")
        a.e(f"buffer_load_dwordx4 v{PB}, s[24:27], s23 offen lds")
    a.e(f"buffer_load_dwordx4 {v(R,4)}, v{PB+1}, s[28:31], s22 offen")
    a.e(f"buffer_load_dwordx4 {v(R+4,4)}, v{PB+1}, s[28:31], s22 offen offset:1152")
    a.e(f"s_add_u32 m0, s{PBASE}, 64")
    setexec(a, 0xfff)
    a.e(f"buffer_load_dwordx4 v{PB+3}, s[24:27], 0 offen lds")
    a.e(f"s_add_u32 m0, s{PBASE}, 2304")
    a.e("s_mov_b32 exec_lo, 0xffff")
    a.e("s_lshl_b32 s23, s41, 8")
    a.e(f"buffer_load_dwordx4 v{PB+2}, s[32:35], s23 offen lds")
    a.e("s_mov_b64 exec, -1")

def prep_compute(a, VR, T):
    KR, SW = T + 52, T + 72
    UK, UW, UV, TA, OUT = T, T+20, T+36, T+44, T+88
    A0, A1, A2, A3, A4 = PB, PB+1, PB+2, PB+3, PB+4
    a.e(f"v_lshlrev_b32 v{A0}, 7, v{PB+8}")
    a.e(f"v_lshl_add_u32 v{A0}, v{PB+9}, 4, v{A0}")
    a.e(f"v_add_u32 v{A0}, s{PBASE}, v{A0}")
    a.e(f"v_lshl_add_u32 v{A1}, v{PB+9}, 6, s{PBASE}")
    for j in range(5): a.lds(f"ds_read_b128 {v(KR+4*j,4)}, v{A0} offset:{64+64*j}", "PK")
    for i in range(4): a.lds(f"ds_read_b128 {v(SW+4*i,4)}, v{A1} offset:{2304+16*i}", "PW")
    a.e("s_mov_b32 s42, 0xffff0000")
    a.e(f"v_lshrrev_b32 v{A2}, 3, v0")
    a.e(f"v_mul_u32_u24 v{A2}, {UP}, v{A2}")
    a.e(f"v_and_b32 v{A3}, 1, v{PB+8}")
    a.e(f"v_lshl_add_u32 v{A2}, v{A3}, 2, v{A2}")
    a.e(f"v_add_u32 v{A2}, v{A2}, v{A1}")
    a.e(f"v_add_u32 v{A2}, 2560, v{A2}")
    a.e(f"v_bfe_u32 v{A3}, v0, 2, 2")
    a.e(f"v_sub_u32 v{A3}, 3, v{A3}")
    a.e(f"v_mul_u32_u24 v{A3}, {UP}, v{A3}")
    a.e(f"v_lshrrev_b32 v{A4}, 4, v0")
    a.e(f"v_lshl_add_u32 v{A3}, v{A4}, 5, v{A3}")
    a.e(f"v_lshl_add_u32 v{A3}, v{PB+9}, 3, v{A3}")
    a.e(f"v_add_u32 v{A3}, s{PBASE}, v{A3}")
    a.e(f"v_lshlrev_b32 v{A4}, 12, v{PB+8}")
    a.e(f"v_lshl_add_u32 v{A4}, v{PB+9}, 4, v{A4}")
    a.e("s_lshl_b32 s22, s41, 17")
    a.e("s_lshl_b32 s23, s40, 6")
    a.e("s_add_u32 s22, s22, s23")
    a.e(f"s_add_u32 s22, s22, {WS_U}")
    a.e(f"s_add_u32 s23, s22, {16*4096}")
    for half in range(2):
        for r in range(2):
            for qq in range(2):
                a.e(f"v_lshlrev_b32 v{UV+4*r+2*qq}, 16, v{VR+4*r+2*half+qq}")
                a.e(f"v_and_b32 v{UV+4*r+2*qq+1}, s42, v{VR+4*r+2*half+qq}")
        a.wait_lds("PK")
        for r in range(5):
            for qq in range(2):
                a.e(f"v_lshlrev_b32 v{UK+4*r+2*qq}, 16, v{KR+4*r+2*half+qq}")
                a.e(f"v_and_b32 v{UK+4*r+2*qq+1}, s42, v{KR+4*r+2*half+qq}")
        a.wait_lds("PW")
        for c in range(4):
            for t in range(2):
                src = SW + (4*half+c)*2 + t
                a.e(f"v_lshlrev_b32 v{UW+4*c+2*t}, 16, v{src}")
                a.e(f"v_and_b32 v{UW+4*c+2*t+1}, s42, v{src}")
        RC = [(r, c) for r in range(2) for c in range(4)]
        for r, c in RC: a.e(f"v_mul_f32 v{TA+4*r+c}, v{UK+4*r+c}, v{UW+4*c+3}")
        for t in (1, 2, 3):
            for r, c in RC: a.e(f"v_fmac_f32 v{TA+4*r+c}, v{UK+4*(r+t)+c}, v{UW+4*c+3-t}")
        for r, c in RC: rnd(a, TA+4*r+c, TA+4*r+c)
        for r, c in RC: a.e(f"v_mul_f32 v{TA+4*r+c}, v{TA+4*r+c}, v{UV+4*r+c}")
        for c in range(4):
            a.e(f"v_cvt_pk_bf16_f32 v{OUT+4*half+c}, v{TA+c}, v{TA+4+c}")
        for c in range(4*half, 4*half+4, 2):
            a.lds(f"ds_write2_b32 v{A2}, v{OUT+c}, v{OUT+c+1} offset0:{2*c} offset1:{2*c+2}")
    for d in range(2):
        a.lds(f"ds_read_b64_tr_b16 {v(T+4*d,2)}, v{A3} offset:{2560+4*UP+128*d}", f"PT{d}")
        a.lds(f"ds_read_b64_tr_b16 {v(T+4*d+2,2)}, v{A3} offset:{2560+128*d}", f"PT{d}")
    for d in range(2):
        a.wait_lds(f"PT{d}")
        a.e(f"buffer_store_dwordx4 {v(T+4*d,4)}, v{A4}, s[36:39], s{22+d} offen {SC}")

def tag_make(a):
    a.e(f"v_readfirstlane_b32 s{TAG}, v214")
    a.e(f"v_readfirstlane_b32 s{TAG+1}, v215")
    a.e(f"v_mov_b32 v212, {L_CNT+192}")
    a.e(f"s_add_u32 s{TAG}, s{TAG}, 1")
    a.e(f"s_addc_u32 s{TAG+1}, s{TAG+1}, 0")
    a.e(f"s_or_b32 s{TAG+1}, s{TAG+1}, 0x80000000")
    a.e(f"v_mov_b32 v214, s{TAG}")
    a.e(f"v_mov_b32 v215, s{TAG+1}")
    a.lds("ds_write_b64 v212, v[214:215]")

def last_arriver(a, off, n, T, skip):
    a.e(f"v_mov_b32 v{T}, {L_CNT+off}")
    a.e(f"v_mov_b32 v{T+1}, 1")
    a.e("s_mov_b64 exec, 1")
    a.e(f"ds_add_rtn_u32 v{T+1}, v{T}, v{T+1}")
    a.e("s_mov_b64 exec, -1")
    a.e("s_waitcnt lgkmcnt(0)")
    a.e(f"v_readfirstlane_b32 s22, v{T+1}")
    a.e(f"s_cmp_lg_u32 s22, {n-1}")
    a.e(f"s_cbranch_scc1 {skip}")

def tag_from_lds(a, T):
    a.e(f"v_mov_b32 v{T}, {L_CNT+192}")
    a.lds(f"ds_read_b64 {v(T+2,2)}, v{T}", "TG")
    a.wait_lds("TG")
    a.e(f"v_readfirstlane_b32 s{TAG}, v{T+2}")
    a.e(f"v_readfirstlane_b32 s{TAG+1}, v{T+3}")

def flag_write(a, stage, T):
    a.e("s_lshl_b32 s22, s2, 7")
    a.e(f"s_add_u32 s22, s22, {WS_F + 8*stage}")
    a.e(f"v_mov_b32 v{T}, s22")
    a.e(f"v_mov_b32 v{T+2}, s{TAG}")
    a.e(f"v_mov_b32 v{T+3}, s{TAG+1}")
    a.e("s_mov_b64 exec, 1")
    a.vmem(f"buffer_store_dwordx2 {v(T+2,2)}, v{T}, s[36:39], 0 offen sc0 sc1", "FL")
    a.e("s_mov_b64 exec, -1")

def flag_wait(a, stage, W, T, sleep=2):
    a.e(f"v_lshlrev_b32 v{W}, 7, v{W}")
    a.e(f"s_mov_b32 s22, {WS_F + 8*stage}")
    l = a.newlabel("fspin"); d = a.newlabel("fdone")
    a.e(f"s_mov_b32 s97, {SPIN_MAX}")
    a.label(l)
    a.e(f"buffer_load_dwordx2 {v(T,2)}, v{W}, s[36:39], s22 offen sc0 sc1")
    a.e("s_waitcnt vmcnt(0)"); a.vm = []
    a.e(f"v_cmp_ne_u64 vcc, s[{TAG}:{TAG+1}], {v(T,2)}")
    a.e(f"s_cbranch_vccz {d}")
    a.e(f"s_sleep {sleep}")
    a.e("s_sub_u32 s97, s97, 1")
    a.e(f"s_cbranch_scc0 {l}")
    a.label(d)

def group_barrier(a, T):
    a.e(f"v_mov_b32 v{T}, s{GCNT}")
    a.e(f"v_mov_b32 v{T+1}, 1")
    a.e(f"s_add_u32 s{GTGT}, s{GTGT}, 4")
    a.wait_lds(None)
    a.e("s_mov_b64 exec, 1")
    a.e(f"ds_add_u32 v{T}, v{T+1}")
    a.e("s_mov_b64 exec, -1")
    lds_spin(a, T, f"s{GTGT}")

def lds_spin(a, T, target, fast=False):
    l = a.newlabel("gb"); d = a.newlabel("gbd")
    a.e(f"s_mov_b32 s97, {SPIN_MAX*8}")
    a.label(l)
    a.e(f"ds_read_b32 v{T+1}, v{T}")
    a.e("s_sub_u32 s97, s97, 1")
    a.e(f"s_cbranch_scc1 {d}")
    a.e("s_waitcnt lgkmcnt(0)")
    a.e(f"v_readfirstlane_b32 s22, v{T+1}")
    a.e(f"s_cmp_ge_u32 s22, {target}")
    a.e(f"s_cbranch_scc1 {d}")
    if not fast: a.e("s_sleep 1")
    a.e(f"s_branch {l}")
    a.label(d)
    a.e("s_waitcnt lgkmcnt(0)")

L_Q = 10240

def convk_issue(a, CH_s, RH, R, tag):
    a.e(f"s_lshl_b32 s20, s{CH_s}, 12")
    a.e("s_add_u32 s24, s14, s20")
    a.e("s_addc_u32 s25, s15, 0")
    a.e("s_mov_b32 s26, 4096")
    a.e("s_mov_b32 s27, 0x00020000")
    a.e(f"s_add_u32 s21, s{RH}, 1")
    a.e("s_lshr_b32 s21, s21, 1")
    a.e("s_lshl_b32 s21, s21, 2")
    a.e("v_lshlrev_b32 v4, 4, v0")
    a.e("v_subrev_u32 v4, s21, v4")
    a.e("v_add_u32 v5, 1024, v4")
    a.e("v_add_u32 v6, 16, v4")
    a.vmem(f"buffer_load_dwordx4 {v(R,4)}, v4, s[24:27], 0 offen", tag)
    for i in range(3): a.vmem(f"buffer_load_dwordx4 {v(R+6+6*i,4)}, v5, s[24:27], 0 offen offset:{1024*i}", tag)
    for i in range(4): a.vmem(f"buffer_load_dword v{R+6*i+4}, v6, s[24:27], 0 offen offset:{1024*i}", tag)
    a.e("v_lshlrev_b32 v4, 1, v0")
    a.e(f"s_lshl_b32 s21, s{RH}, 1")
    a.e("v_subrev_u32 v4, s21, v4")
    a.e("v_subrev_u32 v4, 32, v4")
    a.vmem(f"buffer_load_ushort v{R+24}, v4, s[24:27], 0 offen", tag)

def convk_write(a, RH, KD, koff, R, tag):
    a.e(f"s_and_b32 s21, s{RH}, 1")
    a.e("s_lshl_b32 s21, s21, 4")
    a.e(f"v_lshl_add_u32 v4, v0, 4, s{KD}")
    a.e(f"v_lshl_add_u32 v5, v0, 1, s{KD}")
    a.wait_vm(tag)
    for i in range(4):
        for j in range(4):
            a.e(f"v_alignbit_b32 v{R+6*i+j}, v{R+6*i+j+1}, v{R+6*i+j}, s21")
        a.lds(f"ds_write_b128 v4, {v(R+6*i,4)} offset:{koff+32+1024*i}")
    setexec(a, 0xffffff)
    a.lds(f"ds_write_b16 v5, v{R+24} offset:{koff}")
    a.e("s_mov_b64 exec, -1")

def convu_wait(a):
    a.e("s_lshr_b32 s21, s3, 5")
    a.e("v_mul_u32_u24 v8, 18, v0")
    a.e("v_add_u32 v8, s21, v8")
    a.e("v_and_b32 v9, 31, v8")
    a.e("v_add_u32 v9, 224, v9")
    a.e("v_cmp_gt_u32 vcc, 256, v8")
    a.e("v_subrev_u32 v8, 256, v8")
    a.e("v_lshrrev_b32 v8, 2, v8")
    a.e("v_cndmask_b32 v8, v8, v9, vcc")
    flag_wait(a, 0, 8, 10, 6)

def convu_issue(a, CH_s, UD, rhos, tag):
    a.e("v_sub_u32 v4, 63, v0")
    a.e("v_lshlrev_b32 v4, 6, v4")
    a.e(f"s_lshl_b32 s21, s{CH_s}, 12")
    a.e(f"s_add_u32 s21, s21, {WS_U}")
    a.e(f"s_mov_b32 s23, s{UD}")
    if rhos[0] == 's':
        a.e(f"s_lshl_b32 s20, s{rhos[1]}, 4")
        a.e("s_add_u32 s21, s21, s20")
        a.e(f"s_mul_i32 s20, s{rhos[1]}, {CV_USZ}")
        a.e("s_add_u32 s23, s23, s20")
        rhos = [0]
    a.e("v_lshl_add_u32 v5, v0, 1, s23")
    a.e("v_mov_b32 v6, 0")
    for r in rhos:
        a.e(f"s_add_u32 m0, s23, {CV_USZ*r}")
        a.lds(f"ds_write_b16 v5, v6 offset:{1024+CV_USZ*r}")
        a.vmem(f"buffer_load_dwordx4 v4, s[36:39], s21 offen {SC} lds", tag)
        a.e("s_add_u32 s21, s21, 16")

def kshift(a, KX):
    for i in range(4):
        X = KX + 4*i; R1, R2, R3 = 64+12*i, 68+12*i, 72+12*i
        a.e("v_mov_b32 v6, 0"); a.e("v_mov_b32 v7, 0")
        if i:
            a.e(f"v_readlane_b32 s20, v{X-2}, 63")
            a.e(f"v_readlane_b32 s21, v{X-1}, 63")
            a.e("s_nop 1")
            a.e("v_mov_b32 v6, s20"); a.e("v_mov_b32 v7, s21")
        a.e("s_nop 1")
        a.e(f"v_mov_b32_dpp v6, v{X+2} wave_shr:1 row_mask:0xf bank_mask:0xf")
        a.e(f"v_mov_b32_dpp v7, v{X+3} wave_shr:1 row_mask:0xf bank_mask:0xf")
        a.e(f"v_alignbit_b32 v{R1}, v{X}, v7, 16")
        for j in range(1, 4): a.e(f"v_alignbit_b32 v{R1+j}, v{X+j}, v{X+j-1}, 16")
        a.e(f"v_mov_b32 v{R2}, v7")
        for j in range(1, 4): a.e(f"v_mov_b32 v{R2+j}, v{X+j-1}")
        a.e(f"v_alignbit_b32 v{R3}, v7, v6, 16")
        for j in range(1, 4): a.e(f"v_mov_b32 v{R3+j}, v{R1+j-1}")

def kwrite(a, KX):
    a.e("v_lshl_add_u32 v4, v0, 4, s41")
    for i in range(4):
        for (r, R_) in ((0, KX+4*i), (1, 64+12*i), (2, 68+12*i), (3, 72+12*i)):
            a.lds(f"ds_write_b128 v4, {v(R_,4)} offset:{8192*r+32+1024*i}")
    a.e("v_mov_b32 v6, 0"); a.e("v_mov_b32 v7, 0")
    a.e("v_lshl_add_u32 v4, v0, 3, s41")
    setexec(a, 0xf)
    for r in range(4): a.lds(f"ds_write_b64 v4, v[6:7] offset:{8192*r}")
    a.e("s_mov_b64 exec, -1")

def lds_add(a, T, off):
    a.e("s_mov_b64 exec, 1")
    a.lds(f"ds_add_u32 v{T}, v{T+1} offset:{off}")
    a.e("s_mov_b64 exec, -1")
PW2 = 4864
VD = 180
FULL, FREE = 64, 100
import os
OPT = os.environ.get('OPT', 'E')
ROTX = tuple(int(x) for x in os.environ['ROTX'].split(',')) if 'ROTX' in os.environ else None
TOK_AT = int(os.environ.get('TOK', '15'))
SCHED = int(os.environ.get('SCHED', '0'))
F1_AT = int(os.environ.get('F1AT', '1'))

def code_touch(a, K, lbl):
    a.e("s_getpc_b64 s[20:21]")
    a.label(lbl)
    a.e(f"s_add_u32 s20, s20, L_conv-{lbl}")
    a.e("s_addc_u32 s21, s21, 0")
    a.e("s_mov_b32 s22, L_fallback-L_conv")
    a.e("s_mov_b32 s23, 0x00020000")
    a.e("v_lshlrev_b32 v2, 7, v0")
    a.e("s_movk_i32 s19, 0x2000")
    a.e("buffer_load_dword v197, v2, s[20:23], 0 offen")
    a.e("buffer_load_dword v198, v2, s[20:23], s19 offen")

def gen(a):
    K = NAME + "_kernel"
    kernel_head(a, K)
    a.e("s_cmp_ge_u32 s2, 256")
    a.e("s_cbranch_scc1 L_end")
    st = NStamps(a); st.real("rt0"); st("t0")
    a.e("s_load_dwordx4 s[4:7], s[0:1], 0")
    a.e("s_load_dwordx4 s[8:11], s[0:1], 32")
    a.e("s_load_dwordx4 s[12:15], s[0:1], 48")
    a.e("s_load_dwordx2 s[16:17], s[0:1], 96")
    a.e("v_lshrrev_b32 v1, 6, v0")
    a.e("v_and_b32 v0, 63, v0")
    a.e("v_readfirstlane_b32 s18, v1")
    if "R" in OPT:
        a.e("s_cmp_lg_u32 s18, 3")
        a.e("s_cbranch_scc1 L_nct0")
        a.e("s_getpc_b64 s[20:21]")
        a.label("L_pc0")
        a.e("s_mov_b32 s22, L_conv-L_pc0")
        a.e("s_mov_b32 s23, 0x00020000")
        a.e("v_lshlrev_b32 v2, 7, v0")
        a.e("s_movk_i32 s19, 0x2000")
        a.e("buffer_load_dword v197, v2, s[20:23], 0 offen")
        a.e("buffer_load_dword v198, v2, s[20:23], s19 offen")
        a.label("L_nct0")
    a.e("v_lshlrev_b32 v12, 2, v0")
    a.e("v_mov_b32 v13, 0")
    a.e(f"ds_write_b32 v12, v13 offset:{L_CNT}")
    a.e("s_and_b32 s43, s2, 3")
    a.e("s_lshl_b32 s43, s43, 2")
    a.e("s_bfe_u32 s19, s2, 0x20003")
    a.e("s_add_u32 s43, s43, s19")
    a.e("s_bfe_u32 s44, s2, 0x10002")
    a.e("s_mul_i32 s44, s44, 7")
    a.e("s_lshr_b32 s45, s2, 5")
    a.e("s_add_u32 s44, s44, s45")
    RB, CT = 43, 44
    a.e(f"s_and_b32 s{RHO}, s18, 3")
    a.e("s_lshr_b32 s19, s18, 2")
    a.e(f"s_lshl_b32 s{CVK}, s18, 13")
    a.e(f"s_add_u32 s{CVK}, s{CVK}, {L_CVK}")
    a.e(f"s_mul_i32 s{CVU}, s19, {4*CV_USZ}")
    a.e(f"s_lshl_b32 s{GCNT}, s19, 2")
    a.e(f"s_add_u32 s{GCNT}, s{GCNT}, {L_CNT}")
    a.e(f"s_mov_b32 s{GTGT}, 0")
    a.e(f"s_mov_b32 s{ROLE}, s19")
    a.e(f"s_mov_b32 s{ROUNDS}, 1")
    a.e("s_lshl_b32 s3, s2, 1")
    a.e("s_add_u32 s3, s3, s19")
    a.e("s_add_u32 s3, s3, 128")
    a.e("s_lshl_b32 s19, s18, 5")
    a.e("s_and_b32 s20, s2, 31")
    a.e("s_add_u32 s19, s19, s20")
    a.e("s_lshl_b32 s20, s2, 2")
    a.e("s_add_u32 s20, s20, s18")
    a.e("s_add_u32 s20, s20, 252")
    a.e("s_cmp_ge_u32 s18, 4")
    a.e("s_cselect_b32 s20, s20, -1")
    a.e(f"s_mul_i32 s21, s{RHO}, {PW2}")
    a.e(f"s_mul_i32 s{PBASE}, s18, {PW2}")
    a.e(f"s_add_u32 s{PBASE}, s{PBASE}, {L_RING}")
    a.e("s_cmp_eq_u32 s45, 7")
    a.e("s_cselect_b32 s99, s19, s20")
    a.e(f"s_cselect_b32 s{PBASE}, s{PBASE}, s21")
    prep_setup(a)
    prep_task(a, 99)
    if "H" in OPT:
        a.e("v_lshrrev_b32 v4, 4, v0")
        a.e("v_lshlrev_b32 v6, 1, v4")
        a.e("v_and_b32 v7, 15, v0")
        a.e("v_xor_b32 v6, v6, v7")
        a.e("v_mul_u32_u24 v5, 3456, v4")
        a.e("v_lshl_add_u32 v2, v6, 4, v5")
        a.e("v_xor_b32 v6, 8, v6")
        a.e("v_lshl_add_u32 v3, v6, 4, v5")
        a.e("v_lshrrev_b32 v5, 3, v0")
        a.e("v_mul_u32_u24 v6, 2304, v5")
        a.e("v_lshrrev_b32 v5, 1, v5")
        a.e("v_and_b32 v7, 7, v0")
        a.e("v_xor_b32 v5, v5, v7")
        a.e("v_lshl_add_u32 v8, v5, 4, v6")
        a.e("v_xor_b32 v5, 4, v5")
        a.e("v_lshl_add_u32 v9, v5, 4, v6")
        a.e(f"v_add_u32 v9, {8*2304}, v9")
        a.e("s_lshr_b32 s46, s2, 3")
        if ROTX:
            ra, rb_, rc = ROTX
            a.e("s_and_b32 s19, s2, 3")
            a.e(f"s_mul_i32 s19, s19, {ra}")
            a.e("s_bfe_u32 s20, s2, 0x10002")
            a.e(f"s_mul_i32 s20, s20, {rb_}")
            a.e("s_add_u32 s19, s19, s20")
            a.e("s_bfe_u32 s20, s2, 0x20003")
            a.e(f"s_mul_i32 s20, s20, {rc}")
            a.e("s_add_u32 s19, s19, s20")
            a.e("s_add_u32 s46, s46, s19")
        a.e("s_mul_i32 s19, s46, 57")
        a.e("s_lshr_b32 s19, s19, 9")
        a.e("s_mul_i32 s19, s19, 9")
        a.e("s_sub_u32 s46, s46, s19")
    a.e("s_waitcnt lgkmcnt(0)")
    if "J" in OPT: a.e("s_barrier")
    a.e("s_cmp_eq_u32 s99, -1")
    a.e("s_cbranch_scc1 L_nopi")
    srd(a, 24, 8, SZ); srd(a, 28, 10, SZ); srd(a, 32, 12, 576*8)
    srd(a, 36, 16, WS_TOTAL)
    a.e(f"v_mov_b32 v212, {WS_E}")
    a.e("buffer_load_dwordx2 v[214:215], v212, s[36:39], 0 offen sc0 sc1")
    prep_issue(a, VD)
    a.label("L_nopi")
    if "J" not in OPT: a.e("s_barrier")
    a.e("s_cmp_eq_u32 s45, 7")
    a.e("s_cbranch_scc1 L_spare")
    a.e("s_cmp_ge_u32 s18, 4")
    a.e("s_cbranch_scc1 L_mma")
    n0 = st.n
    a.label("L_ld")
    a.e("s_setprio 3")
    if "H" not in OPT:
        a.e("v_lshrrev_b32 v4, 4, v0")
        a.e("v_lshlrev_b32 v6, 1, v4")
        a.e("v_and_b32 v7, 15, v0")
        a.e("v_xor_b32 v6, v6, v7")
        a.e("v_mul_u32_u24 v5, 3456, v4")
        a.e("v_lshl_add_u32 v2, v6, 4, v5")
        a.e("v_xor_b32 v6, 8, v6")
        a.e("v_lshl_add_u32 v3, v6, 4, v5")
        a.e("v_lshrrev_b32 v5, 3, v0")
        a.e("v_mul_u32_u24 v6, 2304, v5")
        a.e("v_lshrrev_b32 v5, 1, v5")
        a.e("v_and_b32 v7, 7, v0")
        a.e("v_xor_b32 v5, v5, v7")
        a.e("v_lshl_add_u32 v8, v5, 4, v6")
        a.e("v_xor_b32 v5, 4, v5")
        a.e("v_lshl_add_u32 v9, v5, 4, v6")
        a.e(f"v_add_u32 v9, {8*2304}, v9")
        a.e("s_lshr_b32 s46, s2, 3")
        if ROTX:
            ra, rb_, rc = ROTX
            a.e("s_and_b32 s19, s2, 3")
            a.e(f"s_mul_i32 s19, s19, {ra}")
            a.e("s_bfe_u32 s20, s2, 0x10002")
            a.e(f"s_mul_i32 s20, s20, {rb_}")
            a.e("s_add_u32 s19, s19, s20")
            a.e("s_bfe_u32 s20, s2, 0x20003")
            a.e(f"s_mul_i32 s20, s20, {rc}")
            a.e("s_add_u32 s19, s19, s20")
            a.e("s_add_u32 s46, s46, s19")
        a.e("s_mul_i32 s19, s46, 57")
        a.e("s_lshr_b32 s19, s19, 9")
        a.e("s_mul_i32 s19, s19, 9")
        a.e("s_sub_u32 s46, s46, s19")
    a.e(f"s_mul_i32 s19, s{RB}, {128*1152}")
    a.e(f"s_lshl_b32 s20, s{CT}, 8")
    a.e("s_add_u32 s48, s4, s19")
    a.e("s_addc_u32 s49, s5, 0")
    a.e(f"s_mov_b32 s50, {128*1152}")
    a.e("s_mov_b32 s51, 0x00020000")
    a.e("s_add_u32 s52, s6, s20")
    a.e("s_addc_u32 s53, s7, 0")
    a.e(f"s_sub_u32 s54, {576*3456}, s20")
    a.e("s_mov_b32 s55, 0x00020000")
    a.e("s_load_dwordx2 s[28:29], s[0:1], 72")
    a.e("v_and_b32 v13, 3, v0")
    a.e("v_bfe_u32 v14, v0, 3, 1")
    a.e("v_lshl_or_b32 v13, v14, 2, v13")
    a.e("v_xor_b32 v13, 4, v13")
    a.e("v_lshlrev_b32 v13, 5, v13")
    a.e("v_lshl_add_u32 v14, v0, 8, v13")
    a.e("v_lshlrev_b32 v15, 1, v0")
    a.e(f"v_mov_b32 v10, {L_CNT}")
    a.e("v_mov_b32 v11, 1")
    srd(a, 36, 16, WS_TOTAL)
    a.e("s_mov_b32 s58, s18")
    a.e("s_branch L_ld_go")
    a.label("L_ld_issue")
    a.e("s_mov_b64 exec, 1")
    a.e("ds_add_rtn_u32 v12, v10, v11 offset:28")
    a.e("s_mov_b64 exec, -1")
    a.e("s_waitcnt lgkmcnt(0)")
    a.e("v_readfirstlane_b32 s58, v12")
    a.e("s_add_u32 s58, s58, 4")
    a.e("s_cmp_gt_u32 s58, 8")
    a.e("s_cbranch_scc1 L_ld_done")
    a.e("s_lshl_b32 s19, s58, 2")
    a.e(f"s_add_u32 s19, s19, {L_CNT+FREE-16}")
    a.e("v_mov_b32 v12, s19")
    lds_spin(a, 12, 4, "S" in OPT)
    a.label("L_ld_go")
    a.e("s_add_u32 s59, s46, s58")
    a.e("s_sub_u32 s19, s59, 9")
    a.e("s_cmp_ge_u32 s59, 9")
    a.e("s_cselect_b32 s59, s19, s59")
    a.e("s_and_b32 s47, s58, 3")
    a.e("s_lshl_b32 s47, s47, 15")
    a.e(f"s_add_u32 s47, s47, {L_RING}")
    a.e(f"s_mul_i32 s19, s59, {64*3456}")
    a.e("s_lshl_b32 s20, s59, 7")
    a.e(f"v_mov_b32 v12, {L_CNT+24}")
    lds_spin(a, 12, "s58", "S" in OPT)
    for i in range(16):
        a.e(f"s_add_u32 m0, s47, {1024*i}")
        if i and i % 2 == 0: a.e(f"s_add_u32 s20, s20, {1152 if (i//2) % 2 else 31*1152}")
        else: a.e("s_nop 0")
        a.e(f"buffer_load_dwordx4 v{3 if (i//2) % 2 else 2}, s[52:55], s19 offen lds")
        a.e(f"s_add_u32 m0, s47, {16384+1024*i}")
        a.e(f"s_add_u32 s19, s19, {4*3456}")
        a.e(f"buffer_load_dwordx4 v{8 + i % 2}, s[48:51], s20 offen lds")
        if i == TOK_AT: lds_add(a, 10, 24)
    a.e(f"s_cmp_lg_u32 s{CT}, 13")
    a.e("s_cbranch_scc1 L_ld_ng")
    a.e("s_mov_b32 s30, 1152")
    a.e("s_mov_b32 s31, 0x00020000")
    a.e("s_lshl_b32 s20, s59, 7")
    a.e("buffer_load_ushort v16, v15, s[28:31], s20 offen")
    a.e("v_add_u32 v17, s47, v14")
    a.e("s_waitcnt vmcnt(0)")
    a.e("ds_write_b16 v17, v16")
    a.label("L_ld_ng")
    a.e("s_lshl_b32 s19, s58, 2")
    a.e("v_add_u32 v12, s19, v10")
    a.e("s_waitcnt vmcnt(0)")
    a.e("s_mov_b64 exec, 1")
    a.e(f"ds_add_u32 v12, v11 offset:{FULL}")
    a.e("s_mov_b64 exec, -1")
    a.e("s_branch L_ld_issue")
    a.label("L_ld_done")
    a.e("s_setprio 0")
    st("b8")
    a.e("s_cmp_ge_u32 s18, 2")
    a.e("s_cbranch_scc1 L_aux2")
    if "Q" in OPT:
        a.e("s_cmp_lg_u32 s18, 0")
        a.e("s_cbranch_scc1 L_cvwait")
        code_touch(a, K, "L_pc2")
    a.e("s_branch L_cvwait")
    a.label("L_aux2")
    a.reset_counters()
    a.e(f"v_mov_b32 v20, {L_CNT+196}")
    lds_spin(a, 20, "0x80000000")
    tag_from_lds(a, 20)
    a.e("s_and_b32 s46, s18, 1")
    a.e(f"v_mov_b32 v4, {L_CNT+12}")
    lds_spin(a, 4, 4)
    a.e("s_add_u32 s56, s3, s46")
    a.e("s_lshl_b32 s20, s56, 12")
    srd(a, 48, 14, SZ)
    a.e("v_lshlrev_b32 v4, 4, v0")
    KX = 128
    for i in range(4): a.vmem(f"buffer_load_dwordx4 {v(KX+4*i,4)}, v4, s[48:51], s20 offen offset:{1024*i}", "K")
    a.e("v_mov_b32 v3, 1")
    st("m0")
    convu_wait(a)
    st("m2")
    a.e(f"s_mul_i32 s41, s46, {4*CV_USZ}")
    convu_issue(a, 56, 41, [0, 1, 2, 3], "U")
    kshift(a, KX)
    a.e("s_lshl_b32 s21, s46, 2")
    a.e(f"s_add_u32 s21, s21, {L_CNT+FREE+20}")
    a.e("v_mov_b32 v4, s21")
    lds_spin(a, 4, 4)
    st("m5")
    a.e("s_lshl_b32 s41, s46, 15")
    a.e(f"s_add_u32 s41, s41, {L_CVK}")
    kwrite(a, KX)
    st("m6")
    a.wait_vm(None)
    st("m7"); st("m8")
    a.e("s_lshl_b32 s21, s46, 2")
    a.e(f"s_add_u32 s21, s21, {L_CNT+16}")
    a.e("v_mov_b32 v4, s21")
    a.lds("ds_write_b32 v4, v3")
    a.e("s_setprio 0")
    a.label("L_cvwait")
    st("cvk")
    a.e(f"s_lshl_b32 s21, s{ROLE}, 2")
    a.e(f"s_add_u32 s21, s21, {L_CNT+16}")
    a.e("v_mov_b32 v1, s21")
    lds_spin(a, 1, 1)
    tag_from_lds(a, 8)
    st("f1")
    a.e("s_branch L_conv")
    a.label("L_mma")
    a.reset_counters()
    st.n = n0; st.names = st.names[:n0]
    a.e("s_setprio 1")
    srd(a, 36, 16, WS_TOTAL)
    a.e("s_cmp_eq_u32 s99, -1")
    a.e("s_cbranch_scc1 L_mnp")
    a.e("s_waitcnt vmcnt(0)")
    st("p0")
    tag_make(a)
    prep_compute(a, VD, 64)
    st("p1")
    a.label("L_mnp")
    a.reset_counters()
    WA, XA, ACC, FR = 2, 10, 16, 80
    a.e("v_lshrrev_b32 v12, 4, v0")
    a.e("v_bfe_u32 v13, v0, 2, 2")
    a.e("v_and_b32 v14, 1, v12")
    a.e("v_lshl_or_b32 v14, v14, 2, v13")
    a.e("s_and_b32 s22, s18, 1")
    a.e("s_lshl_b32 s22, s22, 2")
    a.e("v_xor_b32 v14, s22, v14")
    a.e("v_lshl_add_u32 v15, v12, 3, v13")
    a.e("v_lshlrev_b32 v15, 8, v15")
    a.e("v_lshl_add_u32 v15, v14, 5, v15")
    a.e("v_and_b32 v14, 3, v0")
    a.e("v_lshl_add_u32 v15, v14, 3, v15")
    a.e(f"v_add_u32 v{WA}, {L_RING}, v15")
    for mt in range(1, 4): a.e(f"v_xor_b32 v{WA+mt}, {32*mt}, v{WA}")
    for mt in range(4): a.e(f"v_add_u32 v{WA+4+mt}, 0x10000, v{WA+mt}")
    SO = 1
    a.e("v_and_b32 v13, 15, v0")
    a.e(f"s_lshl_b32 s21, s{CT}, 5")
    a.e("s_lshl_b32 s22, s22, 2")
    a.e("s_add_u32 s56, s21, s22")
    a.e("v_add_u32 v14, s56, v12")
    a.e("v_lshlrev_b32 v14, 14, v14")
    a.e("s_bfe_u32 s23, s18, 0x10001")
    a.e(f"s_lshl_b32 s21, s{RB}, 10")
    a.e("s_lshl_b32 s22, s23, 9")
    a.e("s_add_u32 s21, s21, s22")
    a.e("v_lshl_add_u32 v14, v13, 4, v14")
    a.e(f"v_add_u32 v{SO}, s21, v14")
    a.e("v_lshrrev_b32 v14, 1, v13")
    a.e("v_xor_b32 v14, v14, v12")
    a.e("s_lshl_b32 s21, s23, 13")
    a.e(f"s_add_u32 s21, s21, {L_RING+16384}")
    a.e("v_lshlrev_b32 v15, 7, v13")
    a.e("v_lshl_add_u32 v15, v14, 4, v15")
    a.e(f"v_add_u32 v{XA}, s21, v15")
    a.e(f"v_xor_b32 v{XA+1}, 64, v{XA}")
    a.e(f"v_add_u32 v{XA+2}, 0x10000, v{XA}")
    a.e(f"v_add_u32 v{XA+3}, 0x10000, v{XA+1}")
    a.e("s_waitcnt lgkmcnt(0)"); a.lgkm = []
    srd(a, 48, 16, QKV_BYTES)
    srd(a, 36, 16, WS_TOTAL)
    def reads(c):
        f = FR + 64 * (c % 2); slot = c % 4; hb = slot // 2; ob = 32768 * (slot % 2)
        out = []
        for kh in range(2):
            for i in range(4):
                for hf in range(2):
                    out.append(lambda kh=kh, mt=i, hf=hf: a.lds(f"ds_read_b64_tr_b16 {v(f+16*kh+4*mt+2*hf,2)}, v{WA+4*hb+mt} offset:{ob+(32*kh+4*hf)*256}", f"F{c}_{kh}"))
                out.append(lambda kh=kh, nt=i: a.lds(f"ds_read_b128 {v(f+32+16*kh+4*nt,4)}, v{XA+2*hb+kh} offset:{ob+2048*nt}", f"F{c}_{kh}"))
        return out
    a.e(f"v_mov_b32 v208, {L_CNT}")
    a.e("v_mov_b32 v209, 1")
    def poll_issue(c): a.lds(f"ds_read_b32 v210, v208 offset:{FULL+4*c}", f"poll{c}")
    def poll_check(c):
        a.wait_lds(f"poll{c}")
        d = a.newlabel("full")
        a.e("v_readfirstlane_b32 s22, v210")
        a.e("s_cmp_ge_u32 s22, 1")
        a.e(f"s_cbranch_scc1 {d}")
        a.e(f"v_add_u32 v210, {FULL+4*c}, v208")
        lds_spin(a, 210, 1, "C" in OPT)
        a.label(d)
        st(f"m{c}")
    poll_issue(0); poll_check(0)
    for r_ in reads(0): r_()
    a.wait_lds(None)
    lds_add(a, 208, FREE)
    poll_issue(1)
    for c in range(9):
        f = FR + 64 * (c % 2)
        fill = []
        if c + 1 < 9:
            poll_check(c + 1)
            rr = reads(c + 1)
            fill = [(lambda x=rr[2*i], y=rr[2*i+1]: (x(), y())) for i in range(12)] + [None] * 5
            def free_(c=c):
                a.wait_lds(None)
                if c + 1 < 7: lds_add(a, 208, FREE + 4*(c+1))
            fill += [free_] + [None] * 8
            if c + 2 < 9: fill += [lambda c=c: poll_issue(c + 2)]
        else:
            a.wait_lds(None)
        if c == 7: st("b8")
        if c == F1_AT:
            a.e("s_cmp_eq_u32 s99, -1")
            a.e("s_cbranch_scc1 L_nf1")
            a.e("s_waitcnt vmcnt(0)")
            a.e("s_mov_b64 exec, 1")
            a.e("ds_add_rtn_u32 v212, v208, v209 offset:12")
            a.e("s_mov_b64 exec, -1")
            a.e("s_waitcnt lgkmcnt(0)")
            a.e("v_readfirstlane_b32 s22, v212")
            a.e("s_cmp_lg_u32 s22, 3")
            a.e("s_cbranch_scc1 L_nf1")
            flag_write(a, 0, 212); a.vm.pop()
            a.label("L_nf1")
        order = [(kh, nt, mt) for kh in range(2) for nt in range(4) for mt in range(4)]
        def epi(mt):
            r_ = Rec(a)
            for nt in range(4):
                ac = ACC + (mt*4+nt)*4
                for i in range(4): r_.e(f"v_mul_f32 v{ac+i}, s21, v{ac+i}")
                t = FR + 64 + (mt*4+nt)*2
                r_.e(f"v_cvt_pk_bf16_f32 v{t}, v{ac}, v{ac+1}")
                r_.e(f"v_cvt_pk_bf16_f32 v{t+1}, v{ac+2}, v{ac+3}")
                if nt == 1:
                    r_.e(f"s_mov_b32 s19, {mt*65536}")
                    r_.vmem(f"buffer_store_dwordx4 {v(FR+64+mt*8,4)}, v{SO}, s[48:51], s19 offen {SC}")
            r_.vmem(f"buffer_store_dwordx4 {v(FR+64+mt*8+4,4)}, v{SO}, s[48:51], s19 offen offset:256 {SC}")
            return r_.ops
        eq = []
        if c == 8:
            order = [(kh, nt, mt) for mt in range(4) for kh in range(2) for nt in range(4)]
            a.e(f"s_mov_b32 s20, {f32(QSCALE)}")
            a.e("s_cmp_lt_u32 s56, 144")
            a.e("s_cselect_b32 s21, s20, 1.0")
        for n_, (kh, nt, mt) in enumerate(order):
            acc = v(ACC + (mt*4+nt)*4, 4)
            first = (c == 0 and kh == 0)
            a.e(f"v_mfma_f32_16x16x32_bf16 {acc}, {v(f+16*kh+4*mt,4)}, {v(f+32+16*kh+4*nt,4)}, {0 if first else acc}")
            if fill:
                x_ = fill.pop(0)
                if x_: x_()
            if c == 8:
                if n_ % 8 == 4 and n_ >= 8: eq += epi(n_ // 8 - 1)
                for _ in range(4):
                    if eq: eq.pop(0)()
    while eq: eq.pop(0)()
    a.e("s_nop 3")
    for x_ in epi(3): x_()
    a.e("s_cmp_lt_u32 s56, 432")
    a.e("s_cbranch_scc1 L_mdone")
    a.e("s_nop 7")
    G0 = 208
    for nt in range(4): rnd(a, G0+nt, ACC+4*nt)
    for nt in range(4): a.e(f"v_mul_f32 v{G0+nt}, {f32(-1.4426950408889634)}, v{G0+nt}")
    for nt in range(4): a.e(f"v_exp_f32 v{G0+nt}, v{G0+nt}")
    for nt in range(4): a.e(f"v_add_f32 v{G0+nt}, 1.0, v{G0+nt}")
    for nt in range(4): a.e(f"v_rcp_f32 v{G0+nt}, v{G0+nt}")
    for nt in range(4): rnd(a, G0+nt, G0+nt)
    a.e(f"v_and_b32 v2, 0x3fff, v{SO}")
    a.e("v_lshrrev_b32 v2, 1, v2")
    a.e(f"s_mov_b32 s19, {WS_G}")
    setexec(a, 0xffff)
    a.e(f"buffer_store_dwordx2 {v(G0,2)}, v2, s[36:39], s19 offen {SC}")
    a.e(f"buffer_store_dwordx2 {v(G0+2,2)}, v2, s[36:39], s19 offen offset:128 {SC}")
    a.e("s_mov_b64 exec, -1")
    a.label("L_mdone")
    a.e("s_setprio 0")
    a.e("s_waitcnt vmcnt(0)")
    a.e(f"v_mov_b32 v1, {L_CNT+8}")
    a.e("v_mov_b32 v2, 1")
    a.e("s_mov_b64 exec, 1")
    a.e("ds_add_rtn_u32 v2, v1, v2")
    a.e("s_mov_b64 exec, -1")
    a.e("s_waitcnt lgkmcnt(0)")
    a.e("v_readfirstlane_b32 s22, v2")
    a.e("s_cmp_lg_u32 s22, 3")
    a.e("s_cbranch_scc1 L_cvwait")
    flag_write(a, 1, 120); a.vm.pop()
    a.e("s_branch L_cvwait")
    a.label("L_spare")
    a.reset_counters()
    st.n = n0; st.names = st.names[:n0]
    a.e("s_and_b32 s46, s2, 31")
    a.e("s_and_b32 s58, s18, 3")
    a.e("s_lshr_b32 s59, s18, 2")
    a.e("s_lshl_b32 s3, s46, 2")
    a.e("s_add_u32 s3, s3, s59")
    a.e(f"s_mov_b32 s{ROUNDS}, 2")
    a.e(f"s_add_u32 s{ROLE}, s{ROLE}, 2")
    a.e("s_waitcnt lgkmcnt(0)"); a.lgkm = []
    srd(a, 36, 16, WS_TOTAL)
    srd(a, 48, 14, SZ)
    KS = 164
    a.e("s_lshl_b32 s19, s46, 2")
    a.e(f"s_add_u32 s19, s19, s{RHO}")
    a.e("s_lshl_b32 s19, s19, 12")
    a.e("v_lshlrev_b32 v2, 4, v0")
    for i in range(4): a.e(f"buffer_load_dwordx4 {v(KS+4*i,4)}, v2, s[48:51], s19 offen offset:{1024*i}")
    a.e("s_waitcnt vmcnt(4)")
    st("m1")
    tag_make(a)
    prep_compute(a, VD, 64)
    st("m6")
    a.e("v_lshlrev_b32 v2, 7, v0")
    a.e("s_lshl_b32 s19, s46, 3")
    a.e("s_add_u32 s19, s19, s18")
    a.e("s_mul_i32 s19, s19, 7168")
    a.e(f"s_add_u32 s19, s19, {128*4096}")
    setexec(a, (1 << 56) - 1)
    a.e("buffer_load_dword v210, v2, s[48:51], s19 offen")
    a.e("s_mov_b64 exec, -1")
    a.e("s_waitcnt vmcnt(1) lgkmcnt(0)"); a.reset_counters()
    a.e("s_barrier")
    st("b8")
    a.e("s_cmp_lg_u32 s18, 4")
    a.e("s_cbranch_scc1 L_spc")
    flag_write(a, 0, 8)
    a.label("L_spc")
    a.reset_counters()
    a.e(f"s_mov_b32 s100, s{CVK}")
    a.e(f"s_mov_b32 s101, s{CVU}")
    a.e("s_lshl_b32 s19, s59, 16")
    a.e(f"s_add_u32 s{CVK}, s{CVK}, s19")
    a.e(f"s_sub_u32 s{CVK}, s{CVK}, 32768")
    a.e(f"s_add_u32 s{CVU}, s{CVU}, {8*CV_USZ}")
    a.e("s_add_u32 s56, s3, 2")
    a.e("s_cmp_ge_u32 s18, 4")
    a.e("s_cbranch_scc1 L_spk")
    a.e("s_mul_i32 s41, s18, 3")
    a.e("s_sub_u32 s19, s18, 1")
    a.e("s_cmp_ge_u32 s18, 2")
    a.e("s_cselect_b32 s41, s19, s41")
    a.e("s_lshl_b32 s41, s41, 15")
    a.e(f"s_add_u32 s41, s41, {L_RING}")
    kshift(a, KS)
    kwrite(a, KS)
    a.label("L_spk")
    if "P" in OPT:
        a.e("s_cmp_lg_u32 s18, 5")
        a.e("s_cbranch_scc1 L_nct")
        code_touch(a, K, "L_pc1")
        a.label("L_nct")
    if "W" in OPT:
        a.e("s_load_dwordx2 s[20:21], s[0:1], 16")
        a.e("s_lshl_b32 s19, s46, 3")
        a.e("s_add_u32 s19, s19, s18")
        a.e("s_mul_i32 s19, s19, 2688")
        a.e("v_lshlrev_b32 v2, 7, v0")
        a.e("s_waitcnt lgkmcnt(0)")
        srd(a, 52, 20, 576*1152)
        setexec(a, 0x1fffff)
        a.e("buffer_load_dword v211, v2, s[52:55], s19 offen")
        a.e("s_mov_b64 exec, -1")
    st("cvk")
    convu_wait(a)
    st("f1")
    convu_issue(a, 3, CVU, ['s', RHO], "U")
    convu_issue(a, 56, 101, ['s', RHO], "U2")
    a.e("s_waitcnt vmcnt(0) lgkmcnt(0)")
    a.e("s_barrier")
    a.label("L_conv")
    a.reset_counters()
    st("cv0")
    AF, ACC, BF = 16, 80, 112
    a.e("s_load_dwordx2 s[6:7], s[0:1], 64")
    a.e("s_lshl_b32 s20, s3, 12")
    a.e(f"s_mul_i32 s23, s{RHO}, {CV_USZ}")
    a.e(f"s_add_u32 s23, s23, s{CVU}")
    a.e("v_lshlrev_b32 v13, 4, v0")
    a.e(f"v_add_u32 v14, s{CVK}, v13")
    a.e("v_lshrrev_b32 v7, 4, v0")
    a.e("v_bfe_u32 v8, v0, 2, 2")
    a.e("v_and_b32 v9, 3, v0")
    a.e("v_lshlrev_b32 v10, 3, v7")
    a.e("v_add3_u32 v10, v10, v8, v9")
    a.e(f"v_lshl_add_u32 v10, v10, 3, s{CVK}")
    a.e("v_and_b32 v11, 15, v0")
    a.e("v_lshlrev_b32 v12, 4, v7")
    a.e("v_lshlrev_b32 v8, 3, v11")
    a.e("v_sub_u32 v12, v12, v8")
    a.e(f"v_add_u32 v12, {2*508-64*14}, v12")
    a.e("v_add_u32 v12, s23, v12")
    a.e("s_lshr_b32 s21, s3, 1")
    a.e("s_lshl_b32 s21, s21, 2")
    a.e("s_waitcnt lgkmcnt(0)")
    a.e("s_load_dword s24, s[6:7], s21")
    def rdA(kap):
        for hf in range(2):
            a.lds(f"ds_read_b64_tr_b16 {v(AF+4*kap+2*hf,2)}, v10 offset:{8+256*kap+32*hf}", f"A{kap}")
    lams = []
    lo, hi = -1, 14
    while lo <= hi:
        lams.append(hi); hi -= 1
        if lo <= hi: lams.append(lo); lo += 1
    def rdB(i):
        lam = lams[i]; b = BF + 4 * (i % 4)
        for hf in range(2):
            a.lds(f"ds_read_b64 {v(b+2*hf,2)}, v12 offset:{64*(14-lam)+8*hf}", f"B{i}")
    rdA(0); rdB(0); rdB(1)
    for kap in (1, 3, 5, 7): rdA(kap)
    restA = [9, 11, 13, 15, 2, 4, 6, 8, 10, 12, 14]
    seen = set()
    for i, lam in enumerate(lams):
        if i + 2 < len(lams): rdB(i + 2)
        a.wait_lds(f"B{i}")
        b = BF + 4 * (i % 4)
        for tau in range(8):
            kap = 2 * tau - lam
            if kap < 0 or kap > 15: continue
            assert kap not in restA
            a.wait_lds(f"A{kap}")
            w = v(ACC + 4*tau, 4)
            a.e(f"v_mfma_f32_16x16x32_bf16 {w}, {v(AF+4*kap,4)}, {v(b,4)}, {w if tau in seen else 0}")
            seen.add(tau)
            for _ in range(2 if i == 0 else 1):
                if restA: rdA(restA.pop(0))
    st("cv1")
    a.e(f"s_lshl_b32 s21, s{RHO}, 13")
    a.e(f"s_sub_u32 s22, s{CVK}, s21")
    a.e(f"s_lshl_b32 s21, s{RHO}, 11")
    a.e("s_add_u32 s22, s22, s21")
    a.e("v_add_u32 v15, s22, v13")
    for i in range(8): a.e(f"v_mov_b32 v{AF+32+i}, 0")
    for tau in range(8):
        a.lds(f"ds_write_b128 v14, {v(ACC+4*tau,4)} offset:{1024*tau}")
    a.e("v_lshl_add_u32 v13, v11, 2, v7")
    a.e("v_lshlrev_b32 v13, 1, v13")
    a.e(f"v_sub_u32 v13, {2*511-128}, v13")
    a.e(f"s_lshl_b32 s21, s{RHO}, 8")
    a.e(f"s_sub_u32 s21, s{CVU}, s21")
    a.e("v_add_u32 v13, s21, v13")
    a.e("v_lshlrev_b32 v14, 5, v11")
    a.e("v_lshl_add_u32 v14, v7, 3, v14")
    a.e(f"s_lshl_b32 s21, s{RHO}, 10")
    a.e("s_add_u32 s21, s21, s20")
    a.e(f"s_add_u32 s21, s21, {WS_Z}")
    st("cv2")
    group_barrier(a, 1)
    st("cv3")
    a.e("s_lshl_b32 s25, s24, 16")
    a.e("s_and_b32 s24, s24, 0xffff0000")
    a.e("s_bitcmp1_b32 s3, 0")
    a.e("s_cselect_b32 s24, s24, s25")
    for j in range(2):
        for sw in range(4):
            a.lds(f"ds_read_b128 {v(AF+16*j+4*sw,4)}, v15 offset:{8192*sw+1024*j}", f"R{j}")
        for i in range(4):
            a.lds(f"ds_read_u16_d16_hi v{AF+32+4*j+i}, v13 offset:{CV_USZ*i+128*(1-j)}", f"R{j}")
    for j in range(2):
        a.wait_lds(f"R{j}")
        y = AF + 16*j; u = AF + 32 + 4*j
        for i in range(4): a.e(f"v_add_f32 v{y+i}, v{y+i}, v{y+4+i}")
        for i in range(4): a.e(f"v_add_f32 v{y+8+i}, v{y+8+i}, v{y+12+i}")
        for i in range(4): a.e(f"v_mul_f32 v{u+i}, s24, v{u+i}")
        for i in range(4): a.e(f"v_add_f32 v{y+i}, v{y+i}, v{y+8+i}")
        for i in range(4): rnd(a, u+i, u+i)
        for i in range(4): rnd(a, y+i, y+i)
        for i in range(4): a.e(f"v_add_f32 v{y+i}, v{y+i}, v{u+i}")
        a.e(f"v_cvt_pk_bf16_f32 v{y}, v{y}, v{y+1}")
        a.e(f"v_cvt_pk_bf16_f32 v{y+1}, v{y+2}, v{y+3}")
        a.vmem(f"buffer_store_dwordx2 {v(y,2)}, v14, s[36:39], s21 offen offset:{512*j} {SC}")
    a.e(f"s_sub_u32 s{ROUNDS}, s{ROUNDS}, 1")
    a.e(f"s_cmp_eq_u32 s{ROUNDS}, 0")
    a.e("s_cbranch_scc1 L_attn")
    if "E" not in OPT: group_barrier(a, 1)
    a.e("s_add_u32 s3, s3, 2")
    a.e(f"s_mov_b32 s{CVK}, s100")
    a.e(f"s_mov_b32 s{CVU}, s101")
    a.e("s_branch L_conv")
    a.label("L_attn")
    a.reset_counters()
    st("conv")
    a.e("s_and_b32 s22, s2, 7")
    a.e("s_lshl_b32 s22, s22, 1")
    a.e("s_bfe_u32 s19, s2, 0x10003")
    a.e("s_add_u32 s40, s22, s19")
    a.e("s_lshr_b32 s41, s2, 4")
    a.e("s_lshr_b32 s23, s18, 2")
    a.e("s_mul_i32 s24, s40, 9")
    for i in range(3):
        a.e(f"s_sub_i32 s{32+i}, s41, {2-i}")
        a.e(f"s_max_i32 s{32+i}, s{32+i}, 0")
    Q1, Q2 = 8, 12
    KB_ = [16, 22, 122] if 'K' in OPT else [16, 22]; NK = len(KB_); VB_ = [28, 36]; SS = [44, 60]; PP = [76, 84]; OA = 92; NM = 14
    a.e("s_cmp_ge_u32 s18, 4")
    a.e("s_cbranch_scc1 L_nostage")
    a.e("v_lshrrev_b32 v1, 3, v0")
    a.e("v_min_u32 v1, 2, v1")
    a.e("v_mul_u32_u24 v1, 144, v1")
    a.e("v_bfe_u32 v2, v0, 2, 1")
    a.e("v_lshl_add_u32 v1, v2, 3, v1")
    a.e("v_add_u32 v1, s24, v1")
    a.e("v_lshrrev_b32 v1, 5, v1")
    a.e("v_and_b32 v2, 3, v0")
    a.e("v_min_u32 v2, 2, v2")
    a.e("v_sub_u32 v2, s41, v2")
    a.e("v_max_i32 v2, 0, v2")
    a.e("v_cmp_lt_u32 vcc, 6, v1")
    a.e("v_subrev_u32 v3, 7, v1")
    a.e("v_lshrrev_b32 v4, 2, v2")
    a.e("v_cndmask_b32 v1, v1, v3, vcc")
    a.e("v_add_u32 v3, 4, v4")
    a.e("v_cndmask_b32 v4, v4, v3, vcc")
    a.e("v_and_b32 v2, 3, v2")
    a.e("v_lshl_add_u32 v1, v1, 2, v2")
    a.e("v_lshl_add_u32 v1, v1, 3, v4")
    for i in range(3): a.e(f"s_lshl_b32 s{32+i}, s{32+i}, 10")
    a.e("s_add_u32 s26, s24, s18")
    a.e("s_lshl_b32 s26, s26, 14")
    a.e(f"s_mul_i32 s27, s18, {PL}")
    a.e("s_lshl_b32 s28, s18, 10")
    a.e("s_add_u32 s29, s24, 8")
    a.e("s_lshl_b32 s29, s29, 14")
    combos = [(0, 2, L_Q, 1024), (1, 2, L_KP+2048, PL), (2, 2, L_VP+2048, PL), (1, 1, L_KP+1024, PL), (2, 1, L_VP+1024, PL), (1, 0, L_KP, PL), (2, 0, L_VP, PL)]
    for n in range(2):
        so, do = 48 + 2*n, 49 + 2*n
        for jj in range(4):
            ty, i, dst, stride = combos[min(4*n + jj, 6)]
            if jj == 0:
                a.e(f"s_add_u32 s{so}, s{32+i}, {ty*144*16384}")
                a.e(f"s_mov_b32 s{do}, {dst+8*stride}")
            else:
                a.e(f"s_add_u32 s19, s{32+i}, {ty*144*16384}")
                a.e(f"s_cmp_eq_u32 s18, {jj}")
                a.e(f"s_cselect_b32 s{so}, s19, s{so}")
                a.e(f"s_cselect_b32 s{do}, {dst+8*stride}, s{do}")
        a.e(f"s_add_u32 s{so}, s{so}, s29")
    a.e("s_cmp_lg_u32 s18, 0")
    a.e("s_cbranch_scc1 L_w2_o")
    flag_wait(a, 1, 1, 2, 2)
    a.e(f"v_mov_b32 v2, {L_CNT+36}")
    a.e("v_mov_b32 v3, 1")
    a.e("ds_write_b32 v2, v3")
    a.e("s_branch L_w2_j")
    a.label("L_w2_o")
    a.e(f"v_mov_b32 v2, {L_CNT+36}")
    lds_spin(a, 2, 1)
    a.label("L_w2_j")
    a.e(f"s_cmp_eq_u32 s{ROLE}, 0")
    a.e("s_cselect_b32 s19, 8, 4")
    a.e("s_cselect_b32 s20, 4, 8")
    a.e(f"s_add_u32 s19, s19, {L_CNT}")
    a.e("v_mov_b32 v1, s19")
    lds_spin(a, 1, "s20")
    a.e("v_lshlrev_b32 v2, 4, v0")
    for n, (ty, i, dst, stride) in enumerate(combos):
        for q in range(2):
            a.e(f"s_add_u32 m0, s{28 if stride == 1024 else 27}, {dst + 4*q*stride}")
            a.e(f"s_add_u32 s35, s26, s{32+i}")
            a.e(f"s_add_u32 s35, s35, {(ty*144+4*q)*16384}")
            a.vmem(f"buffer_load_dwordx4 v2, s[36:39], s35 offen {SC} lds", "S")
        if n in (2, 5):
            k_ = 0 if n == 2 else 1
            a.e(f"s_mov_b32 m0, s{49+2*k_}")
            a.e("s_nop 0")
            a.vmem(f"buffer_load_dwordx4 v2, s[36:39], s{48+2*k_} offen {SC} lds", "S")
    a.e("v_mov_b32 v5, 0x3f803f80")
    a.e("v_lshlrev_b32 v6, 2, v0")
    a.e("s_lshl_b32 s35, s18, 8")
    a.e("v_add_u32 v6, s35, v6")
    for i in range(3): a.lds(f"ds_write_b32 v6, v5 offset:{L_ONE+1024*i}")
    a.label("L_nostage")
    st("f2")
    a.e("v_and_b32 v1, 31, v0")
    a.e("v_lshrrev_b32 v15, 5, v0")
    a.e("s_lshl_b32 s46, s41, 2")
    a.e(f"s_add_u32 s46, s46, s{RHO}")
    a.e("v_lshlrev_b32 v3, 3, v1")
    a.e("s_mul_i32 s25, s23, 5")
    a.e(f"s_lshl_b32 s35, s{RHO}, 8")
    a.e("s_lshl_b32 s26, s25, 10")
    a.e("s_add_u32 s26, s26, s35")
    a.e(f"s_add_u32 s26, s26, {L_Q}")
    a.e("v_lshl_add_u32 v108, v15, 11, v3")
    a.e("v_add_u32 v108, s26, v108")
    a.e(f"s_add_u32 s26, s35, {L_Q+4096}")
    a.e("v_add_u32 v109, s26, v3")
    a.e(f"s_lshl_b32 s35, s{RHO}, 8")
    a.e(f"s_mul_i32 s25, s25, {PL}")
    a.e("s_add_u32 s26, s25, s35")
    a.e(f"s_add_u32 s26, s26, {L_KP}")
    a.e(f"v_mul_u32_u24 v4, {2*PL}, v15")
    a.e("v_add3_u32 v4, v4, v3, s26")
    a.e(f"v_mul_u32_u24 v5, {5*PL}, v15")
    a.e(f"s_add_u32 s26, s35, {L_KP+4*PL}")
    a.e("v_add3_u32 v3, v5, v3, s26")
    a.e("v_bfe_u32 v5, v0, 2, 2")
    a.e("v_lshl_add_u32 v5, v15, 2, v5")
    a.e("v_lshlrev_b32 v5, 3, v5")
    a.e("v_and_b32 v6, 3, v0")
    a.e(f"v_mul_u32_u24 v7, {PL}, v6")
    a.e(f"s_add_u32 s26, s25, {L_VP}")
    a.e("v_add_u32 v7, s26, v7")
    a.e(f"v_mov_b32 v2, {L_VP+4*PL}")
    m1 = lane_mask(lambda l: (l >> 4) & 1 and (l & 3) == 0); m2 = lane_mask(lambda l: (l >> 4) & 1 and (l & 3) != 0)
    a.e(f"s_mov_b32 s20, 0x{m1 & 0xffffffff:x}"); a.e("s_mov_b32 s21, s20")
    a.e("v_cndmask_b32 v7, v7, v2, s[20:21]")
    a.e(f"v_mov_b32 v2, {L_ONE}")
    a.e(f"s_mov_b32 s20, 0x{m2 & 0xffffffff:x}"); a.e("s_mov_b32 s21, s20")
    a.e("v_cndmask_b32 v7, v7, v2, s[20:21]")
    a.e("v_add3_u32 v5, v5, v7, s35")
    a.e("s_sub_i32 s27, 8, s46")
    a.e("s_max_i32 s27, s27, 0")
    a.e(f"v_mov_b32 v2, {NEGINF}")
    def mask_ops(S, diag):
        ops = []
        for ri in range(16):
            j, i = ri // 4, ri % 4
            md = lane_mask(lambda l: 8*j + 4*(l >> 5) + i <= (l & 31))
            def f(ri=ri, md=md):
                a.e(f"s_mov_b32 s20, 0x{md & 0xffffffff:x}")
                a.e(f"s_mov_b32 s21, 0x{md >> 32:x}")
                if diag: a.e(f"v_cndmask_b32 v{S+ri}, v2, 0, s[20:21]")
                else: a.e(f"v_cndmask_b32 v{S+ri}, 0, v2, s[20:21]")
            ops.append(f)
        return ops
    for f in mask_ops(SS[0], True): f()
    MFR = 144
    for i in range(16): a.e(f"v_xor_b32 v{MFR+i}, v2, v{SS[0]+i}")
    a.e("s_cmp_eq_u32 s23, 0")
    a.e("s_cselect_b32 s48, -1, 0")
    a.e("s_mov_b32 s49, 0")
    a.e("s_cselect_b32 s50, 0, -1")
    a.e("s_mov_b32 s51, 0")
    a.e("s_mov_b32 s42, 0")
    a.e("s_mov_b32 s43, -1")
    a.e("s_load_dwordx2 s[6:7], s[0:1], 16")
    a.e("s_min_u32 s19, s2, 251")
    a.e("s_mul_i32 s56, s19, 2341")
    a.e("s_lshr_b32 s56, s56, 16")
    a.e("s_lshl_b32 s57, s56, 7")
    a.e("v_lshrrev_b32 v110, 3, v0")
    a.e("v_and_b32 v111, 7, v0")
    a.e("v_lshrrev_b32 v112, 1, v110")
    a.e("v_lshlrev_b32 v112, 1, v112")
    a.e("v_xor_b32 v111, v111, v112")
    a.e("v_mul_u32_u24 v110, 1152, v110")
    a.e("v_lshl_add_u32 v110, v111, 4, v110")
    if "Z" in OPT:
        a.e("s_cmp_ge_u32 s18, 4")
        a.e("s_cbranch_scc1 L_nls")
        a.e("s_waitcnt vmcnt(0)")
        a.label("L_nls")
        a.e("s_waitcnt lgkmcnt(0)"); a.reset_counters()
        a.e("s_barrier")
        st("staged")
    else:
        a.e("s_waitcnt vmcnt(0) lgkmcnt(0)"); a.reset_counters()
        a.e("s_barrier")
        st("staged")
        a.e("s_cmp_lg_u32 s18, 0")
        a.e("s_cbranch_scc1 L_nf3")
        flag_write(a, 2, 112); a.vm.pop()
        a.label("L_nf3")

    def rdK(t):
        buf = KB_[t % NK]
        return [lambda: a.lds(f"ds_read_b64 {v(buf,2)}, v4 offset:{256*t}", f"K{t}"),
                lambda: a.lds(f"ds_read_b64 {v(buf+2,2)}, v4 offset:{256*t+PL}", f"K{t}"),
                lambda: a.lds(f"ds_read_b64 {v(buf+4,2)}, v3 offset:{256*t}", f"K{t}")]
    def rdV(t):
        buf = VB_[t % 2]
        return [lambda i=i: a.lds(f"ds_read_b64_tr_b16 {v(buf+2*i,2)}, v5 offset:{256*t+64*i}", f"V{t}") for i in range(4)]
    def qk1(t):
        S = SS[t % 2]; buf = KB_[t % NK]
        a.e(f"v_mfma_f32_32x32x16_bf16 {v(S,16)}, {v(buf,4)}, {v(Q1,4)}, {v(S,16) if t == 8 else v(MFR,16) if t == 0 else 0}")
    def qk2(t):
        S = SS[t % 2]; buf = KB_[t % NK]
        a.e(f"v_mfma_f32_32x32x8_bf16 {v(S,16)}, {v(buf+4,2)}, {v(Q2,2)}, {v(S,16)}")
    def pv(t, h):
        a.e(f"v_mfma_f32_32x32x16_bf16 {v(OA,16)}, {v(VB_[t%2]+4*h,4)}, {v(PP[t%2]+4*h,4)}, {0 if (t == 8 and h == 0) else v(OA,16)}")
    def kill(t, pfx):
        l = f"{pfx}_k{t}"
        a.e(f"s_cmp_lg_u32 s27, {t+1}")
        a.e(f"s_cbranch_scc1 {l}")
        a.e("v_mov_b32 v6, 0xff7f")
        a.e(f"v_cndmask_b32 v{Q2}, v{Q2}, v6, s[42:43]")
        a.label(l)
    a.lds(f"ds_read_b64 {v(Q1,2)}, v108", "Q")
    a.lds(f"ds_read_b64 {v(Q1+2,2)}, v108 offset:1024", "Q")
    a.lds(f"ds_read_b64 {v(Q2,2)}, v109", "Q")
    for f in rdK(8) + rdK(7) + (rdK(6) if NK == 3 else []): f()
    a.e("s_add_u32 s28, s6, s57")
    a.e("s_addc_u32 s29, s7, 0")
    a.e(f"s_sub_u32 s30, {576*1152}, s57")
    a.e("s_mov_b32 s31, 0x00020000")
    a.e(f"s_mul_i32 s58, s18, {8*1152}")
    a.e("s_lshl_b32 s59, s18, 10")
    def wo_dma(j):
        a.e(f"s_add_u32 m0, s59, {L_WO + j*8192}")
        a.e("s_nop 0")
        a.vmem("buffer_load_dwordx4 v110, s[28:31], s58 offen lds", "WO")
        a.e(f"s_add_u32 s58, s58, {64*1152}")
    a.wait_lds("K8")
    a.e(f"v_cndmask_b32 v{Q2}, 0, v{Q2}, s[48:49]")
    a.e(f"v_cndmask_b32 v{Q2+1}, 0, v{Q2+1}, s[50:51]")
    KA = KB_[8 % NK]
    a.e(f"v_dot2_f32_bf16 v6, v{Q1}, v{KA}, 0")
    for i in range(1, 6): a.e(f"v_dot2_f32_bf16 v6, v{Q1+i}, v{KA+i}, v6")
    qk1(8)
    a.e("s_nop 2")
    a.e("v_mov_b32 v7, v6")
    a.e("s_nop 1")
    a.e("v_permlane32_swap_b32 v6, v7")
    a.e("s_nop 1")
    a.e("v_add_f32 v6, v6, v7")
    a.e("v_sub_f32 v6, 0, v6")
    a.e("v_cvt_pk_bf16_f32 v6, v6, 0")
    a.e(f"v_cndmask_b32 v{Q2}, v{Q2}, v6, s[42:43]")
    a.e("s_nop 1")

    def softmax_pass(sub, pfx):
        qk2(8)
        for f in rdV(8): f()
        kill(7, pfx)
        a.e("s_nop 3")
        for t in range(8, -1, -1):
            S = SS[t % 2]; P = PP[t % 2]
            valu = []
            for i in range(16):
                if sub: valu.append(lambda i=i: a.e(f"v_add_f32 v{S+i}, v{S+i}, v{NM}"))
                valu.append(lambda i=i: a.e(f"v_exp_f32 v{S+i}, v{S+i}"))
                if i % 2 == 1 and i >= 3:
                    valu.append(lambda i=i: a.e(f"v_cvt_pk_bf16_f32 v{P+(i-3)//2}, v{S+i-3}, v{S+i-2}"))
            valu.append(lambda: a.e("s_nop 0"))
            valu.append(lambda: a.e(f"v_cvt_pk_bf16_f32 v{P+7}, v{S+14}, v{S+15}"))
            q = len(valu) // 4
            def run(n):
                for _ in range(n):
                    if valu: valu.pop(0)()
            if t > 0:
                a.wait_lds(f"K{t-1}")
                qk1(t - 1)
            else:
                a.e("s_nop 3")
            q1, q2, q3 = {0: (q, q, q), 1: (0, 2*q, 0), 2: (0, 0, 0), 3: (2, 2*q-2, 2), 4: (0, q, 0)}[SCHED]
            if t == 8 and q1 < 6: a.e("s_nop 5")
            run(q1)
            if t > 0: qk2(t - 1)
            if t - NK >= 0:
                for f in rdK(t - NK): f()
            if t > 1:
                kill(t - 2, pfx)
            run(q2)
            if t < 8:
                a.wait_lds(f"V{t+1}")
                pv(t + 1, 0)
            run(q3)
            if t < 8: pv(t + 1, 1)
            if t > 0:
                for f in rdV(t - 1): f()
            if not sub and t == 3 and "B" in OPT: a.e("s_setprio 0")
            if not sub and t == 8 and "Z" in OPT:
                a.wait_vm(None)
                last_arriver(a, 140, 8, 112, "L_nf3")
                flag_write(a, 2, 112); a.vm.pop()
                a.label("L_nf3")
                a.lgkm = []
            if not sub and "W" not in OPT:
                for j_ in {8: (0, 1), 7: (2, 3), 6: (4, 5), 5: (6, 7), 4: (8,)}.get(t, ()): wo_dma(j_)
            run(100)
        a.wait_lds(None)
        a.e("s_nop 0")
        pv(0, 0); pv(0, 1)
        a.e("s_nop 7")
        a.e("s_nop 3")

    if "B" in OPT:
        a.e("s_cmp_lt_u32 s18, 4")
        a.e("s_cbranch_scc1 L_np")
        a.e("s_setprio 1")
        a.label("L_np")
    softmax_pass(False, "sa")
    st("soft")
    a.e(f"v_mov_b32 v6, v{OA+12}")
    for i in range(12): a.e(f"v_fma_f32 v6, v{OA+i}, 0, v6")
    a.e(f"s_mov_b32 s20, {f32(2.0**-30)}")
    a.e(f"s_mov_b32 s21, {f32(2.0**100)}")
    a.e("v_cmp_nlt_f32 vcc, s20, v6")
    a.e("v_cmp_ngt_f32 s[44:45], s21, v6")
    a.e("s_or_b64 vcc, vcc, s[44:45]")
    a.e("s_cbranch_vccnz L_fallback")
    a.label("L_fin")
    P0 = PP[0]
    a.e(f"v_rcp_f32 v6, v{OA+12}")
    a.e("s_nop 0")
    for i in range(12): a.e(f"v_mul_f32 v{OA+i}, v{OA+i}, v6")
    for i in range(6): a.e(f"v_cvt_pk_bf16_f32 v{P0+i}, v{OA+2*i}, v{OA+2*i+1}")
    a.e("v_lshrrev_b32 v6, 4, v1")
    a.e("v_mul_u32_u24 v6, 18432, v6")
    a.e("v_and_b32 v7, 15, v1")
    a.e("v_lshl_add_u32 v6, v7, 4, v6")
    a.e("v_lshl_add_u32 v7, v15, 8, v6")
    a.e("s_mul_i32 s26, s46, 36864")
    a.e(f"s_add_u32 s26, s26, {WS_O}")
    a.e("s_lshl_b32 s19, s40, 1")
    a.e("s_add_u32 s19, s19, s23")
    a.e("s_lshl_b32 s20, s19, 9")
    a.e("s_add_u32 s20, s20, s26")
    a.vmem(f"buffer_store_dwordx4 {v(P0,4)}, v7, s[36:39], s20 offen {SC}")
    a.e("s_lshr_b32 s20, s19, 2")
    a.e("s_lshl_b32 s20, s20, 8")
    a.e("s_and_b32 s21, s19, 3")
    a.e("s_lshl_b32 s21, s21, 2")
    a.e("s_add_u32 s20, s20, s21")
    a.e("s_add_u32 s20, s20, s26")
    a.e("s_add_u32 s20, s20, 16384")
    a.e("s_cmp_eq_u32 s23, 0")
    a.e("s_cbranch_scc1 L_ev")
    a.e(f"v_mov_b32 v{P0+4}, v{P0+5}")
    a.label("L_ev")
    setexec(a, 0xffffffff)
    a.vmem(f"buffer_store_dword v{P0+4}, v6, s[36:39], s20 offen {SC}")
    a.e("s_mov_b64 exec, -1")
    a.e("s_load_dwordx2 s[4:5], s[0:1], 0")
    a.e("s_load_dwordx2 s[8:9], s[0:1], 80")
    a.e("s_mul_i32 s19, s56, 28")
    a.e("s_sub_u32 s19, s2, s19")
    a.e("s_mul_i32 s21, s19, 5")
    a.e("s_lshl_b32 s22, s19, 2")
    a.e("s_add_u32 s22, s22, 16")
    a.e("s_cmp_lt_u32 s19, 16")
    a.e("s_cselect_b32 s19, s21, s22")
    a.e("s_cselect_b32 s43, 5, 4")
    a.e("s_cmp_ge_u32 s2, 252")
    a.e("s_cselect_b32 s43, 0, s43")
    a.e("s_add_u32 s21, s19, s18")
    OF, ACC, WF = 16, 88, 104
    XE, GE = 136, 144
    a.e("s_min_u32 s21, s21, 127")
    a.e("v_and_b32 v2, 15, v0")
    a.e("v_lshrrev_b32 v3, 4, v0")
    a.e("s_lshl_b32 s40, s21, 4")
    a.e("v_add_u32 v4, s40, v2")
    a.e("v_mul_u32_u24 v5, 1152, v4")
    a.e("v_lshl_add_u32 v5, v3, 3, v5")
    a.e("s_waitcnt lgkmcnt(0)")
    srd(a, 24, 4, SZ)
    srd(a, 32, 8, SZ)
    a.e("s_lshl_b32 s19, s56, 6")
    a.e("v_add_u32 v6, s19, v0")
    a.e("v_lshrrev_b32 v7, 2, v6")
    a.e("v_add_u32 v7, 224, v7")
    a.e("v_subrev_u32 v8, 128, v6")
    a.e("v_lshrrev_b32 v8, 1, v8")
    a.e("v_cmp_gt_u32 vcc, 128, v6")
    a.e("s_lshr_b32 s19, s40, 9")
    a.e("s_bfe_u32 s20, s40, 0x20007")
    a.e("s_lshl_b32 s20, s20, 3")
    a.e("s_add_u32 s19, s19, s20")
    a.e("s_add_u32 s19, s19, 196")
    a.e("v_cndmask_b32 v6, v8, v7, vcc")
    a.e("v_mov_b32 v7, s19")
    a.e("s_mov_b32 s44, 0xaaaaaaaa")
    a.e("s_mov_b32 s45, 0xaaaaaaaa")
    a.e("v_cndmask_b32 v6, v6, v7, s[44:45]")
    a.e("v_lshlrev_b32 v7, 7, v6")
    a.e(f"s_mov_b32 s22, {WS_F + 16}")
    a.e("buffer_load_dwordx2 v[8:9], v7, s[36:39], s22 offen sc0 sc1")
    a.e(f"v_mov_b32 v10, {L_CNT+32}")
    a.e("v_mov_b32 v11, 1")
    if "W" in OPT:
        a.reset_counters()
        for j_ in range(9): wo_dma(j_)
        a.e("s_waitcnt vmcnt(9)"); a.reset_counters()
    else:
        a.e("s_waitcnt vmcnt(0)"); a.reset_counters()
    a.e("s_mov_b64 exec, 1")
    a.e("ds_add_rtn_u32 v11, v10, v11")
    a.e("s_mov_b64 exec, -1")
    a.e("s_waitcnt lgkmcnt(0)")
    a.e("v_readfirstlane_b32 s22, v11")
    a.e("s_cmp_lg_u32 s22, 7")
    a.e("s_cbranch_scc1 L_nf4")
    flag_write(a, 3, 12); a.vm.pop()
    a.label("L_nf4")
    st("ost")
    if "W" in OPT:
        a.e(f"v_mov_b32 v10, {L_CNT}")
        a.e("v_mov_b32 v11, 1")
        a.e("s_waitcnt vmcnt(0)")
        lds_add(a, 10, 144)
    a.e("s_cmp_lt_u32 s18, s43")
    a.e("s_cbranch_scc1 L_g2")
    a.e("s_cmp_lg_u32 s2, 255")
    a.e("s_cbranch_scc1 L_end")
    a.e("s_cmp_lg_u32 s18, 0")
    a.e("s_cbranch_scc1 L_end")
    for q in range(4):
        a.e(f"v_add_u32 v6, {64*q}, v0")
        flag_wait(a, 3, 6, 8, 8)
    a.e(f"v_mov_b32 v6, {WS_E}")
    a.e(f"v_mov_b32 v8, s{TAG}")
    a.e(f"v_mov_b32 v9, s{TAG+1}")
    a.e("s_mov_b64 exec, 1")
    a.e("buffer_store_dwordx2 v[8:9], v6, s[36:39], 0 offen sc0 sc1")
    a.e("s_endpgm")
    a.label("L_g2")
    for mt in range(4):
        a.vmem(f"buffer_load_dwordx2 {v(XE+2*mt,2)}, v5, s[24:27], s57 offen offset:{32*mt}", "X")
    a.e(f"v_cmp_ne_u64 vcc, s[{TAG}:{TAG+1}], v[8:9]")
    a.e("s_cbranch_vccz L_f3ok")
    flag_wait(a, 2, 6, 8)
    a.label("L_f3ok")
    a.e("v_lshrrev_b32 v6, 1, v0")
    a.e("v_lshlrev_b32 v6, 12, v6")
    a.e("v_and_b32 v8, 1, v0")
    a.e("v_lshl_add_u32 v6, v8, 4, v6")
    a.e("s_lshl_b32 s45, s56, 18")
    a.e("s_lshl_b32 s46, s21, 5")
    a.e("s_add_u32 s45, s45, s46")
    a.e(f"s_add_u32 s45, s45, {WS_Z}")
    a.e("s_lshl_b32 s44, s18, 11")
    for q in range(2):
        a.e(f"s_add_u32 m0, s44, {q*1024}")
        a.e("s_nop 0")
        a.vmem(f"buffer_load_dwordx4 v6, s[36:39], s45 offen {SC} lds", "X")
        a.e(f"s_add_u32 s45, s45, {32*4096}")
    a.e("v_lshlrev_b32 v6, 2, v4")
    a.e(f"s_mov_b32 s45, {WS_G}")
    a.vmem(f"buffer_load_dword v{GE}, v6, s[36:39], s45 offen {SC}", "X")
    a.e("v_bfe_u32 v6, v0, 2, 2")
    a.e("v_and_b32 v11, 3, v0")
    a.e("v_lshrrev_b32 v8, 1, v3")
    a.e("v_mul_u32_u24 v8, 20, v8")
    a.e("v_and_b32 v9, 1, v3")
    a.e("v_lshl_add_u32 v8, v9, 2, v8")
    a.e("v_add_u32 v8, v8, v6")
    a.e("v_bfe_u32 v9, v8, 1, 2")
    a.e("v_lshlrev_b32 v8, 7, v8")
    a.e("v_lshl_add_u32 v8, v11, 3, v8")
    a.e(f"v_add_u32 v8, {L_WO}, v8")
    MA = 148
    for mt in range(4):
        a.e(f"v_xor_b32 v10, {mt}, v9")
        a.e(f"v_lshl_add_u32 v{MA+mt}, v10, 5, v8")
    a.e("v_mul_u32_u24 v8, 72, v3")
    a.e("v_add3_u32 v8, v8, v6, 16")
    a.e("v_bfe_u32 v9, v8, 1, 2")
    a.e("v_lshlrev_b32 v8, 7, v8")
    a.e("v_lshl_add_u32 v8, v11, 3, v8")
    a.e(f"v_add_u32 v8, {L_WO}, v8")
    TA_ = 152
    for mt in range(4):
        a.e(f"v_xor_b32 v10, {mt}, v9")
        a.e(f"v_lshl_add_u32 v{TA_+mt}, v10, 5, v8")
    a.e("v_lshl_add_u32 v8, v3, 2, v6")
    a.e("v_lshlrev_b32 v8, 5, v8")
    a.e("v_lshl_add_u32 v8, v11, 3, v8")
    a.e("v_add_u32 v8, s44, v8")
    BP, ZE, T = 156, 172, 180
    a.wait_vm(None)
    for mt in range(4):
        a.lds(f"ds_read_b64_tr_b16 {v(ZE+2*mt,2)}, v8 offset:{512*mt}", "Z")
    a.e(f"v_sub_f32 v9, 1.0, v{GE}")
    rnd(a, 9, 9)
    a.e("s_mov_b32 s42, 0xffff0000")
    a.wait_lds("Z")
    for mt in range(4):
        B = BP + 4*mt
        for i in range(4):
            op = "v_lshlrev_b32 v%d, 16, v%d" if i % 2 == 0 else "v_and_b32 v%d, s42, v%d"
            a.e(op % (B+i, XE+2*mt+i//2))
            a.e(op % (T+i, ZE+2*mt+i//2))
        for i in range(4): a.e(f"v_mul_f32 v{B+i}, v{B+i}, v{T+i}")
        for i in range(4): rnd(a, B+i, B+i)
        for i in range(4): a.e(f"v_mul_f32 v{B+i}, v{B+i}, v9")
        for i in range(4): rnd(a, B+i, B+i)
    def rd(ks):
        b = WF + 16 * (ks % 2)
        for mt in range(4):
            for hf in range(2):
                if ks < 16:
                    kk = ks if ks < 12 else ks - 12
                    ar = MA + (mt ^ (2 * (ks & 1))); off = (36*kk + 8*hf) * 128
                else:
                    ar = TA_ + (mt ^ (2 * hf)); off = (288*(ks-16) + 36*hf) * 128
                a.lds(f"ds_read_b64_tr_b16 {v(b+4*mt+2*hf,2)}, v{ar} offset:{off}", f"F{ks}")
    a.e(f"v_mov_b32 v10, {L_CNT+(144 if 'W' in OPT else 32)}")
    lds_spin(a, 10, 8)
    rd(0)
    a.e("s_lshr_b32 s19, s21, 3")
    a.e("s_lshl_b32 s19, s19, 4")
    a.e("v_add_u32 v6, s19, v2")
    a.e("s_add_u32 s19, s21, s43")
    a.e("s_sub_u32 s19, s19, 1")
    a.e("s_lshr_b32 s19, s19, 3")
    a.e("s_lshl_b32 s19, s19, 4")
    a.e("v_add_u32 v7, s19, v2")
    a.e("v_cndmask_b32 v6, v6, v7, s[44:45]") if False else None
    a.e("s_mov_b32 s46, 0")
    a.e("s_mov_b32 s47, -1")
    a.e("v_cndmask_b32 v6, v6, v7, s[46:47]")
    a.e("s_cmp_lg_u32 s18, 0")
    a.e("s_cbranch_scc1 L_w4_o")
    flag_wait(a, 3, 6, 10, 2)
    a.e(f"v_mov_b32 v10, {L_CNT+40}")
    a.e("v_mov_b32 v11, 1")
    a.e("ds_write_b32 v10, v11")
    a.e("s_branch L_w4_j")
    a.label("L_w4_o")
    a.e(f"v_mov_b32 v10, {L_CNT+40}")
    lds_spin(a, 10, 1)
    a.label("L_w4_j")
    a.lgkm.append(None)
    st("f4")
    a.e("v_lshlrev_b32 v7, 4, v0")
    a.e("s_mul_i32 s22, s21, 18432")
    a.e(f"s_add_u32 s22, s22, {WS_O}")
    for ks in range(18):
        a.vmem(f"buffer_load_dwordx4 {v(OF+4*ks,4)}, v7, s[36:39], s22 offen offset:{1024*(ks%4)} {SC}", f"O{ks}")
        if ks % 4 == 3: a.e("s_add_u32 s22, s22, 4096")
    for ks in range(18):
        if ks + 1 == 12:
            for mt in range(4): a.e(f"v_add_u32 v{MA+mt}, {12*36*128}, v{MA+mt}")
        if ks + 1 < 18: rd(ks + 1)
        a.wait_vm(f"O{ks}")
        a.wait_lds(f"F{ks}")
        b = WF + 16 * (ks % 2)
        for mt in range(4):
            acc = v(ACC + 4*mt, 4)
            a.e(f"v_mfma_f32_16x16x32_bf16 {acc}, {v(b+4*mt,4)}, {v(OF+4*ks,4)}, {acc if ks else 0}")
    a.e("s_nop 4")
    for mt in range(4):
        ac = ACC + 4*mt
        for i in range(4): rnd(a, ac+i, ac+i)
        for i in range(4): a.e(f"v_mul_f32 v{ac+i}, v{ac+i}, v{GE}")
        for i in range(4): rnd(a, ac+i, ac+i)
        for i in range(4): a.e(f"v_add_f32 v{ac+i}, v{ac+i}, v{BP+4*mt+i}")
        a.e(f"v_cvt_pk_bf16_f32 v{ac}, v{ac}, v{ac+1}")
        a.e(f"v_cvt_pk_bf16_f32 v{ac+1}, v{ac+2}, v{ac+3}")
        a.vmem(f"buffer_store_dwordx2 {v(ac,2)}, v5, s[32:35], s57 offen offset:{32*mt}")
    st("end"); st.real("rt1"); st.flush(16, 18, 0)
    a.label("L_end")
    a.e("s_endpgm")
    a.label("L_fallback")
    a.reset_counters()
    a.e(f"v_cndmask_b32 v{Q2}, v{Q2}, 0, s[42:43]")
    a.e(f"v_mov_b32 v{NM}, {NEGINF}")
    for t in range(8, -1, -1):
        for f in rdK(t): f()
        if t == 8:
            for f in mask_ops(SS[0], True): f()
        if t < 8: kill(t, "sm")
        a.wait_lds(None)
        a.e("s_nop 1")
        qk1(t); qk2(t)
        a.e("s_nop 7"); a.e("s_nop 3")
        S = SS[t % 2]
        for i in range(8): a.e(f"v_max3_f32 v{NM}, v{S+2*i}, v{S+2*i+1}, v{NM}")
    for f in rdK(8) + rdK(7) + (rdK(6) if NK == 3 else []): f()
    a.e(f"v_cndmask_b32 v{Q2}, v{Q2}, 0, s[42:43]")
    a.e(f"v_mov_b32 v7, v{NM}")
    a.e("s_nop 1")
    a.e(f"v_permlane32_swap_b32 v{NM}, v7")
    a.e("s_nop 1")
    a.e(f"v_max_f32 v{NM}, v{NM}, v7")
    a.e(f"v_sub_f32 v{NM}, 0, v{NM}")
    for f in mask_ops(SS[0], True): f()
    a.wait_lds("K8")
    a.e("s_nop 1")
    qk1(8)
    softmax_pass(True, "sb")
    a.e("s_branch L_fin")
    a.label("L_codeend")

def main(path):
    a = Asm()
    hdr = open(f"cdna_kernels/{NAME}.s.ref").read().split("\n")
    head = [l for l in hdr if l.startswith(";") and "@launch" not in l and "Override" not in l and "grid=ceil" not in l]
    for l in head: a.raw(l)
    a.raw(f"; @launch grid=(256,1,1) block=(512,1,1) lds={LDS_TOTAL}")
    for l in """
; ---------------------------------------------------------------------------------------------------------
; One persistent launch, 256 workgroups x 8 waves (one per CU, all co-resident: 160 KiB LDS each).
;  phase A  QKV GEMM (224 WGs, 128x128 tiles, LDS-DMA ring, 4 loader + 4 MFMA waves); gate logit rides along as
;           an extra weight column; u = shiftconv(k)*v is prepared wave-wise and stored phase-split/reversed.
;  phase B  long causal conv as Toeplitz MFMA (one channel per 4 waves, transposing LDS reads build the
;           Toeplitz fragments from 4 shifted copies of the filter).
;  phase C  sliding-window attention, S^T = K Q^T so that P feeds the PV MFMA without shuffles; the row sum comes
;           from a ones column of V.  Softmax shift: the row's own diagonal score s_ii (always inside the window) is
;           subtracted through a spare K slot; a run-time check (sum and outputs finite, sum in [2^-30, 2^100])
;           sends the wave to L_fallback, which recomputes with the true row maximum.
;  phase D  out projection + gate mix.
; Hand-offs between workgroups: write-through (sc1) stores, drained, then a flag word carrying this launch's tag;
; readers poll with sc1 loads and read with sc1 loads.  The tag is (epoch word found in d_ws)+1; the epoch is
; advanced once every workgroup has raised its last flag.  Every spin is bounded.
; ---------------------------------------------------------------------------------------------------------""".strip().split("\n"): a.raw(l)
    a.raw('.amdgcn_target "amdgcn-amd-amdhsa--gfx950"')
    a.raw(".text")
    gen(a)
    a.raw('.section .rodata,"a"')
    a.raw(kernel_desc(NAME + "_kernel", 216))
    open(path, "w").write(a.text())

if __name__ == "__main__":
    if len(sys.argv) > 2 and sys.argv[2] == "stamps":
        asmlib.STAMP_ON = True
        asmlib.STAMP_FILTER = list((sys.argv[3] if len(sys.argv) > 3 else "b8,cvk,f1,cv1,cv3,conv,f2,staged,soft,ost,f4,end").split(","))
    main(sys.argv[1] if len(sys.argv) > 1 else f"fused.s")
```
